```python
import torch

def _softmax(x, axis=-1):
    return torch.softmax(x, dim=axis)
def _gelu(x):
    return torch.nn.functional.gelu(x, approximate="tanh")
def _silu(x):
    return torch.nn.functional.silu(x)
def _sigmoid(x):
    return torch.sigmoid(x)
def _layernorm(x, axis=-1, eps=1e-5):
    m = x.mean(dim=axis, keepdim=True)
    v = x.var(dim=axis, keepdim=True, unbiased=False)
    return (x - m) / torch.sqrt(v + eps)
def _scatter_add(tgt, idx, src, axis=0):
    return tgt.clone().index_add_(axis, idx, src)
def _segment_sum(src, seg, n):
    out = torch.zeros((n,) + src.shape[1:], dtype=src.dtype)
    return out.index_add_(0, seg, src)
def _pad(x, pw):
    flat = tuple(v for pair in reversed(pw) for v in pair)
    return torch.nn.functional.pad(x, flat)

kernel_name = 'gated_mix__ssm_conv_s5__dense_activation_relu__prompt'

def setup_inputs():

    _w = (lambda a: (lambda t: t.to(torch.bfloat16) if t.is_floating_point() else t)(torch.as_tensor(a)))
    def _A_setup():
        B, S, D = 1, 2048, 640
        P = D
        Lambda_re = -0.5 * (lambda _x: torch.exp(torch.as_tensor(_x)))((lambda *s: torch.randn(*s, dtype=torch.bfloat16) * 0.8)(P))
        Lambda_im = (lambda *s: torch.randn(*s, dtype=torch.bfloat16) * 0.8)(P) * 1.0
        B_re = (lambda *s: torch.randn(*s, dtype=torch.bfloat16) * 0.8)(P, D) * (D ** -0.5)
        B_im = (lambda *s: torch.randn(*s, dtype=torch.bfloat16) * 0.8)(P, D) * (D ** -0.5)
        C_re = (lambda *s: torch.randn(*s, dtype=torch.bfloat16) * 0.8)(D, P) * (P ** -0.5)
        C_im = (lambda *s: torch.randn(*s, dtype=torch.bfloat16) * 0.8)(D, P) * (P ** -0.5)
        log_dt = (lambda *s: torch.randn(*s, dtype=torch.bfloat16) * 0.8)(P) * 0.3 - 2.0
        Dskip = (lambda *s: torch.randn(*s, dtype=torch.bfloat16) * 0.8)(D)
        return {
            "x": _w((lambda *s: torch.randn(*s, dtype=torch.bfloat16) * 0.05)(B, S, D)),
            "Lambda_re": _w(Lambda_re),
            "Lambda_im": _w(Lambda_im),
            "B_re": _w(B_re),
            "B_im": _w(B_im),
            "C_re": _w(C_re),
            "C_im": _w(C_im),
            "log_dt": _w(log_dt),
            "Dskip": _w(Dskip),
        }
    _A_in = _A_setup()

    def _B_setup():
        B, S, D, Dff = 1, 2048, 640, 1536
        return {
            "x": _w((lambda *s: torch.randn(*s, dtype=torch.bfloat16) * 0.05)(B, S, D)),
            "w1": _w((lambda *s: torch.randn(*s, dtype=torch.bfloat16) * 0.05)(D, Dff)),
            "w2": _w((lambda *s: torch.randn(*s, dtype=torch.bfloat16) * 0.05)(Dff, D)),
        }
    _B_in = _B_setup()

    return {
        "A_x": _A_in["x"],
        "A_Lambda_re": _A_in["Lambda_re"],
        "A_Lambda_im": _A_in["Lambda_im"],
        "A_B_re": _A_in["B_re"],
        "A_B_im": _A_in["B_im"],
        "A_C_re": _A_in["C_re"],
        "A_C_im": _A_in["C_im"],
        "A_log_dt": _A_in["log_dt"],
        "A_Dskip": _A_in["Dskip"],
        "B_x": _B_in["x"],
        "B_w1": _B_in["w1"],
        "B_w2": _B_in["w2"],
        "gate_w": _w((lambda *s: torch.randn(*s, dtype=torch.bfloat16) * 0.05)(640) * 16.0),
    }

def reference(A_x, A_Lambda_re, A_Lambda_im, A_B_re, A_B_im, A_C_re, A_C_im, A_log_dt, A_Dskip, B_x, B_w1, B_w2, gate_w):
    def _A_ref(x, Lambda_re, Lambda_im, B_re, B_im, C_re, C_im, log_dt, Dskip):
        Bsz, L, H = x.shape
        Lam = Lambda_re + 1j * Lambda_im
        Bmat = B_re + 1j * B_im
        Cmat = C_re + 1j * C_im
        dt = torch.exp(log_dt)
        Lam_bar = torch.exp(dt * Lam)
        B_bar = ((Lam_bar - 1.0) / Lam)[:, None] * Bmat
        Bu = torch.einsum("bld,pd->blp", x + 0j, B_bar)
        h = torch.zeros_like(Bu[:, 0, :])
        hs = []
        for t in range(L):
            h = Lam_bar[None, :] * h + Bu[:, t, :]
            hs.append(h)
        hseq = torch.stack(hs, 1)
        y = 2.0 * torch.einsum("blp,dp->bld", hseq, Cmat).real + x * Dskip[None, None, :]
        return y

    def _B_ref(x, w1, w2):
        h = torch.einsum("bsd,df->bsf", x, w1)
        zero = torch.zeros_like(h)
        h = torch.maximum(h, zero)
        return torch.einsum("bsf,fd->bsd", h, w2)

    x = A_x
    g = _sigmoid((x * gate_w).sum(-1, keepdims=True))
    a = _A_ref(x, A_Lambda_re, A_Lambda_im, A_B_re, A_B_im, A_C_re, A_C_im, A_log_dt, A_Dskip)
    b = _B_ref(x, B_w1, B_w2)
    return g * a + (1 - g) * b
```

```python
import re

REG = re.compile(r'^(-|\|)?([vas])(\d+)\|?$')
RNG = re.compile(r'^(-|\|)?([vas])\[(\d+):(\d+)\]\|?$')

TRANS = ('v_exp_f32', 'v_log_f32', 'v_rcp_f32', 'v_rsq_f32', 'v_sqrt_f32', 'v_sin_f32', 'v_cos_f32')


def regs_of(tok):
    tok = tok.strip()
    m = REG.match(tok)
    if m:
        return [(m.group(2), int(m.group(3)))]
    m = RNG.match(tok)
    if m:
        return [(m.group(2), i) for i in range(int(m.group(3)), int(m.group(4)) + 1)]
    if tok == 'vcc':
        return [('s', 'vcc')]
    if tok == 'exec':
        return [('s', 'exec')]
    if tok == 'm0':
        return [('s', 'm0')]
    return []


def split_ops(s):
    out, depth, cur = [], 0, ''
    for ch in s:
        if ch in '[(':
            depth += 1
        if ch in '])':
            depth -= 1
        if ch == ',' and depth == 0:
            out.append(cur.strip())
            cur = ''
        else:
            cur += ch
    if cur.strip():
        out.append(cur.strip())
    return out


class Ins:
    __slots__ = ('text', 'mn', 'kind', 'rd', 'wr', 'passes', 'lds_dma', 'wide_store', 'seq', 'cd', 'a_b', 'c',
                 'target', 'trans', 'note')

    def __init__(self, text):
        self.text = text
        self.seq = None
        self.passes = 0
        self.lds_dma = False
        self.wide_store = False
        self.trans = False
        self.target = None
        self.c = []
        self.a_b = []
        self.note = None
        parts = text.split(None, 1)
        mn = parts[0]
        self.mn = mn
        rest = parts[1] if len(parts) > 1 else ''
        ops = split_ops(rest)
        mods = []
        if ops:
            last = ops[-1].split()
            ops[-1] = last[0]
            mods = last[1:]
        R = [regs_of(o) for o in ops]
        flat = lambda L: [r for x in L for r in x]
        rd, wr = [], []
        if mn.startswith('v_mfma'):
            self.kind = 'mfma'
            self.passes = 8 if '32x32x16' in mn else 4
            wr = R[0]
            self.a_b = R[1] + R[2]
            self.c = R[3]
            rd = self.a_b + self.c
        elif mn.startswith('ds_read'):
            self.kind = 'lds'
            wr = R[0]
            rd = R[1]
        elif mn.startswith('ds_write'):
            self.kind = 'lds'
            rd = flat(R)
        elif mn.startswith('buffer_load') or mn.startswith('global_load'):
            self.kind = 'vm'
            if 'lds' in mods:
                self.lds_dma = True
                rd = flat(R) + [('s', 'm0')]
            else:
                wr = R[0]
                rd = flat(R[1:])
        elif mn.startswith('buffer_store') or mn.startswith('global_store'):
            self.kind = 'vm'
            rd = flat(R)
            self.wide_store = mn.endswith('x4') or mn.endswith('x3')
            if self.wide_store:
                self.c = R[0] if mn.startswith('buffer') else R[1]
        elif mn.startswith('v_'):
            self.kind = 'valu'
            if mn.startswith('v_permlane') and 'swap' in mn:
                wr = flat(R)
                rd = flat(R)
            elif mn.startswith('v_cmp'):
                wr = R[0]
                rd = flat(R[1:])
            elif mn.startswith('v_fmac') or mn.startswith('v_dot2c'):
                wr = R[0]
                rd = flat(R)
            elif mn.startswith('v_cndmask') and len(ops) == 3:
                wr = R[0]
                rd = flat(R[1:]) + [('s', 'vcc')]
            elif mn.startswith('v_add_co') or mn.startswith('v_sub_co'):
                wr = R[0] + R[1]
                rd = flat(R[2:])
            elif mn.startswith('v_addc_co') or mn.startswith('v_subb_co'):
                wr = R[0] + R[1]
                rd = flat(R[2:])
            else:
                wr = R[0]
                rd = flat(R[1:])
            self.trans = mn in TRANS or any(mn == t + '_e32' for t in TRANS)
        elif mn.startswith('s_load') or mn in ('s_memtime', 's_memrealtime'):
            self.kind = 'smem'
            wr = R[0]
            rd = flat(R[1:])
        elif mn in ('s_waitcnt', 's_nop', 's_barrier', 's_endpgm', 's_branch', 's_setprio', 's_sleep') or mn.startswith('s_cbranch'):
            self.kind = 'ctl'
            if mn in ('s_cbranch_vccz', 's_cbranch_vccnz'):
                rd = [('s', 'vcc')]
        elif mn.startswith('s_cmp') or mn.startswith('s_bitcmp'):
            self.kind = 'salu'
            rd = flat(R)
        elif mn.startswith('s_'):
            self.kind = 'salu'
            wr = R[0]
            rd = flat(R[1:])
            if 'saveexec' in mn:
                wr = wr + [('s', 'exec')]
                rd = rd + [('s', 'exec')]
            if mn in ('s_addk_i32', 's_mulk_i32'):
                rd = rd + R[0]
        else:
            raise ValueError('unknown mnemonic ' + text)
        self.rd = set(rd)
        self.wr = set(wr)


class WaitVM:
    def __init__(self, target):
        self.target = target


class WaitLG:
    def __init__(self, target):
        self.target = target


class Asm:
    def __init__(self):
        self.lines = []
        self.hist = []
        self.vm_seq = 0
        self.lg_seq = 0
        self.vm_done = 0
        self.lg_done = 0
        self.vm_pending = {}
        self.lg_pending = {}
        self.smem_pending = set()
        self.n_ins = 0
        self.stats = {}
        self.nop_states = 0

    def snapshot(self):
        return dict(hist=[list(x) for x in self.hist], vm_seq=self.vm_seq, lg_seq=self.lg_seq, vm_done=self.vm_done,
                    lg_done=self.lg_done, vm_pending=dict(self.vm_pending), lg_pending=dict(self.lg_pending),
                    smem_pending=set(self.smem_pending))

    def restore(self, s):
        self.hist = [list(x) for x in s['hist']]
        self.vm_seq, self.lg_seq, self.vm_done, self.lg_done = s['vm_seq'], s['lg_seq'], s['vm_done'], s['lg_done']
        self.vm_pending = dict(s['vm_pending'])
        self.lg_pending = dict(s['lg_pending'])
        self.smem_pending = set(s['smem_pending'])

    def raw(self, text):
        self.lines.append(text)

    def comment(self, text):
        self.lines.append('    ; ' + text)

    def label(self, name):
        self.lines.append(name + ':')

    def _advance(self, states):
        for h in self.hist:
            h[1] += states
        self.hist = [h for h in self.hist if h[1] <= 24]

    def _out(self, text, states=1, ins=None):
        self.lines.append('    ' + text)
        self.n_ins += 1
        self._advance(states)
        if ins is not None:
            self.hist.append([ins, 0])

    def nop(self, states):
        while states > 0:
            n = min(states, 16)
            self._out('s_nop %d' % (n - 1), n)
            self.nop_states += n
            states -= n

    def waitcnt(self, vm=None, lg=None):
        parts = []
        if vm is not None:
            vm = min(vm, 63)
            parts.append('vmcnt(%d)' % vm)
            self.vm_done = max(self.vm_done, self.vm_seq - vm)
            self.vm_pending = {r: s for r, s in self.vm_pending.items() if s > self.vm_done}
        if lg is not None:
            lg = min(lg, 15)
            parts.append('lgkmcnt(%d)' % lg)
            self.lg_done = max(self.lg_done, self.lg_seq - lg)
            self.lg_pending = {r: s for r, s in self.lg_pending.items() if s > self.lg_done}
            if lg == 0:
                self.smem_pending = set()
        self._out('s_waitcnt ' + ' '.join(parts))

    def drain(self):
        self.waitcnt(vm=0, lg=0)

    def _need_wait(self, ins):
        touched = ins.rd | ins.wr
        vm_need = max([self.vm_pending[r] for r in touched if r in self.vm_pending], default=0)
        lg_need = max([self.lg_pending[r] for r in touched if r in self.lg_pending], default=0)
        sm = any(r in self.smem_pending for r in touched)
        vm = lg = None
        if vm_need > self.vm_done:
            vm = self.vm_seq - vm_need
        if sm:
            lg = 0
        elif lg_need > self.lg_done:
            lg = self.lg_seq - lg_need
            if self.smem_pending:
                lg = 0
        if vm is not None or lg is not None:
            self.waitcnt(vm, lg)

    def _hazard(self, ins):
        need = 0
        for p, dist in self.hist:
            req = 0
            if p.kind == 'valu':
                vw = {r for r in p.wr if r[0] in 'va'}
                sw = {r for r in p.wr if r[0] == 's'}
                if ins.kind == 'mfma' and vw & ins.rd:
                    req = max(req, 2)
                if ins.kind == 'valu':
                    if ins.mn.startswith('v_permlane') and vw & ins.rd:
                        req = max(req, 2)
                    if ins.mn.startswith('v_readfirstlane') or ins.mn.startswith('v_readlane'):
                        if vw & ins.rd:
                            req = max(req, 1)
                        if sw & ins.rd:
                            req = max(req, 4)
                    if 'dpp' in ins.text or 'row_' in ins.text or 'quad_perm' in ins.text:
                        if vw & ins.rd:
                            req = max(req, 2)
                    if sw & ins.rd:
                        req = max(req, 2)
                    if p.trans and vw & ins.rd:
                        req = max(req, 1)
                if ins.kind == 'vm' and sw & ins.rd:
                    req = max(req, 5)
                if ins.kind in ('salu', 'ctl', 'smem') and sw & ins.rd:
                    req = max(req, 4)
            elif p.kind == 'mfma':
                big = p.passes == 8
                if ins.kind == 'mfma':
                    if p.wr & set(ins.a_b):
                        req = max(req, 12 if big else 8)
                    if p.wr & set(ins.c):
                        same = (p.wr == set(ins.c)) and p.passes == ins.passes
                        if not same:
                            req = max(req, 10 if big else 6)
                    elif p.wr & ins.wr:
                        req = max(req, 12 if big else 8)
                elif ins.kind in ('valu', 'vm', 'lds'):
                    if p.wr & (ins.rd | ins.wr):
                        req = max(req, 12 if big else 8)
                    if ins.kind == 'valu' and set(p.c) & ins.wr:
                        req = max(req, 7 if big else 3)
            elif p.kind == 'salu':
                if ins.lds_dma and ('s', 'm0') in p.wr:
                    req = max(req, 1)
            elif p.kind == 'vm' and p.wide_store:
                if set(p.c) & ins.wr:
                    req = max(req, 2)
            if req > dist:
                need = max(need, req - dist)
        if need:
            self.nop(need)

    def put(self, ins):
        if isinstance(ins, str):
            ins = Ins(ins)
        if isinstance(ins, WaitVM):
            t = ins.target
            assert t.seq is not None, 'wait on an un-issued vm op'
            if t.seq > self.vm_done:
                self.waitcnt(vm=self.vm_seq - t.seq)
            return None
        if isinstance(ins, WaitLG):
            t = ins.target
            assert t.seq is not None
            if t.seq > self.lg_done:
                self.waitcnt(lg=0 if self.smem_pending else self.lg_seq - t.seq)
            return None
        self._need_wait(ins)
        self._hazard(ins)
        if ins.kind == 'vm':
            self.vm_seq += 1
            ins.seq = self.vm_seq
            for r in ins.wr:
                self.vm_pending[r] = ins.seq
        elif ins.kind == 'lds':
            self.lg_seq += 1
            ins.seq = self.lg_seq
            for r in ins.wr:
                self.lg_pending[r] = ins.seq
        elif ins.kind == 'smem':
            for r in ins.wr:
                self.smem_pending.add(r)
            if not ins.wr:
                self.smem_pending.add(('s', 'anon'))
        self.stats[ins.kind] = self.stats.get(ins.kind, 0) + 1
        states = 1
        if ins.mn == 's_nop':
            states = int(ins.text.split()[1]) + 1
        self._out(ins.text, states, ins)
        return ins

    def __call__(self, text):
        return self.put(Ins(text))

    def many(self, text):
        r = None
        for ln in text.strip().split('\n'):
            ln = ln.split(';')[0].strip()
            if ln:
                r = self.put(Ins(ln))
        return r

    def settle(self, states=16):
        worst = 0
        for p, dist in self.hist:
            if p.kind == 'mfma':
                worst = max(worst, (12 if p.passes == 8 else 8) - dist)
            elif p.kind == 'valu':
                worst = max(worst, (5 if any(r[0] == 's' for r in p.wr) else 2) - dist)
            elif p.kind == 'vm' and p.wide_store:
                worst = max(worst, 2 - dist)
            elif p.kind == 'salu' and ('s', 'm0') in p.wr:
                worst = max(worst, 1 - dist)
        if worst > 0:
            self.nop(worst)

    def text(self):
        return '\n'.join(self.lines) + '\n'


def interleave(asm, main, fillers, per_gap):
    fi = 0
    for it in main:
        asm.put(it)
        if isinstance(it, Ins) and it.kind == 'mfma':
            k = 0
            while k < per_gap and fi < len(fillers):
                asm.put(fillers[fi])
                fi += 1
                k += 1
    while fi < len(fillers):
        asm.put(fillers[fi])
        fi += 1
```

```python
import sys, math, struct
from asmgen import Asm, Ins, WaitVM, WaitLG, interleave

KNAME = 'gated_mix__ssm_conv_s5__dense_activation_relu__prompt_kernel'

EPOCH_OFF = 0
FLAG_OFF = 0x1000
W2F_OFF = 0x4000
AGG_OFF = 0x10000
W2T_OFF = 0x40000
H_OFF = 0x240000
WS_BYTES = 268435456
OOB = 0x40000000

SLOT = 20480
MISC = 7 * SLOT
L_GW = MISC
L_GATE = MISC + 2048
L_W2S = MISC + 2560
L_SEG = MISC + 2560 + 8192
L_LB = L_W2S
LDS_BYTES = 163840
assert L_SEG + 5120 <= LDS_BYTES

S_X, S_LRE, S_LIM, S_BRE, S_BIM, S_CRE, S_CIM, S_LDT = 4, 6, 8, 10, 12, 14, 16, 18
S_DSK, S_BX, S_W1, S_W2, S_GWP, S_OUT, S_DBG, S_WS = 20, 22, 24, 26, 28, 30, 32, 34
R_X, R_WS, R_BRE, R_BIM, R_W1, R_W2, R_GW = 36, 40, 44, 48, 52, 56, 60
R_C, R_OUT = 44, 48
sTAG, sTAG2, sW, sR, sG, sA, sR2, sC2, sC16, sHALF, sCC = 64, 65, 66, 67, 68, 69, 70, 71, 72, 73, 74
sE = 75
S_MASK = 76
sT = [90, 91, 92, 93, 94, 95, 96, 97, 98, 99]
sXROW = 3


def srd(r):
    return 's[%d:%d]' % (r, r + 3)


def vr(b, n=1):
    return 'v%d' % b if n == 1 else 'v[%d:%d]' % (b, b + n - 1)


def ar(b, n=1):
    return 'a%d' % b if n == 1 else 'a[%d:%d]' % (b, b + n - 1)


def f2u(x):
    return struct.unpack('<I', struct.pack('<f', x))[0]


LOG2E = '0x%08x' % f2u(math.log2(math.e))
INV2PI = '0x%08x' % f2u(1.0 / (2 * math.pi))


class Gen:
    def __init__(self, opts):
        self.o = opts
        self.a = Asm()
        self.stamp_idx = 0

    def stamp(self, k):
        if not self.o.get('stamps'):
            return
        a = self.a
        a.drain() if self.o.get('stamp_drain') else None
        a('s_memrealtime s[100:101]')
        a.waitcnt(lg=0)
        a('v_mov_b32 v1, s100') if False else None

    def build_srd(self, r, ptr, nbytes):
        a = self.a
        a('s_mov_b32 s%d, s%d' % (r, ptr))
        a('s_and_b32 s%d, s%d, 0xffff' % (r + 1, ptr + 1))
        a('s_mov_b32 s%d, 0x%x' % (r + 2, nbytes))
        a('s_mov_b32 s%d, 0x20000' % (r + 3))

    def prologue(self):
        a = self.a
        a('s_cmp_ge_u32 s2, 256')
        a('s_cbranch_scc1 L_exit')
        a('s_load_dwordx16 s[4:19], s[0:1], 0')
        a('s_load_dwordx16 s[20:35], s[0:1], 64')
        a.many('''
            s_and_b32 s90, s2, 7
            s_lshr_b32 s91, s2, 3
            s_lshr_b32 s92, s90, 1
            s_and_b32 s%(half)d, s90, 1
            s_lshl_b32 s93, s92, 2
            s_lshr_b32 s94, s91, 3
            s_add_u32 s%(r)d, s93, s94
            s_and_b32 s%(cc)d, s91, 7
            s_lshl_b32 s93, s%(half)d, 3
            s_add_u32 s%(c16)d, s93, s%(cc)d
            s_lshl_b32 s93, s92, 3
            s_lshr_b32 s94, s91, 2
            s_add_u32 s%(r2)d, s93, s94
            s_lshl_b32 s93, s%(half)d, 2
            s_and_b32 s94, s91, 3
            s_add_u32 s%(c2)d, s93, s94
        ''' % dict(half=sHALF, r=sR, cc=sCC, c16=sC16, r2=sR2, c2=sC2))
        a('v_lshrrev_b32 v1, 6, v0')
        a('v_and_b32 v0, 63, v0')
        a('v_readfirstlane_b32 s%d, v1' % sW)
        a.many('''
            s_mul_i32 s93, s%(half)d, 6
            s_add_u32 s%(A)d, s93, s%(cc)d
            s_lshl_b32 s93, s%(half)d, 1
            s_add_u32 s93, s93, s%(cc)d
            s_sub_u32 s93, s93, 6
            s_lshl_b32 s93, s93, 1
            s_add_u32 s93, s93, 12
            s_cmp_lt_u32 s%(cc)d, 6
            s_cselect_b32 s%(G)d, s%(A)d, s93
        ''' % dict(half=sHALF, A=sA, cc=sCC, G=sG))
        a.waitcnt(lg=0)
        a('s_load_dword s%d, s[%d:%d], 0x%x' % (sE, S_WS, S_WS + 1, EPOCH_OFF))
        self.build_srd(R_X, S_X, 2621440)
        self.build_srd(R_WS, S_WS, WS_BYTES)
        self.build_srd(R_BRE, S_BRE, 819200)
        self.build_srd(R_BIM, S_BIM, 819200)
        self.build_srd(R_W1, S_W1, 1966080)
        self.build_srd(R_W2, S_W2, 1966080)
        self.build_srd(R_GW, S_GWP, 1280)
        a.many('''
            s_lshl_b32 s90, s%d, 2
            s_add_u32 s90, s90, s%d
            s_mul_i32 s%d, s90, 40960
        ''' % (sR, sW, sXROW))

    def lane_t(self, dst, src, tmp):
        a = self.a
        a('v_bfe_u32 %s, %s, 2, 1' % (vr(tmp), vr(src)))
        a('v_lshlrev_b32 %s, 4, %s' % (vr(tmp), vr(tmp)))
        a('v_and_b32 %s, 3, %s' % (vr(dst), vr(src)))
        a('v_add_u32 %s, %s, %s' % (vr(dst), vr(dst), vr(tmp)))
        a('v_lshrrev_b32 %s, 3, %s' % (vr(tmp), vr(src)))
        a('v_lshl_add_u32 %s, %s, 2, %s' % (vr(dst), vr(tmp), vr(dst)))

    def phase1(self, typ):
        a = self.a
        A = typ == 'A'
        V = {}
        nxt = [1]

        def al(name, n=1, align=1):
            nxt[0] = (nxt[0] + align - 1) // align * align
            V[name] = nxt[0]
            nxt[0] += n
            return V[name]
        for nm in ('XA', 'XB', 'WS', 'WF', 'ST', 'AG', 'LB0', 'LB1', 'SEGW', 'SEGR', 'GW', 'G', 'OMG', 'W2D', 'W2R'):
            al(nm)
        al('RS', 4)
        if A:
            al('RF', 6)
        ngrp = 1 if A else 2
        for g in range(ngrp):
            for nm in ('lr', 'li', 'nli', 'l16r', 'l16i', 'lsr', 'lsi', 'p1r', 'p1i', 'p2r', 'p2i', 'cr', 'ci'):
                al('%s%d' % (nm, g))
        assert nxt[0] <= 48, nxt[0]
        STG = 48
        RING = 96
        ACC = [112, 48]
        XV = 144
        NXV = 28
        TMP = 48 if A else 80
        A_X = 0
        A_F = [48, 64]

        def XF(s):
            return vr(XV + 4 * s, 4) if s < NXV else ar(A_X + 4 * (s - NXV), 4)
        self.V = V

        T0, T1, T2, T3 = STG, STG + 1, STG + 2, STG + 3
        a('v_and_b32 %s, 15, v0' % vr(T0))
        self.lane_t(T1, T0, T2)
        a('v_mul_u32_u24 %s, 1280, %s' % (vr(T1), vr(T1)))
        a('v_lshrrev_b32 %s, 4, v0' % vr(T2))
        a('v_lshl_add_u32 %s, %s, 4, %s' % (vr(V['XA']), vr(T2), vr(T1)))
        a('v_add_u32 %s, 10240, %s' % (vr(V['XB']), vr(V['XA'])))

        a('v_lshrrev_b32 %s, 1, v0' % vr(T0))
        a('v_mul_u32_u24 %s, 1280, %s' % (vr(T0), vr(T0)))
        a('v_and_b32 %s, 1, v0' % vr(T1))
        a('v_lshl_add_u32 %s, %s, 4, %s' % (vr(T0), vr(T1), vr(T0)))
        a('s_lshl_b32 s90, s2, 2')
        a('s_add_u32 s90, s90, s%d' % sW)
        a('s_cmp_lt_u32 s90, 960')
        a('s_cselect_b32 s91, 0, 0x%x' % OOB)
        a('v_add_u32 %s, s91, %s' % (vr(T0), vr(T0)))
        a('v_lshlrev_b32 %s, 4, v0' % vr(V['W2D']))
        a('v_add_u32 %s, s91, %s' % (vr(V['W2D']), vr(V['W2D'])))
        self.sGWI = 98
        a('s_mov_b32 s%d, s90' % self.sGWI)
        w2_dma = []
        for e in range(2):
            a('s_min_u32 s91, s%d, 959' % self.sGWI)
            a('s_lshl_b32 s91, s91, 1')
            if e:
                a('s_add_u32 s91, s91, 1')
            a('s_mul_hi_u32 s92, s91, 0x%x' % ((1 << 32) // 240 + 1))
            a('s_mul_i32 s93, s92, 240')
            a('s_sub_u32 s93, s91, s93')
            a('s_mul_hi_u32 s94, s93, 0x%x' % ((1 << 32) // 5 + 1))
            a('s_mul_i32 s95, s94, 5')
            a('s_sub_u32 s95, s93, s95')
            a('s_mul_i32 s94, s94, 40960')
            a('s_mul_i32 s92, s92, 160')
            a('s_add_u32 s94, s94, s92')
            a('s_lshl_b32 s95, s95, 5')
            a('s_add_u32 s94, s94, s95')
            a('s_lshl_b32 s95, s%d, 11' % sW)
            a('s_add_u32 m0, s95, %d' % (L_W2S + 1024 * e))
            w2_dma.append(a('buffer_load_dwordx4 %s, %s, s94 offen lds' % (vr(T0), srd(R_W2))))
        a('v_lshlrev_b32 %s, 4, v0' % vr(T1))
        a('s_mov_b32 m0, %d' % L_GW)
        a('s_nop 0')
        a('buffer_load_dwordx4 %s, %s, 0 offen lds' % (vr(T1), srd(R_GW)))
        a('s_mov_b32 m0, %d' % L_GW)
        a('s_nop 0')
        gw_dma = a('buffer_load_dwordx4 %s, %s, 0 offen offset:1024 lds' % (vr(T1), srd(R_GW)))

        n_ = T0
        a('v_and_b32 %s, 31, v0' % vr(n_))
        a('v_and_b32 %s, 19, %s' % (vr(T1), vr(n_)))
        a('v_bfe_u32 %s, %s, 2, 1' % (vr(T2), vr(n_)))
        a('v_lshl_add_u32 %s, %s, 3, %s' % (vr(T1), vr(T2), vr(T1)))
        a('v_bfe_u32 %s, %s, 3, 1' % (vr(T2), vr(n_)))
        a('v_lshl_add_u32 %s, %s, 2, %s' % (vr(T1), vr(T2), vr(T1)))
        a('v_lshlrev_b32 %s, 1, %s' % (vr(T2), vr(T1)))
        par_ld = []
        for g in range(ngrp):
            a('s_add_u32 s90, s%d, %d' % (sG, g))
            a('s_lshl_b32 s90, s90, 6')
            a('v_add_u32 %s, s90, %s' % (vr(T3), vr(T2)))
            a('global_load_ushort %s, %s, s[%d:%d]' % (vr(V['lr%d' % g]), vr(T3), S_LRE, S_LRE + 1))
            a('global_load_ushort %s, %s, s[%d:%d]' % (vr(V['li%d' % g]), vr(T3), S_LIM, S_LIM + 1))
            a('global_load_ushort %s, %s, s[%d:%d]' % (vr(V['cr%d' % g]), vr(T3), S_LDT, S_LDT + 1))

        a('v_lshrrev_b32 %s, 3, v0' % vr(T0))
        a('s_lshl_b32 s90, s%d, 3' % sW)
        a('v_add_u32 %s, s90, %s' % (vr(T0), vr(T0)))
        a('v_and_b32 %s, 19, %s' % (vr(T1), vr(T0)))
        a('v_bfe_u32 %s, %s, 2, 1' % (vr(T2), vr(T0)))
        a('v_lshl_add_u32 %s, %s, 3, %s' % (vr(T1), vr(T2), vr(T1)))
        a('v_bfe_u32 %s, %s, 3, 1' % (vr(T2), vr(T0)))
        a('v_lshl_add_u32 %s, %s, 2, %s' % (vr(T1), vr(T2), vr(T1)))
        a('v_mul_u32_u24 %s, 1280, %s' % (vr(T1), vr(T1)))
        a('v_bfe_u32 %s, %s, 1, 3' % (vr(T2), vr(T0)))
        a('v_and_b32 %s, 7, v0' % vr(T3))
        a('v_xor_b32 %s, %s, %s' % (vr(T2), vr(T2), vr(T3)))
        a('v_lshl_add_u32 %s, %s, 4, %s' % (vr(V['WS']), vr(T2), vr(T1)))
        if A:
            a('v_lshrrev_b32 %s, 3, v0' % vr(T0))
            a('v_mul_u32_u24 %s, 3072, %s' % (vr(T1), vr(T0)))
            a('v_bfe_u32 %s, %s, 1, 1' % (vr(T2), vr(T0)))
            a('v_lshlrev_b32 %s, 2, %s' % (vr(T2), vr(T2)))
            a('v_xor_b32 %s, %s, %s' % (vr(T2), vr(T2), vr(T3)))
            a('v_lshl_add_u32 %s, %s, 4, %s' % (vr(V['WF']), vr(T2), vr(T1)))

        def ssm_dma(g, stage, slot):
            items = []
            R = R_BRE if stage % 2 == 0 else R_BIM
            kh = stage // 2
            items.append(Ins('s_add_u32 s92, s%d, %d' % (sG, g)))
            items.append(Ins('s_mul_i32 s92, s92, 40960'))
            if kh:
                items.append(Ins('s_add_u32 s92, s92, 640'))
            items.append(Ins('s_lshl_b32 s93, s%d, 10' % sW))
            last = None
            for kb in range(5):
                items.append(Ins('s_add_u32 m0, s93, %d' % (slot * SLOT + kb * 4096 - kb * 128)))
                items.append(Ins('s_nop 0'))
                last = Ins('buffer_load_dwordx4 %s, %s, s92 offen offset:%d lds' % (vr(V['WS']), srd(R), kb * 128))
                items.append(last)
            return items, last

        def ffn_dma(fst, slot):
            items = []
            blk, st = fst >> 2, fst & 3
            items.append(Ins('s_lshl_b32 s92, s%d, 8' % sA))
            items.append(Ins('s_mul_i32 s94, s%d, 24576' % sW))
            items.append(Ins('s_add_u32 s92, s92, s94'))
            items.append(Ins('s_add_u32 s92, s92, %d' % (160 * st * 3072 + 128 * blk)))
            items.append(Ins('s_lshl_b32 s93, s%d, 10' % sW))
            last = None
            for i2 in range(5):
                items.append(Ins('s_add_u32 m0, s93, %d' % (slot * SLOT + i2 * 4096)))
                if i2:
                    items.append(Ins('s_add_u32 s92, s92, %d' % (32 * 3072)))
                else:
                    items.append(Ins('s_nop 0'))
                last = Ins('buffer_load_dwordx4 %s, %s, s92 offen lds' % (vr(V['WF']), srd(R_W1)))
                items.append(last)
            return items, last

        def put_all(items):
            for it in items:
                a.put(it)

        def xload(b):
            da = XV + 8 * b if 2 * b < NXV else STG + 8 * (b - NXV // 2)
            l0 = a('buffer_load_dwordx4 %s, %s, %s, s%d offen offset:%d' % (vr(da, 4), vr(V['XA']), srd(R_X), sXROW, 64 * b))
            l1 = a('buffer_load_dwordx4 %s, %s, %s, s%d offen offset:%d' % (vr(da + 4, 4), vr(V['XB']), srd(R_X), sXROW, 64 * b))
            return da

        if A:
            seq = [('S', 0, 0), ('S', 0, 1), ('S', 0, 2), ('S', 0, 3)] + [('F', 0, i) for i in range(8)]
        else:
            seq = [('S', 0, i) for i in range(4)] + [('S', 1, i) for i in range(4)]
        slot_of = [i % 7 for i in range(len(seq))]
        if A:
            slot_of = [0, 1, 2, 3, 4, 5, 6, 0, 1, 2, 3, 4]
        dma_last = [None] * len(seq)

        def issue_stage(i):
            kind, g, st = seq[i]
            items, last = ssm_dma(g, st, slot_of[i]) if kind == 'S' else ffn_dma(st, slot_of[i])
            dma_last[i] = last
            return items

        xdst = {}
        for b in range(0, 5):
            xdst[b] = xload(b)
        put_all(issue_stage(0))
        for b in range(5, 10):
            xdst[b] = xload(b)
        put_all(issue_stage(1))
        for b in range(10, 15):
            xdst[b] = xload(b)
        put_all(issue_stage(2))
        for b in range(15, 20):
            xdst[b] = xload(b)
        put_all(issue_stage(3))

        U0, U1, U2, U3 = RING, RING + 1, RING + 2, RING + 3
        a('v_and_b32 %s, 31, v0' % vr(U0))
        a('v_lshrrev_b32 %s, 5, v0' % vr(U1))
        a('v_bfe_u32 %s, %s, 1, 3' % (vr(U2), vr(U0)))
        a('v_lshlrev_b32 %s, 1, %s' % (vr(U3), vr(U1)))
        a('v_xor_b32 %s, %s, %s' % (vr(U2), vr(U2), vr(U3)))
        a('v_lshrrev_b32 %s, 3, %s' % (vr(U3), vr(U0)))
        a('v_lshlrev_b32 %s, 10, %s' % (vr(U3), vr(U3)))
        a('v_and_b32 %s, 7, %s' % (vr(RING + 4), vr(U0)))
        a('v_lshl_add_u32 %s, %s, 7, %s' % (vr(U3), vr(RING + 4), vr(U3)))
        for u in range(2):
            for ab in range(2):
                d = V['RS'] + 2 * u + ab
                a('v_xor_b32 %s, %d, %s' % (vr(d), 4 * u + ab, vr(U2)))
                a('v_lshl_add_u32 %s, %s, 4, %s' % (vr(d), vr(d), vr(U3)))
        a('v_lshlrev_b32 %s, 5, %s' % (vr(V['GW']), vr(U1)))
        a('v_add_u32 %s, %d, %s' % (vr(V['GW']), L_GW, vr(V['GW'])))
        a('v_lshrrev_b32 %s, 4, %s' % (vr(U2), vr(U0)))
        a('v_lshlrev_b32 %s, 10, %s' % (vr(U2), vr(U2)))
        a('v_and_b32 %s, 15, %s' % (vr(U3), vr(U0)))
        a('v_lshl_add_u32 %s, %s, 4, %s' % (vr(U3), vr(U1), vr(U3)))
        a('v_lshl_add_u32 %s, %s, 4, %s' % (vr(V['ST']), vr(U3), vr(U2)))
        a('v_lshlrev_b32 %s, 4, %s' % (vr(V['AG']), vr(U0)))
        a('v_mul_u32_u24 %s, 80, %s' % (vr(V['SEGR']), vr(U0)))
        a('v_add_u32 %s, %d, %s' % (vr(V['SEGR']), MISC, vr(V['SEGR'])))
        a('s_lshl_b32 s90, s%d, 1' % sW)
        a('v_add_u32 %s, s90, %s' % (vr(U2), vr(U1)))
        a('v_lshl_add_u32 %s, %s, 3, %s' % (vr(V['SEGW']), vr(U2), vr(V['SEGR'])))
        for s in range(1, 8):
            a('v_cmp_eq_u32 s[%d:%d], %d, %s' % (S_MASK + 2 * (s - 1), S_MASK + 2 * (s - 1) + 1, s, vr(U2)))
        SEGV = RING + 5
        a('v_mov_b32 %s, %s' % (vr(SEGV), vr(U2)))
        EXPO = [RING + 6, RING + 7]
        for i2 in range(2):
            a('v_add_u32 %s, %d, %s' % (vr(U3), 8 * i2, vr(SEGV)))
            a('v_cmp_gt_u32 vcc, s%d, %s' % (sR, vr(U3)))
            a('v_sub_u32 %s, s%d, %s' % (vr(EXPO[i2]), sR, vr(U3)))
            a('v_add_u32 %s, -1, %s' % (vr(EXPO[i2]), vr(EXPO[i2])))
            a('v_cndmask_b32 %s, -1, %s, vcc' % (vr(EXPO[i2]), vr(EXPO[i2])))
            a('v_cndmask_b32 %s, 0, %s, vcc' % (vr(U3), vr(U3)))
            a('v_lshl_add_u32 %s, %s, 9, %s' % (vr(V['LB%d' % i2]), vr(U3), vr(V['AG'])))
        if A:
            jl, mh = RING + 8, RING + 9
            a('v_and_b32 %s, 15, v0' % vr(jl))
            a('v_bfe_u32 %s, v0, 4, 1' % vr(mh))
            a('v_lshrrev_b32 %s, 2, %s' % (vr(U2), vr(jl)))
            a('v_lshl_add_u32 %s, %s, 4, %s' % (vr(U2), vr(U1), vr(U2)))
            a('v_lshlrev_b32 %s, 7, %s' % (vr(U2), vr(U2)))
            a('v_and_b32 %s, 1, %s' % (vr(U3), vr(jl)))
            a('v_lshl_add_u32 %s, %s, 3, %s' % (vr(U2), vr(U3), vr(U2)))
            a('v_bfe_u32 %s, %s, 1, 1' % (vr(U3), vr(jl)))
            a('v_lshl_add_u32 %s, %s, 1, %s' % (vr(U3), vr(mh), vr(U3)))
            a('v_bfe_u32 %s, %s, 3, 1' % (vr(RING + 10), vr(jl)))
            a('v_lshlrev_b32 %s, 2, %s' % (vr(RING + 10), vr(RING + 10)))
            a('v_xor_b32 %s, %s, %s' % (vr(U3), vr(U3), vr(RING + 10)))
            for tp in range(2):
                d = V['RF'] + tp
                a('v_xor_b32 %s, %d, %s' % (vr(d), 4 * tp, vr(U3)))
                a('v_lshl_add_u32 %s, %s, 4, %s' % (vr(d), vr(d), vr(U2)))
                a('v_add_u32 %s, %d, %s' % (vr(d + 2), 3 * SLOT, vr(d)))
                a('v_add_u32 %s, %d, %s' % (vr(d + 4), 6 * SLOT, vr(d)))
        a('v_lshrrev_b32 %s, 5, v0' % vr(U2))
        a('v_lshlrev_b32 %s, 4, %s' % (vr(U2), vr(U2)))
        a('v_bfe_u32 %s, v0, 4, 1' % vr(U3))
        a('v_lshl_add_u32 %s, %s, 2, %s' % (vr(U2), vr(U3), vr(U2)))
        a('v_bfe_u32 %s, v0, 2, 2' % vr(U3))
        a('v_add_u32 %s, %s, %s' % (vr(U2), vr(U2), vr(U3)))
        a('v_lshlrev_b32 %s, 5, %s' % (vr(U2), vr(U2)))
        a('v_and_b32 %s, 3, v0' % vr(U3))
        a('v_lshl_add_u32 %s, %s, 3, %s' % (vr(U2), vr(U3), vr(U2)))
        a('s_lshl_b32 s90, s%d, 11' % sW)
        a('s_add_u32 s90, s90, %d' % L_W2S)
        a('v_add_u32 %s, s90, %s' % (vr(V['W2R']), vr(U2)))

        for i in range(4, 7):
            put_all(issue_stage(i))

        def cpow(dr, di, m_reg, m_const, aL, bR, t0, t1):
            if m_reg is not None:
                a('v_mul_f32 %s, %s, %s' % (vr(t0), vr(m_reg), vr(aL)))
                a('v_mul_f32 %s, %s, %s' % (vr(t1), vr(m_reg), vr(bR)))
            else:
                a('v_mul_f32 %s, 0x%08x, %s' % (vr(t0), f2u(float(m_const)), vr(aL)))
                a('v_mul_f32 %s, 0x%08x, %s' % (vr(t1), f2u(float(m_const)), vr(bR)))
            a('v_exp_f32 %s, %s' % (vr(t0), vr(t0)))
            a('v_fract_f32 %s, %s' % (vr(t1), vr(t1)))
            a('v_cos_f32 %s, %s' % (vr(dr), vr(t1)))
            a('v_sin_f32 %s, %s' % (vr(di), vr(t1)))
            a('v_mul_f32 %s, %s, %s' % (vr(dr), vr(t0), vr(dr)))
            a('v_mul_f32 %s, %s, %s' % (vr(di), vr(t0), vr(di)))

        P0, P1, P2, P3, P4, P5 = RING + 8, RING + 9, RING + 10, RING + 11, RING + 12, RING + 13
        FS, FE0, FE1 = RING + 14, RING + 15, RING + 4
        a('v_cvt_f32_u32 %s, %s' % (vr(FS), vr(SEGV)))
        a('v_mul_f32 %s, 0x41800000, %s' % (vr(FS), vr(FS)))
        a('v_cvt_f32_i32 %s, %s' % (vr(FE0), vr(EXPO[0])))
        a('v_cvt_f32_i32 %s, %s' % (vr(FE1), vr(EXPO[1])))
        a('v_mul_f32 %s, 0x43000000, %s' % (vr(FE0), vr(FE0)))
        a('v_mul_f32 %s, 0x43000000, %s' % (vr(FE1), vr(FE1)))
        for g in range(ngrp):
            lr, li, nli, cr, ci = (V[x + str(g)] for x in ('lr', 'li', 'nli', 'cr', 'ci'))
            a('v_lshlrev_b32 %s, 16, %s' % (vr(P0), vr(lr)))
            a('v_lshlrev_b32 %s, 16, %s' % (vr(P1), vr(li)))
            a('v_lshlrev_b32 %s, 16, %s' % (vr(P2), vr(cr)))
            a('v_mul_f32 %s, %s, %s' % (vr(P2), LOG2E, vr(P2)))
            a('v_exp_f32 %s, %s' % (vr(P2), vr(P2)))
            a('v_cvt_pk_bf16_f32 %s, %s, %s' % (vr(P2), vr(P2), vr(P2)))
            a('v_lshlrev_b32 %s, 16, %s' % (vr(P2), vr(P2)))
            a('v_mul_f32 %s, %s, %s' % (vr(P3), vr(P2), vr(P0)))
            a('v_mul_f32 %s, %s, %s' % (vr(P4), vr(P2), vr(P1)))
            a('v_mul_f32 %s, %s, %s' % (vr(P3), LOG2E, vr(P3)))
            a('v_mul_f32 %s, %s, %s' % (vr(P4), INV2PI, vr(P4)))
            cpow(lr, li, None, 1, P3, P4, P2, P5)
            a('v_sub_f32 %s, 0, %s' % (vr(nli), vr(li)))
            cpow(V['l16r%d' % g], V['l16i%d' % g], None, 16, P3, P4, P2, P5)
            cpow(V['lsr%d' % g], V['lsi%d' % g], FS, None, P3, P4, P2, P5)
            for k, (fe, ex) in enumerate(((FE0, EXPO[0]), (FE1, EXPO[1]))):
                pr, pi = V['p%dr%d' % (k + 1, g)], V['p%di%d' % (k + 1, g)]
                cpow(pr, pi, fe, None, P3, P4, P2, P5)
                a('v_cmp_le_i32 vcc, 0, %s' % vr(ex))
                a('v_cndmask_b32 %s, 0, %s, vcc' % (vr(pr), vr(pr)))
                a('v_cndmask_b32 %s, 0, %s, vcc' % (vr(pi), vr(pi)))
            a('v_add_f32 %s, -1.0, %s' % (vr(P2), vr(lr)))
            a('v_mul_f32 %s, %s, %s' % (vr(P3), vr(P0), vr(P0)))
            a('v_fmac_f32 %s, %s, %s' % (vr(P3), vr(P1), vr(P1)))
            a('v_rcp_f32 %s, %s' % (vr(P3), vr(P3)))
            a('v_mul_f32 %s, %s, %s' % (vr(P4), vr(P2), vr(P0)))
            a('v_fmac_f32 %s, %s, %s' % (vr(P4), vr(li), vr(P1)))
            a('v_mul_f32 %s, %s, %s' % (vr(P5), vr(li), vr(P0)))
            a('v_fma_f32 %s, -%s, %s, %s' % (vr(P5), vr(P2), vr(P1), vr(P5)))
            a('v_add_f32 %s, %s, %s' % (vr(P3), vr(P3), vr(P3)))
            a('v_mul_f32 %s, %s, %s' % (vr(cr), vr(P4), vr(P3)))
            a('v_mul_f32 %s, %s, %s' % (vr(ci), vr(P5), vr(P3)))

        a.put(WaitVM(w2_dma[1]))
        for e in range(2):
            q = RING + 8 * 0 + 4 * e
            a('ds_read_b64_tr_b16 %s, %s offset:%d' % (vr(q, 2), vr(V['W2R']), 1024 * e))
            a('ds_read_b64_tr_b16 %s, %s offset:%d' % (vr(q + 2, 2), vr(V['W2R']), 1024 * e + 256))
        a('s_min_u32 s90, s%d, 959' % self.sGWI)
        a('s_lshl_b32 s90, s90, 11')
        a('s_add_u32 s90, s90, 0x%x' % W2T_OFF)
        a('buffer_store_dwordx4 %s, %s, %s, s90 offen sc1' % (vr(RING, 4), vr(V['W2D']), srd(R_WS)))
        w2_st = a('buffer_store_dwordx4 %s, %s, %s, s90 offen offset:1024 sc1' % (vr(RING + 4, 4), vr(V['W2D']), srd(R_WS)))
        a('s_add_u32 s%d, s%d, 1' % (sTAG, sE))
        a('s_xor_b32 s%d, s%d, 0x5bd1e995' % (sTAG2, sTAG))

        def xfix(b):
            items = []
            d = xdst[b]
            for e in range(4):
                items.append(Ins('v_permlane16_swap_b32 %s, %s' % (vr(d + e), vr(d + 4 + e))))
            if 2 * b >= NXV:
                for e in range(8):
                    items.append(Ins('v_accvgpr_write_b32 %s, %s' % (ar(A_X + 8 * (b - NXV // 2) + e), vr(d + e))))
            return items

        def ssm_stage(i, ring0):
            kind, g, st = seq[i]
            slot = slot_of[i]
            acc = ACC[g] + (16 if st % 2 else 0)
            kh = st // 2
            gate = (g == 0 and st % 2 == 0)
            reads, mf = [], []
            base = slot * SLOT
            rsb = V['RS']
            pre = []
            if base + SLOT > 65536:
                rsb = RING_ADDR
                pre = [Ins('v_add_u32 %s, %d, %s' % (vr(RING_ADDR + k), base, vr(V['RS'] + k))) for k in range(4)]
                base = 0
            out = list(pre)
            nq = 2 if gate else 4
            seqops = []
            for sp in range(20):
                bp, ab = sp >> 1, sp & 1
                kb, u = bp >> 1, bp & 1
                s = 20 * kh + sp
                q = RING + 4 * (sp % nq)
                rd = Ins('ds_read_b128 %s, %s offset:%d' % (vr(q, 4), vr(rsb + 2 * u + ab), base + kb * 4096))
                first = (kh == 0 and sp == 0)
                m = Ins('v_mfma_f32_32x32x16_bf16 %s, %s, %s, %s' % (vr(acc, 16), XF(s), vr(q, 4), '0' if first else vr(acc, 16)))
                grd = gm = None
                if gate:
                    gq = RING + 8 + 4 * (sp % 2)
                    b, abg = s >> 1, s & 1
                    grd = Ins('ds_read_b128 %s, %s offset:%d' % (vr(gq, 4), vr(V['GW']), 64 * b + 16 * abg))
                    gm = Ins('v_mfma_f32_32x32x16_bf16 %s, %s, %s, %s' % (ar(A_F[0], 16), vr(gq, 4), XF(s), '0' if s == 0 else ar(A_F[0], 16)))
                seqops.append((rd, m, grd, gm, s))
            dist = 1 if gate else 3
            for sp in range(dist):
                out.append(seqops[sp][0])
                if gate:
                    out.append(seqops[sp][2])
            for sp in range(20):
                rd, m, grd, gm, s = seqops[sp]
                if s % 2 == 0 and (s // 2) not in xfixed:
                    out += xfix(s // 2)
                    xfixed.add(s // 2)
                out.append(m)
                if gate:
                    out.append(gm)
                if sp + dist < 20:
                    out.append(seqops[sp + dist][0])
                    if gate:
                        out.append(seqops[sp + dist][2])
            return out
        RING_ADDR = V['W2D'] if False else None
        RING_ADDR = 92
        xfixed = set()

        def stage_open(i, refill=None, covers=None):
            for c in (covers or [i]):
                a.put(WaitVM(dma_last[c]))
            a.waitcnt(lg=0)
            a('s_barrier')
            if refill is not None:
                put_all(issue_stage(refill))

        a.put(WaitVM(gw_dma))
        stage_open(0)
        put_all(ssm_stage(0, 0))
        stage_open(1, refill=7)
        put_all(ssm_stage(1, 0))
        stage_open(2, refill=8 if A else None)
        put_all(ssm_stage(2, 0))
        stage_open(3, refill=9 if A else None)
        assert len(xfixed) == 20
        put_all(ssm_stage(3, 0))

        a.put(WaitVM(w2_st))
        a('v_mov_b32 %s, s%d' % (vr(RING), sTAG))
        a('v_mov_b32 %s, s%d' % (vr(RING + 1), sTAG2))
        a('s_lshl_b32 s90, s%d, 3' % self.sGWI)
        a('s_add_u32 s90, s90, 0x%x' % W2F_OFF)
        a('v_lshrrev_b32 %s, 4, %s' % (vr(RING + 2), vr(V['W2D'])))
        a('v_and_b32 %s, 0x%x, %s' % (vr(RING + 2), OOB >> 4, vr(RING + 2)))
        a('v_lshlrev_b32 %s, 4, %s' % (vr(RING + 2), vr(RING + 2)))
        a('buffer_store_dwordx2 %s, %s, %s, s90 offen sc1' % (vr(RING, 2), vr(RING + 2), srd(R_WS)))

        G, OMG = V['G'], V['OMG']
        t0, t1 = RING + 4, RING + 5
        a('v_accvgpr_read_b32 %s, %s' % (vr(t0), ar(A_F[0])))
        a('v_cvt_pk_bf16_f32 %s, %s, %s' % (vr(t0), vr(t0), vr(t0)))
        a('v_lshlrev_b32 %s, 16, %s' % (vr(t0), vr(t0)))
        a('v_mul_f32 %s, 0x%08x, %s' % (vr(t0), f2u(-math.log2(math.e)), vr(t0)))
        a('v_exp_f32 %s, %s' % (vr(t0), vr(t0)))
        a('v_add_f32 %s, 1.0, %s' % (vr(t0), vr(t0)))
        a('v_rcp_f32 %s, %s' % (vr(t0), vr(t0)))
        a('v_cvt_pk_bf16_f32 %s, %s, %s' % (vr(t0), vr(t0), vr(t0)))
        a('v_lshlrev_b32 %s, 16, %s' % (vr(G), vr(t0)))
        a('v_sub_f32 %s, 1.0, %s' % (vr(t1), vr(G)))
        a('v_cvt_pk_bf16_f32 %s, %s, %s' % (vr(t1), vr(t1), vr(t1)))
        a('v_lshlrev_b32 %s, 16, %s' % (vr(OMG), vr(t1)))
        a('v_and_b32 %s, 31, v0' % vr(t0))
        self.lane_t(t1, t0, RING + 6)
        a('s_lshl_b32 s90, s%d, 5' % sW)
        a('v_add_u32 %s, s90, %s' % (vr(t1), vr(t1)))
        a('v_lshlrev_b32 %s, 2, %s' % (vr(t1), vr(t1)))
        a('v_add_u32 %s, %d, %s' % (vr(t1), L_GATE, vr(t1)))
        a('ds_write_b32 %s, %s' % (vr(t1), vr(G)))

        def pass1(g):
            it = []
            RE, IM = ACC[g], ACC[g] + 16
            lr, li, nli = V['lr%d' % g], V['li%d' % g], V['nli%d' % g]
            sa = [SC[g] + 0, SC[g] + 1]
            sb = [SC[g] + 2, SC[g] + 3]
            cur = [RE, IM]
            for t in range(1, 16):
                d = sa if t % 2 else sb
                it.append(Ins('v_fma_f32 %s, %s, %s, %s' % (vr(d[0]), vr(lr), vr(cur[0]), vr(RE + t))))
                it.append(Ins('v_fma_f32 %s, %s, %s, %s' % (vr(d[1]), vr(lr), vr(cur[1]), vr(IM + t))))
                it.append(Ins('v_fmac_f32 %s, %s, %s' % (vr(d[0]), vr(nli), vr(cur[1]))))
                it.append(Ins('v_fmac_f32 %s, %s, %s' % (vr(d[1]), vr(li), vr(cur[0]))))
                cur = d
            it.append(Ins('ds_write_b64 %s, %s offset:%d' % (vr(V['SEGW']), vr(cur[0], 2), L_SEG - MISC + 2560 * g)))
            return it

        def prefix(g, buf):
            it = []
            l16r, l16i = V['l16r%d' % g], V['l16i%d' % g]
            Pr, Pi = SC[g] + 0, SC[g] + 1
            for jj in range(4):
                it.append(Ins('ds_read_b128 %s, %s offset:%d' % (vr(buf + 4 * jj, 4), vr(V['SEGR']), L_SEG - MISC + 2560 * g + 16 * jj)))
            it.append(Ins('v_mov_b32 %s, 0' % vr(Pr)))
            it.append(Ins('v_mov_b32 %s, 0' % vr(Pi)))
            for s in range(1, 8):
                m = S_MASK + 2 * (s - 1)
                it.append(Ins('v_cndmask_b32 %s, %s, %s, s[%d:%d]' % (vr(Pr), vr(Pr), vr(buf + 2 * (s - 1)), m, m + 1)))
                it.append(Ins('v_cndmask_b32 %s, %s, %s, s[%d:%d]' % (vr(Pi), vr(Pi), vr(buf + 2 * (s - 1) + 1), m, m + 1)))
                pr, pi_, cr_, ci_ = buf + 2 * (s - 1), buf + 2 * (s - 1) + 1, buf + 2 * s, buf + 2 * s + 1
                it.append(Ins('v_fmac_f32 %s, %s, %s' % (vr(cr_), vr(l16r), vr(pr))))
                it.append(Ins('v_fmac_f32 %s, %s, %s' % (vr(ci_), vr(l16r), vr(pi_))))
                it.append(Ins('v_fma_f32 %s, -%s, %s, %s' % (vr(cr_), vr(l16i), vr(pi_), vr(cr_))))
                it.append(Ins('v_fmac_f32 %s, %s, %s' % (vr(ci_), vr(l16i), vr(pr))))
            pb = buf
            it.append(Ins('v_mov_b32 %s, %s' % (vr(pb + 2), vr(buf + 15))))
            it.append(Ins('v_mov_b32 %s, %s' % (vr(pb), vr(buf + 14))))
            it.append(Ins('v_mov_b32 %s, s%d' % (vr(pb + 1), sTAG)))
            it.append(Ins('v_mov_b32 %s, s%d' % (vr(pb + 3), sTAG)))
            it.append(Ins('s_add_u32 s90, s%d, %d' % (sG, g)))
            it.append(Ins('s_lshl_b32 s90, s90, 4'))
            it.append(Ins('s_add_u32 s90, s90, s%d' % sR))
            it.append(Ins('s_lshl_b32 s90, s90, 9'))
            it.append(Ins('s_add_u32 s90, s90, 0x%x' % AGG_OFF))
            it.append(Ins('buffer_store_dwordx4 %s, %s, %s, s90 offen sc1' % (vr(pb, 4), vr(V['AG']), srd(R_WS))))
            return it

        def coef(g, t0):
            it = []
            RE, IM = ACC[g], ACC[g] + 16
            cr, ci = V['cr%d' % g], V['ci%d' % g]
            for t in range(16):
                tt = t0 + (t & 1)
                it.append(Ins('v_mul_f32 %s, %s, %s' % (vr(tt), vr(ci), vr(IM + t))))
                it.append(Ins('v_mul_f32 %s, %s, %s' % (vr(IM + t), vr(cr), vr(IM + t))))
                it.append(Ins('v_fmac_f32 %s, %s, %s' % (vr(IM + t), vr(ci), vr(RE + t))))
                it.append(Ins('v_fma_f32 %s, %s, %s, -%s' % (vr(RE + t), vr(cr), vr(RE + t), vr(tt))))
            return it

        def lookback(g, buf, lbl):
            a('s_add_u32 s90, s%d, %d' % (sG, g))
            a('s_lshl_b32 s90, s90, 13')
            a('s_add_u32 s90, s90, 0x%x' % AGG_OFF)
            a('s_mov_b32 s91, 0')
            a.drain()
            a.settle()
            a.label(lbl)
            a('buffer_load_dwordx4 %s, %s, %s, s90 offen sc1' % (vr(buf, 4), vr(V['LB0']), srd(R_WS)))
            a('buffer_load_dwordx4 %s, %s, %s, s90 offen sc1' % (vr(buf + 4, 4), vr(V['LB1']), srd(R_WS)))
            a('s_add_u32 s91, s91, 1')
            t = buf + 8
            a('v_xor_b32 %s, s%d, %s' % (vr(t), sTAG, vr(buf + 1)))
            a('v_xor_b32 %s, s%d, %s' % (vr(t + 1), sTAG, vr(buf + 3)))
            a('v_xor_b32 %s, s%d, %s' % (vr(t + 2), sTAG, vr(buf + 5)))
            a('v_xor_b32 %s, s%d, %s' % (vr(t + 3), sTAG, vr(buf + 7)))
            a('v_or3_b32 %s, %s, %s, %s' % (vr(t), vr(t), vr(t + 1), vr(t + 2)))
            a('v_or_b32 %s, %s, %s' % (vr(t), vr(t), vr(t + 3)))
            a('v_cmp_ne_u32 vcc, 0, %s' % vr(t))
            a('s_cmp_eq_u64 vcc, 0')
            a('s_cbranch_scc1 %s_ok' % lbl)
            a('s_cmp_lt_u32 s91, 0x%x' % self.o.get('spin', 200000))
            a('s_cbranch_scc1 %s' % lbl)
            a.label(lbl + '_ok')
            p1r, p1i, p2r, p2i = (V['p%s%d' % (x, g)] for x in ('1r', '1i', '2r', '2i'))
            hr, hi = buf + 8, buf + 9
            a('v_mul_f32 %s, %s, %s' % (vr(hr), vr(p1r), vr(buf)))
            a('v_mul_f32 %s, %s, %s' % (vr(hi), vr(p1r), vr(buf + 2)))
            a('v_fma_f32 %s, -%s, %s, %s' % (vr(hr), vr(p1i), vr(buf + 2), vr(hr)))
            a('v_fmac_f32 %s, %s, %s' % (vr(hi), vr(p1i), vr(buf)))
            a('v_fmac_f32 %s, %s, %s' % (vr(hr), vr(p2r), vr(buf + 4)))
            a('v_fmac_f32 %s, %s, %s' % (vr(hi), vr(p2r), vr(buf + 6)))
            a('v_fma_f32 %s, -%s, %s, %s' % (vr(hr), vr(p2i), vr(buf + 6), vr(hr)))
            a('v_fmac_f32 %s, %s, %s' % (vr(hi), vr(p2i), vr(buf + 4)))
            a('ds_write_b64 %s, %s offset:%d' % (vr(V['SEGW']), vr(hr, 2), L_LB - MISC + 2560 * g))
            a.waitcnt(lg=0)
            a('s_barrier')
            for jj in range(4):
                a('ds_read_b128 %s, %s offset:%d' % (vr(buf + 4 * jj, 4), vr(V['SEGR']), L_LB - MISC + 2560 * g + 16 * jj))
            for jj in range(1, 8):
                a('v_add_f32 %s, %s, %s' % (vr(buf), vr(buf), vr(buf + 2 * jj)))
                a('v_add_f32 %s, %s, %s' % (vr(buf + 1), vr(buf + 1), vr(buf + 2 * jj + 1)))
            Pr, Pi = SC[g] + 0, SC[g] + 1
            lsr, lsi, cr, ci = (V[x + str(g)] for x in ('lsr', 'lsi', 'cr', 'ci'))
            a('v_fmac_f32 %s, %s, %s' % (vr(Pr), vr(lsr), vr(buf)))
            a('v_fmac_f32 %s, %s, %s' % (vr(Pi), vr(lsr), vr(buf + 1)))
            a('v_fma_f32 %s, -%s, %s, %s' % (vr(Pr), vr(lsi), vr(buf + 1), vr(Pr)))
            a('v_fmac_f32 %s, %s, %s' % (vr(Pi), vr(lsi), vr(buf)))
            a('v_mul_f32 %s, %s, %s' % (vr(buf + 2), vr(cr), vr(Pr)))
            a('v_mul_f32 %s, %s, %s' % (vr(buf + 3), vr(cr), vr(Pi)))
            a('v_fma_f32 %s, -%s, %s, %s' % (vr(buf + 2), vr(ci), vr(Pi), vr(buf + 2)))
            a('v_fmac_f32 %s, %s, %s' % (vr(buf + 3), vr(ci), vr(Pr)))
            a('v_mov_b32 %s, %s' % (vr(Pr), vr(buf + 2)))
            a('v_mov_b32 %s, %s' % (vr(Pi), vr(buf + 3)))

        def pass2(g):
            it = []
            RE, IM = ACC[g], ACC[g] + 16
            lr, li, nli = V['lr%d' % g], V['li%d' % g], V['nli%d' % g]
            pr, pi_ = SC[g] + 0, SC[g] + 1
            for t in range(16):
                it.append(Ins('v_fmac_f32 %s, %s, %s' % (vr(RE + t), vr(lr), vr(pr))))
                it.append(Ins('v_fmac_f32 %s, %s, %s' % (vr(IM + t), vr(lr), vr(pi_))))
                it.append(Ins('v_fmac_f32 %s, %s, %s' % (vr(RE + t), vr(nli), vr(pi_))))
                it.append(Ins('v_fmac_f32 %s, %s, %s' % (vr(IM + t), vr(li), vr(pr))))
                pr, pi_ = RE + t, IM + t
            return it

        def build_sel(B):
            n_, e_, t_, val = B + 8, B + 9, B + 10, B + 11
            a('v_and_b32 %s, 31, v0' % vr(n_))
            a('v_lshrrev_b32 %s, 3, %s' % (vr(t_), vr(n_)))
            a('v_and_b32 %s, 3, %s' % (vr(e_), vr(n_)))
            a('v_lshl_add_u32 %s, %s, 2, %s' % (vr(e_), vr(t_), vr(e_)))
            a('v_bfe_u32 %s, %s, 2, 1' % (vr(t_), vr(n_)))
            a('v_lshrrev_b32 %s, 5, v0' % vr(val))
            a('v_cmp_eq_u32 vcc, %s, %s' % (vr(t_), vr(val)))
            a('v_cndmask_b32 %s, 31, %s, vcc' % (vr(e_), vr(e_)))
            a('v_lshrrev_b32 %s, 16, %s' % (vr(val), vr(V['G'])))
            a('v_and_b32 %s, 1, %s' % (vr(t_), vr(e_)))
            a('v_lshlrev_b32 %s, 4, %s' % (vr(t_), vr(t_)))
            a('v_lshlrev_b32 %s, %s, %s' % (vr(val), vr(t_), vr(val)))
            a('v_lshrrev_b32 %s, 1, %s' % (vr(e_), vr(e_)))
            for k in range(8):
                a('v_cmp_eq_u32 vcc, %d, %s' % (k, vr(e_)))
                a('v_cndmask_b32 %s, 0, %s, vcc' % (vr(B + k), vr(val)))

        def h_soff(dst, ks_expr_reg, ks_const):
            it = [Ins('s_lshr_b32 s96, s%d, 1' % sW),
                  Ins('s_lshl_b32 s97, s%d, 1' % sR),
                  Ins('s_add_u32 s96, s96, s97'),
                  Ins('s_mul_i32 s96, s96, 88'),
                  Ins('s_add_u32 s96, s96, s%d' % ks_expr_reg),
                  Ins('s_add_u32 s96, s96, %d' % ks_const),
                  Ins('s_lshl_b32 s96, s96, 12'),
                  Ins('s_and_b32 s97, s%d, 1' % sW),
                  Ins('s_lshl_b32 s97, s97, 11'),
                  Ins('s_add_u32 s96, s96, 0x%x' % H_OFF),
                  Ins('s_add_u32 s%d, s96, s97' % dst)]
            return it

        def transpose_store(g, B, D):
            RE, IM = ACC[g], ACC[g] + 16
            for e in range(8):
                a('v_cvt_pk_bf16_f32 %s, %s, %s' % (vr(RE + e), vr(RE + 2 * e), vr(RE + 2 * e + 1)))
            for e in range(8):
                a('v_cvt_pk_bf16_f32 %s, -%s, -%s' % (vr(RE + 8 + e), vr(IM + 2 * e), vr(IM + 2 * e + 1)))
            for part in range(2):
                src = RE + 8 * part
                a('v_mfma_f32_32x32x16_bf16 %s, %s, %s, 0' % (vr(D, 16), vr(src, 4), vr(B, 4)))
                a('v_mfma_f32_32x32x16_bf16 %s, %s, %s, %s' % (vr(D, 16), vr(src + 4, 4), vr(B + 4, 4), vr(D, 16)))
                a('s_add_u32 s95, s%d, %d' % (sG, g))
                put_all(h_soff(94, 95, 48 + 20 * part))
                for e in range(8):
                    a('v_cvt_pk_bf16_f32 %s, %s, %s' % (vr(D + e), vr(D + 2 * e), vr(D + 2 * e + 1)))
                a('buffer_store_dwordx4 %s, %s, %s, s94 offen sc1' % (vr(D, 4), vr(V['ST']), srd(R_WS)))
                a('buffer_store_dwordx4 %s, %s, %s, s94 offen offset:512 sc1' % (vr(D + 4, 4), vr(V['ST']), srd(R_WS)))

        def ffn_tile(tile):
            blk, tp = tile >> 1, tile & 1
            acc = A_F[tile & 1]
            ops = []
            for s in range(40):
                st, sp = s // 10, s % 10
                i = 4 + 4 * blk + st
                slot = slot_of[i]
                reg = slot // 3
                off = (slot % 3) * SLOT + (32 * (sp >> 1) + 8 * (sp & 1)) * 128
                q = RING + 4 * (s % 4)
                base = V['RF'] + tp + 2 * reg
                r0 = Ins('ds_read_b64_tr_b16 %s, %s offset:%d' % (vr(q, 2), vr(base), off))
                r1 = Ins('ds_read_b64_tr_b16 %s, %s offset:%d' % (vr(q + 2, 2), vr(base), off + 512))
                m = Ins('v_mfma_f32_32x32x16_bf16 %s, %s, %s, %s' % (ar(acc, 16), vr(q, 4), XF(s), '0' if s == 0 else ar(acc, 16)))
                ops.append((r0, r1, m))
            out = []
            dist = 3
            for s in range(dist):
                out += [ops[s][0], ops[s][1]]
            for s in range(40):
                out.append(ops[s][2])
                if s + dist < 40:
                    out += [ops[s + dist][0], ops[s + dist][1]]
            return out

        def ffn_epilogue(tile, T):
            acc = A_F[tile & 1]
            it = []
            for e in range(16):
                it.append(Ins('v_accvgpr_read_b32 %s, %s' % (vr(T + e), ar(acc + e))))
            for e in range(16):
                it.append(Ins('v_mul_f32 %s, %s, %s' % (vr(T + e), vr(V['OMG']), vr(T + e))))
            for e in range(8):
                it.append(Ins('v_cvt_pk_bf16_f32 %s, %s, %s' % (vr(T + e), vr(T + 2 * e), vr(T + 2 * e + 1))))
            for e in range(8):
                it.append(Ins('v_pk_max_i16 %s, %s, 0' % (vr(T + e), vr(T + e))))
            it.append(Ins('s_lshl_b32 s95, s%d, 2' % sA))
            it += h_soff(94, 95, tile)
            it.append(Ins('buffer_store_dwordx4 %s, %s, %s, s94 offen sc1' % (vr(T, 4), vr(V['ST']), srd(R_WS))))
            it.append(Ins('buffer_store_dwordx4 %s, %s, %s, s94 offen offset:512 sc1' % (vr(T + 4, 4), vr(V['ST']), srd(R_WS))))
            return it

        if A:
            SC = [TMP]
            BUF = TMP + 4
            SEL = TMP + 20
            EPI = TMP + 32
            put_all(pass1(0))
            stage_open(4, refill=10, covers=[4, 5, 6, 7])
            put_all(prefix(0, BUF))
            put_all(ffn_tile(0))
            put_all(coef(0, BUF))
            put_all(ffn_epilogue(0, EPI))
            t1 = ffn_tile(1)
            cut = next(k for k, x in enumerate(t1) if x.kind == 'mfma' and x is [y for y in t1 if y.kind == 'mfma'][9])
            put_all(t1[:cut + 1])
            a.waitcnt(lg=0)
            a('s_barrier')
            put_all(issue_stage(11))
            put_all(t1[cut + 1:])
            put_all(ffn_epilogue(1, EPI))
            stage_open(8, covers=[8, 9, 10, 11])
            put_all(ffn_tile(2))
            put_all(ffn_epilogue(2, EPI))
            put_all(ffn_tile(3))
            put_all(ffn_epilogue(3, EPI))
            build_sel(SEL)
            lookback(0, BUF, 'L_lbA')
            put_all(pass2(0))
            transpose_store(0, SEL, EPI)
        else:
            SC = [80, 84]
            BUF = RING
            put_all(pass1(0))
            stage_open(4, covers=[4])
            put_all(prefix(0, BUF))
            put_all(ssm_stage(4, 0))
            stage_open(5)
            put_all(ssm_stage(5, 0))
            stage_open(6)
            put_all(ssm_stage(6, 0))
            stage_open(7)
            put_all(ssm_stage(7, 0))
            put_all(pass1(1))
            a.waitcnt(lg=0)
            a('s_barrier')
            put_all(prefix(1, BUF))
            put_all(coef(0, BUF))
            put_all(coef(1, BUF))
            SEL = XV
            D = XV + 16
            build_sel(SEL)
            lookback(0, BUF, 'L_lbB0')
            put_all(pass2(0))
            transpose_store(0, SEL, D)
            lookback(1, BUF, 'L_lbB1')
            put_all(pass2(1))
            transpose_store(1, SEL, D)

        a.waitcnt(vm=0)
        a('v_mov_b32 %s, s%d' % (vr(RING), sTAG))
        a('v_mov_b32 %s, s%d' % (vr(RING + 1), sTAG2))
        a('s_lshl_b32 s90, s%d, 2' % sR)
        a('s_add_u32 s90, s90, s%d' % sW)
        a('s_lshl_b32 s90, s90, 4')
        a('s_add_u32 s90, s90, s%d' % sC16)
        a('s_lshl_b32 s90, s90, 3')
        a('s_add_u32 s90, s90, 0x%x' % FLAG_OFF)
        a('v_mov_b32 %s, 0' % vr(RING + 2))
        a('buffer_store_dwordx2 %s, %s, %s, s90 offen sc1' % (vr(RING, 2), vr(RING + 2), srd(R_WS)))
        a.drain()
        a.settle()

    def poll(self, lbl, voff, soff, tmp):
        a = self.a
        a('s_mov_b32 s91, 0')
        a.drain()
        a.settle()
        a.label(lbl)
        a('buffer_load_dwordx2 %s, %s, %s, s%d offen sc1' % (vr(tmp, 2), vr(voff), srd(R_WS), soff))
        a('s_add_u32 s91, s91, 1')
        a('v_xor_b32 %s, s%d, %s' % (vr(tmp), sTAG, vr(tmp)))
        a('v_xor_b32 %s, s%d, %s' % (vr(tmp + 1), sTAG2, vr(tmp + 1)))
        a('v_or_b32 %s, %s, %s' % (vr(tmp), vr(tmp), vr(tmp + 1)))
        a('v_cmp_ne_u32 vcc, 0, %s' % vr(tmp))
        a('s_cmp_eq_u64 vcc, 0')
        a('s_cbranch_scc1 %s_ok' % lbl)
        a('s_cmp_lt_u32 s91, 0x%x' % self.o.get('spin', 200000))
        a('s_cbranch_scc1 %s' % lbl)
        a.label(lbl + '_ok')

    def phase2(self):
        a = self.a
        VL16, VL16B, VH, VC, VRW, VRR, VO, VX, VD, VG, VP = 1, 2, 3, 7, 12, 15, 96, 97, 98, 99, 100
        ACC = 16
        arch_pool = list(range(104, 256, 4))
        acc_pool = list(range(0, 256, 4))

        def acc(dt, dl):
            return ACC + 4 * (4 * dt + dl)
        self.build_srd(R_OUT, S_OUT, 5242880)
        a('s_cmp_lt_u32 s%d, 2' % sW)
        a('s_cselect_b32 s%d, s%d, s%d' % (R_C, S_CRE, S_CIM))
        a('s_cselect_b32 s%d, s%d, s%d' % (R_C + 1, S_CRE + 1, S_CIM + 1))
        a('s_and_b32 s%d, s%d, 0xffff' % (R_C + 1, R_C + 1))
        a('s_mov_b32 s%d, 819200' % (R_C + 2))
        a('s_mov_b32 s%d, 0x20000' % (R_C + 3))
        a('v_lshlrev_b32 %s, 4, v0' % vr(VL16))
        a('v_add_u32 %s, 4096, %s' % (vr(VL16B), vr(VL16)))
        for dl in range(4):
            a('s_add_u32 s90, s%d, %d' % (sW, dl))
            a('s_and_b32 s90, s90, 3')
            a('s_lshl_b32 s91, s90, 10')
            a('v_add_u32 %s, s91, %s' % (vr(VH + dl), vr(VL16)))
            if dl:
                a('s_mul_i32 s91, s90, 15360')
                a('s_add_u32 s91, s91, %d' % ((dl - 1) * 5120))
                a('v_add_u32 %s, s91, %s' % (vr(VRW + dl - 1), vr(VL16)))
        a('s_mul_i32 s91, s%d, 15360' % sW)
        a('v_add_u32 %s, s91, %s' % (vr(VRR), vr(VL16)))
        t0, t1, t2 = 102, 103, 101
        a('v_and_b32 %s, 15, v0' % vr(t0))
        a('v_mul_u32_u24 %s, 1280, %s' % (vr(t1), vr(t0)))
        a('v_lshrrev_b32 %s, 4, v0' % vr(t2))
        a('v_lshl_add_u32 %s, %s, 4, %s' % (vr(VC), vr(t2), vr(t1)))
        for dt in range(1, 5):
            a('v_add_u32 %s, %d, %s' % (vr(VC + dt), dt * 20480, vr(VC)))
        a('v_bfe_u32 %s, %s, 2, 1' % (vr(t1), vr(t0)))
        a('v_lshlrev_b32 %s, 4, %s' % (vr(t1), vr(t1)))
        a('v_and_b32 %s, 3, %s' % (vr(VP), vr(t0)))
        a('v_add_u32 %s, %s, %s' % (vr(t1), vr(t1), vr(VP)))
        a('v_lshrrev_b32 %s, 3, %s' % (vr(VP), vr(t0)))
        a('v_lshl_add_u32 %s, %s, 2, %s' % (vr(t1), vr(VP), vr(t1)))
        a('s_lshr_b32 s90, s%d, 1' % sW)
        a('s_lshl_b32 s90, s90, 5')
        a('s_and_b32 s91, s%d, 1' % sW)
        a('s_lshl_b32 s91, s91, 3')
        a('s_add_u32 s90, s90, s91')
        a('v_add_u32 %s, s90, %s' % (vr(t1), vr(t1)))
        a('v_mul_u32_u24 %s, 2560, %s' % (vr(VO), vr(t1)))
        a('v_lshl_add_u32 %s, %s, 4, %s' % (vr(VO), vr(t2), vr(VO)))
        a('v_mul_u32_u24 %s, 1280, %s' % (vr(VX), vr(t1)))
        a('v_lshl_add_u32 %s, %s, 3, %s' % (vr(VX), vr(t2), vr(VX)))
        a('s_mul_i32 s90, s%d, 160' % sC2)
        a('v_lshlrev_b32 %s, 3, %s' % (vr(VD), vr(t2)))
        a('v_add_u32 %s, s90, %s' % (vr(VD), vr(VD)))
        a('s_and_b32 s90, s%d, 1' % sR2)
        a('s_lshl_b32 s90, s90, 6')
        a('v_add_u32 %s, s90, %s' % (vr(VG), vr(t1)))
        a('v_lshlrev_b32 %s, 2, %s' % (vr(VG), vr(VG)))
        a('v_add_u32 %s, %d, %s' % (vr(VG), L_GATE, vr(VG)))
        a('s_barrier')
        a('ds_read_b32 %s, %s' % (vr(VG), vr(VG)))

        sW2, sCo, sH = 92, 93, 94
        a('s_mul_i32 s%d, s%d, 48' % (sW2, sC2))
        a('s_mul_i32 s90, s%d, 12' % sW)
        a('s_add_u32 s%d, s%d, s90' % (sW2, sW2))
        a('s_mul_i32 s%d, s%d, 5120' % (sW2, sW2))
        a('s_add_u32 s%d, s%d, 0x%x' % (sW2, sW2, W2T_OFF))
        a('s_mul_i32 s%d, s%d, 102400' % (sCo, sC2))
        a('s_and_b32 s90, s%d, 1' % sW)
        a('s_mul_i32 s90, s90, 640')
        a('s_add_u32 s%d, s%d, s90' % (sCo, sCo))
        a('s_mul_i32 s%d, s%d, %d' % (sH, sR2, 88 * 4096))
        a('s_add_u32 s%d, s%d, 0x%x' % (sH, sH, H_OFF))
        a('s_mul_i32 s90, s%d, 120' % sC2)
        a('s_mul_i32 s95, s%d, 30' % sW)
        a('s_add_u32 s90, s90, s95')
        a('s_lshl_b32 s90, s90, 3')
        a('s_add_u32 s95, s90, 0x%x' % W2F_OFF)
        a('v_min_u32 %s, 29, v0' % vr(t0))
        a('v_lshlrev_b32 %s, 3, %s' % (vr(t0), vr(t0)))
        self.poll('L_pw2', t0, 95, VP)

        steps = [('F', i) for i in range(12)] + [('S', i) for i in range(10)]
        pool = [('v', r) for r in arch_pool] + [('a', r) for r in acc_pool]
        wq, hq = {}, {}

        def q(x):
            return (vr if x[0] == 'v' else ar)(x[1], 4)

        def issue_w(k):
            kind, i = steps[k]
            for dt in range(5):
                r = pool.pop(0)
                wq[(k, dt)] = r
                if kind == 'F':
                    if dt < 4:
                        a('buffer_load_dwordx4 %s, %s, %s, s%d offen offset:%d sc1' % (q(r), vr(VL16), srd(R_WS), sW2, dt * 1024))
                    else:
                        a('buffer_load_dwordx4 %s, %s, %s, s%d offen sc1' % (q(r), vr(VL16B), srd(R_WS), sW2))
                else:
                    a('buffer_load_dwordx4 %s, %s, %s, s%d offen offset:%d' % (q(r), vr(VC + dt), srd(R_C), sCo, 64 * i))
            if kind == 'F':
                a('s_add_u32 s%d, s%d, 5120' % (sW2, sW2))

        sHk = 95

        def issue_h(k):
            kind, i = steps[k]
            if kind == 'F':
                a('s_mul_i32 s90, s%d, 12' % sW)
                a('s_add_u32 s90, s90, %d' % i)
            else:
                a('s_mul_i32 s90, s%d, 10' % sW)
                a('s_add_u32 s90, s90, %d' % (48 + i))
            a('s_lshl_b32 s90, s90, 12')
            a('s_add_u32 s%d, s90, s%d' % (sHk, sH))
            for dl in range(4):
                r = pool.pop(0)
                hq[(k, dl)] = r
                a('buffer_load_dwordx4 %s, %s, %s, s%d offen sc1' % (q(r), vr(VH + dl), srd(R_WS), sHk))

        WD = self.o.get('wdepth', 12)
        HD = self.o.get('hdepth', 8)
        for k in range(WD):
            issue_w(k)
        XS, DS = 104 + 0, 0
        a('s_lshl_b32 s90, s%d, 2' % sR)
        a('s_and_b32 s95, s%d, 1' % sR2)
        a('s_lshl_b32 s95, s95, 1')
        a('s_add_u32 s90, s90, s95')
        a('s_lshl_b32 s90, s90, 7')
        a('s_add_u32 s95, s90, 0x%x' % FLAG_OFF)
        a('v_and_b32 %s, 31, v0' % vr(t0))
        a('v_lshlrev_b32 %s, 3, %s' % (vr(t0), vr(t0)))
        self.poll('L_pfl', t0, 95, VP)
        a('s_cmp_lg_u32 s%d, 31' % sR2)
        a('s_cbranch_scc1 L_noep')
        a('s_cmp_lg_u32 s%d, 0' % sC2)
        a('s_cbranch_scc1 L_noep')
        a('v_mov_b32 %s, s%d' % (vr(t1), sTAG))
        a('v_mov_b32 %s, 0x%x' % (vr(t0), EPOCH_OFF))
        a('buffer_store_dword %s, %s, %s, 0 offen sc1' % (vr(t1), vr(t0), srd(R_WS)))
        a.waitcnt(vm=0)
        a.label('L_noep')
        nh = 0
        while nh < HD and len(pool) >= 4:
            issue_h(nh)
            nh += 1
        nw = WD
        for k in range(22):
            for dt in range(5):
                for dl in range(4):
                    c = '0' if k == 0 else vr(acc(dt, dl), 4)
                    a('v_mfma_f32_16x16x32_bf16 %s, %s, %s, %s' % (vr(acc(dt, dl), 4), q(wq[(k, dt)]), q(hq[(k, dl)]), c))
            for dt in range(5):
                pool.append(wq[(k, dt)])
            for dl in range(4):
                pool.append(hq[(k, dl)])
            if nh < 22:
                issue_h(nh)
                nh += 1
            if nw < 22:
                issue_w(nw)
                nw += 1
        XR, DR = 104, 116
        a('s_mul_i32 s90, s%d, %d' % (sR2, 64 * 1280))
        a('s_mul_i32 s91, s%d, 160' % sC2)
        a('s_add_u32 s90, s90, s91')
        for dt in range(5):
            a('buffer_load_dwordx2 %s, %s, %s, s90 offen offset:%d' % (vr(XR + 2 * dt, 2), vr(VX), srd(R_X), 32 * dt))
            a('global_load_dwordx2 %s, %s, s[%d:%d] offset:%d' % (vr(DR + 2 * dt, 2), vr(VD), S_DSK, S_DSK + 1, 32 * dt))
        a('s_barrier')
        for dl in range(1, 4):
            for dt in range(5):
                a('ds_write_b128 %s, %s offset:%d' % (vr(VRW + dl - 1), vr(acc(dt, dl), 4), dt * 1024))
        a.waitcnt(lg=0)
        a('s_barrier')
        RB = 128
        for sl in range(3):
            for dt in range(5):
                a('ds_read_b128 %s, %s offset:%d' % (vr(RB + 4 * (5 * sl + dt), 4), vr(VRR), (sl * 5 + dt) * 1024))
        a('s_mul_i32 s90, s%d, %d' % (sR2, 64 * 2560))
        a('s_mul_i32 s91, s%d, 320' % sC2)
        a('s_add_u32 s90, s90, s91')
        for dt in range(5):
            xs, ds = XR + 2 * dt, DR + 2 * dt
            tx, td = 200, 204
            a('v_lshlrev_b32 %s, 16, %s' % (vr(tx), vr(xs)))
            a('v_and_b32 %s, 0xffff0000, %s' % (vr(tx + 1), vr(xs)))
            a('v_lshlrev_b32 %s, 16, %s' % (vr(tx + 2), vr(xs + 1)))
            a('v_and_b32 %s, 0xffff0000, %s' % (vr(tx + 3), vr(xs + 1)))
            a('v_lshlrev_b32 %s, 16, %s' % (vr(td), vr(ds)))
            a('v_and_b32 %s, 0xffff0000, %s' % (vr(td + 1), vr(ds)))
            a('v_lshlrev_b32 %s, 16, %s' % (vr(td + 2), vr(ds + 1)))
            a('v_and_b32 %s, 0xffff0000, %s' % (vr(td + 3), vr(ds + 1)))
            for r in range(4):
                a('v_mul_f32 %s, %s, %s' % (vr(tx + r), vr(tx + r), vr(td + r)))
            for r in range(4):
                d = acc(dt, 0) + r
                a('v_fmac_f32 %s, %s, %s' % (vr(d), vr(VG), vr(tx + r)))
                for sl in range(3):
                    a('v_add_f32 %s, %s, %s' % (vr(d), vr(d), vr(RB + 4 * (5 * sl + dt) + r)))
            a('buffer_store_dwordx4 %s, %s, %s, s90 offen offset:%d' % (vr(acc(dt, 0), 4), vr(VO), srd(R_OUT), 64 * dt))

    def kernel(self):
        a = self.a
        self.prologue()
        a('s_cmp_ge_u32 s%d, 6' % sCC)
        a.settle()
        a('s_cbranch_scc1 L_typeB')
        snap = a.snapshot()
        self.phase1('A')
        a('s_branch L_phase2')
        a.label('L_typeB')
        a.restore(snap)
        self.phase1('B')
        a.label('L_phase2')
        self.phase2()
        a.label('L_exit')
        a('s_endpgm')
        head = open('gated_mix__ssm_conv_s5__dense_activation_relu__prompt.s.ref').read().split('\n')
        hdr = [ln for ln in head if ln.startswith(';') and '@launch' not in ln and 'Override' not in ln and 'grid=ceil' not in ln]
        out = '\n'.join(hdr) + '\n'
        out += '; @launch grid=(256,1,1) block=(256,1,1) lds=%d\n' % LDS_BYTES
        out += '.amdgcn_target "amdgcn-amd-amdhsa--gfx950"\n.text\n.globl %s\n.p2align 8\n.type %s,@function\n%s:\n' % (KNAME, KNAME, KNAME)
        out += a.text()
        out += '''.section .rodata,"a"
.p2align 6
.amdhsa_kernel %s
  .amdhsa_next_free_vgpr 512
  .amdhsa_next_free_sgpr 102
  .amdhsa_accum_offset 256
  .amdhsa_group_segment_fixed_size 0
  .amdhsa_kernarg_size 128
  .amdhsa_user_sgpr_count 2
  .amdhsa_user_sgpr_kernarg_segment_ptr 1
  .amdhsa_system_sgpr_workgroup_id_x 1
  .amdhsa_float_denorm_mode_32 3
.end_amdhsa_kernel
''' % KNAME
        return out


if __name__ == '__main__':
    opts = {}
    for arg in sys.argv[2:]:
        k, v = arg.split('=')
        opts[k] = int(v, 0)
    g = Gen(opts)
    txt = g.kernel()
    open(sys.argv[1], 'w').write(txt)
    print('instructions', g.a.n_ins, g.a.stats, 'nop states', g.a.nop_states, 'bytes of text', len(txt))
```

```python
import sys, math, struct
from asmgen import Asm, Ins, WaitVM, WaitLG, interleave

KNAME = 'gated_mix__ssm_conv_s5__dense_activation_relu__prompt_kernel'

EPOCH_OFF = 0
FLAG_OFF = 0x1000
W2F_OFF = 0x4000
AGG_OFF = 0x10000
W2T_OFF = 0x40000
H_OFF = 0x240000
STAMP_OFF = 0x1000000
WS_BYTES = 268435456
OOB = 0x40000000

SLOT = 20480
MISC = 7 * SLOT
L_GW = MISC
L_GATE = MISC + 2048
L_W2S = MISC + 2560
L_SEG = MISC + 2560 + 8192
L_LB = L_W2S
LDS_BYTES = 163840
assert L_SEG + 5120 <= LDS_BYTES

S_X, S_LRE, S_LIM, S_BRE, S_BIM, S_CRE, S_CIM, S_LDT = 4, 6, 8, 10, 12, 14, 16, 18
S_DSK, S_BX, S_W1, S_W2, S_GWP, S_OUT, S_DBG, S_WS = 20, 22, 24, 26, 28, 30, 32, 34
R_X, R_WS, R_BRE, R_BIM, R_W1, R_W2, R_GW = 36, 40, 44, 48, 52, 56, 60
R_C, R_OUT = 44, 48
sTAG, sTAG2, sW, sR, sG, sA, sR2, sC2, sC16, sHALF, sCC = 64, 65, 66, 67, 68, 69, 70, 71, 72, 73, 74
sE = 75
S_MASK = 76
sT = [90, 91, 92, 93, 94, 95, 96, 97, 98, 99]
sXROW = 3


def srd(r):
    return 's[%d:%d]' % (r, r + 3)


def vr(b, n=1):
    return 'v%d' % b if n == 1 else 'v[%d:%d]' % (b, b + n - 1)


def ar(b, n=1):
    return 'a%d' % b if n == 1 else 'a[%d:%d]' % (b, b + n - 1)


def f2u(x):
    return struct.unpack('<I', struct.pack('<f', x))[0]


LOG2E = '0x%08x' % f2u(math.log2(math.e))
INV2PI = '0x%08x' % f2u(1.0 / (2 * math.pi))


class Gen:
    def __init__(self, opts):
        self.o = opts
        self.a = Asm()
        self.stamp_idx = 0

    def stamp(self, k, clock=False):
        if not self.o.get('stamps'):
            return
        a = self.a
        a('%s s[100:101]' % ('s_memtime' if clock else 's_memrealtime'))
        a.waitcnt(lg=0)
        a('v_accvgpr_write_b32 a%d, s100' % (240 + k))

    def dump_stamps(self):
        if not self.o.get('stamps'):
            return
        a = self.a
        self.stamp(12)
        self.stamp(14, clock=True)
        a.drain()
        for k in range(16):
            a('v_accvgpr_read_b32 v%d, a%d' % (16 + k, 240 + k))
        a('s_lshl_b32 s90, s2, 2')
        a('s_add_u32 s90, s90, s%d' % sW)
        a('s_lshl_b32 s90, s90, 6')
        a('s_add_u32 s90, s90, 0x%x' % STAMP_OFF)
        a('v_mov_b32 v1, 0')
        for k in range(4):
            a('buffer_store_dwordx4 v[%d:%d], v1, %s, s90 offen offset:%d' % (16 + 4 * k, 19 + 4 * k, srd(R_WS), 16 * k))
        a('s_cmp_eq_u32 s%d, 0' % sW)
        a('s_cbranch_scc0 L_nodbg')
        a('s_cmp_eq_u32 s2, %d' % self.o.get('dbgwg', 0))
        a('s_cbranch_scc0 L_nodbg')
        for k in range(1, 13):
            a('v_sub_u32 v%d, v%d, v16' % (16 + k, 16 + k))
        a('v_sub_u32 v30, v30, v29')
        a('v_mov_b32 v1, 0')
        a('s_mov_b32 s92, s%d' % S_DBG)
        a('s_and_b32 s93, s%d, 0xffff' % (S_DBG + 1))
        a('s_mov_b32 s94, 256')
        a('s_mov_b32 s95, 0x20000')
        for k in range(4):
            a('buffer_store_dwordx4 v[%d:%d], v1, s[92:95], 0 offen offset:%d' % (16 + 4 * k, 19 + 4 * k, 16 * k))
        a.waitcnt(vm=0)
        a.label('L_nodbg')

    def build_srd(self, r, ptr, nbytes):
        a = self.a
        a('s_mov_b32 s%d, s%d' % (r, ptr))
        a('s_and_b32 s%d, s%d, 0xffff' % (r + 1, ptr + 1))
        a('s_mov_b32 s%d, 0x%x' % (r + 2, nbytes))
        a('s_mov_b32 s%d, 0x20000' % (r + 3))

    def prologue(self):
        a = self.a
        a('s_cmp_ge_u32 s2, 256')
        a('s_cbranch_scc1 L_exit')
        self.stamp(0)
        self.stamp(13, clock=True)
        a('s_load_dwordx16 s[4:19], s[0:1], 0')
        a('s_load_dwordx16 s[20:35], s[0:1], 64')
        a.many('''
            s_and_b32 s90, s2, 7
            s_lshr_b32 s91, s2, 3
            s_lshr_b32 s92, s90, 1
            s_and_b32 s%(half)d, s90, 1
            s_lshl_b32 s93, s92, 2
            s_lshr_b32 s94, s91, 3
            s_add_u32 s%(r)d, s93, s94
            s_and_b32 s%(cc)d, s91, 7
            s_lshl_b32 s93, s%(half)d, 3
            s_add_u32 s%(c16)d, s93, s%(cc)d
            s_lshl_b32 s93, s92, 3
            s_lshr_b32 s94, s91, 2
            s_add_u32 s%(r2)d, s93, s94
            s_lshl_b32 s93, s%(half)d, 2
            s_and_b32 s94, s91, 3
            s_add_u32 s%(c2)d, s93, s94
        ''' % dict(half=sHALF, r=sR, cc=sCC, c16=sC16, r2=sR2, c2=sC2))
        a('v_lshrrev_b32 v1, 6, v0')
        a('v_and_b32 v0, 63, v0')
        a('v_readfirstlane_b32 s%d, v1' % sW)
        a.many('''
            s_mul_i32 s93, s%(half)d, 6
            s_add_u32 s%(A)d, s93, s%(cc)d
            s_lshl_b32 s93, s%(half)d, 1
            s_add_u32 s93, s93, s%(cc)d
            s_sub_u32 s93, s93, 6
            s_lshl_b32 s93, s93, 1
            s_add_u32 s93, s93, 12
            s_cmp_lt_u32 s%(cc)d, 6
            s_cselect_b32 s%(G)d, s%(A)d, s93
        ''' % dict(half=sHALF, A=sA, cc=sCC, G=sG))
        a.waitcnt(lg=0)
        self.stamp(1)
        a('s_load_dword s%d, s[%d:%d], 0x%x' % (sE, S_WS, S_WS + 1, EPOCH_OFF))
        self.build_srd(R_X, S_X, 2621440)
        self.build_srd(R_WS, S_WS, WS_BYTES)
        self.build_srd(R_BRE, S_BRE, 819200)
        self.build_srd(R_BIM, S_BIM, 819200)
        self.build_srd(R_W1, S_W1, 1966080)
        self.build_srd(R_W2, S_W2, 1966080)
        self.build_srd(R_GW, S_GWP, 1280)
        a.many('''
            s_lshl_b32 s90, s%d, 2
            s_add_u32 s90, s90, s%d
            s_mul_i32 s%d, s90, 40960
        ''' % (sR, sW, sXROW))

    def lane_t(self, dst, src, tmp):
        a = self.a
        a('v_bfe_u32 %s, %s, 2, 1' % (vr(tmp), vr(src)))
        a('v_lshlrev_b32 %s, 4, %s' % (vr(tmp), vr(tmp)))
        a('v_and_b32 %s, 3, %s' % (vr(dst), vr(src)))
        a('v_add_u32 %s, %s, %s' % (vr(dst), vr(dst), vr(tmp)))
        a('v_lshrrev_b32 %s, 3, %s' % (vr(tmp), vr(src)))
        a('v_lshl_add_u32 %s, %s, 2, %s' % (vr(dst), vr(tmp), vr(dst)))

    def phase1(self, typ):
        a = self.a
        A = typ == 'A'
        V = {}
        nxt = [1]

        def al(name, n=1, align=1):
            nxt[0] = (nxt[0] + align - 1) // align * align
            V[name] = nxt[0]
            nxt[0] += n
            return V[name]
        for nm in ('XA', 'XB', 'WS', 'WF', 'ST', 'AG', 'LB0', 'LB1', 'SEGW', 'SEGR', 'GW', 'G', 'OMG', 'W2D', 'W2R'):
            al(nm)
        al('RS', 4)
        if A:
            al('RF', 6)
        ngrp = 1 if A else 2
        for g in range(ngrp):
            for nm in ('lr', 'li', 'nli', 'l16r', 'l16i', 'lsr', 'lsi', 'p1r', 'p1i', 'p2r', 'p2i', 'cr', 'ci'):
                al('%s%d' % (nm, g))
        assert nxt[0] <= 48, nxt[0]
        STG = 48
        RING = 96
        ACC = [112, 48]
        XV = 144
        NXV = 28
        TMP = 48 if A else 80
        A_X = 0
        A_F = [48, 64]

        def XF(s):
            return vr(XV + 4 * s, 4) if s < NXV else ar(A_X + 4 * (s - NXV), 4)
        self.V = V

        T0, T1, T2, T3 = STG, STG + 1, STG + 2, STG + 3
        a('v_and_b32 %s, 15, v0' % vr(T0))
        self.lane_t(T1, T0, T2)
        a('v_mul_u32_u24 %s, 1280, %s' % (vr(T1), vr(T1)))
        a('v_lshrrev_b32 %s, 4, v0' % vr(T2))
        a('v_lshl_add_u32 %s, %s, 4, %s' % (vr(V['XA']), vr(T2), vr(T1)))
        a('v_add_u32 %s, 10240, %s' % (vr(V['XB']), vr(V['XA'])))

        a('v_lshrrev_b32 %s, 1, v0' % vr(T0))
        a('v_mul_u32_u24 %s, 1280, %s' % (vr(T0), vr(T0)))
        a('v_and_b32 %s, 1, v0' % vr(T1))
        a('v_lshl_add_u32 %s, %s, 4, %s' % (vr(T0), vr(T1), vr(T0)))
        a('s_lshl_b32 s90, s2, 2')
        a('s_add_u32 s90, s90, s%d' % sW)
        a('s_cmp_lt_u32 s90, 960')
        a('s_cselect_b32 s91, 0, 0x%x' % OOB)
        a('v_add_u32 %s, s91, %s' % (vr(T0), vr(T0)))
        a('v_lshlrev_b32 %s, 4, v0' % vr(V['W2D']))
        a('v_add_u32 %s, s91, %s' % (vr(V['W2D']), vr(V['W2D'])))
        self.sGWI = 98
        a('s_mov_b32 s%d, s90' % self.sGWI)
        w2_dma = []
        for e in range(2):
            a('s_min_u32 s91, s%d, 959' % self.sGWI)
            a('s_lshl_b32 s91, s91, 1')
            if e:
                a('s_add_u32 s91, s91, 1')
            a('s_mul_hi_u32 s92, s91, 0x%x' % ((1 << 32) // 240 + 1))
            a('s_mul_i32 s93, s92, 240')
            a('s_sub_u32 s93, s91, s93')
            a('s_mul_hi_u32 s94, s93, 0x%x' % ((1 << 32) // 5 + 1))
            a('s_mul_i32 s95, s94, 5')
            a('s_sub_u32 s95, s93, s95')
            a('s_mul_i32 s94, s94, 40960')
            a('s_mul_i32 s92, s92, 160')
            a('s_add_u32 s94, s94, s92')
            a('s_lshl_b32 s95, s95, 5')
            a('s_add_u32 s94, s94, s95')
            a('s_lshl_b32 s95, s%d, 11' % sW)
            a('s_add_u32 m0, s95, %d' % (L_W2S + 1024 * e))
            w2_dma.append(a('buffer_load_dwordx4 %s, %s, s94 offen lds' % (vr(T0), srd(R_W2))))
        a('v_lshlrev_b32 %s, 4, v0' % vr(T1))
        a('s_mov_b32 m0, %d' % L_GW)
        a('s_nop 0')
        a('buffer_load_dwordx4 %s, %s, 0 offen lds' % (vr(T1), srd(R_GW)))
        a('s_mov_b32 m0, %d' % L_GW)
        a('s_nop 0')
        gw_dma = a('buffer_load_dwordx4 %s, %s, 0 offen offset:1024 lds' % (vr(T1), srd(R_GW)))

        n_ = T0
        a('v_and_b32 %s, 31, v0' % vr(n_))
        a('v_and_b32 %s, 19, %s' % (vr(T1), vr(n_)))
        a('v_bfe_u32 %s, %s, 2, 1' % (vr(T2), vr(n_)))
        a('v_lshl_add_u32 %s, %s, 3, %s' % (vr(T1), vr(T2), vr(T1)))
        a('v_bfe_u32 %s, %s, 3, 1' % (vr(T2), vr(n_)))
        a('v_lshl_add_u32 %s, %s, 2, %s' % (vr(T1), vr(T2), vr(T1)))
        a('v_lshlrev_b32 %s, 1, %s' % (vr(T2), vr(T1)))
        par_ld = []
        for g in range(ngrp):
            a('s_add_u32 s90, s%d, %d' % (sG, g))
            a('s_lshl_b32 s90, s90, 6')
            a('v_add_u32 %s, s90, %s' % (vr(T3), vr(T2)))
            a('global_load_ushort %s, %s, s[%d:%d]' % (vr(V['lr%d' % g]), vr(T3), S_LRE, S_LRE + 1))
            a('global_load_ushort %s, %s, s[%d:%d]' % (vr(V['li%d' % g]), vr(T3), S_LIM, S_LIM + 1))
            a('global_load_ushort %s, %s, s[%d:%d]' % (vr(V['cr%d' % g]), vr(T3), S_LDT, S_LDT + 1))

        a('v_lshrrev_b32 %s, 3, v0' % vr(T0))
        a('s_lshl_b32 s90, s%d, 3' % sW)
        a('v_add_u32 %s, s90, %s' % (vr(T0), vr(T0)))
        a('v_and_b32 %s, 19, %s' % (vr(T1), vr(T0)))
        a('v_bfe_u32 %s, %s, 2, 1' % (vr(T2), vr(T0)))
        a('v_lshl_add_u32 %s, %s, 3, %s' % (vr(T1), vr(T2), vr(T1)))
        a('v_bfe_u32 %s, %s, 3, 1' % (vr(T2), vr(T0)))
        a('v_lshl_add_u32 %s, %s, 2, %s' % (vr(T1), vr(T2), vr(T1)))
        a('v_mul_u32_u24 %s, 1280, %s' % (vr(T1), vr(T1)))
        a('v_bfe_u32 %s, %s, 1, 3' % (vr(T2), vr(T0)))
        a('v_and_b32 %s, 7, v0' % vr(T3))
        a('v_xor_b32 %s, %s, %s' % (vr(T2), vr(T2), vr(T3)))
        a('v_lshl_add_u32 %s, %s, 4, %s' % (vr(V['WS']), vr(T2), vr(T1)))
        if A:
            a('v_lshrrev_b32 %s, 3, v0' % vr(T0))
            a('v_mul_u32_u24 %s, 3072, %s' % (vr(T1), vr(T0)))
            a('v_bfe_u32 %s, %s, 1, 1' % (vr(T2), vr(T0)))
            a('v_lshlrev_b32 %s, 2, %s' % (vr(T2), vr(T2)))
            a('v_xor_b32 %s, %s, %s' % (vr(T2), vr(T2), vr(T3)))
            a('v_lshl_add_u32 %s, %s, 4, %s' % (vr(V['WF']), vr(T2), vr(T1)))

        def ssm_dma(g, stage, slot):
            items = []
            R = R_BRE if stage % 2 == 0 else R_BIM
            kh = stage // 2
            items.append(Ins('s_add_u32 s92, s%d, %d' % (sG, g)))
            items.append(Ins('s_mul_i32 s92, s92, 40960'))
            if kh:
                items.append(Ins('s_add_u32 s92, s92, 640'))
            items.append(Ins('s_lshl_b32 s93, s%d, 10' % sW))
            last = None
            for kb in range(5):
                items.append(Ins('s_add_u32 m0, s93, %d' % (slot * SLOT + kb * 4096 - kb * 128)))
                items.append(Ins('s_nop 0'))
                last = Ins('buffer_load_dwordx4 %s, %s, s92 offen offset:%d lds' % (vr(V['WS']), srd(R), kb * 128))
                items.append(last)
            return items, last

        def ffn_dma(fst, slot):
            items = []
            blk, st = fst >> 2, fst & 3
            items.append(Ins('s_lshl_b32 s92, s%d, 8' % sA))
            items.append(Ins('s_mul_i32 s94, s%d, 24576' % sW))
            items.append(Ins('s_add_u32 s92, s92, s94'))
            items.append(Ins('s_add_u32 s92, s92, %d' % (160 * st * 3072 + 128 * blk)))
            items.append(Ins('s_lshl_b32 s93, s%d, 10' % sW))
            last = None
            for i2 in range(5):
                items.append(Ins('s_add_u32 m0, s93, %d' % (slot * SLOT + i2 * 4096)))
                if i2:
                    items.append(Ins('s_add_u32 s92, s92, %d' % (32 * 3072)))
                else:
                    items.append(Ins('s_nop 0'))
                last = Ins('buffer_load_dwordx4 %s, %s, s92 offen lds' % (vr(V['WF']), srd(R_W1)))
                items.append(last)
            return items, last

        def put_all(items):
            for it in items:
                a.put(it)

        def xload(b):
            da = XV + 8 * b if 2 * b < NXV else STG + 8 * (b - NXV // 2)
            l0 = a('buffer_load_dwordx4 %s, %s, %s, s%d offen offset:%d' % (vr(da, 4), vr(V['XA']), srd(R_X), sXROW, 64 * b))
            l1 = a('buffer_load_dwordx4 %s, %s, %s, s%d offen offset:%d' % (vr(da + 4, 4), vr(V['XB']), srd(R_X), sXROW, 64 * b))
            return da

        if A:
            seq = [('S', 0, 0), ('S', 0, 1), ('S', 0, 2), ('S', 0, 3)] + [('F', 0, i) for i in range(8)]
        else:
            seq = [('S', 0, i) for i in range(4)] + [('S', 1, i) for i in range(4)]
        slot_of = [i % 7 for i in range(len(seq))]
        if A:
            slot_of = [0, 1, 2, 3, 4, 5, 6, 0, 1, 2, 3, 4]
        dma_last = [None] * len(seq)

        def issue_stage(i):
            kind, g, st = seq[i]
            items, last = ssm_dma(g, st, slot_of[i]) if kind == 'S' else ffn_dma(st, slot_of[i])
            dma_last[i] = last
            return items

        xdst = {}
        for b in range(0, 5):
            xdst[b] = xload(b)
        put_all(issue_stage(0))
        for b in range(5, 10):
            xdst[b] = xload(b)
        put_all(issue_stage(1))
        for b in range(10, 15):
            xdst[b] = xload(b)
        put_all(issue_stage(2))
        for b in range(15, 20):
            xdst[b] = xload(b)
        put_all(issue_stage(3))

        U0, U1, U2, U3 = RING, RING + 1, RING + 2, RING + 3
        a('v_and_b32 %s, 31, v0' % vr(U0))
        a('v_lshrrev_b32 %s, 5, v0' % vr(U1))
        a('v_bfe_u32 %s, %s, 1, 3' % (vr(U2), vr(U0)))
        a('v_lshlrev_b32 %s, 1, %s' % (vr(U3), vr(U1)))
        a('v_xor_b32 %s, %s, %s' % (vr(U2), vr(U2), vr(U3)))
        a('v_lshrrev_b32 %s, 3, %s' % (vr(U3), vr(U0)))
        a('v_lshlrev_b32 %s, 10, %s' % (vr(U3), vr(U3)))
        a('v_and_b32 %s, 7, %s' % (vr(RING + 4), vr(U0)))
        a('v_lshl_add_u32 %s, %s, 7, %s' % (vr(U3), vr(RING + 4), vr(U3)))
        for u in range(2):
            for ab in range(2):
                d = V['RS'] + 2 * u + ab
                a('v_xor_b32 %s, %d, %s' % (vr(d), 4 * u + ab, vr(U2)))
                a('v_lshl_add_u32 %s, %s, 4, %s' % (vr(d), vr(d), vr(U3)))
        a('v_lshlrev_b32 %s, 5, %s' % (vr(V['GW']), vr(U1)))
        a('v_add_u32 %s, %d, %s' % (vr(V['GW']), L_GW, vr(V['GW'])))
        a('v_lshrrev_b32 %s, 4, %s' % (vr(U2), vr(U0)))
        a('v_lshlrev_b32 %s, 10, %s' % (vr(U2), vr(U2)))
        a('v_and_b32 %s, 15, %s' % (vr(U3), vr(U0)))
        a('v_lshl_add_u32 %s, %s, 4, %s' % (vr(U3), vr(U1), vr(U3)))
        a('v_lshl_add_u32 %s, %s, 4, %s' % (vr(V['ST']), vr(U3), vr(U2)))
        a('v_lshlrev_b32 %s, 4, %s' % (vr(V['AG']), vr(U0)))
        a('v_mul_u32_u24 %s, 80, %s' % (vr(V['SEGR']), vr(U0)))
        a('v_add_u32 %s, %d, %s' % (vr(V['SEGR']), MISC, vr(V['SEGR'])))
        a('s_lshl_b32 s90, s%d, 1' % sW)
        a('v_add_u32 %s, s90, %s' % (vr(U2), vr(U1)))
        a('v_lshl_add_u32 %s, %s, 3, %s' % (vr(V['SEGW']), vr(U2), vr(V['SEGR'])))
        for s in range(1, 8):
            a('v_cmp_eq_u32 s[%d:%d], %d, %s' % (S_MASK + 2 * (s - 1), S_MASK + 2 * (s - 1) + 1, s, vr(U2)))
        SEGV = RING + 5
        a('v_mov_b32 %s, %s' % (vr(SEGV), vr(U2)))
        EXPO = [RING + 6, RING + 7]
        for i2 in range(2):
            a('v_add_u32 %s, %d, %s' % (vr(U3), 8 * i2, vr(SEGV)))
            a('v_cmp_gt_u32 vcc, s%d, %s' % (sR, vr(U3)))
            a('v_sub_u32 %s, s%d, %s' % (vr(EXPO[i2]), sR, vr(U3)))
            a('v_add_u32 %s, -1, %s' % (vr(EXPO[i2]), vr(EXPO[i2])))
            a('v_cndmask_b32 %s, -1, %s, vcc' % (vr(EXPO[i2]), vr(EXPO[i2])))
            a('v_cndmask_b32 %s, 0, %s, vcc' % (vr(U3), vr(U3)))
            a('v_lshl_add_u32 %s, %s, 9, %s' % (vr(V['LB%d' % i2]), vr(U3), vr(V['AG'])))
        if A:
            jl, mh = RING + 8, RING + 9
            a('v_and_b32 %s, 15, v0' % vr(jl))
            a('v_bfe_u32 %s, v0, 4, 1' % vr(mh))
            a('v_lshrrev_b32 %s, 2, %s' % (vr(U2), vr(jl)))
            a('v_lshl_add_u32 %s, %s, 4, %s' % (vr(U2), vr(U1), vr(U2)))
            a('v_lshlrev_b32 %s, 7, %s' % (vr(U2), vr(U2)))
            a('v_and_b32 %s, 1, %s' % (vr(U3), vr(jl)))
            a('v_lshl_add_u32 %s, %s, 3, %s' % (vr(U2), vr(U3), vr(U2)))
            a('v_bfe_u32 %s, %s, 1, 1' % (vr(U3), vr(jl)))
            a('v_lshl_add_u32 %s, %s, 1, %s' % (vr(U3), vr(mh), vr(U3)))
            a('v_bfe_u32 %s, %s, 3, 1' % (vr(RING + 10), vr(jl)))
            a('v_lshlrev_b32 %s, 2, %s' % (vr(RING + 10), vr(RING + 10)))
            a('v_xor_b32 %s, %s, %s' % (vr(U3), vr(U3), vr(RING + 10)))
            for tp in range(2):
                d = V['RF'] + tp
                a('v_xor_b32 %s, %d, %s' % (vr(d), 4 * tp, vr(U3)))
                a('v_lshl_add_u32 %s, %s, 4, %s' % (vr(d), vr(d), vr(U2)))
                a('v_add_u32 %s, %d, %s' % (vr(d + 2), 3 * SLOT, vr(d)))
                a('v_add_u32 %s, %d, %s' % (vr(d + 4), 6 * SLOT, vr(d)))
        a('v_lshrrev_b32 %s, 5, v0' % vr(U2))
        a('v_lshlrev_b32 %s, 4, %s' % (vr(U2), vr(U2)))
        a('v_bfe_u32 %s, v0, 4, 1' % vr(U3))
        a('v_lshl_add_u32 %s, %s, 2, %s' % (vr(U2), vr(U3), vr(U2)))
        a('v_bfe_u32 %s, v0, 2, 2' % vr(U3))
        a('v_add_u32 %s, %s, %s' % (vr(U2), vr(U2), vr(U3)))
        a('v_lshlrev_b32 %s, 5, %s' % (vr(U2), vr(U2)))
        a('v_and_b32 %s, 3, v0' % vr(U3))
        a('v_lshl_add_u32 %s, %s, 3, %s' % (vr(U2), vr(U3), vr(U2)))
        a('s_lshl_b32 s90, s%d, 11' % sW)
        a('s_add_u32 s90, s90, %d' % L_W2S)
        a('v_add_u32 %s, s90, %s' % (vr(V['W2R']), vr(U2)))

        for i in range(4, 7):
            put_all(issue_stage(i))

        self.stamp(2)
        def cpow(dr, di, m_reg, m_const, aL, bR, t0, t1):
            if m_reg is not None:
                a('v_mul_f32 %s, %s, %s' % (vr(t0), vr(m_reg), vr(aL)))
                a('v_mul_f32 %s, %s, %s' % (vr(t1), vr(m_reg), vr(bR)))
            else:
                a('v_mul_f32 %s, 0x%08x, %s' % (vr(t0), f2u(float(m_const)), vr(aL)))
                a('v_mul_f32 %s, 0x%08x, %s' % (vr(t1), f2u(float(m_const)), vr(bR)))
            a('v_exp_f32 %s, %s' % (vr(t0), vr(t0)))
            a('v_fract_f32 %s, %s' % (vr(t1), vr(t1)))
            a('v_cos_f32 %s, %s' % (vr(dr), vr(t1)))
            a('v_sin_f32 %s, %s' % (vr(di), vr(t1)))
            a('v_mul_f32 %s, %s, %s' % (vr(dr), vr(t0), vr(dr)))
            a('v_mul_f32 %s, %s, %s' % (vr(di), vr(t0), vr(di)))

        P0, P1, P2, P3, P4, P5 = RING + 8, RING + 9, RING + 10, RING + 11, RING + 12, RING + 13
        FS, FE0, FE1 = RING + 14, RING + 15, RING + 4
        a('v_cvt_f32_u32 %s, %s' % (vr(FS), vr(SEGV)))
        a('v_mul_f32 %s, 0x41800000, %s' % (vr(FS), vr(FS)))
        a('v_cvt_f32_i32 %s, %s' % (vr(FE0), vr(EXPO[0])))
        a('v_cvt_f32_i32 %s, %s' % (vr(FE1), vr(EXPO[1])))
        a('v_mul_f32 %s, 0x43000000, %s' % (vr(FE0), vr(FE0)))
        a('v_mul_f32 %s, 0x43000000, %s' % (vr(FE1), vr(FE1)))
        for g in range(ngrp):
            lr, li, nli, cr, ci = (V[x + str(g)] for x in ('lr', 'li', 'nli', 'cr', 'ci'))
            a('v_lshlrev_b32 %s, 16, %s' % (vr(P0), vr(lr)))
            a('v_lshlrev_b32 %s, 16, %s' % (vr(P1), vr(li)))
            a('v_lshlrev_b32 %s, 16, %s' % (vr(P2), vr(cr)))
            a('v_mul_f32 %s, %s, %s' % (vr(P2), LOG2E, vr(P2)))
            a('v_exp_f32 %s, %s' % (vr(P2), vr(P2)))
            a('v_cvt_pk_bf16_f32 %s, %s, %s' % (vr(P2), vr(P2), vr(P2)))
            a('v_lshlrev_b32 %s, 16, %s' % (vr(P2), vr(P2)))
            a('v_mul_f32 %s, %s, %s' % (vr(P3), vr(P2), vr(P0)))
            a('v_mul_f32 %s, %s, %s' % (vr(P4), vr(P2), vr(P1)))
            a('v_mul_f32 %s, %s, %s' % (vr(P3), LOG2E, vr(P3)))
            a('v_mul_f32 %s, %s, %s' % (vr(P4), INV2PI, vr(P4)))
            cpow(lr, li, None, 1, P3, P4, P2, P5)
            a('v_sub_f32 %s, 0, %s' % (vr(nli), vr(li)))
            cpow(V['l16r%d' % g], V['l16i%d' % g], None, 16, P3, P4, P2, P5)
            cpow(V['lsr%d' % g], V['lsi%d' % g], FS, None, P3, P4, P2, P5)
            for k, (fe, ex) in enumerate(((FE0, EXPO[0]), (FE1, EXPO[1]))):
                pr, pi = V['p%dr%d' % (k + 1, g)], V['p%di%d' % (k + 1, g)]
                cpow(pr, pi, fe, None, P3, P4, P2, P5)
                a('v_cmp_le_i32 vcc, 0, %s' % vr(ex))
                a('v_cndmask_b32 %s, 0, %s, vcc' % (vr(pr), vr(pr)))
                a('v_cndmask_b32 %s, 0, %s, vcc' % (vr(pi), vr(pi)))
            a('v_add_f32 %s, -1.0, %s' % (vr(P2), vr(lr)))
            a('v_mul_f32 %s, %s, %s' % (vr(P3), vr(P0), vr(P0)))
            a('v_fmac_f32 %s, %s, %s' % (vr(P3), vr(P1), vr(P1)))
            a('v_rcp_f32 %s, %s' % (vr(P3), vr(P3)))
            a('v_mul_f32 %s, %s, %s' % (vr(P4), vr(P2), vr(P0)))
            a('v_fmac_f32 %s, %s, %s' % (vr(P4), vr(li), vr(P1)))
            a('v_mul_f32 %s, %s, %s' % (vr(P5), vr(li), vr(P0)))
            a('v_fma_f32 %s, -%s, %s, %s' % (vr(P5), vr(P2), vr(P1), vr(P5)))
            a('v_add_f32 %s, %s, %s' % (vr(P3), vr(P3), vr(P3)))
            a('v_mul_f32 %s, %s, %s' % (vr(cr), vr(P4), vr(P3)))
            a('v_mul_f32 %s, %s, %s' % (vr(ci), vr(P5), vr(P3)))

        a.put(WaitVM(w2_dma[1]))
        for e in range(2):
            q = RING + 8 * 0 + 4 * e
            a('ds_read_b64_tr_b16 %s, %s offset:%d' % (vr(q, 2), vr(V['W2R']), 1024 * e))
            a('ds_read_b64_tr_b16 %s, %s offset:%d' % (vr(q + 2, 2), vr(V['W2R']), 1024 * e + 256))
        a('s_min_u32 s90, s%d, 959' % self.sGWI)
        a('s_lshl_b32 s90, s90, 11')
        a('s_add_u32 s90, s90, 0x%x' % W2T_OFF)
        a('buffer_store_dwordx4 %s, %s, %s, s90 offen sc1' % (vr(RING, 4), vr(V['W2D']), srd(R_WS)))
        w2_st = a('buffer_store_dwordx4 %s, %s, %s, s90 offen offset:1024 sc1' % (vr(RING + 4, 4), vr(V['W2D']), srd(R_WS)))
        a('s_add_u32 s%d, s%d, 1' % (sTAG, sE))
        a('s_xor_b32 s%d, s%d, 0x5bd1e995' % (sTAG2, sTAG))

        def xfix(b):
            items = []
            d = xdst[b]
            for e in range(4):
                items.append(Ins('v_permlane16_swap_b32 %s, %s' % (vr(d + e), vr(d + 4 + e))))
            if 2 * b >= NXV:
                for e in range(8):
                    items.append(Ins('v_accvgpr_write_b32 %s, %s' % (ar(A_X + 8 * (b - NXV // 2) + e), vr(d + e))))
            return items

        def ssm_stage(i, ring0):
            kind, g, st = seq[i]
            slot = slot_of[i]
            acc = ACC[g] + (16 if st % 2 else 0)
            kh = st // 2
            gate = (g == 0 and st % 2 == 0)
            reads, mf = [], []
            base = slot * SLOT
            rsb = V['RS']
            pre = []
            if base + SLOT > 65536:
                rsb = RING_ADDR
                pre = [Ins('v_add_u32 %s, %d, %s' % (vr(RING_ADDR + k), base, vr(V['RS'] + k))) for k in range(4)]
                base = 0
            out = list(pre)
            nq = 2 if gate else 4
            seqops = []
            for sp in range(20):
                bp, ab = sp >> 1, sp & 1
                kb, u = bp >> 1, bp & 1
                s = 20 * kh + sp
                q = RING + 4 * (sp % nq)
                rd = Ins('ds_read_b128 %s, %s offset:%d' % (vr(q, 4), vr(rsb + 2 * u + ab), base + kb * 4096))
                first = (kh == 0 and sp == 0)
                m = Ins('v_mfma_f32_32x32x16_bf16 %s, %s, %s, %s' % (vr(acc, 16), XF(s), vr(q, 4), '0' if first else vr(acc, 16)))
                grd = gm = None
                if gate:
                    gq = RING + 8 + 4 * (sp % 2)
                    b, abg = s >> 1, s & 1
                    grd = Ins('ds_read_b128 %s, %s offset:%d' % (vr(gq, 4), vr(V['GW']), 64 * b + 16 * abg))
                    gm = Ins('v_mfma_f32_32x32x16_bf16 %s, %s, %s, %s' % (ar(A_F[0], 16), vr(gq, 4), XF(s), '0' if s == 0 else ar(A_F[0], 16)))
                seqops.append((rd, m, grd, gm, s))
            dist = 1 if gate else 3
            for sp in range(dist):
                out.append(seqops[sp][0])
                if gate:
                    out.append(seqops[sp][2])
            for sp in range(20):
                rd, m, grd, gm, s = seqops[sp]
                if s % 2 == 0 and (s // 2) not in xfixed:
                    out += xfix(s // 2)
                    xfixed.add(s // 2)
                out.append(m)
                if gate:
                    out.append(gm)
                if sp + dist < 20:
                    out.append(seqops[sp + dist][0])
                    if gate:
                        out.append(seqops[sp + dist][2])
            return out
        RING_ADDR = V['W2D'] if False else None
        RING_ADDR = 92
        xfixed = set()

        def stage_open(i, refill=None, covers=None):
            for c in (covers or [i]):
                a.put(WaitVM(dma_last[c]))
            a.waitcnt(lg=0)
            a('s_barrier')
            if refill is not None:
                put_all(issue_stage(refill))

        a.put(WaitVM(gw_dma))
        stage_open(0)
        self.stamp(3)
        put_all(ssm_stage(0, 0))
        stage_open(1, refill=7)
        put_all(ssm_stage(1, 0))
        stage_open(2, refill=8 if A else None)
        put_all(ssm_stage(2, 0))
        stage_open(3, refill=9 if A else None)
        assert len(xfixed) == 20
        put_all(ssm_stage(3, 0))

        self.stamp(4)
        a.put(WaitVM(w2_st))
        a('v_mov_b32 %s, s%d' % (vr(RING), sTAG))
        a('v_mov_b32 %s, s%d' % (vr(RING + 1), sTAG2))
        a('s_lshl_b32 s90, s%d, 3' % self.sGWI)
        a('s_add_u32 s90, s90, 0x%x' % W2F_OFF)
        a('v_lshrrev_b32 %s, 4, %s' % (vr(RING + 2), vr(V['W2D'])))
        a('v_and_b32 %s, 0x%x, %s' % (vr(RING + 2), OOB >> 4, vr(RING + 2)))
        a('v_lshlrev_b32 %s, 4, %s' % (vr(RING + 2), vr(RING + 2)))
        a('buffer_store_dwordx2 %s, %s, %s, s90 offen sc1' % (vr(RING, 2), vr(RING + 2), srd(R_WS)))

        G, OMG = V['G'], V['OMG']
        t0, t1 = RING + 4, RING + 5
        a('v_accvgpr_read_b32 %s, %s' % (vr(t0), ar(A_F[0])))
        a('v_cvt_pk_bf16_f32 %s, %s, %s' % (vr(t0), vr(t0), vr(t0)))
        a('v_lshlrev_b32 %s, 16, %s' % (vr(t0), vr(t0)))
        a('v_mul_f32 %s, 0x%08x, %s' % (vr(t0), f2u(-math.log2(math.e)), vr(t0)))
        a('v_exp_f32 %s, %s' % (vr(t0), vr(t0)))
        a('v_add_f32 %s, 1.0, %s' % (vr(t0), vr(t0)))
        a('v_rcp_f32 %s, %s' % (vr(t0), vr(t0)))
        a('v_cvt_pk_bf16_f32 %s, %s, %s' % (vr(t0), vr(t0), vr(t0)))
        a('v_lshlrev_b32 %s, 16, %s' % (vr(G), vr(t0)))
        a('v_sub_f32 %s, 1.0, %s' % (vr(t1), vr(G)))
        a('v_cvt_pk_bf16_f32 %s, %s, %s' % (vr(t1), vr(t1), vr(t1)))
        a('v_lshlrev_b32 %s, 16, %s' % (vr(OMG), vr(t1)))
        a('v_and_b32 %s, 31, v0' % vr(t0))
        self.lane_t(t1, t0, RING + 6)
        a('s_lshl_b32 s90, s%d, 5' % sW)
        a('v_add_u32 %s, s90, %s' % (vr(t1), vr(t1)))
        a('v_lshlrev_b32 %s, 2, %s' % (vr(t1), vr(t1)))
        a('v_add_u32 %s, %d, %s' % (vr(t1), L_GATE, vr(t1)))
        a('ds_write_b32 %s, %s' % (vr(t1), vr(G)))

        def pass1(g):
            it = []
            RE, IM = ACC[g], ACC[g] + 16
            lr, li, nli = V['lr%d' % g], V['li%d' % g], V['nli%d' % g]
            sa = [SC[g] + 0, SC[g] + 1]
            sb = [SC[g] + 2, SC[g] + 3]
            cur = [RE, IM]
            for t in range(1, 16):
                d = sa if t % 2 else sb
                it.append(Ins('v_fma_f32 %s, %s, %s, %s' % (vr(d[0]), vr(lr), vr(cur[0]), vr(RE + t))))
                it.append(Ins('v_fma_f32 %s, %s, %s, %s' % (vr(d[1]), vr(lr), vr(cur[1]), vr(IM + t))))
                it.append(Ins('v_fmac_f32 %s, %s, %s' % (vr(d[0]), vr(nli), vr(cur[1]))))
                it.append(Ins('v_fmac_f32 %s, %s, %s' % (vr(d[1]), vr(li), vr(cur[0]))))
                cur = d
            it.append(Ins('ds_write_b64 %s, %s offset:%d' % (vr(V['SEGW']), vr(cur[0], 2), L_SEG - MISC + 2560 * g)))
            return it

        def prefix(g, buf):
            it = []
            l16r, l16i = V['l16r%d' % g], V['l16i%d' % g]
            Pr, Pi = SC[g] + 0, SC[g] + 1
            for jj in range(4):
                it.append(Ins('ds_read_b128 %s, %s offset:%d' % (vr(buf + 4 * jj, 4), vr(V['SEGR']), L_SEG - MISC + 2560 * g + 16 * jj)))
            it.append(Ins('v_mov_b32 %s, 0' % vr(Pr)))
            it.append(Ins('v_mov_b32 %s, 0' % vr(Pi)))
            for s in range(1, 8):
                m = S_MASK + 2 * (s - 1)
                it.append(Ins('v_cndmask_b32 %s, %s, %s, s[%d:%d]' % (vr(Pr), vr(Pr), vr(buf + 2 * (s - 1)), m, m + 1)))
                it.append(Ins('v_cndmask_b32 %s, %s, %s, s[%d:%d]' % (vr(Pi), vr(Pi), vr(buf + 2 * (s - 1) + 1), m, m + 1)))
                pr, pi_, cr_, ci_ = buf + 2 * (s - 1), buf + 2 * (s - 1) + 1, buf + 2 * s, buf + 2 * s + 1
                it.append(Ins('v_fmac_f32 %s, %s, %s' % (vr(cr_), vr(l16r), vr(pr))))
                it.append(Ins('v_fmac_f32 %s, %s, %s' % (vr(ci_), vr(l16r), vr(pi_))))
                it.append(Ins('v_fma_f32 %s, -%s, %s, %s' % (vr(cr_), vr(l16i), vr(pi_), vr(cr_))))
                it.append(Ins('v_fmac_f32 %s, %s, %s' % (vr(ci_), vr(l16i), vr(pr))))
            pb = buf
            it.append(Ins('v_mov_b32 %s, %s' % (vr(pb + 2), vr(buf + 15))))
            it.append(Ins('v_mov_b32 %s, %s' % (vr(pb), vr(buf + 14))))
            it.append(Ins('v_mov_b32 %s, s%d' % (vr(pb + 1), sTAG)))
            it.append(Ins('v_mov_b32 %s, s%d' % (vr(pb + 3), sTAG)))
            it.append(Ins('s_add_u32 s90, s%d, %d' % (sG, g)))
            it.append(Ins('s_lshl_b32 s90, s90, 4'))
            it.append(Ins('s_add_u32 s90, s90, s%d' % sR))
            it.append(Ins('s_lshl_b32 s90, s90, 9'))
            it.append(Ins('s_add_u32 s90, s90, 0x%x' % AGG_OFF))
            it.append(Ins('buffer_store_dwordx4 %s, %s, %s, s90 offen sc1' % (vr(pb, 4), vr(V['AG']), srd(R_WS))))
            return it

        def coef(g, t0):
            it = []
            RE, IM = ACC[g], ACC[g] + 16
            cr, ci = V['cr%d' % g], V['ci%d' % g]
            for t in range(16):
                tt = t0 + (t & 1)
                it.append(Ins('v_mul_f32 %s, %s, %s' % (vr(tt), vr(ci), vr(IM + t))))
                it.append(Ins('v_mul_f32 %s, %s, %s' % (vr(IM + t), vr(cr), vr(IM + t))))
                it.append(Ins('v_fmac_f32 %s, %s, %s' % (vr(IM + t), vr(ci), vr(RE + t))))
                it.append(Ins('v_fma_f32 %s, %s, %s, -%s' % (vr(RE + t), vr(cr), vr(RE + t), vr(tt))))
            return it

        def lookback(g, buf, lbl):
            a('s_add_u32 s90, s%d, %d' % (sG, g))
            a('s_lshl_b32 s90, s90, 13')
            a('s_add_u32 s90, s90, 0x%x' % AGG_OFF)
            a('s_mov_b32 s91, 0')
            a.drain()
            a.settle()
            a.label(lbl)
            a('buffer_load_dwordx4 %s, %s, %s, s90 offen sc1' % (vr(buf, 4), vr(V['LB0']), srd(R_WS)))
            a('buffer_load_dwordx4 %s, %s, %s, s90 offen sc1' % (vr(buf + 4, 4), vr(V['LB1']), srd(R_WS)))
            a('s_add_u32 s91, s91, 1')
            t = buf + 8
            a('v_xor_b32 %s, s%d, %s' % (vr(t), sTAG, vr(buf + 1)))
            a('v_xor_b32 %s, s%d, %s' % (vr(t + 1), sTAG, vr(buf + 3)))
            a('v_xor_b32 %s, s%d, %s' % (vr(t + 2), sTAG, vr(buf + 5)))
            a('v_xor_b32 %s, s%d, %s' % (vr(t + 3), sTAG, vr(buf + 7)))
            a('v_or3_b32 %s, %s, %s, %s' % (vr(t), vr(t), vr(t + 1), vr(t + 2)))
            a('v_or_b32 %s, %s, %s' % (vr(t), vr(t), vr(t + 3)))
            a('v_cmp_ne_u32 vcc, 0, %s' % vr(t))
            a('s_cmp_eq_u64 vcc, 0')
            a('s_cbranch_scc1 %s_ok' % lbl)
            a('s_cmp_lt_u32 s91, 0x%x' % self.o.get('spin', 200000))
            a('s_cbranch_scc1 %s' % lbl)
            a.label(lbl + '_ok')
            p1r, p1i, p2r, p2i = (V['p%s%d' % (x, g)] for x in ('1r', '1i', '2r', '2i'))
            hr, hi = buf + 8, buf + 9
            a('v_mul_f32 %s, %s, %s' % (vr(hr), vr(p1r), vr(buf)))
            a('v_mul_f32 %s, %s, %s' % (vr(hi), vr(p1r), vr(buf + 2)))
            a('v_fma_f32 %s, -%s, %s, %s' % (vr(hr), vr(p1i), vr(buf + 2), vr(hr)))
            a('v_fmac_f32 %s, %s, %s' % (vr(hi), vr(p1i), vr(buf)))
            a('v_fmac_f32 %s, %s, %s' % (vr(hr), vr(p2r), vr(buf + 4)))
            a('v_fmac_f32 %s, %s, %s' % (vr(hi), vr(p2r), vr(buf + 6)))
            a('v_fma_f32 %s, -%s, %s, %s' % (vr(hr), vr(p2i), vr(buf + 6), vr(hr)))
            a('v_fmac_f32 %s, %s, %s' % (vr(hi), vr(p2i), vr(buf + 4)))
            a('ds_write_b64 %s, %s offset:%d' % (vr(V['SEGW']), vr(hr, 2), L_LB - MISC + 2560 * g))
            a.waitcnt(lg=0)
            a('s_barrier')
            for jj in range(4):
                a('ds_read_b128 %s, %s offset:%d' % (vr(buf + 4 * jj, 4), vr(V['SEGR']), L_LB - MISC + 2560 * g + 16 * jj))
            for jj in range(1, 8):
                a('v_add_f32 %s, %s, %s' % (vr(buf), vr(buf), vr(buf + 2 * jj)))
                a('v_add_f32 %s, %s, %s' % (vr(buf + 1), vr(buf + 1), vr(buf + 2 * jj + 1)))
            Pr, Pi = SC[g] + 0, SC[g] + 1
            lsr, lsi, cr, ci = (V[x + str(g)] for x in ('lsr', 'lsi', 'cr', 'ci'))
            a('v_fmac_f32 %s, %s, %s' % (vr(Pr), vr(lsr), vr(buf)))
            a('v_fmac_f32 %s, %s, %s' % (vr(Pi), vr(lsr), vr(buf + 1)))
            a('v_fma_f32 %s, -%s, %s, %s' % (vr(Pr), vr(lsi), vr(buf + 1), vr(Pr)))
            a('v_fmac_f32 %s, %s, %s' % (vr(Pi), vr(lsi), vr(buf)))
            a('v_mul_f32 %s, %s, %s' % (vr(buf + 2), vr(cr), vr(Pr)))
            a('v_mul_f32 %s, %s, %s' % (vr(buf + 3), vr(cr), vr(Pi)))
            a('v_fma_f32 %s, -%s, %s, %s' % (vr(buf + 2), vr(ci), vr(Pi), vr(buf + 2)))
            a('v_fmac_f32 %s, %s, %s' % (vr(buf + 3), vr(ci), vr(Pr)))
            a('v_mov_b32 %s, %s' % (vr(Pr), vr(buf + 2)))
            a('v_mov_b32 %s, %s' % (vr(Pi), vr(buf + 3)))

        def pass2(g):
            it = []
            RE, IM = ACC[g], ACC[g] + 16
            lr, li, nli = V['lr%d' % g], V['li%d' % g], V['nli%d' % g]
            pr, pi_ = SC[g] + 0, SC[g] + 1
            for t in range(16):
                it.append(Ins('v_fmac_f32 %s, %s, %s' % (vr(RE + t), vr(lr), vr(pr))))
                it.append(Ins('v_fmac_f32 %s, %s, %s' % (vr(IM + t), vr(lr), vr(pi_))))
                it.append(Ins('v_fmac_f32 %s, %s, %s' % (vr(RE + t), vr(nli), vr(pi_))))
                it.append(Ins('v_fmac_f32 %s, %s, %s' % (vr(IM + t), vr(li), vr(pr))))
                pr, pi_ = RE + t, IM + t
            return it

        def build_sel(B):
            n_, e_, t_, val = B + 8, B + 9, B + 10, B + 11
            a('v_and_b32 %s, 31, v0' % vr(n_))
            a('v_lshrrev_b32 %s, 3, %s' % (vr(t_), vr(n_)))
            a('v_and_b32 %s, 3, %s' % (vr(e_), vr(n_)))
            a('v_lshl_add_u32 %s, %s, 2, %s' % (vr(e_), vr(t_), vr(e_)))
            a('v_bfe_u32 %s, %s, 2, 1' % (vr(t_), vr(n_)))
            a('v_lshrrev_b32 %s, 5, v0' % vr(val))
            a('v_cmp_eq_u32 vcc, %s, %s' % (vr(t_), vr(val)))
            a('v_cndmask_b32 %s, 31, %s, vcc' % (vr(e_), vr(e_)))
            a('v_lshrrev_b32 %s, 16, %s' % (vr(val), vr(V['G'])))
            a('v_and_b32 %s, 1, %s' % (vr(t_), vr(e_)))
            a('v_lshlrev_b32 %s, 4, %s' % (vr(t_), vr(t_)))
            a('v_lshlrev_b32 %s, %s, %s' % (vr(val), vr(t_), vr(val)))
            a('v_lshrrev_b32 %s, 1, %s' % (vr(e_), vr(e_)))
            for k in range(8):
                a('v_cmp_eq_u32 vcc, %d, %s' % (k, vr(e_)))
                a('v_cndmask_b32 %s, 0, %s, vcc' % (vr(B + k), vr(val)))

        def h_soff(dst, ks_expr_reg, ks_const):
            it = [Ins('s_lshr_b32 s96, s%d, 1' % sW),
                  Ins('s_lshl_b32 s97, s%d, 1' % sR),
                  Ins('s_add_u32 s96, s96, s97'),
                  Ins('s_mul_i32 s96, s96, 88'),
                  Ins('s_add_u32 s96, s96, s%d' % ks_expr_reg),
                  Ins('s_add_u32 s96, s96, %d' % ks_const),
                  Ins('s_lshl_b32 s96, s96, 12'),
                  Ins('s_and_b32 s97, s%d, 1' % sW),
                  Ins('s_lshl_b32 s97, s97, 11'),
                  Ins('s_add_u32 s96, s96, 0x%x' % H_OFF),
                  Ins('s_add_u32 s%d, s96, s97' % dst)]
            return it

        def transpose_store(g, B, D):
            RE, IM = ACC[g], ACC[g] + 16
            for e in range(8):
                a('v_cvt_pk_bf16_f32 %s, %s, %s' % (vr(RE + e), vr(RE + 2 * e), vr(RE + 2 * e + 1)))
            for e in range(8):
                a('v_cvt_pk_bf16_f32 %s, -%s, -%s' % (vr(RE + 8 + e), vr(IM + 2 * e), vr(IM + 2 * e + 1)))
            for part in range(2):
                src = RE + 8 * part
                a('v_mfma_f32_32x32x16_bf16 %s, %s, %s, 0' % (vr(D, 16), vr(src, 4), vr(B, 4)))
                a('v_mfma_f32_32x32x16_bf16 %s, %s, %s, %s' % (vr(D, 16), vr(src + 4, 4), vr(B + 4, 4), vr(D, 16)))
                a('s_add_u32 s95, s%d, %d' % (sG, g))
                put_all(h_soff(94, 95, 48 + 20 * part))
                for e in range(8):
                    a('v_cvt_pk_bf16_f32 %s, %s, %s' % (vr(D + e), vr(D + 2 * e), vr(D + 2 * e + 1)))
                a('buffer_store_dwordx4 %s, %s, %s, s94 offen sc1' % (vr(D, 4), vr(V['ST']), srd(R_WS)))
                a('buffer_store_dwordx4 %s, %s, %s, s94 offen offset:512 sc1' % (vr(D + 4, 4), vr(V['ST']), srd(R_WS)))

        def ffn_tile(tile):
            blk, tp = tile >> 1, tile & 1
            acc = A_F[tile & 1]
            ops = []
            for s in range(40):
                st, sp = s // 10, s % 10
                i = 4 + 4 * blk + st
                slot = slot_of[i]
                reg = slot // 3
                off = (slot % 3) * SLOT + (32 * (sp >> 1) + 8 * (sp & 1)) * 128
                q = RING + 4 * (s % 4)
                base = V['RF'] + tp + 2 * reg
                r0 = Ins('ds_read_b64_tr_b16 %s, %s offset:%d' % (vr(q, 2), vr(base), off))
                r1 = Ins('ds_read_b64_tr_b16 %s, %s offset:%d' % (vr(q + 2, 2), vr(base), off + 512))
                m = Ins('v_mfma_f32_32x32x16_bf16 %s, %s, %s, %s' % (ar(acc, 16), vr(q, 4), XF(s), '0' if s == 0 else ar(acc, 16)))
                ops.append((r0, r1, m))
            out = []
            dist = 3
            for s in range(dist):
                out += [ops[s][0], ops[s][1]]
            for s in range(40):
                out.append(ops[s][2])
                if s + dist < 40:
                    out += [ops[s + dist][0], ops[s + dist][1]]
            return out

        def ffn_epilogue(tile, T):
            acc = A_F[tile & 1]
            it = []
            for e in range(16):
                it.append(Ins('v_accvgpr_read_b32 %s, %s' % (vr(T + e), ar(acc + e))))
            for e in range(16):
                it.append(Ins('v_mul_f32 %s, %s, %s' % (vr(T + e), vr(V['OMG']), vr(T + e))))
            for e in range(8):
                it.append(Ins('v_cvt_pk_bf16_f32 %s, %s, %s' % (vr(T + e), vr(T + 2 * e), vr(T + 2 * e + 1))))
            for e in range(8):
                it.append(Ins('v_pk_max_i16 %s, %s, 0' % (vr(T + e), vr(T + e))))
            it.append(Ins('s_lshl_b32 s95, s%d, 2' % sA))
            it += h_soff(94, 95, tile)
            it.append(Ins('buffer_store_dwordx4 %s, %s, %s, s94 offen sc1' % (vr(T, 4), vr(V['ST']), srd(R_WS))))
            it.append(Ins('buffer_store_dwordx4 %s, %s, %s, s94 offen offset:512 sc1' % (vr(T + 4, 4), vr(V['ST']), srd(R_WS))))
            return it

        if A:
            SC = [TMP]
            BUF = TMP + 4
            SEL = TMP + 20
            EPI = TMP + 32
            put_all(pass1(0))
            stage_open(4, refill=10, covers=[4, 5, 6, 7])
            put_all(prefix(0, BUF))
            put_all(ffn_tile(0))
            put_all(coef(0, BUF))
            put_all(ffn_epilogue(0, EPI))
            t1 = ffn_tile(1)
            cut = next(k for k, x in enumerate(t1) if x.kind == 'mfma' and x is [y for y in t1 if y.kind == 'mfma'][9])
            put_all(t1[:cut + 1])
            a.waitcnt(lg=0)
            a('s_barrier')
            put_all(issue_stage(11))
            put_all(t1[cut + 1:])
            put_all(ffn_epilogue(1, EPI))
            stage_open(8, covers=[8, 9, 10, 11])
            put_all(ffn_tile(2))
            put_all(ffn_epilogue(2, EPI))
            put_all(ffn_tile(3))
            put_all(ffn_epilogue(3, EPI))
            self.stamp(5)
            build_sel(SEL)
            lookback(0, BUF, 'L_lbA')
            self.stamp(6)
            put_all(pass2(0))
            transpose_store(0, SEL, EPI)
        else:
            SC = [80, 84]
            BUF = RING
            put_all(pass1(0))
            stage_open(4, covers=[4])
            put_all(prefix(0, BUF))
            put_all(ssm_stage(4, 0))
            stage_open(5)
            put_all(ssm_stage(5, 0))
            stage_open(6)
            put_all(ssm_stage(6, 0))
            stage_open(7)
            put_all(ssm_stage(7, 0))
            put_all(pass1(1))
            a.waitcnt(lg=0)
            a('s_barrier')
            put_all(prefix(1, BUF))
            put_all(coef(0, BUF))
            put_all(coef(1, BUF))
            self.stamp(5)
            SEL = XV
            D = XV + 16
            build_sel(SEL)
            lookback(0, BUF, 'L_lbB0')
            self.stamp(6)
            put_all(pass2(0))
            transpose_store(0, SEL, D)
            lookback(1, BUF, 'L_lbB1')
            put_all(pass2(1))
            transpose_store(1, SEL, D)

        self.stamp(7)
        a.waitcnt(vm=0)
        self.stamp(8)
        a('v_mov_b32 %s, s%d' % (vr(RING), sTAG))
        a('v_mov_b32 %s, s%d' % (vr(RING + 1), sTAG2))
        a('s_lshl_b32 s90, s%d, 2' % sR)
        a('s_add_u32 s90, s90, s%d' % sW)
        a('s_lshl_b32 s90, s90, 4')
        a('s_add_u32 s90, s90, s%d' % sC16)
        a('s_lshl_b32 s90, s90, 3')
        a('s_add_u32 s90, s90, 0x%x' % FLAG_OFF)
        a('v_mov_b32 %s, 0' % vr(RING + 2))
        a('buffer_store_dwordx2 %s, %s, %s, s90 offen sc1' % (vr(RING, 2), vr(RING + 2), srd(R_WS)))
        a.drain()
        a.settle()

    def poll(self, lbl, voff, soff, tmp):
        a = self.a
        a('s_mov_b32 s91, 0')
        a.drain()
        a.settle()
        a.label(lbl)
        a('buffer_load_dwordx2 %s, %s, %s, s%d offen sc1' % (vr(tmp, 2), vr(voff), srd(R_WS), soff))
        a('s_add_u32 s91, s91, 1')
        a('v_xor_b32 %s, s%d, %s' % (vr(tmp), sTAG, vr(tmp)))
        a('v_xor_b32 %s, s%d, %s' % (vr(tmp + 1), sTAG2, vr(tmp + 1)))
        a('v_or_b32 %s, %s, %s' % (vr(tmp), vr(tmp), vr(tmp + 1)))
        a('v_cmp_ne_u32 vcc, 0, %s' % vr(tmp))
        a('s_cmp_eq_u64 vcc, 0')
        a('s_cbranch_scc1 %s_ok' % lbl)
        a('s_cmp_lt_u32 s91, 0x%x' % self.o.get('spin', 200000))
        a('s_cbranch_scc1 %s' % lbl)
        a.label(lbl + '_ok')

    def phase2(self):
        a = self.a
        VL16, VL16B, VH, VC, VRW, VRR, VO, VX, VD, VG, VP = 1, 2, 3, 7, 12, 15, 96, 97, 98, 99, 100
        ACC = 16
        arch_pool = list(range(104, 256, 4))
        acc_pool = list(range(0, 240 if self.o.get('stamps') else 256, 4))

        def acc(dt, dl):
            return ACC + 4 * (4 * dt + dl)
        self.build_srd(R_OUT, S_OUT, 5242880)
        a('s_cmp_lt_u32 s%d, 2' % sW)
        a('s_cselect_b32 s%d, s%d, s%d' % (R_C, S_CRE, S_CIM))
        a('s_cselect_b32 s%d, s%d, s%d' % (R_C + 1, S_CRE + 1, S_CIM + 1))
        a('s_and_b32 s%d, s%d, 0xffff' % (R_C + 1, R_C + 1))
        a('s_mov_b32 s%d, 819200' % (R_C + 2))
        a('s_mov_b32 s%d, 0x20000' % (R_C + 3))
        a('v_lshlrev_b32 %s, 4, v0' % vr(VL16))
        a('v_add_u32 %s, 4096, %s' % (vr(VL16B), vr(VL16)))
        for dl in range(4):
            a('s_add_u32 s90, s%d, %d' % (sW, dl))
            a('s_and_b32 s90, s90, 3')
            a('s_lshl_b32 s91, s90, 10')
            a('v_add_u32 %s, s91, %s' % (vr(VH + dl), vr(VL16)))
            if dl:
                a('s_mul_i32 s91, s90, 15360')
                a('s_add_u32 s91, s91, %d' % ((dl - 1) * 5120))
                a('v_add_u32 %s, s91, %s' % (vr(VRW + dl - 1), vr(VL16)))
        a('s_mul_i32 s91, s%d, 15360' % sW)
        a('v_add_u32 %s, s91, %s' % (vr(VRR), vr(VL16)))
        t0, t1, t2 = 102, 103, 101
        a('v_and_b32 %s, 15, v0' % vr(t0))
        a('v_mul_u32_u24 %s, 1280, %s' % (vr(t1), vr(t0)))
        a('v_lshrrev_b32 %s, 4, v0' % vr(t2))
        a('v_lshl_add_u32 %s, %s, 4, %s' % (vr(VC), vr(t2), vr(t1)))
        for dt in range(1, 5):
            a('v_add_u32 %s, %d, %s' % (vr(VC + dt), dt * 20480, vr(VC)))
        a('v_bfe_u32 %s, %s, 2, 1' % (vr(t1), vr(t0)))
        a('v_lshlrev_b32 %s, 4, %s' % (vr(t1), vr(t1)))
        a('v_and_b32 %s, 3, %s' % (vr(VP), vr(t0)))
        a('v_add_u32 %s, %s, %s' % (vr(t1), vr(t1), vr(VP)))
        a('v_lshrrev_b32 %s, 3, %s' % (vr(VP), vr(t0)))
        a('v_lshl_add_u32 %s, %s, 2, %s' % (vr(t1), vr(VP), vr(t1)))
        a('s_lshr_b32 s90, s%d, 1' % sW)
        a('s_lshl_b32 s90, s90, 5')
        a('s_and_b32 s91, s%d, 1' % sW)
        a('s_lshl_b32 s91, s91, 3')
        a('s_add_u32 s90, s90, s91')
        a('v_add_u32 %s, s90, %s' % (vr(t1), vr(t1)))
        a('v_mul_u32_u24 %s, 2560, %s' % (vr(VO), vr(t1)))
        a('v_lshl_add_u32 %s, %s, 4, %s' % (vr(VO), vr(t2), vr(VO)))
        a('v_mul_u32_u24 %s, 1280, %s' % (vr(VX), vr(t1)))
        a('v_lshl_add_u32 %s, %s, 3, %s' % (vr(VX), vr(t2), vr(VX)))
        a('s_mul_i32 s90, s%d, 160' % sC2)
        a('v_lshlrev_b32 %s, 3, %s' % (vr(VD), vr(t2)))
        a('v_add_u32 %s, s90, %s' % (vr(VD), vr(VD)))
        a('s_and_b32 s90, s%d, 1' % sR2)
        a('s_lshl_b32 s90, s90, 6')
        a('v_add_u32 %s, s90, %s' % (vr(VG), vr(t1)))
        a('v_lshlrev_b32 %s, 2, %s' % (vr(VG), vr(VG)))
        a('v_add_u32 %s, %d, %s' % (vr(VG), L_GATE, vr(VG)))
        a('s_barrier')
        a('ds_read_b32 %s, %s' % (vr(VG), vr(VG)))

        sW2, sCo, sH = 92, 93, 94
        a('s_mul_i32 s%d, s%d, 48' % (sW2, sC2))
        a('s_mul_i32 s90, s%d, 12' % sW)
        a('s_add_u32 s%d, s%d, s90' % (sW2, sW2))
        a('s_mul_i32 s%d, s%d, 5120' % (sW2, sW2))
        a('s_add_u32 s%d, s%d, 0x%x' % (sW2, sW2, W2T_OFF))
        a('s_mul_i32 s%d, s%d, 102400' % (sCo, sC2))
        a('s_and_b32 s90, s%d, 1' % sW)
        a('s_mul_i32 s90, s90, 640')
        a('s_add_u32 s%d, s%d, s90' % (sCo, sCo))
        a('s_mul_i32 s%d, s%d, %d' % (sH, sR2, 88 * 4096))
        a('s_add_u32 s%d, s%d, 0x%x' % (sH, sH, H_OFF))
        a('s_mul_i32 s90, s%d, 120' % sC2)
        a('s_mul_i32 s95, s%d, 30' % sW)
        a('s_add_u32 s90, s90, s95')
        a('s_lshl_b32 s90, s90, 3')
        a('s_add_u32 s95, s90, 0x%x' % W2F_OFF)
        a('v_min_u32 %s, 29, v0' % vr(t0))
        a('v_lshlrev_b32 %s, 3, %s' % (vr(t0), vr(t0)))
        self.poll('L_pw2', t0, 95, VP)

        steps = [('F', i) for i in range(12)] + [('S', i) for i in range(10)]
        pool = [('v', r) for r in arch_pool] + [('a', r) for r in acc_pool]
        wq, hq = {}, {}

        def q(x):
            return (vr if x[0] == 'v' else ar)(x[1], 4)

        def issue_w(k):
            kind, i = steps[k]
            for dt in range(5):
                r = pool.pop(0)
                wq[(k, dt)] = r
                if kind == 'F':
                    if dt < 4:
                        a('buffer_load_dwordx4 %s, %s, %s, s%d offen offset:%d sc1' % (q(r), vr(VL16), srd(R_WS), sW2, dt * 1024))
                    else:
                        a('buffer_load_dwordx4 %s, %s, %s, s%d offen sc1' % (q(r), vr(VL16B), srd(R_WS), sW2))
                else:
                    a('buffer_load_dwordx4 %s, %s, %s, s%d offen offset:%d' % (q(r), vr(VC + dt), srd(R_C), sCo, 64 * i))
            if kind == 'F':
                a('s_add_u32 s%d, s%d, 5120' % (sW2, sW2))

        sHk = 95

        def issue_h(k):
            kind, i = steps[k]
            if kind == 'F':
                a('s_mul_i32 s90, s%d, 12' % sW)
                a('s_add_u32 s90, s90, %d' % i)
            else:
                a('s_mul_i32 s90, s%d, 10' % sW)
                a('s_add_u32 s90, s90, %d' % (48 + i))
            a('s_lshl_b32 s90, s90, 12')
            a('s_add_u32 s%d, s90, s%d' % (sHk, sH))
            for dl in range(4):
                r = pool.pop(0)
                hq[(k, dl)] = r
                a('buffer_load_dwordx4 %s, %s, %s, s%d offen sc1' % (q(r), vr(VH + dl), srd(R_WS), sHk))

        WD = self.o.get('wdepth', 12)
        HD = self.o.get('hdepth', 8)
        for k in range(WD):
            issue_w(k)
        self.stamp(9)
        a('s_lshl_b32 s90, s%d, 2' % sR)
        a('s_and_b32 s95, s%d, 1' % sR2)
        a('s_lshl_b32 s95, s95, 1')
        a('s_add_u32 s90, s90, s95')
        a('s_lshl_b32 s90, s90, 7')
        a('s_add_u32 s95, s90, 0x%x' % FLAG_OFF)
        a('v_and_b32 %s, 31, v0' % vr(t0))
        a('v_lshlrev_b32 %s, 3, %s' % (vr(t0), vr(t0)))
        self.poll('L_pfl', t0, 95, VP)
        a('s_cmp_lg_u32 s%d, 31' % sR2)
        a('s_cbranch_scc1 L_noep')
        a('s_cmp_lg_u32 s%d, 0' % sC2)
        a('s_cbranch_scc1 L_noep')
        a('v_mov_b32 %s, s%d' % (vr(t1), sTAG))
        a('v_mov_b32 %s, 0x%x' % (vr(t0), EPOCH_OFF))
        a('buffer_store_dword %s, %s, %s, 0 offen sc1' % (vr(t1), vr(t0), srd(R_WS)))
        a.waitcnt(vm=0)
        a.label('L_noep')
        self.stamp(10)
        nh = 0
        while nh < HD and len(pool) >= 4:
            issue_h(nh)
            nh += 1
        nw = WD
        for k in range(22):
            for dt in range(5):
                for dl in range(4):
                    c = '0' if k == 0 else vr(acc(dt, dl), 4)
                    a('v_mfma_f32_16x16x32_bf16 %s, %s, %s, %s' % (vr(acc(dt, dl), 4), q(wq[(k, dt)]), q(hq[(k, dl)]), c))
            for dt in range(5):
                pool.append(wq[(k, dt)])
            for dl in range(4):
                pool.append(hq[(k, dl)])
            if nh < 22:
                issue_h(nh)
                nh += 1
            if nw < 22:
                issue_w(nw)
                nw += 1
        self.stamp(11)
        XR, DR = 104, 116
        a('s_mul_i32 s90, s%d, %d' % (sR2, 64 * 1280))
        a('s_mul_i32 s91, s%d, 160' % sC2)
        a('s_add_u32 s90, s90, s91')
        for dt in range(5):
            a('buffer_load_dwordx2 %s, %s, %s, s90 offen offset:%d' % (vr(XR + 2 * dt, 2), vr(VX), srd(R_X), 32 * dt))
            a('global_load_dwordx2 %s, %s, s[%d:%d] offset:%d' % (vr(DR + 2 * dt, 2), vr(VD), S_DSK, S_DSK + 1, 32 * dt))
        a('s_barrier')
        for dl in range(1, 4):
            for dt in range(5):
                a('ds_write_b128 %s, %s offset:%d' % (vr(VRW + dl - 1), vr(acc(dt, dl), 4), dt * 1024))
        a.waitcnt(lg=0)
        a('s_barrier')
        RB = 128
        for sl in range(3):
            for dt in range(5):
                a('ds_read_b128 %s, %s offset:%d' % (vr(RB + 4 * (5 * sl + dt), 4), vr(VRR), (sl * 5 + dt) * 1024))
        a('s_mul_i32 s90, s%d, %d' % (sR2, 64 * 2560))
        a('s_mul_i32 s91, s%d, 320' % sC2)
        a('s_add_u32 s90, s90, s91')
        for dt in range(5):
            xs, ds = XR + 2 * dt, DR + 2 * dt
            tx, td = 200, 204
            a('v_lshlrev_b32 %s, 16, %s' % (vr(tx), vr(xs)))
            a('v_and_b32 %s, 0xffff0000, %s' % (vr(tx + 1), vr(xs)))
            a('v_lshlrev_b32 %s, 16, %s' % (vr(tx + 2), vr(xs + 1)))
            a('v_and_b32 %s, 0xffff0000, %s' % (vr(tx + 3), vr(xs + 1)))
            a('v_lshlrev_b32 %s, 16, %s' % (vr(td), vr(ds)))
            a('v_and_b32 %s, 0xffff0000, %s' % (vr(td + 1), vr(ds)))
            a('v_lshlrev_b32 %s, 16, %s' % (vr(td + 2), vr(ds + 1)))
            a('v_and_b32 %s, 0xffff0000, %s' % (vr(td + 3), vr(ds + 1)))
            for r in range(4):
                a('v_mul_f32 %s, %s, %s' % (vr(tx + r), vr(tx + r), vr(td + r)))
            for r in range(4):
                d = acc(dt, 0) + r
                a('v_fmac_f32 %s, %s, %s' % (vr(d), vr(VG), vr(tx + r)))
                for sl in range(3):
                    a('v_add_f32 %s, %s, %s' % (vr(d), vr(d), vr(RB + 4 * (5 * sl + dt) + r)))
            a('buffer_store_dwordx4 %s, %s, %s, s90 offen offset:%d' % (vr(acc(dt, 0), 4), vr(VO), srd(R_OUT), 64 * dt))

    def kernel(self):
        a = self.a
        self.prologue()
        a('s_cmp_ge_u32 s%d, 6' % sCC)
        a.settle()
        a('s_cbranch_scc1 L_typeB')
        snap = a.snapshot()
        self.phase1('A')
        a('s_branch L_phase2')
        a.label('L_typeB')
        a.restore(snap)
        self.phase1('B')
        a.label('L_phase2')
        self.phase2()
        self.dump_stamps()
        a.label('L_exit')
        a('s_endpgm')
        head = open('gated_mix__ssm_conv_s5__dense_activation_relu__prompt.s.ref').read().split('\n')
        hdr = [ln for ln in head if ln.startswith(';') and '@launch' not in ln and 'Override' not in ln and 'grid=ceil' not in ln]
        out = '\n'.join(hdr) + '\n'
        out += '; @launch grid=(256,1,1) block=(256,1,1) lds=%d\n' % LDS_BYTES
        out += '.amdgcn_target "amdgcn-amd-amdhsa--gfx950"\n.text\n.globl %s\n.p2align 8\n.type %s,@function\n%s:\n' % (KNAME, KNAME, KNAME)
        out += a.text()
        out += '''.section .rodata,"a"
.p2align 6
.amdhsa_kernel %s
  .amdhsa_next_free_vgpr 512
  .amdhsa_next_free_sgpr 102
  .amdhsa_accum_offset 256
  .amdhsa_group_segment_fixed_size 0
  .amdhsa_kernarg_size 128
  .amdhsa_user_sgpr_count 2
  .amdhsa_user_sgpr_kernarg_segment_ptr 1
  .amdhsa_system_sgpr_workgroup_id_x 1
  .amdhsa_float_denorm_mode_32 3
.end_amdhsa_kernel
''' % KNAME
        return out


if __name__ == '__main__':
    opts = {}
    for arg in sys.argv[2:]:
        k, v = arg.split('=')
        opts[k] = int(v, 0)
    g = Gen(opts)
    txt = g.kernel()
    open(sys.argv[1], 'w').write(txt)
    print('instructions', g.a.n_ins, g.a.stats, 'nop states', g.a.nop_states, 'bytes of text', len(txt))
```

```python
import re

REG = re.compile(r'^(-|\|)?([vas])(\d+)\|?$')
RNG = re.compile(r'^(-|\|)?([vas])\[(\d+):(\d+)\]\|?$')

TRANS = ('v_exp_f32', 'v_log_f32', 'v_rcp_f32', 'v_rsq_f32', 'v_sqrt_f32', 'v_sin_f32', 'v_cos_f32')


def regs_of(tok):
    tok = tok.strip()
    m = REG.match(tok)
    if m:
        return [(m.group(2), int(m.group(3)))]
    m = RNG.match(tok)
    if m:
        return [(m.group(2), i) for i in range(int(m.group(3)), int(m.group(4)) + 1)]
    if tok == 'vcc':
        return [('s', 'vcc')]
    if tok == 'exec':
        return [('s', 'exec')]
    if tok == 'm0':
        return [('s', 'm0')]
    return []


def split_ops(s):
    out, depth, cur = [], 0, ''
    for ch in s:
        if ch in '[(':
            depth += 1
        if ch in '])':
            depth -= 1
        if ch == ',' and depth == 0:
            out.append(cur.strip())
            cur = ''
        else:
            cur += ch
    if cur.strip():
        out.append(cur.strip())
    return out


class Ins:
    __slots__ = ('text', 'mn', 'kind', 'rd', 'wr', 'passes', 'lds_dma', 'wide_store', 'seq', 'cd', 'a_b', 'c',
                 'target', 'trans', 'note')

    def __init__(self, text):
        self.text = text
        self.seq = None
        self.passes = 0
        self.lds_dma = False
        self.wide_store = False
        self.trans = False
        self.target = None
        self.c = []
        self.a_b = []
        self.note = None
        parts = text.split(None, 1)
        mn = parts[0]
        self.mn = mn
        rest = parts[1] if len(parts) > 1 else ''
        ops = split_ops(rest)
        mods = []
        if ops:
            last = ops[-1].split()
            ops[-1] = last[0]
            mods = last[1:]
        R = [regs_of(o) for o in ops]
        flat = lambda L: [r for x in L for r in x]
        rd, wr = [], []
        if mn.startswith('v_mfma'):
            self.kind = 'mfma'
            self.passes = 8 if '32x32x16' in mn else 4
            wr = R[0]
            self.a_b = R[1] + R[2]
            self.c = R[3]
            rd = self.a_b + self.c
        elif mn.startswith('ds_read'):
            self.kind = 'lds'
            wr = R[0]
            rd = R[1]
        elif mn.startswith('ds_write'):
            self.kind = 'lds'
            rd = flat(R)
        elif mn.startswith('buffer_load') or mn.startswith('global_load'):
            self.kind = 'vm'
            if 'lds' in mods:
                self.lds_dma = True
                rd = flat(R) + [('s', 'm0')]
            else:
                wr = R[0]
                rd = flat(R[1:])
        elif mn.startswith('buffer_store') or mn.startswith('global_store'):
            self.kind = 'vm'
            rd = flat(R)
            self.wide_store = mn.endswith('x4') or mn.endswith('x3')
            if self.wide_store:
                self.c = R[0] if mn.startswith('buffer') else R[1]
        elif mn.startswith('v_'):
            self.kind = 'valu'
            if mn.startswith('v_permlane') and 'swap' in mn:
                wr = flat(R)
                rd = flat(R)
            elif mn.startswith('v_cmp'):
                wr = R[0]
                rd = flat(R[1:])
            elif mn.startswith('v_fmac') or mn.startswith('v_dot2c'):
                wr = R[0]
                rd = flat(R)
            elif mn.startswith('v_cndmask') and len(ops) == 3:
                wr = R[0]
                rd = flat(R[1:]) + [('s', 'vcc')]
            elif mn.startswith('v_add_co') or mn.startswith('v_sub_co'):
                wr = R[0] + R[1]
                rd = flat(R[2:])
            elif mn.startswith('v_addc_co') or mn.startswith('v_subb_co'):
                wr = R[0] + R[1]
                rd = flat(R[2:])
            else:
                wr = R[0]
                rd = flat(R[1:])
            self.trans = mn in TRANS or any(mn == t + '_e32' for t in TRANS)
        elif mn.startswith('s_load') or mn in ('s_memtime', 's_memrealtime'):
            self.kind = 'smem'
            wr = R[0]
            rd = flat(R[1:])
        elif mn in ('s_waitcnt', 's_nop', 's_barrier', 's_endpgm', 's_branch', 's_setprio', 's_sleep') or mn.startswith('s_cbranch'):
            self.kind = 'ctl'
            if mn in ('s_cbranch_vccz', 's_cbranch_vccnz'):
                rd = [('s', 'vcc')]
        elif mn.startswith('s_cmp') or mn.startswith('s_bitcmp'):
            self.kind = 'salu'
            rd = flat(R)
        elif mn.startswith('s_'):
            self.kind = 'salu'
            wr = R[0]
            rd = flat(R[1:])
            if 'saveexec' in mn:
                wr = wr + [('s', 'exec')]
                rd = rd + [('s', 'exec')]
            if mn in ('s_addk_i32', 's_mulk_i32'):
                rd = rd + R[0]
        else:
            raise ValueError('unknown mnemonic ' + text)
        self.rd = set(rd)
        self.wr = set(wr)


class WaitVM:
    def __init__(self, target):
        self.target = target


class WaitLG:
    def __init__(self, target):
        self.target = target


class Asm:
    def __init__(self):
        self.lines = []
        self.hist = []
        self.vm_seq = 0
        self.lg_seq = 0
        self.vm_done = 0
        self.lg_done = 0
        self.vm_pending = {}
        self.lg_pending = {}
        self.smem_pending = set()
        self.n_ins = 0
        self.stats = {}
        self.nop_states = 0

    def snapshot(self):
        return dict(hist=[list(x) for x in self.hist], vm_seq=self.vm_seq, lg_seq=self.lg_seq, vm_done=self.vm_done,
                    lg_done=self.lg_done, vm_pending=dict(self.vm_pending), lg_pending=dict(self.lg_pending),
                    smem_pending=set(self.smem_pending))

    def restore(self, s):
        self.hist = [list(x) for x in s['hist']]
        self.vm_seq, self.lg_seq, self.vm_done, self.lg_done = s['vm_seq'], s['lg_seq'], s['vm_done'], s['lg_done']
        self.vm_pending = dict(s['vm_pending'])
        self.lg_pending = dict(s['lg_pending'])
        self.smem_pending = set(s['smem_pending'])

    def raw(self, text):
        self.lines.append(text)

    def comment(self, text):
        self.lines.append('    ; ' + text)

    def label(self, name):
        self.lines.append(name + ':')

    def _advance(self, states):
        for h in self.hist:
            h[1] += states
        self.hist = [h for h in self.hist if h[1] <= 24]

    def _out(self, text, states=1, ins=None):
        self.lines.append('    ' + text)
        self.n_ins += 1
        self._advance(states)
        if ins is not None:
            self.hist.append([ins, 0])

    def nop(self, states):
        while states > 0:
            n = min(states, 16)
            self._out('s_nop %d' % (n - 1), n)
            self.nop_states += n
            states -= n

    def waitcnt(self, vm=None, lg=None):
        parts = []
        if vm is not None:
            vm = min(vm, 63)
            parts.append('vmcnt(%d)' % vm)
            self.vm_done = max(self.vm_done, self.vm_seq - vm)
            self.vm_pending = {r: s for r, s in self.vm_pending.items() if s > self.vm_done}
        if lg is not None:
            lg = min(lg, 15)
            parts.append('lgkmcnt(%d)' % lg)
            self.lg_done = max(self.lg_done, self.lg_seq - lg)
            self.lg_pending = {r: s for r, s in self.lg_pending.items() if s > self.lg_done}
            if lg == 0:
                self.smem_pending = set()
        self._out('s_waitcnt ' + ' '.join(parts))

    def drain(self):
        self.waitcnt(vm=0, lg=0)

    def _need_wait(self, ins):
        touched = ins.rd | ins.wr
        vm_need = max([self.vm_pending[r] for r in touched if r in self.vm_pending], default=0)
        lg_need = max([self.lg_pending[r] for r in touched if r in self.lg_pending], default=0)
        sm = any(r in self.smem_pending for r in touched)
        vm = lg = None
        if vm_need > self.vm_done:
            vm = self.vm_seq - vm_need
        if sm:
            lg = 0
        elif lg_need > self.lg_done:
            lg = self.lg_seq - lg_need
            if self.smem_pending:
                lg = 0
        if vm is not None or lg is not None:
            self.waitcnt(vm, lg)

    def _hazard(self, ins):
        need = 0
        for p, dist in self.hist:
            req = 0
            if p.kind == 'valu':
                vw = {r for r in p.wr if r[0] in 'va'}
                sw = {r for r in p.wr if r[0] == 's'}
                if ins.kind == 'mfma' and vw & ins.rd:
                    req = max(req, 2)
                if ins.kind == 'valu':
                    if ins.mn.startswith('v_permlane') and vw & ins.rd:
                        req = max(req, 2)
                    if ins.mn.startswith('v_readfirstlane') or ins.mn.startswith('v_readlane'):
                        if vw & ins.rd:
                            req = max(req, 1)
                        if sw & ins.rd:
                            req = max(req, 4)
                    if 'dpp' in ins.text or 'row_' in ins.text or 'quad_perm' in ins.text:
                        if vw & ins.rd:
                            req = max(req, 2)
                    if sw & ins.rd:
                        req = max(req, 2)
                    if p.trans and vw & ins.rd:
                        req = max(req, 1)
                if ins.kind == 'vm' and sw & ins.rd:
                    req = max(req, 5)
                if ins.kind in ('salu', 'ctl', 'smem') and sw & ins.rd:
                    req = max(req, 4)
            elif p.kind == 'mfma':
                big = p.passes == 8
                if ins.kind == 'mfma':
                    if p.wr & set(ins.a_b):
                        req = max(req, 12 if big else 8)
                    if p.wr & set(ins.c):
                        same = (p.wr == set(ins.c)) and p.passes == ins.passes
                        if not same:
                            req = max(req, 10 if big else 6)
                    elif p.wr & ins.wr:
                        req = max(req, 12 if big else 8)
                elif ins.kind in ('valu', 'vm', 'lds'):
                    if p.wr & (ins.rd | ins.wr):
                        req = max(req, 12 if big else 8)
                    if ins.kind == 'valu' and set(p.c) & ins.wr:
                        req = max(req, 7 if big else 3)
            elif p.kind == 'salu':
                if ins.lds_dma and ('s', 'm0') in p.wr:
                    req = max(req, 1)
            elif p.kind == 'vm' and p.wide_store:
                if set(p.c) & ins.wr:
                    req = max(req, 2)
            if req > dist:
                need = max(need, req - dist)
        if need:
            self.nop(need)

    def put(self, ins):
        if isinstance(ins, str):
            ins = Ins(ins)
        if isinstance(ins, WaitVM):
            t = ins.target
            assert t.seq is not None, 'wait on an un-issued vm op'
            if t.seq > self.vm_done:
                self.waitcnt(vm=self.vm_seq - t.seq)
            return None
        if isinstance(ins, WaitLG):
            t = ins.target
            assert t.seq is not None
            if t.seq > self.lg_done:
                self.waitcnt(lg=0 if self.smem_pending else self.lg_seq - t.seq)
            return None
        self._need_wait(ins)
        self._hazard(ins)
        if ins.kind == 'vm':
            self.vm_seq += 1
            ins.seq = self.vm_seq
            for r in ins.wr:
                self.vm_pending[r] = ins.seq
        elif ins.kind == 'lds':
            self.lg_seq += 1
            ins.seq = self.lg_seq
            for r in ins.wr:
                self.lg_pending[r] = ins.seq
        elif ins.kind == 'smem':
            for r in ins.wr:
                self.smem_pending.add(r)
            if not ins.wr:
                self.smem_pending.add(('s', 'anon'))
        self.stats[ins.kind] = self.stats.get(ins.kind, 0) + 1
        states = 1
        if ins.mn == 's_nop':
            states = int(ins.text.split()[1]) + 1
        self._out(ins.text, states, ins)
        return ins

    def __call__(self, text):
        return self.put(Ins(text))

    def many(self, text):
        r = None
        for ln in text.strip().split('\n'):
            ln = ln.split(';')[0].strip()
            if ln:
                r = self.put(Ins(ln))
        return r

    def settle(self, states=16):
        worst = 0
        for p, dist in self.hist:
            if p.kind == 'mfma':
                worst = max(worst, (12 if p.passes == 8 else 8) - dist)
            elif p.kind == 'valu':
                worst = max(worst, (5 if any(r[0] == 's' for r in p.wr) else 2) - dist)
            elif p.kind == 'vm' and p.wide_store:
                worst = max(worst, 2 - dist)
            elif p.kind == 'salu' and ('s', 'm0') in p.wr:
                worst = max(worst, 1 - dist)
        if worst > 0:
            self.nop(worst)

    def text(self):
        return '\n'.join(self.lines) + '\n'


def interleave(asm, main, fillers, per_gap):
    fi = 0
    for it in main:
        asm.put(it)
        if isinstance(it, Ins) and it.kind == 'mfma':
            k = 0
            while k < per_gap and fi < len(fillers):
                asm.put(fillers[fi])
                fi += 1
                k += 1
    while fi < len(fillers):
        asm.put(fillers[fi])
        fi += 1


class Stream:
    def __init__(self, groups, start=0, every=1, per=1, name=''):
        self.groups = [g if isinstance(g, list) else [g] for g in groups]
        self.start = start
        self.every = every
        self.per = per
        self.name = name
        self.i = 0

    def done(self):
        return self.i >= len(self.groups)


def weave(asm, main, streams, budget=3, flush=True):
    n = 0
    debt = 0
    for it in main:
        if callable(it):
            it()
            continue
        asm.put(it)
        if isinstance(it, Ins) and it.kind == 'mfma':
            left = budget - debt
            debt = 0
            for s in streams:
                if n < s.start or (n - s.start) % s.every:
                    continue
                k = 0
                while k < s.per and not s.done() and left > 0:
                    g = s.groups[s.i]
                    s.i += 1
                    for x in g:
                        if callable(x):
                            x()
                        else:
                            asm.put(x)
                    left -= len(g)
                    k += 1
            if left < 0:
                debt = -left
            n += 1
    if flush:
        for s in streams:
            while not s.done():
                for x in s.groups[s.i]:
                    if callable(x):
                        x()
                    else:
                        asm.put(x)
                s.i += 1
```

```python
import sys, math, struct
from asmgen import Asm, Ins, WaitVM, WaitLG, Stream, weave

KNAME = 'gated_mix__ssm_conv_s5__dense_activation_relu__prompt_kernel'

EPOCH_OFF = 0
FLAG_OFF = 0x1000
WF_OFF = 0x4000
AGG_OFF = 0x10000
WT_OFF = 0x40000
H_OFF = 0x400000
STAMP_OFF = 0x1000000
WS_BYTES = 268435456
OOB = 0x40000000

SLOT = 20480
MISC = 7 * SLOT
XS = 4 * SLOT
L_GW = MISC + 4096
L_GATE = L_GW + 2048
L_WST = L_GATE + 512
L_SEG = L_WST + 8192
L_LB = L_WST
LDS_BYTES = 163840
assert L_SEG + 5120 <= LDS_BYTES and XS + 65536 <= L_GW

S_X, S_LRE, S_LIM, S_BRE, S_BIM, S_CRE, S_CIM, S_LDT = 4, 6, 8, 10, 12, 14, 16, 18
S_DSK, S_BX, S_W1, S_W2, S_GWP, S_OUT, S_DBG, S_WS = 20, 22, 24, 26, 28, 30, 32, 34
R_X, R_WS, R_BRE, R_BIM, R_W1, R_W2, R_GW = 36, 40, 44, 48, 52, 56, 60
R_CI = 60
R_OUT = 48
sTAG, sTAG2, sW, sR, sG, sA, sR2, sC2, sC16, sHALF, sCC, sRHO = 64, 65, 66, 67, 68, 69, 70, 71, 72, 73, 74, 75
S_MASK = 76
sKO = 76
sE = 3
sW10, sGWI, sHF, sHS = 99, 98, 22, 23
sFB, sXS = 28, 4


def srd(r):
    return 's[%d:%d]' % (r, r + 3)


def vr(b, n=1):
    return 'v%d' % b if n == 1 else 'v[%d:%d]' % (b, b + n - 1)


def ar(b, n=1):
    return 'a%d' % b if n == 1 else 'a[%d:%d]' % (b, b + n - 1)


def f2u(x):
    return struct.unpack('<I', struct.pack('<f', x))[0]


def magic(d):
    return (1 << 32) // d + 1


LOG2E = '0x%08x' % f2u(math.log2(math.e))
INV2PI = '0x%08x' % f2u(1.0 / (2 * math.pi))


class Gen:
    def __init__(self, opts):
        self.o = opts
        self.a = Asm()

    def stamp(self, k, clock=False):
        if not self.o.get('stamps'):
            return
        det = self.o.get('detail', 0)
        if isinstance(k, tuple):
            if k[0] != det:
                return
            k = k[1]
        elif det and 5 <= k <= 11:
            return
        a = self.a
        a('%s s[100:101]' % ('s_memtime' if clock else 's_memrealtime'))
        a.waitcnt(lg=0)
        a('v_accvgpr_write_b32 a%d, s100' % (240 + k))

    def dump_stamps(self):
        if not self.o.get('stamps'):
            return
        a = self.a
        self.stamp(12)
        self.stamp(14, clock=True)
        a.drain()
        for k in range(16):
            a('v_accvgpr_read_b32 v%d, a%d' % (16 + k, 240 + k))
        a('s_lshl_b32 s90, s2, 2')
        a('s_add_u32 s90, s90, s%d' % sW)
        a('s_lshl_b32 s90, s90, 6')
        a('s_add_u32 s90, s90, 0x%x' % STAMP_OFF)
        a('v_mov_b32 v1, 0')
        for k in range(4):
            a('buffer_store_dwordx4 v[%d:%d], v1, %s, s90 offen offset:%d' % (16 + 4 * k, 19 + 4 * k, srd(R_WS), 16 * k))
        a.waitcnt(vm=0)

    def build_srd(self, r, ptr, nbytes):
        a = self.a
        a('s_mov_b32 s%d, s%d' % (r, ptr))
        a('s_and_b32 s%d, s%d, 0xffff' % (r + 1, ptr + 1))
        a('s_mov_b32 s%d, 0x%x' % (r + 2, nbytes))
        a('s_mov_b32 s%d, 0x20000' % (r + 3))

    def swap23(self, dst, src, tmp):
        a = self.a
        a('v_and_b32 %s, 19, %s' % (vr(dst), vr(src)))
        a('v_bfe_u32 %s, %s, 2, 1' % (vr(tmp), vr(src)))
        a('v_lshl_add_u32 %s, %s, 3, %s' % (vr(dst), vr(tmp), vr(dst)))
        a('v_bfe_u32 %s, %s, 3, 1' % (vr(tmp), vr(src)))
        a('v_lshl_add_u32 %s, %s, 2, %s' % (vr(dst), vr(tmp), vr(dst)))

    def lane_t(self, dst, src, tmp):
        a = self.a
        a('v_bfe_u32 %s, %s, 2, 1' % (vr(tmp), vr(src)))
        a('v_lshlrev_b32 %s, 4, %s' % (vr(tmp), vr(tmp)))
        a('v_and_b32 %s, 3, %s' % (vr(dst), vr(src)))
        a('v_add_u32 %s, %s, %s' % (vr(dst), vr(dst), vr(tmp)))
        a('v_lshrrev_b32 %s, 3, %s' % (vr(tmp), vr(src)))
        a('v_lshl_add_u32 %s, %s, 2, %s' % (vr(dst), vr(tmp), vr(dst)))

    XD, XR = 48, 52
    PO, GO0, GO1 = 56, 57, 58
    CD, CR = 60, 62

    def prologue(self):
        a, o = self.a, self.o
        a('s_cmp_ge_u32 s2, 256')
        a('s_cbranch_scc1 L_exit')
        self.stamp(0)
        self.stamp(13, clock=True)
        a('s_load_dwordx16 s[4:19], s[0:1], 0')
        a('s_load_dwordx16 s[20:35], s[0:1], 64')
        if o.get('codepf', 1):
            a('s_getpc_b64 s[92:93]')
            a.label('L_pc')
            a('s_lshr_b32 s90, s2, 3')
            a('s_lshl_b32 s90, s90, 2')
            a('v_lshrrev_b32 v1, 6, v0')
            a('v_add_u32 v1, s90, v1')
            a('v_mul_u32_u24 v1, 3, v1')
            a('v_and_b32 v2, 63, v0')
            a('v_min_u32 v2, 2, v2')
            a('v_add_u32 v1, v1, v2')
            a('v_lshlrev_b32 v1, 7, v1')
            a.raw('    v_min_u32 v1, L_exit-L_pc, v1')
            a('global_load_dword v47, v1, s[92:93]')
        a.many("""
            s_and_b32 s90, s2, 7
            s_lshr_b32 s91, s2, 3
            s_lshr_b32 s92, s90, 1
            s_and_b32 s%(half)d, s90, 1
            s_lshl_b32 s93, s92, 2
            s_lshr_b32 s94, s91, 3
            s_add_u32 s%(r)d, s93, s94
            s_and_b32 s%(cc)d, s91, 7
            s_lshl_b32 s93, s%(half)d, 3
            s_add_u32 s%(c16)d, s93, s%(cc)d
            s_lshl_b32 s93, s92, 3
            s_lshr_b32 s94, s91, 2
            s_add_u32 s%(r2)d, s93, s94
            s_lshl_b32 s93, s%(half)d, 2
            s_and_b32 s94, s91, 3
            s_add_u32 s%(c2)d, s93, s94
        """ % dict(half=sHALF, r=sR, cc=sCC, c16=sC16, r2=sR2, c2=sC2))
        a('v_lshrrev_b32 v1, 6, v0')
        a('v_and_b32 v0, 63, v0')
        a('v_readfirstlane_b32 s%d, v1' % sW)
        a.many("""
            s_mul_i32 s93, s%(half)d, 6
            s_add_u32 s%(A)d, s93, s%(cc)d
            s_lshl_b32 s93, s%(half)d, 1
            s_add_u32 s93, s93, s%(cc)d
            s_sub_u32 s93, s93, 6
            s_lshl_b32 s93, s93, 1
            s_add_u32 s93, s93, 12
            s_cmp_lt_u32 s%(cc)d, 6
            s_cselect_b32 s%(G)d, s%(A)d, s93
        """ % dict(half=sHALF, A=sA, cc=sCC, G=sG))
        a('s_and_b32 s90, s%d, 3' % sR)
        a('s_lshl_b32 s90, s90, 1')
        a('s_add_u32 s90, s90, s%d' % sCC)
        a('s_cmp_ge_u32 s90, 10')
        a('s_cselect_b32 s91, 10, 0')
        a('s_sub_u32 s%d, s90, s91' % sRHO)
        if not o.get('rot', 1):
            a('s_mov_b32 s%d, 0' % sRHO)
        a('s_lshl_b32 s%d, s%d, 7' % (sKO, sRHO))
        for k in range(1, 10):
            a('s_add_u32 s%d, s%d, 128' % (sKO + k, sKO + k - 1))
            a('s_cmp_ge_u32 s%d, 1280' % (sKO + k))
            a('s_cselect_b32 s%d, 0, s%d' % (sKO + k, sKO + k))
        a('s_lshl_b32 s%d, s%d, 10' % (sW10, sW))
        XD, CD = self.XD, self.CD
        a('v_lshrrev_b32 v64, 3, v0')
        a('v_and_b32 v65, 7, v0')
        a('v_lshrrev_b32 v66, 1, v64')
        a('v_xor_b32 v66, v66, v65')
        a('v_mul_u32_u24 v67, 1280, v64')
        a('v_lshl_add_u32 %s, v66, 4, v67' % vr(CD))
        a('v_xor_b32 %s, 64, %s' % (vr(CD + 1), vr(CD)))
        a('v_add_u32 %s, 10240, %s' % (vr(CD + 1), vr(CD + 1)))
        a('s_lshl_b32 s90, s%d, 2' % sR)
        a('s_add_u32 s90, s90, s%d' % sW)
        a('s_mul_i32 s90, s90, 40960')
        a('v_add_u32 %s, s90, %s' % (vr(XD), vr(CD)))
        a('v_add_u32 %s, s90, %s' % (vr(XD + 1), vr(CD + 1)))
        a('v_add_u32 %s, 20480, %s' % (vr(XD + 2), vr(XD)))
        a('v_add_u32 %s, 20480, %s' % (vr(XD + 3), vr(XD + 1)))
        a('s_lshl_b32 s90, s%d, 3' % sW)
        a('v_add_u32 v66, s90, v64')
        self.swap23(67, 66, 68)
        a('v_mul_u32_u24 v67, 1280, v67')
        a('v_bfe_u32 v68, v66, 1, 3')
        a('v_xor_b32 v68, v68, v65')
        a('v_lshl_add_u32 v3, v68, 4, v67')
        a('s_mul_i32 s90, s%d, 40960' % sG)
        a('v_add_u32 v3, s90, v3')
        a('v_and_b32 v66, 31, v0')
        self.swap23(67, 66, 68)
        a('v_lshlrev_b32 %s, 1, v67' % vr(self.PO))
        g0, g1 = self.GO0, self.GO1
        a('s_lshl_b32 s90, s%d, 3' % sRHO)
        a('v_add_u32 %s, s90, v0' % vr(g0))
        a('v_subrev_u32 v66, 80, %s' % vr(g0))
        a('v_cmp_le_u32 vcc, 80, %s' % vr(g0))
        a('v_cndmask_b32 %s, %s, v66, vcc' % (vr(g0), vr(g0)))
        a('v_add_u32 %s, 64, %s' % (vr(g1), vr(g0)))
        a('v_subrev_u32 v66, 80, %s' % vr(g1))
        a('v_cmp_le_u32 vcc, 80, %s' % vr(g1))
        a('v_cndmask_b32 %s, %s, v66, vcc' % (vr(g1), vr(g1)))
        a('v_lshlrev_b32 %s, 4, %s' % (vr(g0), vr(g0)))
        a('v_lshlrev_b32 %s, 4, %s' % (vr(g1), vr(g1)))
        a('v_cmp_gt_u32 vcc, 16, v0')
        a('v_cndmask_b32 %s, 0x%x, %s, vcc' % (vr(g1), OOB, vr(g1)))
        a.waitcnt(lg=0)
        self.stamp(1)
        a('s_load_dword s%d, s[%d:%d], 0x%x' % (sE, S_WS, S_WS + 1, EPOCH_OFF))
        self.build_srd(R_X, S_X, 2621440)
        self.build_srd(R_BRE, S_BRE, 819200)
        self.build_srd(R_GW, S_GWP, 1280)
        a('s_lshl_b32 s%d, s%d, 14' % (sXS, sW))
        a('s_add_u32 s%d, s%d, %d' % (sXS, sXS, XS))

    def phase1(self, typ):
        a, o = self.a, self.o
        A = typ == 'A'
        XD, XR, CD, CR = self.XD, self.XR, self.CD, self.CR
        V = {'WS': 3}
        nxt = [4]

        def al(name, n=1):
            V[name] = nxt[0]
            nxt[0] += n
        for nm in ('WF', 'ST', 'AG', 'LB0', 'LB1', 'SEGW', 'SEGR', 'GW', 'G', 'OMG', 'W2D', 'W2R'):
            al(nm)
        al('RS', 4)
        if A:
            al('RF', 6)
        else:
            al('WS2')
        ngrp = 1 if A else 2
        for g in range(ngrp):
            for nm in ('lr', 'li', 'nli', 'l16r', 'l16i', 'lsr', 'lsi', 'p1r', 'p1i', 'p2r', 'p2i', 'cr', 'ci'):
                al('%s%d' % (nm, g))
        assert nxt[0] <= 47, nxt[0]
        RING = 96
        ACC = [112, 48]
        EXT = 144
        XV, NXV = 160, 24
        RING_ADDR = 92
        A_X = 0
        A_F = [64, 80]
        A_GW = 80

        def XF(s):
            return vr(XV + 4 * s, 4) if s < NXV else ar(A_X + 4 * (s - NXV), 4)

        def put_all(items):
            for it in items:
                if isinstance(it, list):
                    put_all(it)
                elif callable(it):
                    it()
                else:
                    a.put(it)

        for g in range(ngrp):
            a('s_add_u32 s90, s%d, %d' % (sG, g))
            a('s_lshl_b32 s90, s90, 6')
            a('v_add_u32 v59, s90, %s' % vr(self.PO))
            a('global_load_ushort %s, v59, s[%d:%d]' % (vr(V['lr%d' % g]), S_LRE, S_LRE + 1))
            a('global_load_ushort %s, v59, s[%d:%d]' % (vr(V['li%d' % g]), S_LIM, S_LIM + 1))
            a('global_load_ushort %s, v59, s[%d:%d]' % (vr(V['cr%d' % g]), S_LDT, S_LDT + 1))
        a('s_mov_b32 m0, %d' % L_GW)
        a('s_nop 0')
        a('buffer_load_dwordx4 %s, %s, 0 offen lds' % (vr(self.GO0), srd(R_GW)))
        a('s_mov_b32 m0, %d' % (L_GW + 1024))
        a('s_nop 0')
        gw_dma = a('buffer_load_dwordx4 %s, %s, 0 offen lds' % (vr(self.GO1), srd(R_GW)))

        def ssm_dma(g, stage, slot):
            R = R_BRE if stage % 2 == 0 else R_BIM
            kh = stage // 2
            ws_ = V['WS'] if g == 0 else V['WS2']
            grp = []
            last = None
            for kb in range(5):
                last = Ins('buffer_load_dwordx4 %s, %s, s%d offen lds' % (vr(ws_), srd(R), sKO + 5 * kh + kb))
                grp.append([Ins('s_add_u32 m0, s%d, %d' % (sW10, slot * SLOT + kb * 4096)), Ins('s_nop 0'), last])
            return grp, last

        def ffn_dma(fst, slot):
            blk, st = fst >> 2, fst & 3
            grp = []
            last = None
            for i2 in range(5):
                c = (160 * st + 32 * i2) * 3072 + 128 * blk
                last = Ins('buffer_load_dwordx4 %s, %s, s92 offen lds' % (vr(V['WF']), srd(R_W1)))
                grp.append([Ins('s_add_u32 s92, s%d, %d' % (sFB, c)),
                            Ins('s_cmp_ge_u32 s92, %d' % (640 * 3072)),
                            Ins('s_cselect_b32 s93, %d, 0' % (640 * 3072)),
                            Ins('s_add_u32 m0, s%d, %d' % (sW10, slot * SLOT + i2 * 4096)),
                            Ins('s_sub_u32 s92, s92, s93'),
                            last])
            return grp, last

        x_dma_last, x_rd_last = {}, {}

        def xdma(kap):
            grp = []
            for g in range(4):
                ld = Ins('buffer_load_dwordx4 %s, %s, s%d offen lds' % (vr(XD + g), srd(R_X), sKO + kap))
                grp.append([Ins('s_add_u32 m0, s%d, %d' % (sXS, (kap % 4) * 4096 + g * 1024)), Ins('s_nop 0'), ld])
                x_dma_last[kap] = ld
            return grp

        def xread(kap):
            grp = []
            for j in range(4):
                rd = Ins('ds_read_b128 %s, %s offset:%d' % (XF(4 * kap + j), vr(XR + j), (kap % 4) * 4096))
                grp.append(([WaitVM(x_dma_last[kap])] if j == 0 else []) + [rd])
                x_rd_last[kap] = rd
            return grp

        def xrefill(kap):
            g = xdma(kap)
            g[0] = [WaitLG(x_rd_last[kap - 4])] + g[0]
            return g

        if A:
            seq = [('S', 0, i) for i in range(4)] + [('F', 0, i) for i in range(8)]
            slot_of = [0, 1, 2, 3, 0, 1, 4, 5, 6, 2, 3, 0]
        else:
            seq = [('S', 0, i) for i in range(4)] + [('S', 1, i) for i in range(4)]
            slot_of = [0, 1, 2, 3, 0, 1, 4, 5]
        dma_last = [None] * len(seq)

        def stage_loads(i):
            kind, g, st = seq[i]
            grp, last = ssm_dma(g, st, slot_of[i]) if kind == 'S' else ffn_dma(st, slot_of[i])
            dma_last[i] = last
            return grp

        if not A:
            a('v_add_u32 %s, 40960, %s' % (vr(V['WS2']), vr(V['WS'])))
        put_all(xdma(0))
        put_all(stage_loads(0))
        put_all(xdma(1))
        self.build_srd(R_BIM, S_BIM, 819200)
        put_all(xdma(2))
        put_all(xdma(3))
        put_all(stage_loads(1))
        self.build_srd(R_WS, S_WS, WS_BYTES)
        self.build_srd(R_W1, S_W1, 1966080)
        self.build_srd(R_W2, S_W2, 1966080)
        a('s_lshl_b32 s90, s%d, 3' % sRHO)
        a('s_add_u32 s90, s90, s%d' % sW)
        a('s_mul_i32 s90, s90, 24576')
        a('s_lshl_b32 s91, s%d, 8' % sA)
        a('s_add_u32 s%d, s90, s91' % sFB)

        T0, T1 = RING, RING + 1
        a('v_lshrrev_b32 %s, 1, v0' % vr(T0))
        a('v_mul_u32_u24 %s, 1280, %s' % (vr(T0), vr(T0)))
        a('v_and_b32 %s, 1, v0' % vr(T1))
        a('v_lshl_add_u32 %s, %s, 4, %s' % (vr(T0), vr(T1), vr(T0)))
        a('s_lshl_b32 s90, s2, 2')
        a('s_add_u32 s%d, s90, s%d' % (sGWI, sW))
        a('s_cmp_lt_u32 s%d, 960' % sGWI)
        a('s_cselect_b32 s91, 0, 0x%x' % OOB)
        a('v_add_u32 %s, s91, %s' % (vr(T0), vr(T0)))
        a('v_lshlrev_b32 %s, 4, v0' % vr(V['W2D']))
        a('v_add_u32 v1, s91, %s' % vr(V['W2D']))
        a('s_min_u32 s91, s%d, 959' % sGWI)
        a('s_lshl_b32 s91, s91, 1')
        a('s_mul_hi_u32 s92, s91, 0x%x' % magic(240))
        a('s_mul_i32 s93, s92, 240')
        a('s_sub_u32 s93, s91, s93')
        a('s_mul_i32 s94, s92, 440')
        a('s_add_u32 s94, s94, s93')
        a('s_lshl_b32 s94, s94, 10')
        a('s_add_u32 s26, s94, 0x%x' % WT_OFF)
        w2_dma = []
        for e in range(2):
            if e:
                a('s_add_u32 s93, s93, 1')
            a('s_mul_hi_u32 s94, s93, 0x%x' % magic(5))
            a('s_mul_i32 s95, s94, 5')
            a('s_sub_u32 s95, s93, s95')
            a('s_mul_i32 s94, s94, 40960')
            a('s_mul_i32 s96, s92, 160')
            a('s_add_u32 s94, s94, s96')
            a('s_lshl_b32 s95, s95, 5')
            a('s_add_u32 s94, s94, s95')
            a('s_lshl_b32 s95, s%d, 11' % sW)
            a('s_add_u32 m0, s95, %d' % (L_WST + 1024 * e))
            a('s_nop 0')
            w2_dma.append(a('buffer_load_dwordx4 %s, %s, s94 offen lds' % (vr(T0), srd(R_W2))))
        a('s_cmp_lt_u32 s%d, 800' % sGWI)
        a('s_cselect_b32 s91, 0, 0x%x' % OOB)
        a('v_add_u32 %s, s91, %s' % (vr(CD), vr(CD)))
        a('v_add_u32 %s, s91, %s' % (vr(CD + 1), vr(CD + 1)))
        a('v_add_u32 v2, s91, %s' % vr(V['W2D']))
        a('s_min_u32 s91, s%d, 799' % sGWI)
        a('s_cmp_ge_u32 s91, 400')
        a('s_cselect_b32 s92, 1, 0')
        a('s_cselect_b32 s%d, s%d, s%d' % (R_CI, S_CIM, S_CRE))
        a('s_cselect_b32 s%d, s%d, s%d' % (R_CI + 1, S_CIM + 1, S_CRE + 1))
        a('s_and_b32 s%d, s%d, 0xffff' % (R_CI + 1, R_CI + 1))
        a('s_mov_b32 s%d, 819200' % (R_CI + 2))
        a('s_mov_b32 s%d, 0x20000' % (R_CI + 3))
        a('s_mul_i32 s93, s92, 400')
        a('s_sub_u32 s91, s91, s93')
        a('s_mul_hi_u32 s93, s91, 0x%x' % magic(50))
        a('s_mul_i32 s94, s93, 50')
        a('s_sub_u32 s91, s91, s94')
        a('s_mul_hi_u32 s94, s91, 0x%x' % magic(5))
        a('s_mul_i32 s95, s94, 5')
        a('s_sub_u32 s95, s91, s95')
        a('s_mul_i32 s96, s93, 80')
        a('s_lshl_b32 s97, s95, 4')
        a('s_add_u32 s96, s96, s97')
        a('s_mul_i32 s96, s96, 1280')
        a('s_lshl_b32 s97, s94, 7')
        a('s_add_u32 s24, s96, s97')
        a('s_mul_i32 s92, s92, 20')
        a('s_lshl_b32 s94, s94, 1')
        a('s_add_u32 s92, s92, s94')
        a('s_add_u32 s92, s92, 48')
        a('s_mul_i32 s93, s93, 88')
        a('s_add_u32 s92, s92, s93')
        a('s_mul_i32 s92, s92, 5')
        a('s_add_u32 s92, s92, s95')
        a('s_lshl_b32 s92, s92, 10')
        a('s_add_u32 s25, s92, 0x%x' % WT_OFF)
        self.stamp(2)

        U0, U1, U2, U3, U4 = RING + 4, RING + 5, RING + 6, RING + 7, RING + 8
        a('v_and_b32 %s, 31, v0' % vr(U0))
        a('v_lshrrev_b32 %s, 5, v0' % vr(U1))
        self.lane_t(U2, U0, U3)
        a('v_bfe_u32 %s, %s, 1, 3' % (vr(U3), vr(U2)))
        a('v_lshlrev_b32 %s, 1, %s' % (vr(U4), vr(U1)))
        a('v_xor_b32 %s, %s, %s' % (vr(U3), vr(U3), vr(U4)))
        a('v_lshlrev_b32 %s, 7, %s' % (vr(U2), vr(U2)))
        a('v_add_u32 %s, s%d, %s' % (vr(U2), sXS, vr(U2)))
        for u in range(2):
            for ab in range(2):
                d = XR + 2 * u + ab
                a('v_xor_b32 %s, %d, %s' % (vr(d), 4 * u + ab, vr(U3)))
                a('v_lshl_add_u32 %s, %s, 4, %s' % (vr(d), vr(d), vr(U2)))
        put_all(xread(0))
        a('v_bfe_u32 %s, %s, 1, 3' % (vr(U2), vr(U0)))
        a('v_xor_b32 %s, %s, %s' % (vr(U2), vr(U2), vr(U4)))
        a('v_lshlrev_b32 %s, 7, %s' % (vr(U3), vr(U0)))
        for u in range(2):
            for ab in range(2):
                d = V['RS'] + 2 * u + ab
                a('v_xor_b32 %s, %d, %s' % (vr(d), 4 * u + ab, vr(U2)))
                a('v_lshl_add_u32 %s, %s, 4, %s' % (vr(d), vr(d), vr(U3)))
        put_all(xrefill(4))
        a('v_lshlrev_b32 %s, 5, %s' % (vr(V['GW']), vr(U1)))
        a('v_add_u32 %s, %d, %s' % (vr(V['GW']), L_GW, vr(V['GW'])))
        a.put(WaitVM(gw_dma))
        for sg in range(40):
            a('ds_read_b128 %s, %s offset:%d' % (ar(A_GW + 4 * sg, 4), vr(V['GW']), 64 * (sg >> 1) + 16 * (sg & 1)))
        a('v_lshrrev_b32 %s, 4, %s' % (vr(U2), vr(U0)))
        a('v_lshlrev_b32 %s, 10, %s' % (vr(U2), vr(U2)))
        a('v_and_b32 %s, 15, %s' % (vr(U3), vr(U0)))
        a('v_lshl_add_u32 %s, %s, 4, %s' % (vr(U3), vr(U1), vr(U3)))
        a('v_lshl_add_u32 %s, %s, 4, %s' % (vr(V['ST']), vr(U3), vr(U2)))
        a('v_lshlrev_b32 %s, 4, %s' % (vr(V['AG']), vr(U0)))
        a('v_mul_u32_u24 %s, 80, %s' % (vr(V['SEGR']), vr(U0)))
        a('v_add_u32 %s, %d, %s' % (vr(V['SEGR']), MISC, vr(V['SEGR'])))
        a('s_lshl_b32 s90, s%d, 1' % sW)
        a('v_add_u32 %s, s90, %s' % (vr(U2), vr(U1)))
        a('v_lshl_add_u32 %s, %s, 3, %s' % (vr(V['SEGW']), vr(U2), vr(V['SEGR'])))
        SEGV = RING + 9
        a('v_mov_b32 %s, %s' % (vr(SEGV), vr(U2)))
        EXPO = [RING + 10, RING + 11]
        for i2 in range(2):
            a('v_add_u32 %s, %d, %s' % (vr(U3), 8 * i2, vr(SEGV)))
            a('v_cmp_gt_u32 vcc, s%d, %s' % (sR, vr(U3)))
            a('v_sub_u32 %s, s%d, %s' % (vr(EXPO[i2]), sR, vr(U3)))
            a('v_add_u32 %s, -1, %s' % (vr(EXPO[i2]), vr(EXPO[i2])))
            a('v_cndmask_b32 %s, -1, %s, vcc' % (vr(EXPO[i2]), vr(EXPO[i2])))
            a('v_cndmask_b32 %s, 0, %s, vcc' % (vr(U3), vr(U3)))
            a('v_lshl_add_u32 %s, %s, 9, %s' % (vr(V['LB%d' % i2]), vr(U3), vr(V['AG'])))
        if A:
            a('v_lshrrev_b32 %s, 3, v0' % vr(U2))
            a('v_mul_u32_u24 %s, 3072, %s' % (vr(U3), vr(U2)))
            a('v_bfe_u32 %s, %s, 1, 1' % (vr(U2), vr(U2)))
            a('v_lshlrev_b32 %s, 2, %s' % (vr(U2), vr(U2)))
            a('v_and_b32 %s, 7, v0' % vr(U4))
            a('v_xor_b32 %s, %s, %s' % (vr(U2), vr(U2), vr(U4)))
            a('v_lshl_add_u32 %s, %s, 4, %s' % (vr(V['WF']), vr(U2), vr(U3)))
            jl, mh, tq = RING + 12, RING + 13, RING + 14
            a('v_and_b32 %s, 15, v0' % vr(jl))
            a('v_bfe_u32 %s, v0, 4, 1' % vr(mh))
            a('v_lshrrev_b32 %s, 2, %s' % (vr(U2), vr(jl)))
            a('v_lshl_add_u32 %s, %s, 4, %s' % (vr(U2), vr(U1), vr(U2)))
            a('v_lshlrev_b32 %s, 7, %s' % (vr(U2), vr(U2)))
            a('v_and_b32 %s, 1, %s' % (vr(U3), vr(jl)))
            a('v_lshl_add_u32 %s, %s, 3, %s' % (vr(U2), vr(U3), vr(U2)))
            a('v_bfe_u32 %s, %s, 1, 1' % (vr(U3), vr(jl)))
            a('v_lshl_add_u32 %s, %s, 1, %s' % (vr(U3), vr(mh), vr(U3)))
            a('v_bfe_u32 %s, %s, 3, 1' % (vr(tq), vr(jl)))
            a('v_lshlrev_b32 %s, 2, %s' % (vr(tq), vr(tq)))
            a('v_xor_b32 %s, %s, %s' % (vr(U3), vr(U3), vr(tq)))
            for tp in range(2):
                d = V['RF'] + tp
                a('v_xor_b32 %s, %d, %s' % (vr(d), 4 * tp, vr(U3)))
                a('v_lshl_add_u32 %s, %s, 4, %s' % (vr(d), vr(d), vr(U2)))
                a('v_add_u32 %s, %d, %s' % (vr(d + 2), 3 * SLOT, vr(d)))
                a('v_add_u32 %s, %d, %s' % (vr(d + 4), 6 * SLOT, vr(d)))
        a('v_lshrrev_b32 %s, 5, v0' % vr(U2))
        a('v_lshlrev_b32 %s, 4, %s' % (vr(U2), vr(U2)))
        a('v_bfe_u32 %s, v0, 4, 1' % vr(U3))
        a('v_lshl_add_u32 %s, %s, 2, %s' % (vr(U2), vr(U3), vr(U2)))
        a('v_bfe_u32 %s, v0, 2, 2' % vr(U3))
        a('v_add_u32 %s, %s, %s' % (vr(U2), vr(U2), vr(U3)))
        a('v_lshlrev_b32 %s, 5, %s' % (vr(U2), vr(U2)))
        a('v_and_b32 %s, 3, v0' % vr(U3))
        a('v_lshl_add_u32 %s, %s, 3, %s' % (vr(U2), vr(U3), vr(U2)))
        a('s_lshl_b32 s90, s%d, 11' % sW)
        a('s_add_u32 s90, s90, %d' % L_WST)
        a('v_add_u32 %s, s90, %s' % (vr(V['W2R']), vr(U2)))
        a('v_and_b32 %s, 15, v0' % vr(U2))
        a('v_lshrrev_b32 %s, 4, v0' % vr(U3))
        a('v_lshrrev_b32 %s, 1, %s' % (vr(U4), vr(U2)))
        a('v_xor_b32 %s, %s, %s' % (vr(U3), vr(U3), vr(U4)))
        a('v_lshlrev_b32 %s, 4, %s' % (vr(U3), vr(U3)))
        a('v_xor_b32 %s, 64, %s' % (vr(U4), vr(U3)))
        a('v_lshl_add_u32 %s, %s, 7, %s' % (vr(U3), vr(U2), vr(U3)))
        a('v_lshl_add_u32 %s, %s, 7, %s' % (vr(U4), vr(U2), vr(U4)))
        a('v_add_u32 %s, s90, %s' % (vr(CR), vr(U3)))
        a('v_add_u32 %s, s90, %s' % (vr(CR + 1), vr(U4)))
        a.many("""
            s_lshr_b32 s90, s%d, 1
            s_lshl_b32 s91, s%d, 1
            s_add_u32 s90, s90, s91
            s_mul_i32 s90, s90, %d
            s_and_b32 s91, s%d, 1
            s_lshl_b32 s91, s91, 11
            s_add_u32 s90, s90, s91
            s_add_u32 s90, s90, 0x%x
            s_lshl_b32 s91, s%d, 14
            s_add_u32 s%d, s90, s91
            s_lshl_b32 s91, s%d, 12
            s_add_u32 s%d, s90, s91
        """ % (sW, sR, 88 * 4096, sW, H_OFF, sA, sHF, sG, sHS))

        def cpow(dr, di, m_reg, m_const, aL, bR, t0, t1):
            if m_reg is not None:
                a('v_mul_f32 %s, %s, %s' % (vr(t0), vr(m_reg), vr(aL)))
                a('v_mul_f32 %s, %s, %s' % (vr(t1), vr(m_reg), vr(bR)))
            else:
                a('v_mul_f32 %s, 0x%08x, %s' % (vr(t0), f2u(float(m_const)), vr(aL)))
                a('v_mul_f32 %s, 0x%08x, %s' % (vr(t1), f2u(float(m_const)), vr(bR)))
            a('v_exp_f32 %s, %s' % (vr(t0), vr(t0)))
            a('v_fract_f32 %s, %s' % (vr(t1), vr(t1)))
            a('v_cos_f32 %s, %s' % (vr(dr), vr(t1)))
            a('v_sin_f32 %s, %s' % (vr(di), vr(t1)))
            a('v_mul_f32 %s, %s, %s' % (vr(dr), vr(t0), vr(dr)))
            a('v_mul_f32 %s, %s, %s' % (vr(di), vr(t0), vr(di)))

        P0, P1, P2, P3, P4, P5 = RING, RING + 1, RING + 2, RING + 3, RING + 4, RING + 5
        FS, FE0, FE1 = RING + 6, RING + 7, RING + 8
        a('v_cvt_f32_u32 %s, %s' % (vr(FS), vr(SEGV)))
        a('v_mul_f32 %s, 0x41800000, %s' % (vr(FS), vr(FS)))
        a('v_cvt_f32_i32 %s, %s' % (vr(FE0), vr(EXPO[0])))
        a('v_cvt_f32_i32 %s, %s' % (vr(FE1), vr(EXPO[1])))
        a('v_mul_f32 %s, 0x43000000, %s' % (vr(FE0), vr(FE0)))
        a('v_mul_f32 %s, 0x43000000, %s' % (vr(FE1), vr(FE1)))
        for g in range(ngrp):
            lr, li, nli, cr, ci = (V[x + str(g)] for x in ('lr', 'li', 'nli', 'cr', 'ci'))
            a('v_lshlrev_b32 %s, 16, %s' % (vr(P0), vr(lr)))
            a('v_lshlrev_b32 %s, 16, %s' % (vr(P1), vr(li)))
            a('v_lshlrev_b32 %s, 16, %s' % (vr(P2), vr(cr)))
            a('v_mul_f32 %s, %s, %s' % (vr(P2), LOG2E, vr(P2)))
            a('v_exp_f32 %s, %s' % (vr(P2), vr(P2)))
            a('v_cvt_pk_bf16_f32 %s, %s, %s' % (vr(P2), vr(P2), vr(P2)))
            a('v_lshlrev_b32 %s, 16, %s' % (vr(P2), vr(P2)))
            a('v_mul_f32 %s, %s, %s' % (vr(P3), vr(P2), vr(P0)))
            a('v_mul_f32 %s, %s, %s' % (vr(P4), vr(P2), vr(P1)))
            a('v_mul_f32 %s, %s, %s' % (vr(P3), LOG2E, vr(P3)))
            a('v_mul_f32 %s, %s, %s' % (vr(P4), INV2PI, vr(P4)))
            cpow(lr, li, None, 1, P3, P4, P2, P5)
            a('v_sub_f32 %s, 0, %s' % (vr(nli), vr(li)))
            cpow(V['l16r%d' % g], V['l16i%d' % g], None, 16, P3, P4, P2, P5)
            cpow(V['lsr%d' % g], V['lsi%d' % g], FS, None, P3, P4, P2, P5)
            for k, (fe, ex) in enumerate(((FE0, EXPO[0]), (FE1, EXPO[1]))):
                pr, pi = V['p%dr%d' % (k + 1, g)], V['p%di%d' % (k + 1, g)]
                cpow(pr, pi, fe, None, P3, P4, P2, P5)
                a('v_cmp_le_i32 vcc, 0, %s' % vr(ex))
                a('v_cndmask_b32 %s, 0, %s, vcc' % (vr(pr), vr(pr)))
                a('v_cndmask_b32 %s, 0, %s, vcc' % (vr(pi), vr(pi)))
            a('v_add_f32 %s, -1.0, %s' % (vr(P2), vr(lr)))
            a('v_mul_f32 %s, %s, %s' % (vr(P3), vr(P0), vr(P0)))
            a('v_fmac_f32 %s, %s, %s' % (vr(P3), vr(P1), vr(P1)))
            a('v_rcp_f32 %s, %s' % (vr(P3), vr(P3)))
            a('v_mul_f32 %s, %s, %s' % (vr(P4), vr(P2), vr(P0)))
            a('v_fmac_f32 %s, %s, %s' % (vr(P4), vr(li), vr(P1)))
            a('v_mul_f32 %s, %s, %s' % (vr(P5), vr(li), vr(P0)))
            a('v_fma_f32 %s, -%s, %s, %s' % (vr(P5), vr(P2), vr(P1), vr(P5)))
            a('v_add_f32 %s, %s, %s' % (vr(P3), vr(P3), vr(P3)))
            a('v_mul_f32 %s, %s, %s' % (vr(cr), vr(P4), vr(P3)))
            a('v_mul_f32 %s, %s, %s' % (vr(ci), vr(P5), vr(P3)))
        a('s_add_u32 s%d, s%d, 1' % (sTAG, sE))
        a('s_xor_b32 s%d, s%d, 0x5bd1e995' % (sTAG2, sTAG))

        def ssm_stage(i, hooks=None):
            kind, g, st = seq[i]
            slot = slot_of[i]
            acc = ACC[g] + (16 if st % 2 else 0)
            kh = st // 2
            gate = (g == 0 and st % 2 == 0)
            base = slot * SLOT
            rsb = V['RS']
            out = []
            if base + SLOT > 65536:
                rsb = RING_ADDR
                out += [Ins('v_add_u32 %s, %d, %s' % (vr(RING_ADDR + k), base, vr(V['RS'] + k))) for k in range(4)]
                base = 0
            ops = []
            for sp in range(20):
                bp, ab = sp >> 1, sp & 1
                kb, u = bp >> 1, bp & 1
                s = 20 * kh + sp
                q = RING + 4 * (sp % 4)
                rd = Ins('ds_read_b128 %s, %s offset:%d' % (vr(q, 4), vr(rsb + 2 * u + ab), base + kb * 4096))
                first = (kh == 0 and sp == 0)
                m = Ins('v_mfma_f32_32x32x16_bf16 %s, %s, %s, %s' % (vr(acc, 16), XF(s), vr(q, 4), '0' if first else vr(acc, 16)))
                gm = None
                if gate:
                    gm = Ins('v_mfma_f32_32x32x16_bf16 %s, %s, %s, %s' % (ar(A_F[0], 16), ar(A_GW + 4 * s, 4), XF(s), '0' if s == 0 else ar(A_F[0], 16)))
                ops.append((rd, m, gm))
            dist = 3
            for sp in range(dist):
                out.append(ops[sp][0])
            for sp in range(20):
                rd, m, gm = ops[sp]
                out.append(m)
                if sp + dist < 20:
                    out.append(ops[sp + dist][0])
                if hooks and sp in hooks:
                    for grp in hooks[sp]:
                        out += grp
                if gate:
                    out.append(gm)
            return out

        def stage_open(covers):
            for c in covers:
                a.put(WaitVM(dma_last[c]))
            a.waitcnt(lg=0)
            a('s_barrier')

        def w2_item(T):
            gr = []
            last_rd = None
            for e in range(2):
                q = T + 4 * e
                g0 = [Ins('ds_read_b64_tr_b16 %s, %s offset:%d' % (vr(q, 2), vr(V['W2R']), 1024 * e))]
                if e == 0:
                    g0 = [WaitVM(w2_dma[1])] + g0
                gr.append(g0)
                last_rd = Ins('ds_read_b64_tr_b16 %s, %s offset:%d' % (vr(q + 2, 2), vr(V['W2R']), 1024 * e + 256))
                gr.append([last_rd])
            cd = []
            for e in range(2):
                ld = Ins('buffer_load_dwordx4 %s, %s, s24 offen lds' % (vr(CD + e), srd(R_CI)))
                hd = [WaitLG(last_rd)] if e == 0 else []
                gr.append(hd + [Ins('s_lshl_b32 s96, s%d, 11' % sW), Ins('s_add_u32 m0, s96, %d' % (L_WST + 1024 * e)), Ins('s_nop 0'), ld])
                cd.append(ld)
            gr.append([Ins('buffer_store_dwordx4 %s, v1, %s, s26 offen sc1' % (vr(T, 4), srd(R_WS)))])
            gr.append([Ins('buffer_store_dwordx4 %s, v1, %s, s26 offen offset:1024 sc1' % (vr(T + 4, 4), srd(R_WS)))])
            return gr, cd

        def c_item(T, cd):
            gr = [[WaitVM(cd[1]), Ins('ds_read_b128 %s, %s' % (vr(T, 4), vr(CR)))],
                  [Ins('ds_read_b128 %s, %s' % (vr(T + 4, 4), vr(CR + 1)))],
                  [Ins('s_add_u32 s96, s25, 5120')],
                  [Ins('buffer_store_dwordx4 %s, v2, %s, s25 offen sc1' % (vr(T, 4), srd(R_WS)))]]
            st = Ins('buffer_store_dwordx4 %s, v2, %s, s96 offen sc1' % (vr(T + 4, 4), srd(R_WS)))
            gr.append([st])
            return gr, st

        def w_flag(T, st):
            return [[WaitVM(st), Ins('v_mov_b32 %s, s%d' % (vr(T), sTAG))],
                    [Ins('v_mov_b32 %s, s%d' % (vr(T + 1), sTAG2))],
                    [Ins('s_lshl_b32 s96, s%d, 3' % sGWI), Ins('s_add_u32 s96, s96, 0x%x' % WF_OFF)],
                    [Ins('v_mov_b32 %s, 0' % vr(T + 2))],
                    [Ins('buffer_store_dwordx2 %s, %s, %s, s96 offen sc1' % (vr(T, 2), vr(T + 2), srd(R_WS)))]]

        def masks(T):
            g_ = [[Ins('v_lshrrev_b32 %s, 5, v0' % vr(T))], [Ins('s_lshl_b32 s95, s%d, 1' % sW), Ins('v_add_u32 %s, s95, %s' % (vr(T), vr(T)))]]
            for s_ in range(1, 8):
                g_.append([Ins('v_cmp_eq_u32 s[%d:%d], %d, %s' % (S_MASK + 2 * (s_ - 1), S_MASK + 2 * (s_ - 1) + 1, s_, vr(T)))])
            return g_

        def gate_math(T):
            G, OMG = V['G'], V['OMG']
            t0, t1, t2 = T, T + 1, T + 2
            L = ['v_accvgpr_read_b32 %s, %s' % (vr(t0), ar(A_F[0])),
                 'v_cvt_pk_bf16_f32 %s, %s, %s' % (vr(t0), vr(t0), vr(t0)),
                 'v_lshlrev_b32 %s, 16, %s' % (vr(t0), vr(t0)),
                 'v_mul_f32 %s, 0x%08x, %s' % (vr(t0), f2u(-math.log2(math.e)), vr(t0)),
                 'v_exp_f32 %s, %s' % (vr(t0), vr(t0)),
                 'v_and_b32 %s, 31, v0' % vr(t1),
                 'v_add_f32 %s, 1.0, %s' % (vr(t0), vr(t0)),
                 'v_rcp_f32 %s, %s' % (vr(t0), vr(t0)),
                 'v_bfe_u32 %s, %s, 2, 1' % (vr(t2), vr(t1)),
                 'v_cvt_pk_bf16_f32 %s, %s, %s' % (vr(t0), vr(t0), vr(t0)),
                 'v_lshlrev_b32 %s, 16, %s' % (vr(G), vr(t0)),
                 'v_sub_f32 %s, 1.0, %s' % (vr(t0), vr(G)),
                 'v_cvt_pk_bf16_f32 %s, %s, %s' % (vr(t0), vr(t0), vr(t0)),
                 'v_lshlrev_b32 %s, 16, %s' % (vr(OMG), vr(t0)),
                 'v_lshlrev_b32 %s, 4, %s' % (vr(t2), vr(t2)),
                 'v_and_b32 %s, 3, %s' % (vr(t0), vr(t1)),
                 'v_add_u32 %s, %s, %s' % (vr(t0), vr(t0), vr(t2)),
                 'v_lshrrev_b32 %s, 3, %s' % (vr(t2), vr(t1)),
                 'v_lshl_add_u32 %s, %s, 2, %s' % (vr(t0), vr(t2), vr(t0)),
                 's_lshl_b32 s95, s%d, 5' % sW,
                 'v_add_u32 %s, s95, %s' % (vr(t0), vr(t0)),
                 'v_lshlrev_b32 %s, 2, %s' % (vr(t0), vr(t0)),
                 'v_add_u32 %s, %d, %s' % (vr(t0), L_GATE, vr(t0)),
                 'ds_write_b32 %s, %s' % (vr(t0), vr(G))]
            return [[Ins(x)] for x in L]

        def pass1(g):
            it = []
            RE, IM = ACC[g], ACC[g] + 16
            lr, li, nli = V['lr%d' % g], V['li%d' % g], V['nli%d' % g]
            sa = [SC[g] + 0, SC[g] + 1]
            sb = [SC[g] + 2, SC[g] + 3]
            cur = [RE, IM]
            for t in range(1, 16):
                d = sa if t % 2 else sb
                it.append(Ins('v_fma_f32 %s, %s, %s, %s' % (vr(d[0]), vr(lr), vr(cur[0]), vr(RE + t))))
                it.append(Ins('v_fma_f32 %s, %s, %s, %s' % (vr(d[1]), vr(lr), vr(cur[1]), vr(IM + t))))
                it.append(Ins('v_fmac_f32 %s, %s, %s' % (vr(d[0]), vr(nli), vr(cur[1]))))
                it.append(Ins('v_fmac_f32 %s, %s, %s' % (vr(d[1]), vr(li), vr(cur[0]))))
                cur = d
            it.append(Ins('ds_write_b64 %s, %s offset:%d' % (vr(V['SEGW']), vr(cur[0], 2), L_SEG - MISC + 2560 * g)))
            return [[x] for x in it]

        def prefix(g, buf):
            it = []
            l16r, l16i = V['l16r%d' % g], V['l16i%d' % g]
            Pr, Pi = SC[g] + 0, SC[g] + 1
            for jj in range(4):
                it.append(Ins('ds_read_b128 %s, %s offset:%d' % (vr(buf + 4 * jj, 4), vr(V['SEGR']), L_SEG - MISC + 2560 * g + 16 * jj)))
            it.append(Ins('v_mov_b32 %s, 0' % vr(Pr)))
            it.append(Ins('v_mov_b32 %s, 0' % vr(Pi)))
            sel = []
            for s in range(1, 8):
                m = S_MASK + 2 * (s - 1)
                pr, pi_, cr_, ci_ = buf + 2 * (s - 1), buf + 2 * (s - 1) + 1, buf + 2 * s, buf + 2 * s + 1
                it.append(Ins('v_fmac_f32 %s, %s, %s' % (vr(cr_), vr(l16r), vr(pr))))
                it.append(Ins('v_fmac_f32 %s, %s, %s' % (vr(ci_), vr(l16r), vr(pi_))))
                it.append(Ins('v_fma_f32 %s, -%s, %s, %s' % (vr(cr_), vr(l16i), vr(pi_), vr(cr_))))
                it.append(Ins('v_fmac_f32 %s, %s, %s' % (vr(ci_), vr(l16i), vr(pr))))
                sel.append(Ins('v_cndmask_b32 %s, %s, %s, s[%d:%d]' % (vr(Pr), vr(Pr), vr(pr), m, m + 1)))
                sel.append(Ins('v_cndmask_b32 %s, %s, %s, s[%d:%d]' % (vr(Pi), vr(Pi), vr(pi_), m, m + 1)))
            pb = SC[g] + 4 if A else 88
            it.append(Ins('v_mov_b32 %s, %s' % (vr(pb), vr(buf + 14))))
            it.append(Ins('v_mov_b32 %s, s%d' % (vr(pb + 1), sTAG)))
            it.append(Ins('v_mov_b32 %s, %s' % (vr(pb + 2), vr(buf + 15))))
            it.append(Ins('v_mov_b32 %s, s%d' % (vr(pb + 3), sTAG)))
            it.append(Ins('s_add_u32 s97, s%d, %d' % (sG, g)))
            it.append(Ins('s_lshl_b32 s97, s97, 4'))
            it.append(Ins('s_add_u32 s97, s97, s%d' % sR))
            it.append(Ins('s_lshl_b32 s97, s97, 9'))
            it.append(Ins('s_add_u32 s97, s97, 0x%x' % AGG_OFF))
            it.append(Ins('buffer_store_dwordx4 %s, %s, %s, s97 offen sc1' % (vr(pb, 4), vr(V['AG']), srd(R_WS))))
            return [[x] for x in it + sel]

        def coef(g, t0):
            it = []
            RE, IM = ACC[g], ACC[g] + 16
            cr, ci = V['cr%d' % g], V['ci%d' % g]
            for t in range(16):
                tt = t0 + (t & 1)
                it.append(Ins('v_mul_f32 %s, %s, %s' % (vr(tt), vr(ci), vr(IM + t))))
                it.append(Ins('v_mul_f32 %s, %s, %s' % (vr(IM + t), vr(cr), vr(IM + t))))
                it.append(Ins('v_fmac_f32 %s, %s, %s' % (vr(IM + t), vr(ci), vr(RE + t))))
                it.append(Ins('v_fma_f32 %s, %s, %s, -%s' % (vr(RE + t), vr(cr), vr(RE + t), vr(tt))))
            return [[x] for x in it]

        def lb_issue(g, buf):
            return [[Ins('s_add_u32 s95, s%d, %d' % (sG, g)), Ins('s_lshl_b32 s95, s95, 13'), Ins('s_add_u32 s95, s95, 0x%x' % AGG_OFF)],
                    [Ins('buffer_load_dwordx4 %s, %s, %s, s95 offen sc1' % (vr(buf, 4), vr(V['LB0']), srd(R_WS)))],
                    [Ins('buffer_load_dwordx4 %s, %s, %s, s95 offen sc1' % (vr(buf + 4, 4), vr(V['LB1']), srd(R_WS)))]]

        def lb_check(buf, t):
            a('v_xor_b32 %s, s%d, %s' % (vr(t), sTAG, vr(buf + 1)))
            a('v_xor_b32 %s, s%d, %s' % (vr(t + 1), sTAG, vr(buf + 3)))
            a('v_xor_b32 %s, s%d, %s' % (vr(t + 2), sTAG, vr(buf + 5)))
            a('v_xor_b32 %s, s%d, %s' % (vr(t + 3), sTAG, vr(buf + 7)))
            a('v_or3_b32 %s, %s, %s, %s' % (vr(t), vr(t), vr(t + 1), vr(t + 2)))
            a('v_or_b32 %s, %s, %s' % (vr(t), vr(t), vr(t + 3)))
            a('v_cmp_ne_u32 vcc, 0, %s' % vr(t))
            a('s_cmp_eq_u64 vcc, 0')

        def lookback_wait(g, buf, lbl):
            t = buf + 8
            lb_check(buf, t)
            a.settle()
            a('s_cbranch_scc1 %s_ok' % lbl)
            snap = a.snapshot()
            a('s_mov_b32 s91, 0')
            a.drain()
            a.label(lbl)
            a('buffer_load_dwordx4 %s, %s, %s, s95 offen sc1' % (vr(buf, 4), vr(V['LB0']), srd(R_WS)))
            a('buffer_load_dwordx4 %s, %s, %s, s95 offen sc1' % (vr(buf + 4, 4), vr(V['LB1']), srd(R_WS)))
            a('s_add_u32 s91, s91, 1')
            lb_check(buf, t)
            a('s_cbranch_scc1 %s_ok' % lbl)
            a('s_cmp_lt_u32 s91, 0x%x' % o.get('spin', 200000))
            a('s_cbranch_scc1 %s' % lbl)
            a.settle()
            a.label(lbl + '_ok')
            a.restore(snap)
            p1r, p1i, p2r, p2i = (V['p%s%d' % (x, g)] for x in ('1r', '1i', '2r', '2i'))
            hr, hi = buf + 8, buf + 9
            a('v_mul_f32 %s, %s, %s' % (vr(hr), vr(p1r), vr(buf)))
            a('v_mul_f32 %s, %s, %s' % (vr(hi), vr(p1r), vr(buf + 2)))
            a('v_fma_f32 %s, -%s, %s, %s' % (vr(hr), vr(p1i), vr(buf + 2), vr(hr)))
            a('v_fmac_f32 %s, %s, %s' % (vr(hi), vr(p1i), vr(buf)))
            a('v_fmac_f32 %s, %s, %s' % (vr(hr), vr(p2r), vr(buf + 4)))
            a('v_fmac_f32 %s, %s, %s' % (vr(hi), vr(p2r), vr(buf + 6)))
            a('v_fma_f32 %s, -%s, %s, %s' % (vr(hr), vr(p2i), vr(buf + 6), vr(hr)))
            a('v_fmac_f32 %s, %s, %s' % (vr(hi), vr(p2i), vr(buf + 4)))
            a('ds_write_b64 %s, %s offset:%d' % (vr(V['SEGW']), vr(hr, 2), L_LB - MISC + 2560 * g))
            a.waitcnt(lg=0)
            a('s_barrier')

        def entry_state(g, buf):
            it = []
            for jj in range(4):
                it.append('ds_read_b128 %s, %s offset:%d' % (vr(buf + 4 * jj, 4), vr(V['SEGR']), L_LB - MISC + 2560 * g + 16 * jj))
            for jj in (1, 3, 5, 7):
                it.append('v_add_f32 %s, %s, %s' % (vr(buf + 2 * jj - 2), vr(buf + 2 * jj - 2), vr(buf + 2 * jj)))
                it.append('v_add_f32 %s, %s, %s' % (vr(buf + 2 * jj - 1), vr(buf + 2 * jj - 1), vr(buf + 2 * jj + 1)))
            for (x, y) in ((0, 4), (8, 12), (0, 8)):
                it.append('v_add_f32 %s, %s, %s' % (vr(buf + x), vr(buf + x), vr(buf + y)))
                it.append('v_add_f32 %s, %s, %s' % (vr(buf + x + 1), vr(buf + x + 1), vr(buf + y + 1)))
            Pr, Pi = SC[g] + 0, SC[g] + 1
            lsr, lsi, cr, ci = (V[x + str(g)] for x in ('lsr', 'lsi', 'cr', 'ci'))
            it += ['v_fmac_f32 %s, %s, %s' % (vr(Pr), vr(lsr), vr(buf)),
                   'v_fmac_f32 %s, %s, %s' % (vr(Pi), vr(lsr), vr(buf + 1)),
                   'v_fma_f32 %s, -%s, %s, %s' % (vr(Pr), vr(lsi), vr(buf + 1), vr(Pr)),
                   'v_fmac_f32 %s, %s, %s' % (vr(Pi), vr(lsi), vr(buf)),
                   'v_mul_f32 %s, %s, %s' % (vr(buf + 2), vr(cr), vr(Pr)),
                   'v_mul_f32 %s, %s, %s' % (vr(buf + 3), vr(cr), vr(Pi)),
                   'v_fma_f32 %s, -%s, %s, %s' % (vr(buf + 2), vr(ci), vr(Pi), vr(buf + 2)),
                   'v_fmac_f32 %s, %s, %s' % (vr(buf + 3), vr(ci), vr(Pr))]
            return [[Ins(x)] for x in it]

        def pass2(g, buf):
            it = []
            RE, IM = ACC[g], ACC[g] + 16
            lr, li, nli = V['lr%d' % g], V['li%d' % g], V['nli%d' % g]
            pr, pi_ = buf + 2, buf + 3
            for t in range(16):
                it.append(Ins('v_fmac_f32 %s, %s, %s' % (vr(RE + t), vr(lr), vr(pr))))
                it.append(Ins('v_fmac_f32 %s, %s, %s' % (vr(IM + t), vr(lr), vr(pi_))))
                it.append(Ins('v_fmac_f32 %s, %s, %s' % (vr(RE + t), vr(nli), vr(pi_))))
                it.append(Ins('v_fmac_f32 %s, %s, %s' % (vr(IM + t), vr(li), vr(pr))))
                pr, pi_ = RE + t, IM + t
            for e in range(8):
                it.append(Ins('v_cvt_pk_bf16_f32 %s, %s, %s' % (vr(RE + e), vr(RE + 2 * e), vr(RE + 2 * e + 1))))
            for e in range(8):
                it.append(Ins('v_cvt_pk_bf16_f32 %s, -%s, -%s' % (vr(RE + 8 + e), vr(IM + 2 * e), vr(IM + 2 * e + 1))))
            return [[x] for x in it]

        def build_sel(B, T):
            n_, e_, t_, val = T, T + 1, T + 2, T + 3
            L = ['v_and_b32 %s, 31, v0' % vr(n_),
                 'v_lshrrev_b32 %s, 3, %s' % (vr(t_), vr(n_)),
                 'v_and_b32 %s, 3, %s' % (vr(e_), vr(n_)),
                 'v_lshl_add_u32 %s, %s, 2, %s' % (vr(e_), vr(t_), vr(e_)),
                 'v_bfe_u32 %s, %s, 2, 1' % (vr(t_), vr(n_)),
                 'v_lshrrev_b32 %s, 5, v0' % vr(val),
                 'v_cmp_eq_u32 vcc, %s, %s' % (vr(t_), vr(val)),
                 'v_lshrrev_b32 %s, 16, %s' % (vr(val), vr(V['G'])),
                 'v_cndmask_b32 %s, 31, %s, vcc' % (vr(e_), vr(e_)),
                 'v_and_b32 %s, 1, %s' % (vr(t_), vr(e_)),
                 'v_lshlrev_b32 %s, 4, %s' % (vr(t_), vr(t_)),
                 'v_lshlrev_b32 %s, %s, %s' % (vr(val), vr(t_), vr(val)),
                 'v_lshrrev_b32 %s, 1, %s' % (vr(e_), vr(e_))]
            g = [[Ins(x)] for x in L]
            for k in range(8):
                g.append([Ins('v_cmp_eq_u32 vcc, %d, %s' % (k, vr(e_))),
                          Ins('v_cndmask_b32 %s, 0, %s, vcc' % (vr(B + k), vr(val)))])
            return g

        def transpose_store(g, B, D0, D1):
            RE = ACC[g]
            a('v_mfma_f32_32x32x16_bf16 %s, %s, %s, 0' % (vr(D0, 16), vr(RE, 4), vr(B, 4)))
            a('v_mfma_f32_32x32x16_bf16 %s, %s, %s, 0' % (vr(D1, 16), vr(RE + 8, 4), vr(B, 4)))
            a('v_mfma_f32_32x32x16_bf16 %s, %s, %s, %s' % (vr(D0, 16), vr(RE + 4, 4), vr(B + 4, 4), vr(D0, 16)))
            a('v_mfma_f32_32x32x16_bf16 %s, %s, %s, %s' % (vr(D1, 16), vr(RE + 12, 4), vr(B + 4, 4), vr(D1, 16)))
            a('s_add_u32 s94, s%d, %d' % (sHS, (48 + g) * 4096))
            a('s_add_u32 s95, s%d, %d' % (sHS, (68 + g) * 4096))
            for D, so in ((D0, 94), (D1, 95)):
                for e in range(8):
                    a('v_cvt_pk_bf16_f32 %s, %s, %s' % (vr(D + e), vr(D + 2 * e), vr(D + 2 * e + 1)))
                a('buffer_store_dwordx4 %s, %s, %s, s%d offen sc1' % (vr(D, 4), vr(V['ST']), srd(R_WS), so))
                a('buffer_store_dwordx4 %s, %s, %s, s%d offen offset:512 sc1' % (vr(D + 4, 4), vr(V['ST']), srd(R_WS), so))

        def ffn_tile(tile):
            blk, tp = tile >> 1, tile & 1
            acc = A_F[tile & 1]
            ops = []
            for s in range(40):
                st, sp = s // 10, s % 10
                slot = slot_of[4 + 4 * blk + st]
                reg = slot // 3
                off = (slot % 3) * SLOT + (32 * (sp >> 1) + 8 * (sp & 1)) * 128
                q = RING + 4 * (s % 4)
                base = V['RF'] + tp + 2 * reg
                r0 = Ins('ds_read_b64_tr_b16 %s, %s offset:%d' % (vr(q, 2), vr(base), off))
                r1 = Ins('ds_read_b64_tr_b16 %s, %s offset:%d' % (vr(q + 2, 2), vr(base), off + 512))
                m = Ins('v_mfma_f32_32x32x16_bf16 %s, %s, %s, %s' % (ar(acc, 16), vr(q, 4), XF(s), '0' if s == 0 else ar(acc, 16)))
                ops.append((r0, r1, m))
            return ops

        def ffn_seq(ops, s0, s1, dist=3):
            out = []
            for s in range(s0, min(s0 + dist, s1)):
                out += [ops[s][0], ops[s][1]]
            for s in range(s0, s1):
                out.append(ops[s][2])
                if s + dist < s1:
                    out += [ops[s + dist][0], ops[s + dist][1]]
            return out

        def ffn_pack(tile, T):
            acc = A_F[tile & 1]
            it = []
            for e in range(16):
                it.append(Ins('v_accvgpr_read_b32 %s, %s' % (vr(T + e), ar(acc + e))))
            for e in range(16):
                it.append(Ins('v_mul_f32 %s, %s, %s' % (vr(T + e), vr(V['OMG']), vr(T + e))))
            for e in range(8):
                it.append(Ins('v_cvt_pk_bf16_f32 %s, %s, %s' % (vr(T + e), vr(T + 2 * e), vr(T + 2 * e + 1))))
            for e in range(8):
                it.append(Ins('v_pk_max_i16 %s, %s, 0' % (vr(T + e), vr(T + e))))
            return [[x] for x in it]

        def ffn_store(tile, T):
            return [[Ins('s_add_u32 s94, s%d, %d' % (sHF, tile * 4096))],
                    [Ins('buffer_store_dwordx4 %s, %s, %s, s94 offen sc1' % (vr(T, 4), vr(V['ST']), srd(R_WS)))],
                    [Ins('buffer_store_dwordx4 %s, %s, %s, s94 offen offset:512 sc1' % (vr(T + 4, 4), vr(V['ST']), srd(R_WS)))]]

        BUD = o.get('bud', 3)
        stage_open([0])
        self.stamp(3)
        hooks = {}
        for kap in range(5):
            hooks[4 * kap] = xread(kap + 1)
            if kap + 5 <= 9:
                hooks[4 * kap + 2] = xrefill(kap + 5)
        weave(a, ssm_stage(0, hooks), [Stream(stage_loads(2), start=14, every=4)], budget=4)
        self.stamp((1, 5))
        stage_open([1])
        self.stamp((1, 6))
        hooks = {4 * k: xread(6 + k) for k in range(4)}
        weave(a, ssm_stage(1, hooks), [Stream(stage_loads(3) + stage_loads(4))], budget=6)
        self.stamp((1, 7))
        stage_open([2])
        self.stamp((1, 8))
        w2g, c_dma = w2_item(64)
        ld = stage_loads(5) + stage_loads(6) + stage_loads(7) + (stage_loads(8) if A else [])
        weave(a, ssm_stage(2), [Stream(ld, every=2), Stream(w2g, start=4, every=2)], budget=6)
        self.stamp((1, 9))
        stage_open([3])
        self.stamp((1, 10))
        cg, c_st = c_item(72, c_dma)
        weave(a, ssm_stage(3), [Stream(stage_loads(9) if A else []), Stream(gate_math(80) + masks(84), per=3), Stream(cg, start=8)], budget=4)
        if o.get('detail', 0) != 2:
            self.stamp(4)

        if A:
            SC = [48]
            BUF = 56
            SEL = 72
            EPI = [80, EXT]
            put_all(pass1(0))
            stage_open([4, 5, 6, 7])
            t0 = ffn_tile(0)
            weave(a, ffn_seq(t0, 0, 40), [Stream(prefix(0, BUF), per=3), Stream(stage_loads(10)), Stream(coef(0, EPI[1]), per=3)], budget=BUD)
            t1 = ffn_tile(1)
            s_e0 = Stream(ffn_pack(0, EPI[0]) + ffn_store(0, EPI[0]), per=3)
            weave(a, ffn_seq(t1, 0, 10), [s_e0], budget=BUD, flush=False)
            a.waitcnt(lg=0)
            a('s_barrier')
            weave(a, ffn_seq(t1, 10, 40), [Stream(stage_loads(11)), s_e0, Stream(w_flag(52, c_st)), Stream(build_sel(SEL, BUF), per=3)], budget=BUD)
            stage_open([8, 9, 10, 11])
            t2 = ffn_tile(2)
            weave(a, ffn_seq(t2, 0, 40), [Stream(ffn_pack(1, EPI[1]), per=3), Stream(lb_issue(0, BUF), start=o.get('lbpos', 18), per=3)], budget=BUD)
            self.stamp(5)
            lookback_wait(0, BUF, 'L_lbA')
            self.stamp(6)
            t3 = ffn_tile(3)
            weave(a, ffn_seq(t3, 0, 40), [Stream(ffn_store(1, EPI[1]), per=3), Stream(entry_state(0, BUF) + pass2(0, BUF), per=3),
                                         Stream(ffn_pack(2, EPI[0]) + ffn_store(2, EPI[0]), per=3)], budget=BUD)
            transpose_store(0, SEL, XV, XV + 16)
            put_all(ffn_pack(3, EPI[1]) + ffn_store(3, EPI[1]))
        else:
            SC = [80, 84]
            BUF = EXT
            put_all(pass1(0))
            stage_open([4])
            weave(a, ssm_stage(4), [Stream(prefix(0, BUF), per=3)], budget=4)
            stage_open([5])
            weave(a, ssm_stage(5), [Stream(coef(0, BUF), per=4)], budget=4)
            stage_open([6])
            weave(a, ssm_stage(6), [Stream(w_flag(BUF, c_st))], budget=4)
            stage_open([7])
            weave(a, ssm_stage(7), [Stream(lb_issue(0, BUF), start=8, per=3)], budget=4)
            put_all(pass1(1))
            self.stamp(5)
            lookback_wait(0, BUF, 'L_lbB0')
            self.stamp(6)
            SEL = XV
            put_all(prefix(1, XV + 16))
            put_all(build_sel(SEL, XV + 8))
            put_all(entry_state(0, BUF))
            put_all(pass2(0, BUF))
            transpose_store(0, SEL, XV + 16, XV + 32)
            put_all(coef(1, BUF))
            put_all(lb_issue(1, BUF))
            lookback_wait(1, BUF, 'L_lbB1')
            put_all(entry_state(1, BUF))
            put_all(pass2(1, BUF))
            transpose_store(1, SEL, XV + 16, XV + 32)

        self.stamp(7)
        a.waitcnt(vm=0)
        self.stamp(8)
        a('v_mov_b32 %s, s%d' % (vr(RING), sTAG))
        a('v_mov_b32 %s, s%d' % (vr(RING + 1), sTAG2))
        a('s_lshl_b32 s90, s%d, 2' % sR)
        a('s_add_u32 s90, s90, s%d' % sW)
        a('s_lshl_b32 s90, s90, 4')
        a('s_add_u32 s90, s90, s%d' % sC16)
        a('s_lshl_b32 s90, s90, 3')
        a('s_add_u32 s90, s90, 0x%x' % FLAG_OFF)
        a('v_mov_b32 %s, 0' % vr(RING + 2))
        a('buffer_store_dwordx2 %s, %s, %s, s90 offen sc1' % (vr(RING, 2), vr(RING + 2), srd(R_WS)))
        a.waitcnt(lg=0)
        a.settle()

    def poll(self, lbl, voff, soff, tmp):
        a = self.a
        a('s_mov_b32 s91, 0')
        a.drain()
        a.settle()
        a.label(lbl)
        a('buffer_load_dwordx2 %s, %s, %s, s%d offen sc1' % (vr(tmp, 2), vr(voff), srd(R_WS), soff))
        a('s_add_u32 s91, s91, 1')
        a('v_xor_b32 %s, s%d, %s' % (vr(tmp), sTAG, vr(tmp)))
        a('v_xor_b32 %s, s%d, %s' % (vr(tmp + 1), sTAG2, vr(tmp + 1)))
        a('v_or_b32 %s, %s, %s' % (vr(tmp), vr(tmp), vr(tmp + 1)))
        a('v_cmp_ne_u32 vcc, 0, %s' % vr(tmp))
        a('s_cmp_eq_u64 vcc, 0')
        a('s_cbranch_scc1 %s_ok' % lbl)
        a('s_cmp_lt_u32 s91, 0x%x' % self.o.get('spin', 200000))
        a('s_cbranch_scc1 %s' % lbl)
        a.settle()
        a.label(lbl + '_ok')

    def phase2(self):
        a, o = self.a, self.o
        VL16, VL16B, VH, VRW, VRR, VO, VX, VD, VG, VP = 1, 2, 3, 7, 10, 11, 12, 13, 14, 96
        t0, t1, t2 = 98, 99, 15
        ACC = 16
        arch_pool = list(range(100, 256, 4))
        acc_pool = list(range(0, 240 if o.get('stamps') else 256, 4))

        def acc(dt, dl):
            return ACC + 4 * (4 * dt + dl)
        self.build_srd(R_OUT, S_OUT, 5242880)
        a('v_lshlrev_b32 %s, 4, v0' % vr(VL16))
        a('v_add_u32 %s, 4096, %s' % (vr(VL16B), vr(VL16)))
        a('s_mul_i32 s90, s%d, 120' % sC2)
        a('s_mul_i32 s95, s%d, 30' % sW)
        a('s_add_u32 s90, s90, s95')
        a('v_and_b32 %s, 31, v0' % vr(t1))
        a('v_min_u32 %s, 29, %s' % (vr(t0), vr(t1)))
        a('v_add_u32 %s, s90, %s' % (vr(t0), vr(t0)))
        a('s_lshr_b32 s90, s%d, 1' % sW)
        a('s_mul_i32 s90, s90, 400')
        a('s_mul_i32 s95, s%d, 50' % sC2)
        a('s_add_u32 s90, s90, s95')
        a('s_and_b32 s95, s%d, 1' % sW)
        a('s_mul_i32 s95, s95, 25')
        a('s_add_u32 s90, s90, s95')
        a('v_min_u32 %s, 24, %s' % (vr(t1), vr(t1)))
        a('v_add_u32 %s, s90, %s' % (vr(t1), vr(t1)))
        a('v_cmp_gt_u32 vcc, 32, v0')
        a('v_cndmask_b32 %s, %s, %s, vcc' % (vr(t0), vr(t1), vr(t0)))
        a('v_lshlrev_b32 %s, 3, %s' % (vr(t0), vr(t0)))
        a('s_mov_b32 s95, 0x%x' % WF_OFF)
        self.poll('L_pw', t0, 95, VP)

        steps = [('S', i) for i in range(10)] + [('F', i) for i in range(12)]
        KS = list(range(4, 20)) + list(range(52, 58))
        a('s_and_b32 s92, s%d, 3' % sC2)
        if not o.get('rot2', 1):
            a('s_mov_b32 s92, 0')
        a('s_mul_i32 s93, s%d, 10' % sW)
        a('s_add_u32 s93, s93, 48')
        a('s_lshl_b32 s94, s92, 1')
        for i in range(10):
            a('s_add_u32 s%d, s93, s94' % KS[i])
            if i < 9:
                a('s_add_u32 s94, s94, 1')
                a('s_cmp_ge_u32 s94, 10')
                a('s_cselect_b32 s94, 0, s94')
        a('s_mul_i32 s93, s%d, 12' % sW)
        a('s_mul_i32 s94, s92, 3')
        for i in range(12):
            a('s_add_u32 s%d, s93, s94' % KS[10 + i])
            if i < 11:
                a('s_add_u32 s94, s94, 1')
                a('s_cmp_ge_u32 s94, 12')
                a('s_cselect_b32 s94, 0, s94')
        sWB, sHB, sWk, sHk = 24, 25, 26, 27
        a('s_mul_i32 s%d, s%d, %d' % (sWB, sC2, 88 * 5120))
        a('s_add_u32 s%d, s%d, 0x%x' % (sWB, sWB, WT_OFF))
        a('s_mul_i32 s%d, s%d, %d' % (sHB, sR2, 88 * 4096))
        a('s_add_u32 s%d, s%d, 0x%x' % (sHB, sHB, H_OFF))
        pool = [('a', r) for r in acc_pool] + [('v', r) for r in arch_pool]
        wq, hq = {}, {}

        def q(x):
            return (vr if x[0] == 'v' else ar)(x[1], 4)

        def w_groups(k):
            gr = []
            for dt in range(5):
                r = pool.pop(0)
                wq[(k, dt)] = r
                hd = []
                if dt == 0:
                    hd = [Ins('s_mul_i32 s%d, s%d, 5120' % (sWk, KS[k])), Ins('s_add_u32 s%d, s%d, s%d' % (sWk, sWk, sWB))]
                if dt < 4:
                    ld = Ins('buffer_load_dwordx4 %s, %s, %s, s%d offen offset:%d sc1' % (q(r), vr(VL16), srd(R_WS), sWk, dt * 1024))
                else:
                    ld = Ins('buffer_load_dwordx4 %s, %s, %s, s%d offen sc1' % (q(r), vr(VL16B), srd(R_WS), sWk))
                gr.append(hd + [ld])
            return gr

        def h_groups(k):
            gr = []
            for dl in range(4):
                r = pool.pop(0)
                hq[(k, dl)] = r
                hd = []
                if dl == 0:
                    hd = [Ins('s_lshl_b32 s%d, s%d, 12' % (sHk, KS[k])), Ins('s_add_u32 s%d, s%d, s%d' % (sHk, sHk, sHB))]
                gr.append(hd + [Ins('buffer_load_dwordx4 %s, %s, %s, s%d offen sc1' % (q(r), vr(VH + dl), srd(R_WS), sHk))])
            return gr

        def put_groups(gr):
            for g in gr:
                for x in g:
                    a.put(x)

        HD = o.get('hdepth', 5)
        WD = min(o.get('wdepth', 22), (len(pool) - 4 * HD) // 5)
        for k in range(WD):
            put_groups(w_groups(k))
        self.stamp(9)
        for dl in range(4):
            a('s_add_u32 s90, s%d, %d' % (sW, dl))
            a('s_and_b32 s90, s90, 3')
            a('s_lshl_b32 s91, s90, 10')
            a('v_add_u32 %s, s91, %s' % (vr(VH + dl), vr(VL16)))
            if dl:
                a('s_mul_i32 s91, s90, 15360')
                a('s_add_u32 s91, s91, %d' % ((dl - 1) * 5120))
                a('v_add_u32 %s, s91, %s' % (vr(VRW + dl - 1), vr(VL16)))
        a('s_mul_i32 s91, s%d, 15360' % sW)
        a('v_add_u32 %s, s91, %s' % (vr(VRR), vr(VL16)))
        a('v_and_b32 %s, 15, v0' % vr(t0))
        a('v_lshrrev_b32 %s, 4, v0' % vr(t2))
        a('v_bfe_u32 %s, %s, 2, 1' % (vr(t1), vr(t0)))
        a('v_lshlrev_b32 %s, 4, %s' % (vr(t1), vr(t1)))
        a('v_and_b32 %s, 3, %s' % (vr(VP), vr(t0)))
        a('v_add_u32 %s, %s, %s' % (vr(t1), vr(t1), vr(VP)))
        a('v_lshrrev_b32 %s, 3, %s' % (vr(VP), vr(t0)))
        a('v_lshl_add_u32 %s, %s, 2, %s' % (vr(t1), vr(VP), vr(t1)))
        a('s_lshr_b32 s90, s%d, 1' % sW)
        a('s_lshl_b32 s90, s90, 5')
        a('s_and_b32 s91, s%d, 1' % sW)
        a('s_lshl_b32 s91, s91, 3')
        a('s_add_u32 s90, s90, s91')
        a('v_add_u32 %s, s90, %s' % (vr(t1), vr(t1)))
        a('v_mul_u32_u24 %s, 2560, %s' % (vr(VO), vr(t1)))
        a('v_lshl_add_u32 %s, %s, 4, %s' % (vr(VO), vr(t2), vr(VO)))
        a('v_mul_u32_u24 %s, 1280, %s' % (vr(VX), vr(t1)))
        a('v_lshl_add_u32 %s, %s, 3, %s' % (vr(VX), vr(t2), vr(VX)))
        a('s_mul_i32 s90, s%d, 160' % sC2)
        a('v_lshlrev_b32 %s, 3, %s' % (vr(VD), vr(t2)))
        a('v_add_u32 %s, s90, %s' % (vr(VD), vr(VD)))
        a('s_and_b32 s90, s%d, 1' % sR2)
        a('s_lshl_b32 s90, s90, 6')
        a('v_add_u32 %s, s90, %s' % (vr(VG), vr(t1)))
        a('v_lshlrev_b32 %s, 2, %s' % (vr(VG), vr(VG)))
        a('v_add_u32 %s, %d, %s' % (vr(VG), L_GATE, vr(VG)))
        a('s_barrier')
        a('ds_read_b32 %s, %s' % (vr(VG), vr(VG)))
        a('s_lshl_b32 s90, s%d, 2' % sR)
        a('s_and_b32 s95, s%d, 1' % sR2)
        a('s_lshl_b32 s95, s95, 1')
        a('s_add_u32 s90, s90, s95')
        a('s_lshl_b32 s90, s90, 7')
        a('s_add_u32 s95, s90, 0x%x' % FLAG_OFF)
        a('v_and_b32 %s, 31, v0' % vr(t0))
        a('v_lshlrev_b32 %s, 3, %s' % (vr(t0), vr(t0)))
        self.poll('L_pfl', t0, 95, VP)
        a('s_cmp_lg_u32 s%d, 31' % sR2)
        a('s_cbranch_scc1 L_noep')
        a('s_cmp_lg_u32 s%d, 0' % sC2)
        a('s_cbranch_scc1 L_noep')
        a('v_mov_b32 %s, s%d' % (vr(t1), sTAG))
        a('v_mov_b32 %s, 0x%x' % (vr(t0), EPOCH_OFF))
        a('buffer_store_dword %s, %s, %s, 0 offen sc1' % (vr(t1), vr(t0), srd(R_WS)))
        a.waitcnt(vm=0)
        a.label('L_noep')
        self.stamp(10)
        self.stamp((2, 4))
        nh = 0
        while nh < 22 and len(pool) >= 4:
            put_groups(h_groups(nh))
            nh += 1
        nw = WD
        for k in range(22):
            main = []
            for dt in range(5):
                for dl in range(4):
                    c = '0' if k == 0 else vr(acc(dt, dl), 4)
                    main.append(Ins('v_mfma_f32_16x16x32_bf16 %s, %s, %s, %s' % (vr(acc(dt, dl), 4), q(wq[(k, dt)]), q(hq[(k, dl)]), c)))
            gr = []
            if k > 0:
                for dt in range(5):
                    pool.append(wq[(k - 1, dt)])
                for dl in range(4):
                    pool.append(hq[(k - 1, dl)])
                while True:
                    can_h = nh < 22 and len(pool) >= 4
                    can_w = nw < 22 and len(pool) >= 5
                    if can_h and (nh <= nw or not can_w) and nh <= k + o.get('hmax', 9):
                        gr += h_groups(nh)
                        nh += 1
                    elif can_w:
                        gr += w_groups(nw)
                        nw += 1
                    elif can_h and nh <= k + o.get('hmax', 9):
                        gr += h_groups(nh)
                        nh += 1
                    else:
                        break
            weave(a, main, [Stream(gr, every=2)], budget=4)
            if k in (0, 2, 5, 9, 13, 17):
                self.stamp((2, 5 + (0, 2, 5, 9, 13, 17).index(k)))
        assert nh == 22 and nw == 22
        self.stamp(11)
        self.stamp((2, 11))
        XRg, DR = 104, 116
        a('s_mul_i32 s90, s%d, %d' % (sR2, 64 * 1280))
        a('s_mul_i32 s91, s%d, 160' % sC2)
        a('s_add_u32 s90, s90, s91')
        for dt in range(5):
            a('buffer_load_dwordx2 %s, %s, %s, s90 offen offset:%d' % (vr(XRg + 2 * dt, 2), vr(VX), srd(R_X), 32 * dt))
            a('global_load_dwordx2 %s, %s, s[%d:%d] offset:%d' % (vr(DR + 2 * dt, 2), vr(VD), S_DSK, S_DSK + 1, 32 * dt))
        for dl in range(1, 4):
            for dt in range(5):
                a('ds_write_b128 %s, %s offset:%d' % (vr(VRW + dl - 1), vr(acc(dt, dl), 4), dt * 1024))
        a.waitcnt(lg=0)
        a('s_barrier')
        RB = 128
        for sl in range(3):
            for dt in range(5):
                a('ds_read_b128 %s, %s offset:%d' % (vr(RB + 4 * (5 * sl + dt), 4), vr(VRR), (sl * 5 + dt) * 1024))
        a('s_mul_i32 s90, s%d, %d' % (sR2, 64 * 2560))
        a('s_mul_i32 s91, s%d, 320' % sC2)
        a('s_add_u32 s90, s90, s91')
        for dt in range(5):
            xs, ds = XRg + 2 * dt, DR + 2 * dt
            tx, td = 200, 204
            a('v_lshlrev_b32 %s, 16, %s' % (vr(tx), vr(xs)))
            a('v_and_b32 %s, 0xffff0000, %s' % (vr(tx + 1), vr(xs)))
            a('v_lshlrev_b32 %s, 16, %s' % (vr(tx + 2), vr(xs + 1)))
            a('v_and_b32 %s, 0xffff0000, %s' % (vr(tx + 3), vr(xs + 1)))
            a('v_lshlrev_b32 %s, 16, %s' % (vr(td), vr(ds)))
            a('v_and_b32 %s, 0xffff0000, %s' % (vr(td + 1), vr(ds)))
            a('v_lshlrev_b32 %s, 16, %s' % (vr(td + 2), vr(ds + 1)))
            a('v_and_b32 %s, 0xffff0000, %s' % (vr(td + 3), vr(ds + 1)))
            for r in range(4):
                a('v_mul_f32 %s, %s, %s' % (vr(tx + r), vr(tx + r), vr(td + r)))
            for r in range(4):
                d = acc(dt, 0) + r
                a('v_fmac_f32 %s, %s, %s' % (vr(d), vr(VG), vr(tx + r)))
                for sl in range(3):
                    a('v_add_f32 %s, %s, %s' % (vr(d), vr(d), vr(RB + 4 * (5 * sl + dt) + r)))
            a('buffer_store_dwordx4 %s, %s, %s, s90 offen offset:%d' % (vr(acc(dt, 0), 4), vr(VO), srd(R_OUT), 64 * dt))

    def kernel(self):
        a = self.a
        self.prologue()
        a('s_cmp_ge_u32 s%d, 6' % sCC)
        a.settle()
        a('s_cbranch_scc1 L_typeB')
        snap = a.snapshot()
        self.phase1('A')
        a('s_branch L_phase2')
        a.label('L_typeB')
        a.restore(snap)
        self.phase1('B')
        a.label('L_phase2')
        self.phase2()
        self.dump_stamps()
        a.label('L_exit')
        a('s_endpgm')
        head = open('gated_mix__ssm_conv_s5__dense_activation_relu__prompt.s.ref').read().split('\n')
        hdr = [ln for ln in head if ln.startswith(';') and '@launch' not in ln and 'Override' not in ln and 'grid=ceil' not in ln]
        out = '\n'.join(hdr) + '\n'
        out += '; @launch grid=(256,1,1) block=(256,1,1) lds=%d\n' % LDS_BYTES
        out += '.amdgcn_target "amdgcn-amd-amdhsa--gfx950"\n.text\n.globl %s\n.p2align 8\n.type %s,@function\n%s:\n' % (KNAME, KNAME, KNAME)
        out += a.text()
        out += '''.section .rodata,"a"
.p2align 6
.amdhsa_kernel %s
  .amdhsa_next_free_vgpr 512
  .amdhsa_next_free_sgpr 102
  .amdhsa_accum_offset 256
  .amdhsa_group_segment_fixed_size 0
  .amdhsa_kernarg_size 128
  .amdhsa_user_sgpr_count 2
  .amdhsa_user_sgpr_kernarg_segment_ptr 1
  .amdhsa_system_sgpr_workgroup_id_x 1
  .amdhsa_float_denorm_mode_32 3
.end_amdhsa_kernel
''' % KNAME
        return out


if __name__ == '__main__':
    opts = {}
    for arg in sys.argv[2:]:
        k, v = arg.split('=')
        opts[k] = int(v, 0)
    g = Gen(opts)
    txt = g.kernel()
    open(sys.argv[1], 'w').write(txt)
    print('instructions', g.a.n_ins, g.a.stats, 'nop states', g.a.nop_states, 'bytes of text', len(txt))
```

```python
import sys, math, struct
from asmgen import Asm, Ins, WaitVM, WaitLG, Stream, weave

KNAME = 'gated_mix__ssm_conv_s5__dense_activation_relu__prompt_kernel'

EPOCH_OFF = 0
FLAG_OFF = 0x1000
WF_OFF = 0x4000
AGG_OFF = 0x10000
WT_OFF = 0x40000
H_OFF = 0x400000
STAMP_OFF = 0x1000000
WS_BYTES = 268435456
OOB = 0x40000000

SLOT = 20480
MISC = 7 * SLOT
XS = 4 * SLOT
L_GW = MISC + 4096
L_GATE = L_GW + 2048
L_WST = L_GATE + 512
L_SEG = L_WST + 8192
L_LB = L_WST
LDS_BYTES = 163840
assert L_SEG + 5120 <= LDS_BYTES and XS + 65536 <= L_GW

S_X, S_LRE, S_LIM, S_BRE, S_BIM, S_CRE, S_CIM, S_LDT = 4, 6, 8, 10, 12, 14, 16, 18
S_DSK, S_BX, S_W1, S_W2, S_GWP, S_OUT, S_DBG, S_WS = 20, 22, 24, 26, 28, 30, 32, 34
R_X, R_WS, R_BRE, R_BIM, R_W1, R_W2, R_GW = 36, 40, 44, 48, 52, 56, 60
R_CI = 60
R_OUT = 48
sTAG, sTAG2, sW, sR, sG, sA, sR2, sC2, sC16, sHALF, sCC, sRHO = 64, 65, 66, 67, 68, 69, 70, 71, 72, 73, 74, 75
S_MASK = 76
sKO = 76
sE = 3
sW10, sGWI, sHF, sHS = 99, 98, 22, 23
sFB, sXS = 28, 4


def srd(r):
    return 's[%d:%d]' % (r, r + 3)


def vr(b, n=1):
    return 'v%d' % b if n == 1 else 'v[%d:%d]' % (b, b + n - 1)


def ar(b, n=1):
    return 'a%d' % b if n == 1 else 'a[%d:%d]' % (b, b + n - 1)


def f2u(x):
    return struct.unpack('<I', struct.pack('<f', x))[0]


def magic(d):
    return (1 << 32) // d + 1


LOG2E = '0x%08x' % f2u(math.log2(math.e))
INV2PI = '0x%08x' % f2u(1.0 / (2 * math.pi))


class P2:
    VL16, VL16B = 14, 15
    KS = list(range(4, 20)) + list(range(52, 58))
    sWB, sHB, sWk, sHk = 24, 25, 26, 27

    def __init__(self, opts):
        self.o = opts
        top = 240 if opts.get('stamps') else 256
        self.early_quads = [('a', r) for r in range(160, top, 4)] + [('v', r) for r in range(192, 256, 4)]
        self.n_early = min(opts.get('nearly', 22), len(self.early_quads) // 5)
        self.wq = {}
        for k in range(self.n_early):
            for dt in range(5):
                self.wq[(k, dt)] = self.early_quads[5 * k + dt]

    @staticmethod
    def q(x):
        return (vr if x[0] == 'v' else ar)(x[1], 4)

    def tables(self, late=False):
        KS, o = self.KS, self.o
        L = []
        rot = 's_and_b32 s96, s%d, 3' % sC2 if o.get('rot2', 1) else 's_mov_b32 s96, 0'
        if not late:
            L += ['v_add_u32 %s, 4096, %s' % (vr(self.VL16B), vr(self.VL16)),
                  's_mul_i32 s%d, s%d, %d' % (self.sWB, sC2, 88 * 5120), 's_add_u32 s%d, s%d, 0x%x' % (self.sWB, self.sWB, WT_OFF),
                  's_mul_i32 s%d, s%d, %d' % (self.sHB, sR2, 88 * 4096), 's_add_u32 s%d, s%d, 0x%x' % (self.sHB, self.sHB, H_OFF),
                  rot, 's_lshl_b32 s96, s96, 1', 's_mul_i32 s95, s%d, 10' % sW, 's_add_u32 s95, s95, 48']
            gr = [[Ins(x)] for x in L]
            for i in range(10):
                gr.append([Ins('s_add_u32 s%d, s95, s96' % KS[i])])
                if i < 9:
                    gr.append([Ins('s_add_u32 s96, s96, 1')])
                    gr.append([Ins('s_cmp_ge_u32 s96, 10'), Ins('s_cselect_b32 s96, 0, s96')])
            gr += [[Ins(rot)], [Ins('s_mul_i32 s96, s96, 3')], [Ins('s_mul_i32 s95, s%d, 12' % sW)]]
            for i in range(6):
                gr.append([Ins('s_add_u32 s%d, s95, s96' % KS[10 + i])])
                gr.append([Ins('s_add_u32 s96, s96, 1')])
                gr.append([Ins('s_cmp_ge_u32 s96, 12'), Ins('s_cselect_b32 s96, 0, s96')])
            return gr
        gr = [[Ins('s_mul_i32 s95, s%d, 12' % sW)], [Ins('s_sub_u32 s96, s%d, s95' % KS[15])]]
        for i in range(6, 12):
            gr.append([Ins('s_add_u32 s96, s96, 1')])
            gr.append([Ins('s_cmp_ge_u32 s96, 12'), Ins('s_cselect_b32 s96, 0, s96')])
            gr.append([Ins('s_add_u32 s%d, s95, s96' % KS[10 + i])])
        return gr

    def w_loads(self, k, quads):
        gr = []
        for dt in range(5):
            hd = []
            if dt == 0:
                hd = [Ins('s_mul_i32 s%d, s%d, 5120' % (self.sWk, self.KS[k])), Ins('s_add_u32 s%d, s%d, s%d' % (self.sWk, self.sWk, self.sWB))]
            if dt < 4:
                ld = Ins('buffer_load_dwordx4 %s, %s, %s, s%d offen offset:%d sc1' % (self.q(quads[dt]), vr(self.VL16), srd(R_WS), self.sWk, dt * 1024))
            else:
                ld = Ins('buffer_load_dwordx4 %s, %s, %s, s%d offen sc1' % (self.q(quads[dt]), vr(self.VL16B), srd(R_WS), self.sWk))
            gr.append(hd + [ld])
        return gr

    def early_w(self):
        gr = []
        for k in range(self.n_early):
            gr += self.w_loads(k, [self.wq[(k, dt)] for dt in range(5)])
        return gr


class Gen:
    def __init__(self, opts):
        self.o = opts
        self.a = Asm()
        self.p2 = P2(opts)

    def stamp(self, k, clock=False):
        if not self.o.get('stamps'):
            return
        det = self.o.get('detail', 0)
        if isinstance(k, tuple):
            if k[0] != det:
                return
            k = k[1]
        elif det and (5 <= k <= 11 or (det == 3 and k in (1, 2, 3))):
            return
        a = self.a
        a('%s s[100:101]' % ('s_memtime' if clock else 's_memrealtime'))
        a.waitcnt(lg=0)
        a('v_accvgpr_write_b32 a%d, s100' % (240 + k))

    def dump_stamps(self):
        if not self.o.get('stamps'):
            return
        a = self.a
        self.stamp(12)
        self.stamp(14, clock=True)
        a.drain()
        for k in range(16):
            a('v_accvgpr_read_b32 v%d, a%d' % (16 + k, 240 + k))
        a('s_lshl_b32 s90, s2, 2')
        a('s_add_u32 s90, s90, s%d' % sW)
        a('s_lshl_b32 s90, s90, 6')
        a('s_add_u32 s90, s90, 0x%x' % STAMP_OFF)
        a('v_mov_b32 v1, 0')
        for k in range(4):
            a('buffer_store_dwordx4 v[%d:%d], v1, %s, s90 offen offset:%d' % (16 + 4 * k, 19 + 4 * k, srd(R_WS), 16 * k))
        a.waitcnt(vm=0)

    def build_srd(self, r, ptr, nbytes):
        a = self.a
        a('s_mov_b32 s%d, s%d' % (r, ptr))
        a('s_and_b32 s%d, s%d, 0xffff' % (r + 1, ptr + 1))
        a('s_mov_b32 s%d, 0x%x' % (r + 2, nbytes))
        a('s_mov_b32 s%d, 0x20000' % (r + 3))

    def swap23(self, dst, src, tmp):
        a = self.a
        a('v_and_b32 %s, 19, %s' % (vr(dst), vr(src)))
        a('v_bfe_u32 %s, %s, 2, 1' % (vr(tmp), vr(src)))
        a('v_lshl_add_u32 %s, %s, 3, %s' % (vr(dst), vr(tmp), vr(dst)))
        a('v_bfe_u32 %s, %s, 3, 1' % (vr(tmp), vr(src)))
        a('v_lshl_add_u32 %s, %s, 2, %s' % (vr(dst), vr(tmp), vr(dst)))

    def lane_t(self, dst, src, tmp):
        a = self.a
        a('v_bfe_u32 %s, %s, 2, 1' % (vr(tmp), vr(src)))
        a('v_lshlrev_b32 %s, 4, %s' % (vr(tmp), vr(tmp)))
        a('v_and_b32 %s, 3, %s' % (vr(dst), vr(src)))
        a('v_add_u32 %s, %s, %s' % (vr(dst), vr(dst), vr(tmp)))
        a('v_lshrrev_b32 %s, 3, %s' % (vr(tmp), vr(src)))
        a('v_lshl_add_u32 %s, %s, 2, %s' % (vr(dst), vr(tmp), vr(dst)))

    XD, XR = 48, 52
    PO, GO0, GO1 = 56, 57, 58
    CD, CR = 60, 62

    def prologue(self):
        a, o = self.a, self.o
        a('s_cmp_ge_u32 s2, 256')
        a('s_cbranch_scc1 L_exit')
        self.stamp(0)
        self.stamp(13, clock=True)
        a('s_load_dwordx16 s[4:19], s[0:1], 0')
        a('s_load_dwordx16 s[20:35], s[0:1], 64')
        if o.get('codepf', 1):
            a('s_getpc_b64 s[92:93]')
            a.label('L_pc')
            a('s_lshr_b32 s90, s2, 3')
            a('s_lshl_b32 s90, s90, 2')
            a('v_lshrrev_b32 v1, 6, v0')
            a('v_add_u32 v1, s90, v1')
            a('v_mul_u32_u24 v1, 3, v1')
            a('v_and_b32 v2, 63, v0')
            a('v_min_u32 v2, 2, v2')
            a('v_add_u32 v1, v1, v2')
            a('v_lshlrev_b32 v1, 7, v1')
            a.raw('    v_min_u32 v1, L_exit-L_pc, v1')
            a('global_load_dword v47, v1, s[92:93]')
        a.many("""
            s_and_b32 s90, s2, 7
            s_lshr_b32 s91, s2, 3
            s_lshr_b32 s92, s90, 1
            s_and_b32 s%(half)d, s90, 1
            s_lshl_b32 s93, s92, 2
            s_lshr_b32 s94, s91, 3
            s_add_u32 s%(r)d, s93, s94
            s_and_b32 s%(cc)d, s91, 7
            s_lshl_b32 s93, s%(half)d, 3
            s_add_u32 s%(c16)d, s93, s%(cc)d
            s_lshl_b32 s93, s92, 3
            s_lshr_b32 s94, s91, 2
            s_add_u32 s%(r2)d, s93, s94
            s_lshl_b32 s93, s%(half)d, 2
            s_and_b32 s94, s91, 3
            s_add_u32 s%(c2)d, s93, s94
        """ % dict(half=sHALF, r=sR, cc=sCC, c16=sC16, r2=sR2, c2=sC2))
        a('v_lshrrev_b32 v1, 6, v0')
        a('v_and_b32 v0, 63, v0')
        a('v_readfirstlane_b32 s%d, v1' % sW)
        a.many("""
            s_mul_i32 s93, s%(half)d, 6
            s_add_u32 s%(A)d, s93, s%(cc)d
            s_lshl_b32 s93, s%(half)d, 1
            s_add_u32 s93, s93, s%(cc)d
            s_sub_u32 s93, s93, 6
            s_lshl_b32 s93, s93, 1
            s_add_u32 s93, s93, 12
            s_cmp_lt_u32 s%(cc)d, 6
            s_cselect_b32 s%(G)d, s%(A)d, s93
        """ % dict(half=sHALF, A=sA, cc=sCC, G=sG))
        a('s_and_b32 s90, s%d, 3' % sR)
        a('s_lshl_b32 s90, s90, 1')
        a('s_add_u32 s90, s90, s%d' % sCC)
        a('s_cmp_ge_u32 s90, 10')
        a('s_cselect_b32 s91, 10, 0')
        a('s_sub_u32 s%d, s90, s91' % sRHO)
        if not o.get('rot', 1):
            a('s_mov_b32 s%d, 0' % sRHO)
        a('s_lshl_b32 s%d, s%d, 7' % (sKO, sRHO))
        for k in range(1, 10):
            a('s_add_u32 s%d, s%d, 128' % (sKO + k, sKO + k - 1))
            a('s_cmp_ge_u32 s%d, 1280' % (sKO + k))
            a('s_cselect_b32 s%d, 0, s%d' % (sKO + k, sKO + k))
        a('s_lshl_b32 s%d, s%d, 10' % (sW10, sW))
        XD, CD = self.XD, self.CD
        a('v_lshrrev_b32 v64, 3, v0')
        a('v_and_b32 v65, 7, v0')
        a('v_lshrrev_b32 v66, 1, v64')
        a('v_xor_b32 v66, v66, v65')
        a('v_mul_u32_u24 v67, 1280, v64')
        a('v_lshl_add_u32 %s, v66, 4, v67' % vr(CD))
        a('v_xor_b32 %s, 64, %s' % (vr(CD + 1), vr(CD)))
        a('v_add_u32 %s, 10240, %s' % (vr(CD + 1), vr(CD + 1)))
        a('s_lshl_b32 s90, s%d, 2' % sR)
        a('s_add_u32 s90, s90, s%d' % sW)
        a('s_mul_i32 s90, s90, 40960')
        a('v_add_u32 %s, s90, %s' % (vr(XD), vr(CD)))
        a('v_add_u32 %s, s90, %s' % (vr(XD + 1), vr(CD + 1)))
        a('v_add_u32 %s, 20480, %s' % (vr(XD + 2), vr(XD)))
        a('v_add_u32 %s, 20480, %s' % (vr(XD + 3), vr(XD + 1)))
        a('s_lshl_b32 s90, s%d, 3' % sW)
        a('v_add_u32 v66, s90, v64')
        self.swap23(67, 66, 68)
        a('v_mul_u32_u24 v67, 1280, v67')
        a('v_bfe_u32 v68, v66, 1, 3')
        a('v_xor_b32 v68, v68, v65')
        a('v_lshl_add_u32 v3, v68, 4, v67')
        a('s_mul_i32 s90, s%d, 40960' % sG)
        a('v_add_u32 v3, s90, v3')
        a('v_and_b32 v66, 31, v0')
        self.swap23(67, 66, 68)
        a('v_lshlrev_b32 %s, 1, v67' % vr(self.PO))
        g0, g1 = self.GO0, self.GO1
        a('s_lshl_b32 s90, s%d, 3' % sRHO)
        a('v_add_u32 %s, s90, v0' % vr(g0))
        a('v_subrev_u32 v66, 80, %s' % vr(g0))
        a('v_cmp_le_u32 vcc, 80, %s' % vr(g0))
        a('v_cndmask_b32 %s, %s, v66, vcc' % (vr(g0), vr(g0)))
        a('v_add_u32 %s, 64, %s' % (vr(g1), vr(g0)))
        a('v_subrev_u32 v66, 80, %s' % vr(g1))
        a('v_cmp_le_u32 vcc, 80, %s' % vr(g1))
        a('v_cndmask_b32 %s, %s, v66, vcc' % (vr(g1), vr(g1)))
        a('v_lshlrev_b32 %s, 4, %s' % (vr(g0), vr(g0)))
        a('v_lshlrev_b32 %s, 4, %s' % (vr(g1), vr(g1)))
        a('v_cmp_gt_u32 vcc, 16, v0')
        a('v_cndmask_b32 %s, 0x%x, %s, vcc' % (vr(g1), OOB, vr(g1)))
        a.waitcnt(lg=0)
        self.stamp(1)
        a('s_load_dword s%d, s[%d:%d], 0x%x' % (sE, S_WS, S_WS + 1, EPOCH_OFF))
        self.build_srd(R_X, S_X, 2621440)
        self.build_srd(R_BRE, S_BRE, 819200)
        self.build_srd(R_GW, S_GWP, 1280)
        a('s_lshl_b32 s%d, s%d, 14' % (sXS, sW))
        a('s_add_u32 s%d, s%d, %d' % (sXS, sXS, XS))

    def phase1(self, typ):
        a, o = self.a, self.o
        A = typ == 'A'
        XD, XR, CD, CR = self.XD, self.XR, self.CD, self.CR
        V = {'WS': 3}
        nxt = [4]

        def al(name, n=1):
            V[name] = nxt[0]
            nxt[0] += n
        for nm in ('WF', 'ST', 'AG', 'LB0', 'LB1', 'SEGW', 'SEGR', 'GW', 'G', 'OMG', 'W2D', 'W2R'):
            al(nm)
        al('RS', 4)
        if A:
            al('RF', 6)
        else:
            al('WS2')
        ngrp = 1 if A else 2
        for g in range(ngrp):
            for nm in ('lr', 'li', 'nli', 'l16r', 'l16i', 'lsr', 'lsi', 'p1r', 'p1i', 'p2r', 'p2i', 'cr', 'ci'):
                al('%s%d' % (nm, g))
        assert nxt[0] <= 47, nxt[0]
        RING = 96
        RING_ADDR = 112
        PT = 116
        ACC = [128, 160]
        GACC = 160
        FA = [160, 176]
        A_GW = 160

        def XF(s):
            return ar(4 * s, 4)

        def put_all(items):
            for it in items:
                if isinstance(it, list):
                    put_all(it)
                elif callable(it):
                    it()
                else:
                    a.put(it)

        for g in range(ngrp):
            a('s_add_u32 s90, s%d, %d' % (sG, g))
            a('s_lshl_b32 s90, s90, 6')
            a('v_add_u32 v59, s90, %s' % vr(self.PO))
            a('global_load_ushort %s, v59, s[%d:%d]' % (vr(V['lr%d' % g]), S_LRE, S_LRE + 1))
            a('global_load_ushort %s, v59, s[%d:%d]' % (vr(V['li%d' % g]), S_LIM, S_LIM + 1))
            a('global_load_ushort %s, v59, s[%d:%d]' % (vr(V['cr%d' % g]), S_LDT, S_LDT + 1))
        a('s_mov_b32 m0, %d' % L_GW)
        a('s_nop 0')
        a('buffer_load_dwordx4 %s, %s, 0 offen lds' % (vr(self.GO0), srd(R_GW)))
        a('s_mov_b32 m0, %d' % (L_GW + 1024))
        a('s_nop 0')
        gw_dma = a('buffer_load_dwordx4 %s, %s, 0 offen lds' % (vr(self.GO1), srd(R_GW)))

        def ssm_dma(g, stage, slot):
            R = R_BRE if stage % 2 == 0 else R_BIM
            kh = stage // 2
            ws_ = V['WS'] if g == 0 else V['WS2']
            grp = []
            last = None
            for kb in range(5):
                last = Ins('buffer_load_dwordx4 %s, %s, s%d offen lds' % (vr(ws_), srd(R), sKO + 5 * kh + kb))
                grp.append([Ins('s_add_u32 m0, s%d, %d' % (sW10, slot * SLOT + kb * 4096)), Ins('s_nop 0'), last])
            return grp, last

        def ffn_dma(fst, slot):
            blk, st = fst >> 2, fst & 3
            grp = []
            last = None
            for i2 in range(5):
                c = (160 * st + 32 * i2) * 3072 + 128 * blk
                last = Ins('buffer_load_dwordx4 %s, %s, %s offen lds' % (vr(V['WF']), srd(R_W1), '0' if o.get('fakeF') else 's92'))
                grp.append([Ins('s_add_u32 s92, s%d, %d' % (sFB, c)),
                            Ins('s_cmp_ge_u32 s92, %d' % (640 * 3072)),
                            Ins('s_cselect_b32 s93, %d, 0' % (640 * 3072)),
                            Ins('s_add_u32 m0, s%d, %d' % (sW10, slot * SLOT + i2 * 4096)),
                            Ins('s_sub_u32 s92, s92, s93'),
                            last])
            return grp, last

        x_dma_last, x_rd_last = {}, {}

        def xdma(kap):
            grp = []
            for g in range(4):
                ld = Ins('buffer_load_dwordx4 %s, %s, %s offen lds' % (vr(XD + g), srd(R_X), '0' if (o.get('fakeX') and kap >= 4) else 's%d' % (sKO + kap)))
                grp.append([Ins('s_add_u32 m0, s%d, %d' % (sXS, (kap % 4) * 4096 + g * 1024)), Ins('s_nop 0'), ld])
                x_dma_last[kap] = ld
            return grp

        def xread(kap):
            grp = []
            for j in range(4):
                rd = Ins('ds_read_b128 %s, %s offset:%d' % (XF(4 * kap + j), vr(XR + j), (kap % 4) * 4096))
                grp.append(([WaitVM(x_dma_last[kap])] if j == 0 else []) + [rd])
                x_rd_last[kap] = rd
            return grp

        def xrefill(kap):
            g = xdma(kap)
            g[0] = [WaitLG(x_rd_last[kap - 4])] + g[0]
            return g

        if A:
            seq = [('S', 0, i) for i in range(4)] + [('F', 0, i) for i in range(8)]
            slot_of = [0, 1, 2, 3, 0, 1, 4, 5, 6, 2, 3, 0]
        else:
            seq = [('S', 0, i) for i in range(4)] + [('S', 1, i) for i in range(4)]
            slot_of = [0, 1, 2, 3, 0, 1, 4, 5]
        dma_last = [None] * len(seq)

        def stage_loads(i):
            kind, g, st = seq[i]
            grp, last = ssm_dma(g, st, slot_of[i]) if kind == 'S' else ffn_dma(st, slot_of[i])
            dma_last[i] = last
            return grp

        if not A:
            a('v_add_u32 %s, 40960, %s' % (vr(V['WS2']), vr(V['WS'])))
        put_all(xdma(0))
        put_all(stage_loads(0))
        put_all(xdma(1))
        self.build_srd(R_BIM, S_BIM, 819200)
        put_all(xdma(2))
        put_all(xdma(3))
        put_all(stage_loads(1))
        self.stamp(2)

        def G(lines):
            return [[Ins(x)] for x in lines]

        U0, U1, U2, U3, U4 = PT, PT + 1, PT + 2, PT + 3, PT + 4
        a('v_and_b32 %s, 31, v0' % vr(U0))
        a('v_lshrrev_b32 %s, 5, v0' % vr(U1))
        self.lane_t(U2, U0, U3)
        a('v_bfe_u32 %s, %s, 1, 3' % (vr(U3), vr(U2)))
        a('v_lshlrev_b32 %s, 1, %s' % (vr(U4), vr(U1)))
        a('v_xor_b32 %s, %s, %s' % (vr(U3), vr(U3), vr(U4)))
        a('v_lshlrev_b32 %s, 7, %s' % (vr(U2), vr(U2)))
        a('v_add_u32 %s, s%d, %s' % (vr(U2), sXS, vr(U2)))
        for u in range(2):
            for ab in range(2):
                d = XR + 2 * u + ab
                a('v_xor_b32 %s, %d, %s' % (vr(d), 4 * u + ab, vr(U3)))
                a('v_lshl_add_u32 %s, %s, 4, %s' % (vr(d), vr(d), vr(U2)))
        a('v_lshlrev_b32 %s, 5, %s' % (vr(V['GW']), vr(U1)))
        a('v_add_u32 %s, %d, %s' % (vr(V['GW']), L_GW, vr(V['GW'])))
        a('v_bfe_u32 %s, %s, 1, 3' % (vr(U2), vr(U0)))
        a('v_xor_b32 %s, %s, %s' % (vr(U2), vr(U2), vr(U4)))
        a('v_lshlrev_b32 %s, 7, %s' % (vr(U3), vr(U0)))
        for u in range(2):
            for ab in range(2):
                d = V['RS'] + 2 * u + ab
                a('v_xor_b32 %s, %d, %s' % (vr(d), 4 * u + ab, vr(U2)))
                a('v_lshl_add_u32 %s, %s, 4, %s' % (vr(d), vr(d), vr(U3)))

        def gate_reads(half):
            return G(['ds_read_b128 %s, %s offset:%d' % (ar(A_GW + 4 * k, 4), vr(V['GW']), 64 * ((20 * half + k) >> 1) + 16 * (k & 1)) for k in range(20)])
        a.put(WaitVM(gw_dma))
        put_all(gate_reads(0))
        put_all(xread(0))
        put_all(xrefill(4))

        def late_scalars():
            L = []
            for r, ptr, nb in ((R_WS, S_WS, WS_BYTES), (R_W1, S_W1, 1966080), (R_W2, S_W2, 1966080)):
                L += ['s_mov_b32 s%d, s%d' % (r, ptr), 's_and_b32 s%d, s%d, 0xffff' % (r + 1, ptr + 1),
                      's_mov_b32 s%d, 0x%x' % (r + 2, nb), 's_mov_b32 s%d, 0x20000' % (r + 3)]
            L += ['s_lshl_b32 s90, s%d, 3' % sRHO, 's_add_u32 s90, s90, s%d' % sW, 's_mul_i32 s90, s90, 24576',
                  's_lshl_b32 s91, s%d, 8' % sA, 's_add_u32 s%d, s90, s91' % sFB]
            if A:
                t0, t1, t2 = PT, PT + 1, PT + 2
                L += ['v_lshrrev_b32 %s, 3, v0' % vr(t0),
                      'v_mul_u32_u24 %s, 3072, %s' % (vr(t1), vr(t0)),
                      'v_bfe_u32 %s, %s, 1, 1' % (vr(t0), vr(t0)),
                      'v_lshlrev_b32 %s, 2, %s' % (vr(t0), vr(t0)),
                      'v_and_b32 %s, 7, v0' % vr(t2),
                      'v_xor_b32 %s, %s, %s' % (vr(t0), vr(t0), vr(t2)),
                      'v_lshl_add_u32 %s, %s, 4, %s' % (vr(V['WF']), vr(t0), vr(t1))]
            return G(L)

        w2_dma = []
        c_dma = []

        def w2_setup():
            T0, T1 = PT + 3, PT + 4
            L = ['v_lshrrev_b32 %s, 1, v0' % vr(T0),
                 'v_mul_u32_u24 %s, 1280, %s' % (vr(T0), vr(T0)),
                 'v_and_b32 %s, 1, v0' % vr(T1),
                 'v_lshl_add_u32 %s, %s, 4, %s' % (vr(T0), vr(T1), vr(T0)),
                 's_lshl_b32 s90, s2, 2',
                 's_add_u32 s%d, s90, s%d' % (sGWI, sW),
                 's_cmp_lt_u32 s%d, 960' % sGWI]
            gr = G(L[:-1]) + [[Ins(L[-1]), Ins('s_cselect_b32 s91, 0, 0x%x' % OOB)]]
            gr += G(['v_add_u32 %s, s91, %s' % (vr(T0), vr(T0)),
                     'v_lshlrev_b32 %s, 4, v0' % vr(V['W2D']),
                     'v_add_u32 v1, s91, %s' % vr(V['W2D']),
                     's_min_u32 s91, s%d, 959' % sGWI,
                     's_lshl_b32 s91, s91, 1',
                     's_mul_hi_u32 s90, s91, 0x%x' % magic(240),
                     's_mul_i32 s94, s90, 240',
                     's_sub_u32 s91, s91, s94',
                     's_mul_i32 s94, s90, 440',
                     's_add_u32 s94, s94, s91',
                     's_lshl_b32 s94, s94, 10',
                     's_add_u32 s26, s94, 0x%x' % WT_OFF])
            for e in range(2):
                L = []
                if e:
                    L.append('s_add_u32 s91, s91, 1')
                L += ['s_mul_hi_u32 s94, s91, 0x%x' % magic(5),
                      's_mul_i32 s95, s94, 5',
                      's_sub_u32 s95, s91, s95',
                      's_mul_i32 s94, s94, 40960',
                      's_mul_i32 s96, s90, 160',
                      's_add_u32 s94, s94, s96',
                      's_lshl_b32 s95, s95, 5',
                      's_add_u32 s94, s94, s95',
                      's_lshl_b32 s95, s%d, 11' % sW]
                gr += G(L)
                ld = Ins('buffer_load_dwordx4 %s, %s, s94 offen lds' % (vr(T0), srd(R_W2)))
                gr.append([Ins('s_add_u32 m0, s95, %d' % (L_WST + 1024 * e)), Ins('s_nop 0'), ld])
                w2_dma.append(ld)
            return gr

        def c_setup():
            gr = [[Ins('s_cmp_lt_u32 s%d, 800' % sGWI), Ins('s_cselect_b32 s91, 0, 0x%x' % OOB)]]
            gr += G(['v_add_u32 %s, s91, %s' % (vr(CD), vr(CD)),
                     'v_add_u32 %s, s91, %s' % (vr(CD + 1), vr(CD + 1)),
                     'v_add_u32 v2, s91, %s' % vr(V['W2D']),
                     's_min_u32 s91, s%d, 799' % sGWI])
            gr.append([Ins('s_cmp_ge_u32 s91, 400'), Ins('s_cselect_b32 s90, 1, 0'),
                       Ins('s_cselect_b32 s%d, s%d, s%d' % (R_CI, S_CIM, S_CRE)),
                       Ins('s_cselect_b32 s%d, s%d, s%d' % (R_CI + 1, S_CIM + 1, S_CRE + 1))])
            gr += G(['s_and_b32 s%d, s%d, 0xffff' % (R_CI + 1, R_CI + 1),
                     's_mov_b32 s%d, 819200' % (R_CI + 2),
                     's_mov_b32 s%d, 0x20000' % (R_CI + 3),
                     's_mul_i32 s94, s90, 400',
                     's_sub_u32 s91, s91, s94',
                     's_mul_hi_u32 s94, s91, 0x%x' % magic(50),
                     's_mul_i32 s95, s94, 50',
                     's_sub_u32 s91, s91, s95',
                     's_mul_hi_u32 s95, s91, 0x%x' % magic(5),
                     's_mul_i32 s96, s95, 5',
                     's_sub_u32 s96, s91, s96',
                     's_mul_i32 s97, s94, 80',
                     's_lshl_b32 s91, s96, 4',
                     's_add_u32 s97, s97, s91',
                     's_mul_i32 s97, s97, 1280',
                     's_lshl_b32 s91, s95, 7',
                     's_add_u32 s24, s97, s91',
                     's_mul_i32 s90, s90, 20',
                     's_lshl_b32 s95, s95, 1',
                     's_add_u32 s90, s90, s95',
                     's_add_u32 s90, s90, 48',
                     's_mul_i32 s94, s94, 88',
                     's_add_u32 s90, s90, s94',
                     's_mul_i32 s90, s90, 5',
                     's_add_u32 s90, s90, s96',
                     's_lshl_b32 s90, s90, 10',
                     's_add_u32 s25, s90, 0x%x' % WT_OFF])
            return gr

        def item_addrs():
            U2, U3, U4 = PT + 5, PT + 6, PT + 7
            return G(['v_lshrrev_b32 %s, 5, v0' % vr(U2),
                      'v_lshlrev_b32 %s, 4, %s' % (vr(U2), vr(U2)),
                      'v_bfe_u32 %s, v0, 4, 1' % vr(U3),
                      'v_lshl_add_u32 %s, %s, 2, %s' % (vr(U2), vr(U3), vr(U2)),
                      'v_bfe_u32 %s, v0, 2, 2' % vr(U3),
                      'v_add_u32 %s, %s, %s' % (vr(U2), vr(U2), vr(U3)),
                      'v_lshlrev_b32 %s, 5, %s' % (vr(U2), vr(U2)),
                      'v_and_b32 %s, 3, v0' % vr(U3),
                      'v_lshl_add_u32 %s, %s, 3, %s' % (vr(U2), vr(U3), vr(U2)),
                      's_lshl_b32 s97, s%d, 11' % sW,
                      's_add_u32 s97, s97, %d' % L_WST,
                      'v_add_u32 %s, s97, %s' % (vr(V['W2R']), vr(U2)),
                      'v_and_b32 %s, 15, v0' % vr(U2),
                      'v_lshrrev_b32 %s, 4, v0' % vr(U3),
                      'v_lshrrev_b32 %s, 1, %s' % (vr(U4), vr(U2)),
                      'v_xor_b32 %s, %s, %s' % (vr(U3), vr(U3), vr(U4)),
                      'v_lshlrev_b32 %s, 4, %s' % (vr(U3), vr(U3)),
                      'v_xor_b32 %s, 64, %s' % (vr(U4), vr(U3)),
                      'v_lshl_add_u32 %s, %s, 7, %s' % (vr(U3), vr(U2), vr(U3)),
                      'v_lshl_add_u32 %s, %s, 7, %s' % (vr(U4), vr(U2), vr(U4)),
                      'v_add_u32 %s, s97, %s' % (vr(CR), vr(U3)),
                      'v_add_u32 %s, s97, %s' % (vr(CR + 1), vr(U4))])

        def lane_consts():
            U0, U1, U2, U3 = PT, PT + 1, PT + 2, PT + 3
            SEGV, E0, E1 = PT + 8, PT + 9, PT + 10
            L = ['v_and_b32 %s, 31, v0' % vr(U0),
                 'v_lshrrev_b32 %s, 5, v0' % vr(U1),
                 'v_lshrrev_b32 %s, 4, %s' % (vr(U2), vr(U0)),
                 'v_lshlrev_b32 %s, 10, %s' % (vr(U2), vr(U2)),
                 'v_and_b32 %s, 15, %s' % (vr(U3), vr(U0)),
                 'v_lshl_add_u32 %s, %s, 4, %s' % (vr(U3), vr(U1), vr(U3)),
                 'v_lshl_add_u32 %s, %s, 4, %s' % (vr(V['ST']), vr(U3), vr(U2)),
                 'v_lshlrev_b32 %s, 4, %s' % (vr(V['AG']), vr(U0)),
                 'v_mul_u32_u24 %s, 80, %s' % (vr(V['SEGR']), vr(U0)),
                 'v_add_u32 %s, %d, %s' % (vr(V['SEGR']), MISC, vr(V['SEGR'])),
                 's_lshl_b32 s95, s%d, 1' % sW,
                 'v_add_u32 %s, s95, %s' % (vr(SEGV), vr(U1)),
                 'v_lshl_add_u32 %s, %s, 3, %s' % (vr(V['SEGW']), vr(SEGV), vr(V['SEGR']))]
            gr = G(L)
            for i2, E in ((0, E0), (1, E1)):
                gr += G(['v_add_u32 %s, %d, %s' % (vr(U3), 8 * i2, vr(SEGV)),
                         'v_sub_u32 %s, s%d, %s' % (vr(E), sR, vr(U3)),
                         'v_add_u32 %s, -1, %s' % (vr(E), vr(E))])
                gr.append([Ins('v_cmp_gt_u32 vcc, s%d, %s' % (sR, vr(U3))),
                           Ins('v_cndmask_b32 %s, -1, %s, vcc' % (vr(E), vr(E))),
                           Ins('v_cndmask_b32 %s, 0, %s, vcc' % (vr(U3), vr(U3)))])
                gr += G(['v_lshl_add_u32 %s, %s, 9, %s' % (vr(V['LB%d' % i2]), vr(U3), vr(V['AG']))])
            if A:
                jl, mh, tq = PT + 4, PT + 5, PT + 6
                L = ['v_and_b32 %s, 15, v0' % vr(jl),
                     'v_bfe_u32 %s, v0, 4, 1' % vr(mh),
                     'v_lshrrev_b32 %s, 2, %s' % (vr(U2), vr(jl)),
                     'v_lshl_add_u32 %s, %s, 4, %s' % (vr(U2), vr(U1), vr(U2)),
                     'v_lshlrev_b32 %s, 7, %s' % (vr(U2), vr(U2)),
                     'v_and_b32 %s, 1, %s' % (vr(U3), vr(jl)),
                     'v_lshl_add_u32 %s, %s, 3, %s' % (vr(U2), vr(U3), vr(U2)),
                     'v_bfe_u32 %s, %s, 1, 1' % (vr(U3), vr(jl)),
                     'v_lshl_add_u32 %s, %s, 1, %s' % (vr(U3), vr(mh), vr(U3)),
                     'v_bfe_u32 %s, %s, 3, 1' % (vr(tq), vr(jl)),
                     'v_lshlrev_b32 %s, 2, %s' % (vr(tq), vr(tq)),
                     'v_xor_b32 %s, %s, %s' % (vr(U3), vr(U3), vr(tq))]
                for tp in range(2):
                    d = V['RF'] + tp
                    L += ['v_xor_b32 %s, %d, %s' % (vr(d), 4 * tp, vr(U3)),
                          'v_lshl_add_u32 %s, %s, 4, %s' % (vr(d), vr(d), vr(U2)),
                          'v_add_u32 %s, %d, %s' % (vr(d + 2), 3 * SLOT, vr(d)),
                          'v_add_u32 %s, %d, %s' % (vr(d + 4), 6 * SLOT, vr(d))]
                gr += G(L)
            gr += G(['s_lshr_b32 s90, s%d, 1' % sW, 's_lshl_b32 s91, s%d, 1' % sR, 's_add_u32 s90, s90, s91',
                     's_mul_i32 s90, s90, %d' % (88 * 4096), 's_and_b32 s91, s%d, 1' % sW, 's_lshl_b32 s91, s91, 11',
                     's_add_u32 s90, s90, s91', 's_add_u32 s90, s90, 0x%x' % H_OFF, 's_lshl_b32 s91, s%d, 14' % sA,
                     's_add_u32 s%d, s90, s91' % sHF, 's_lshl_b32 s91, s%d, 12' % sG, 's_add_u32 s%d, s90, s91' % sHS,
                     's_add_u32 s%d, s%d, 1' % (sTAG, sE), 's_xor_b32 s%d, s%d, 0x5bd1e995' % (sTAG2, sTAG)])
            return gr

        def params(g):
            SEGV, E = PT + 8, (PT + 9, PT + 10)
            P0, P1, P2, P3, P4, P5, FM = PT, PT + 1, PT + 2, PT + 3, PT + 4, PT + 5, PT + 6
            lr, li, nli, cr, ci = (V[x + str(g)] for x in ('lr', 'li', 'nli', 'cr', 'ci'))

            def cpow(dr, di, m_reg, m_const):
                if m_reg is not None:
                    L = ['v_mul_f32 %s, %s, %s' % (vr(P2), vr(m_reg), vr(P3)), 'v_mul_f32 %s, %s, %s' % (vr(P5), vr(m_reg), vr(P4))]
                else:
                    L = ['v_mul_f32 %s, 0x%08x, %s' % (vr(P2), f2u(float(m_const)), vr(P3)),
                         'v_mul_f32 %s, 0x%08x, %s' % (vr(P5), f2u(float(m_const)), vr(P4))]
                return L + ['v_exp_f32 %s, %s' % (vr(P2), vr(P2)), 'v_fract_f32 %s, %s' % (vr(P5), vr(P5)),
                            'v_cos_f32 %s, %s' % (vr(dr), vr(P5)), 'v_sin_f32 %s, %s' % (vr(di), vr(P5)),
                            'v_mul_f32 %s, %s, %s' % (vr(dr), vr(P2), vr(dr)), 'v_mul_f32 %s, %s, %s' % (vr(di), vr(P2), vr(di))]
            L = ['v_lshlrev_b32 %s, 16, %s' % (vr(P0), vr(lr)),
                 'v_lshlrev_b32 %s, 16, %s' % (vr(P1), vr(li)),
                 'v_lshlrev_b32 %s, 16, %s' % (vr(P2), vr(cr)),
                 'v_mul_f32 %s, %s, %s' % (vr(P2), LOG2E, vr(P2)),
                 'v_exp_f32 %s, %s' % (vr(P2), vr(P2)),
                 'v_cvt_pk_bf16_f32 %s, %s, %s' % (vr(P2), vr(P2), vr(P2)),
                 'v_lshlrev_b32 %s, 16, %s' % (vr(P2), vr(P2)),
                 'v_mul_f32 %s, %s, %s' % (vr(P3), vr(P2), vr(P0)),
                 'v_mul_f32 %s, %s, %s' % (vr(P4), vr(P2), vr(P1)),
                 'v_mul_f32 %s, %s, %s' % (vr(P3), LOG2E, vr(P3)),
                 'v_mul_f32 %s, %s, %s' % (vr(P4), INV2PI, vr(P4))]
            L += cpow(lr, li, None, 1)
            L += ['v_sub_f32 %s, 0, %s' % (vr(nli), vr(li))]
            L += cpow(V['l16r%d' % g], V['l16i%d' % g], None, 16)
            L += ['v_cvt_f32_u32 %s, %s' % (vr(FM), vr(SEGV)), 'v_mul_f32 %s, 0x41800000, %s' % (vr(FM), vr(FM))]
            L += cpow(V['lsr%d' % g], V['lsi%d' % g], FM, None)
            gr = G(L)
            for k in range(2):
                pr, pi = V['p%dr%d' % (k + 1, g)], V['p%di%d' % (k + 1, g)]
                gr += G(['v_cvt_f32_i32 %s, %s' % (vr(FM), vr(E[k])), 'v_mul_f32 %s, 0x43000000, %s' % (vr(FM), vr(FM))] + cpow(pr, pi, FM, None))
                gr.append([Ins('v_cmp_le_i32 vcc, 0, %s' % vr(E[k])),
                           Ins('v_cndmask_b32 %s, 0, %s, vcc' % (vr(pr), vr(pr))),
                           Ins('v_cndmask_b32 %s, 0, %s, vcc' % (vr(pi), vr(pi)))])
            gr += G(['v_add_f32 %s, -1.0, %s' % (vr(P2), vr(lr)),
                     'v_mul_f32 %s, %s, %s' % (vr(P3), vr(P0), vr(P0)),
                     'v_fmac_f32 %s, %s, %s' % (vr(P3), vr(P1), vr(P1)),
                     'v_rcp_f32 %s, %s' % (vr(P3), vr(P3)),
                     'v_mul_f32 %s, %s, %s' % (vr(P4), vr(P2), vr(P0)),
                     'v_fmac_f32 %s, %s, %s' % (vr(P4), vr(li), vr(P1)),
                     'v_mul_f32 %s, %s, %s' % (vr(P5), vr(li), vr(P0)),
                     'v_fma_f32 %s, -%s, %s, %s' % (vr(P5), vr(P2), vr(P1), vr(P5)),
                     'v_add_f32 %s, %s, %s' % (vr(P3), vr(P3), vr(P3)),
                     'v_mul_f32 %s, %s, %s' % (vr(cr), vr(P4), vr(P3)),
                     'v_mul_f32 %s, %s, %s' % (vr(ci), vr(P5), vr(P3))])
            return gr

        def ssm_ops(i):
            kind, g, st = seq[i]
            slot = slot_of[i]
            acc = ACC[g] + (16 if st % 2 else 0)
            kh = st // 2
            gate = (g == 0 and st % 2 == 0)
            base = slot * SLOT
            rsb = V['RS']
            pre = []
            if base + SLOT > 65536:
                rsb = RING_ADDR
                pre = [Ins('v_add_u32 %s, %d, %s' % (vr(RING_ADDR + k), base, vr(V['RS'] + k))) for k in range(4)]
                base = 0
            ops = []
            for sp in range(20):
                bp, ab = sp >> 1, sp & 1
                kb, u = bp >> 1, bp & 1
                s = 20 * kh + sp
                q = RING + 4 * (sp % 4)
                rd = Ins('ds_read_b128 %s, %s offset:%d' % (vr(q, 4), vr(rsb + 2 * u + ab), base + kb * 4096))
                first = (kh == 0 and sp == 0)
                m = Ins('v_mfma_f32_32x32x16_bf16 %s, %s, %s, %s' % (vr(acc, 16), XF(s), vr(q, 4), '0' if first else vr(acc, 16)))
                gm = None
                if gate:
                    gm = Ins('v_mfma_f32_32x32x16_bf16 %s, %s, %s, %s' % (vr(GACC, 16), ar(A_GW + 4 * sp, 4), XF(s), '0' if s == 0 else vr(GACC, 16)))
                ops.append((rd, m, gm))
            return pre, ops

        def ssm_stage(i, hooks=None):
            pre, ops = ssm_ops(i)
            out = list(pre)
            dist = 3
            for sp in range(dist):
                out.append(ops[sp][0])
            for sp in range(20):
                rd, m, gm = ops[sp]
                out.append(m)
                if sp + dist < 20:
                    out.append(ops[sp + dist][0])
                if hooks and sp in hooks:
                    for grp in hooks[sp]:
                        out += grp
                if gm is not None:
                    out.append(gm)
            return out

        def stage_open(covers):
            for c in covers:
                a.put(WaitVM(dma_last[c]))
            a.waitcnt(lg=0)
            a('s_barrier')

        def w2_item(T):
            gr = []
            last_rd = None
            for e in range(2):
                q = T + 4 * e
                g0 = [Ins('ds_read_b64_tr_b16 %s, %s offset:%d' % (vr(q, 2), vr(V['W2R']), 1024 * e))]
                if e == 0:
                    g0 = [WaitVM(w2_dma[1])] + g0
                gr.append(g0)
                last_rd = Ins('ds_read_b64_tr_b16 %s, %s offset:%d' % (vr(q + 2, 2), vr(V['W2R']), 1024 * e + 256))
                gr.append([last_rd])
            cd = []
            for e in range(2):
                ld = Ins('buffer_load_dwordx4 %s, %s, s24 offen lds' % (vr(CD + e), srd(R_CI)))
                hd = [WaitLG(last_rd)] if e == 0 else []
                gr.append(hd + [Ins('s_lshl_b32 s96, s%d, 11' % sW), Ins('s_add_u32 m0, s96, %d' % (L_WST + 1024 * e)), Ins('s_nop 0'), ld])
                cd.append(ld)
            gr.append([Ins('buffer_store_dwordx4 %s, v1, %s, s26 offen sc1' % (vr(T, 4), srd(R_WS)))])
            gr.append([Ins('buffer_store_dwordx4 %s, v1, %s, s26 offen offset:1024 sc1' % (vr(T + 4, 4), srd(R_WS)))])
            return gr, cd

        def c_item(T, cd):
            gr = [[WaitVM(cd[1]), Ins('ds_read_b128 %s, %s' % (vr(T, 4), vr(CR)))],
                  [Ins('ds_read_b128 %s, %s' % (vr(T + 4, 4), vr(CR + 1)))],
                  [Ins('s_add_u32 s96, s25, 5120')],
                  [Ins('buffer_store_dwordx4 %s, v2, %s, s25 offen sc1' % (vr(T, 4), srd(R_WS)))]]
            st = Ins('buffer_store_dwordx4 %s, v2, %s, s96 offen sc1' % (vr(T + 4, 4), srd(R_WS)))
            gr.append([st])
            return gr, st

        def w_flag(T, st):
            return [[WaitVM(st), Ins('v_mov_b32 %s, s%d' % (vr(T), sTAG))],
                    [Ins('v_mov_b32 %s, s%d' % (vr(T + 1), sTAG2))],
                    [Ins('s_lshl_b32 s96, s%d, 3' % sGWI), Ins('s_add_u32 s96, s96, 0x%x' % WF_OFF)],
                    [Ins('v_mov_b32 %s, 0' % vr(T + 2))],
                    [Ins('buffer_store_dwordx2 %s, %s, %s, s96 offen sc1' % (vr(T, 2), vr(T + 2), srd(R_WS)))]]

        def masks(T):
            g_ = [[Ins('v_lshrrev_b32 %s, 5, v0' % vr(T))], [Ins('s_lshl_b32 s95, s%d, 1' % sW), Ins('v_add_u32 %s, s95, %s' % (vr(T), vr(T)))]]
            for s_ in range(1, 8):
                g_.append([Ins('v_cmp_eq_u32 s[%d:%d], %d, %s' % (S_MASK + 2 * (s_ - 1), S_MASK + 2 * (s_ - 1) + 1, s_, vr(T)))])
            return g_

        def gate_math(T):
            G, OMG = V['G'], V['OMG']
            t0, t1, t2 = T, T + 1, T + 2
            L = ['v_cvt_pk_bf16_f32 %s, %s, %s' % (vr(t0), vr(GACC), vr(GACC)),
                 'v_lshlrev_b32 %s, 16, %s' % (vr(t0), vr(t0)),
                 'v_mul_f32 %s, 0x%08x, %s' % (vr(t0), f2u(-math.log2(math.e)), vr(t0)),
                 'v_exp_f32 %s, %s' % (vr(t0), vr(t0)),
                 'v_and_b32 %s, 31, v0' % vr(t1),
                 'v_add_f32 %s, 1.0, %s' % (vr(t0), vr(t0)),
                 'v_rcp_f32 %s, %s' % (vr(t0), vr(t0)),
                 'v_bfe_u32 %s, %s, 2, 1' % (vr(t2), vr(t1)),
                 'v_cvt_pk_bf16_f32 %s, %s, %s' % (vr(t0), vr(t0), vr(t0)),
                 'v_lshlrev_b32 %s, 16, %s' % (vr(G), vr(t0)),
                 'v_sub_f32 %s, 1.0, %s' % (vr(t0), vr(G)),
                 'v_cvt_pk_bf16_f32 %s, %s, %s' % (vr(t0), vr(t0), vr(t0)),
                 'v_lshlrev_b32 %s, 16, %s' % (vr(OMG), vr(t0)),
                 'v_lshlrev_b32 %s, 4, %s' % (vr(t2), vr(t2)),
                 'v_and_b32 %s, 3, %s' % (vr(t0), vr(t1)),
                 'v_add_u32 %s, %s, %s' % (vr(t0), vr(t0), vr(t2)),
                 'v_lshrrev_b32 %s, 3, %s' % (vr(t2), vr(t1)),
                 'v_lshl_add_u32 %s, %s, 2, %s' % (vr(t0), vr(t2), vr(t0)),
                 's_lshl_b32 s95, s%d, 5' % sW,
                 'v_add_u32 %s, s95, %s' % (vr(t0), vr(t0)),
                 'v_lshlrev_b32 %s, 2, %s' % (vr(t0), vr(t0)),
                 'v_add_u32 %s, %d, %s' % (vr(t0), L_GATE, vr(t0)),
                 'ds_write_b32 %s, %s' % (vr(t0), vr(G))]
            return [[Ins(x)] for x in L]

        def pass1(g):
            it = []
            RE, IM = ACC[g], ACC[g] + 16
            lr, li, nli = V['lr%d' % g], V['li%d' % g], V['nli%d' % g]
            sa = [SC[g] + 0, SC[g] + 1]
            sb = [SC[g] + 2, SC[g] + 3]
            cur = [RE, IM]
            for t in range(1, 16):
                d = sa if t % 2 else sb
                it.append(Ins('v_fma_f32 %s, %s, %s, %s' % (vr(d[0]), vr(lr), vr(cur[0]), vr(RE + t))))
                it.append(Ins('v_fma_f32 %s, %s, %s, %s' % (vr(d[1]), vr(lr), vr(cur[1]), vr(IM + t))))
                it.append(Ins('v_fmac_f32 %s, %s, %s' % (vr(d[0]), vr(nli), vr(cur[1]))))
                it.append(Ins('v_fmac_f32 %s, %s, %s' % (vr(d[1]), vr(li), vr(cur[0]))))
                cur = d
            it.append(Ins('ds_write_b64 %s, %s offset:%d' % (vr(V['SEGW']), vr(cur[0], 2), L_SEG - MISC + 2560 * g)))
            return [[x] for x in it]

        def prefix(g, buf):
            it = []
            l16r, l16i = V['l16r%d' % g], V['l16i%d' % g]
            Pr, Pi = SC[g] + 0, SC[g] + 1
            for jj in range(4):
                it.append(Ins('ds_read_b128 %s, %s offset:%d' % (vr(buf + 4 * jj, 4), vr(V['SEGR']), L_SEG - MISC + 2560 * g + 16 * jj)))
            it.append(Ins('v_mov_b32 %s, 0' % vr(Pr)))
            it.append(Ins('v_mov_b32 %s, 0' % vr(Pi)))
            sel = []
            for s in range(1, 8):
                m = S_MASK + 2 * (s - 1)
                pr, pi_, cr_, ci_ = buf + 2 * (s - 1), buf + 2 * (s - 1) + 1, buf + 2 * s, buf + 2 * s + 1
                it.append(Ins('v_fmac_f32 %s, %s, %s' % (vr(cr_), vr(l16r), vr(pr))))
                it.append(Ins('v_fmac_f32 %s, %s, %s' % (vr(ci_), vr(l16r), vr(pi_))))
                it.append(Ins('v_fma_f32 %s, -%s, %s, %s' % (vr(cr_), vr(l16i), vr(pi_), vr(cr_))))
                it.append(Ins('v_fmac_f32 %s, %s, %s' % (vr(ci_), vr(l16i), vr(pr))))
                sel.append(Ins('v_cndmask_b32 %s, %s, %s, s[%d:%d]' % (vr(Pr), vr(Pr), vr(pr), m, m + 1)))
                sel.append(Ins('v_cndmask_b32 %s, %s, %s, s[%d:%d]' % (vr(Pi), vr(Pi), vr(pi_), m, m + 1)))
            pb = 52 if A else 88
            it.append(Ins('v_mov_b32 %s, %s' % (vr(pb), vr(buf + 14))))
            it.append(Ins('v_mov_b32 %s, s%d' % (vr(pb + 1), sTAG)))
            it.append(Ins('v_mov_b32 %s, %s' % (vr(pb + 2), vr(buf + 15))))
            it.append(Ins('v_mov_b32 %s, s%d' % (vr(pb + 3), sTAG)))
            it.append(Ins('s_add_u32 s97, s%d, %d' % (sG, g)))
            it.append(Ins('s_lshl_b32 s97, s97, 4'))
            it.append(Ins('s_add_u32 s97, s97, s%d' % sR))
            it.append(Ins('s_lshl_b32 s97, s97, 9'))
            it.append(Ins('s_add_u32 s97, s97, 0x%x' % AGG_OFF))
            it.append(Ins('buffer_store_dwordx4 %s, %s, %s, s97 offen sc1' % (vr(pb, 4), vr(V['AG']), srd(R_WS))))
            return [[x] for x in it + sel]

        def coef(g, t0):
            it = []
            RE, IM = ACC[g], ACC[g] + 16
            cr, ci = V['cr%d' % g], V['ci%d' % g]
            for t in range(16):
                tt = t0 + (t & 1)
                it.append(Ins('v_mul_f32 %s, %s, %s' % (vr(tt), vr(ci), vr(IM + t))))
                it.append(Ins('v_mul_f32 %s, %s, %s' % (vr(IM + t), vr(cr), vr(IM + t))))
                it.append(Ins('v_fmac_f32 %s, %s, %s' % (vr(IM + t), vr(ci), vr(RE + t))))
                it.append(Ins('v_fma_f32 %s, %s, %s, -%s' % (vr(RE + t), vr(cr), vr(RE + t), vr(tt))))
            return [[x] for x in it]

        def lb_issue(g, buf):
            return [[Ins('s_add_u32 s95, s%d, %d' % (sG, g)), Ins('s_lshl_b32 s95, s95, 13'), Ins('s_add_u32 s95, s95, 0x%x' % AGG_OFF)],
                    [Ins('buffer_load_dwordx4 %s, %s, %s, s95 offen sc1' % (vr(buf, 4), vr(V['LB0']), srd(R_WS)))],
                    [Ins('buffer_load_dwordx4 %s, %s, %s, s95 offen sc1' % (vr(buf + 4, 4), vr(V['LB1']), srd(R_WS)))]]

        def lb_check(buf, t):
            a('v_xor_b32 %s, s%d, %s' % (vr(t), sTAG, vr(buf + 1)))
            a('v_xor_b32 %s, s%d, %s' % (vr(t + 1), sTAG, vr(buf + 3)))
            a('v_xor_b32 %s, s%d, %s' % (vr(t + 2), sTAG, vr(buf + 5)))
            a('v_xor_b32 %s, s%d, %s' % (vr(t + 3), sTAG, vr(buf + 7)))
            a('v_or3_b32 %s, %s, %s, %s' % (vr(t), vr(t), vr(t + 1), vr(t + 2)))
            a('v_or_b32 %s, %s, %s' % (vr(t), vr(t), vr(t + 3)))
            a('v_cmp_ne_u32 vcc, 0, %s' % vr(t))
            a('s_cmp_eq_u64 vcc, 0')

        def lookback_wait(g, buf, lbl):
            t = buf + 8
            lb_check(buf, t)
            a.settle()
            a('s_cbranch_scc1 %s_ok' % lbl)
            snap = a.snapshot()
            a('s_mov_b32 s91, 0')
            a.drain()
            a.label(lbl)
            a('buffer_load_dwordx4 %s, %s, %s, s95 offen sc1' % (vr(buf, 4), vr(V['LB0']), srd(R_WS)))
            a('buffer_load_dwordx4 %s, %s, %s, s95 offen sc1' % (vr(buf + 4, 4), vr(V['LB1']), srd(R_WS)))
            a('s_add_u32 s91, s91, 1')
            lb_check(buf, t)
            a('s_cbranch_scc1 %s_ok' % lbl)
            a('s_cmp_lt_u32 s91, 0x%x' % o.get('spin', 200000))
            a('s_cbranch_scc1 %s' % lbl)
            a.settle()
            a.label(lbl + '_ok')
            a.restore(snap)
            p1r, p1i, p2r, p2i = (V['p%s%d' % (x, g)] for x in ('1r', '1i', '2r', '2i'))
            hr, hi = buf + 8, buf + 9
            a('v_mul_f32 %s, %s, %s' % (vr(hr), vr(p1r), vr(buf)))
            a('v_mul_f32 %s, %s, %s' % (vr(hi), vr(p1r), vr(buf + 2)))
            a('v_fma_f32 %s, -%s, %s, %s' % (vr(hr), vr(p1i), vr(buf + 2), vr(hr)))
            a('v_fmac_f32 %s, %s, %s' % (vr(hi), vr(p1i), vr(buf)))
            a('v_fmac_f32 %s, %s, %s' % (vr(hr), vr(p2r), vr(buf + 4)))
            a('v_fmac_f32 %s, %s, %s' % (vr(hi), vr(p2r), vr(buf + 6)))
            a('v_fma_f32 %s, -%s, %s, %s' % (vr(hr), vr(p2i), vr(buf + 6), vr(hr)))
            a('v_fmac_f32 %s, %s, %s' % (vr(hi), vr(p2i), vr(buf + 4)))
            a('ds_write_b64 %s, %s offset:%d' % (vr(V['SEGW']), vr(hr, 2), L_LB - MISC + 2560 * g))
            a.waitcnt(lg=0)
            a('s_barrier')

        def entry_state(g, buf):
            it = []
            for jj in range(4):
                it.append('ds_read_b128 %s, %s offset:%d' % (vr(buf + 4 * jj, 4), vr(V['SEGR']), L_LB - MISC + 2560 * g + 16 * jj))
            for jj in (1, 3, 5, 7):
                it.append('v_add_f32 %s, %s, %s' % (vr(buf + 2 * jj - 2), vr(buf + 2 * jj - 2), vr(buf + 2 * jj)))
                it.append('v_add_f32 %s, %s, %s' % (vr(buf + 2 * jj - 1), vr(buf + 2 * jj - 1), vr(buf + 2 * jj + 1)))
            for (x, y) in ((0, 4), (8, 12), (0, 8)):
                it.append('v_add_f32 %s, %s, %s' % (vr(buf + x), vr(buf + x), vr(buf + y)))
                it.append('v_add_f32 %s, %s, %s' % (vr(buf + x + 1), vr(buf + x + 1), vr(buf + y + 1)))
            Pr, Pi = SC[g] + 0, SC[g] + 1
            lsr, lsi, cr, ci = (V[x + str(g)] for x in ('lsr', 'lsi', 'cr', 'ci'))
            it += ['v_fmac_f32 %s, %s, %s' % (vr(Pr), vr(lsr), vr(buf)),
                   'v_fmac_f32 %s, %s, %s' % (vr(Pi), vr(lsr), vr(buf + 1)),
                   'v_fma_f32 %s, -%s, %s, %s' % (vr(Pr), vr(lsi), vr(buf + 1), vr(Pr)),
                   'v_fmac_f32 %s, %s, %s' % (vr(Pi), vr(lsi), vr(buf)),
                   'v_mul_f32 %s, %s, %s' % (vr(buf + 2), vr(cr), vr(Pr)),
                   'v_mul_f32 %s, %s, %s' % (vr(buf + 3), vr(cr), vr(Pi)),
                   'v_fma_f32 %s, -%s, %s, %s' % (vr(buf + 2), vr(ci), vr(Pi), vr(buf + 2)),
                   'v_fmac_f32 %s, %s, %s' % (vr(buf + 3), vr(ci), vr(Pr))]
            return [[Ins(x)] for x in it]

        def pass2(g, buf):
            it = []
            RE, IM = ACC[g], ACC[g] + 16
            lr, li, nli = V['lr%d' % g], V['li%d' % g], V['nli%d' % g]
            pr, pi_ = buf + 2, buf + 3
            for t in range(16):
                it.append(Ins('v_fmac_f32 %s, %s, %s' % (vr(RE + t), vr(lr), vr(pr))))
                it.append(Ins('v_fmac_f32 %s, %s, %s' % (vr(IM + t), vr(lr), vr(pi_))))
                it.append(Ins('v_fmac_f32 %s, %s, %s' % (vr(RE + t), vr(nli), vr(pi_))))
                it.append(Ins('v_fmac_f32 %s, %s, %s' % (vr(IM + t), vr(li), vr(pr))))
                pr, pi_ = RE + t, IM + t
            for e in range(8):
                it.append(Ins('v_cvt_pk_bf16_f32 %s, %s, %s' % (vr(RE + e), vr(RE + 2 * e), vr(RE + 2 * e + 1))))
            for e in range(8):
                it.append(Ins('v_cvt_pk_bf16_f32 %s, -%s, -%s' % (vr(RE + 8 + e), vr(IM + 2 * e), vr(IM + 2 * e + 1))))
            return [[x] for x in it]

        def build_sel(B, T):
            n_, e_, t_, val = T, T + 1, T + 2, T + 3
            L = ['v_and_b32 %s, 31, v0' % vr(n_),
                 'v_lshrrev_b32 %s, 3, %s' % (vr(t_), vr(n_)),
                 'v_and_b32 %s, 3, %s' % (vr(e_), vr(n_)),
                 'v_lshl_add_u32 %s, %s, 2, %s' % (vr(e_), vr(t_), vr(e_)),
                 'v_bfe_u32 %s, %s, 2, 1' % (vr(t_), vr(n_)),
                 'v_lshrrev_b32 %s, 5, v0' % vr(val),
                 'v_cmp_eq_u32 vcc, %s, %s' % (vr(t_), vr(val)),
                 'v_lshrrev_b32 %s, 16, %s' % (vr(val), vr(V['G'])),
                 'v_cndmask_b32 %s, 31, %s, vcc' % (vr(e_), vr(e_)),
                 'v_and_b32 %s, 1, %s' % (vr(t_), vr(e_)),
                 'v_lshlrev_b32 %s, 4, %s' % (vr(t_), vr(t_)),
                 'v_lshlrev_b32 %s, %s, %s' % (vr(val), vr(t_), vr(val)),
                 'v_lshrrev_b32 %s, 1, %s' % (vr(e_), vr(e_))]
            g = [[Ins(x)] for x in L]
            for k in range(8):
                g.append([Ins('v_cmp_eq_u32 vcc, %d, %s' % (k, vr(e_))),
                          Ins('v_cndmask_b32 %s, 0, %s, vcc' % (vr(B + k), vr(val)))])
            return g

        def transpose_store(g, B, D0, D1):
            RE = ACC[g]
            a('v_mfma_f32_32x32x16_bf16 %s, %s, %s, 0' % (vr(D0, 16), vr(RE, 4), vr(B, 4)))
            a('v_mfma_f32_32x32x16_bf16 %s, %s, %s, 0' % (vr(D1, 16), vr(RE + 8, 4), vr(B, 4)))
            a('v_mfma_f32_32x32x16_bf16 %s, %s, %s, %s' % (vr(D0, 16), vr(RE + 4, 4), vr(B + 4, 4), vr(D0, 16)))
            a('v_mfma_f32_32x32x16_bf16 %s, %s, %s, %s' % (vr(D1, 16), vr(RE + 12, 4), vr(B + 4, 4), vr(D1, 16)))
            a('s_add_u32 s94, s%d, %d' % (sHS, (48 + g) * 4096))
            a('s_add_u32 s95, s%d, %d' % (sHS, (68 + g) * 4096))
            for D, so in ((D0, 94), (D1, 95)):
                for e in range(8):
                    a('v_cvt_pk_bf16_f32 %s, %s, %s' % (vr(D + e), vr(D + 2 * e), vr(D + 2 * e + 1)))
                a('buffer_store_dwordx4 %s, %s, %s, s%d offen sc1' % (vr(D, 4), vr(V['ST']), srd(R_WS), so))
                a('buffer_store_dwordx4 %s, %s, %s, s%d offen offset:512 sc1' % (vr(D + 4, 4), vr(V['ST']), srd(R_WS), so))

        NQ = 8

        def ffn_ops():
            ops = []
            for n in range(160):
                tile, s = n // 40, n % 40
                blk, tp = tile >> 1, tile & 1
                acc = FA[tile & 1]
                st, sp = s // 10, s % 10
                slot = slot_of[4 + 4 * blk + st]
                reg = slot // 3
                off = (slot % 3) * SLOT + (32 * (sp >> 1) + 8 * (sp & 1)) * 128
                q = RING + 4 * (n % NQ)
                base = V['RF'] + tp + 2 * reg
                r0 = Ins('ds_read_b64_tr_b16 %s, %s offset:%d' % (vr(q, 2), vr(base), off))
                r1 = Ins('ds_read_b64_tr_b16 %s, %s offset:%d' % (vr(q + 2, 2), vr(base), off + 512))
                m = Ins('v_mfma_f32_32x32x16_bf16 %s, %s, %s, %s' % (vr(acc, 16), vr(q, 4), XF(s), '0' if s == 0 else vr(acc, 16)))
                ops.append((r0, r1, m))
            return ops

        def ffn_main(ops, n0, n1, dist, rd_done, rd_limit):
            out = []
            for n in range(n0, n1):
                if n == n0:
                    while rd_done < min(n + dist, rd_limit):
                        out += [ops[rd_done][0], ops[rd_done][1]]
                        rd_done += 1
                out.append(ops[n][2])
                while rd_done < min(n + 1 + dist, rd_limit):
                    out += [ops[rd_done][0], ops[rd_done][1]]
                    rd_done += 1
            return out, rd_done

        def ffn_pack(tile):
            T = FA[tile & 1]
            it = []
            for e in range(16):
                it.append(Ins('v_mul_f32 %s, %s, %s' % (vr(T + e), vr(V['OMG']), vr(T + e))))
            for e in range(8):
                it.append(Ins('v_cvt_pk_bf16_f32 %s, %s, %s' % (vr(T + e), vr(T + 2 * e), vr(T + 2 * e + 1))))
            for e in range(8):
                it.append(Ins('v_pk_max_i16 %s, %s, 0' % (vr(T + e), vr(T + e))))
            return [[x] for x in it]

        def ffn_store(tile):
            T = FA[tile & 1]
            return [[Ins('s_add_u32 s94, s%d, %d' % (sHF, tile * 4096))],
                    [Ins('buffer_store_dwordx4 %s, %s, %s, s94 offen sc1' % (vr(T, 4), vr(V['ST']), srd(R_WS)))],
                    [Ins('buffer_store_dwordx4 %s, %s, %s, s94 offen offset:512 sc1' % (vr(T + 4, 4), vr(V['ST']), srd(R_WS)))]]

        def wf_issue(T):
            t0, t1 = T + 2, T + 3
            gr = G(['s_mul_i32 s90, s%d, 120' % sC2, 's_mul_i32 s91, s%d, 30' % sW, 's_add_u32 s90, s90, s91',
                    'v_and_b32 %s, 31, v0' % vr(t1), 'v_min_u32 %s, 29, %s' % (vr(t0), vr(t1)),
                    'v_add_u32 %s, s90, %s' % (vr(t0), vr(t0)),
                    's_lshr_b32 s90, s%d, 1' % sW, 's_mul_i32 s90, s90, 400', 's_mul_i32 s91, s%d, 50' % sC2,
                    's_add_u32 s90, s90, s91', 's_and_b32 s91, s%d, 1' % sW, 's_mul_i32 s91, s91, 25', 's_add_u32 s90, s90, s91',
                    'v_min_u32 %s, 24, %s' % (vr(t1), vr(t1)), 'v_add_u32 %s, s90, %s' % (vr(t1), vr(t1))])
            gr.append([Ins('v_cmp_gt_u32 vcc, 32, v0'), Ins('v_cndmask_b32 %s, %s, %s, vcc' % (vr(t0), vr(t1), vr(t0)))])
            gr += G(['v_lshlrev_b32 %s, 3, %s' % (vr(t0), vr(t0)), 'v_add_u32 %s, 0x%x, %s' % (vr(t0), WF_OFF, vr(t0)),
                     'buffer_load_dwordx2 %s, %s, %s, 0 offen sc1' % (vr(T, 2), vr(t0), srd(R_WS))])
            return gr

        def wf_check(T, lbl):
            t0 = T + 2

            def chk():
                a('v_xor_b32 %s, s%d, %s' % (vr(T), sTAG, vr(T)))
                a('v_xor_b32 %s, s%d, %s' % (vr(T + 1), sTAG2, vr(T + 1)))
                a('v_or_b32 %s, %s, %s' % (vr(T), vr(T), vr(T + 1)))
                a('v_cmp_ne_u32 vcc, 0, %s' % vr(T))
                a('s_cmp_eq_u64 vcc, 0')
            chk()
            a.settle()
            a('s_cbranch_scc1 %s_ok' % lbl)
            snap = a.snapshot()
            a('s_mov_b32 s91, 0')
            a.drain()
            a.label(lbl)
            a('buffer_load_dwordx2 %s, %s, %s, 0 offen sc1' % (vr(T, 2), vr(t0), srd(R_WS)))
            a('s_add_u32 s91, s91, 1')
            chk()
            a('s_cbranch_scc1 %s_ok' % lbl)
            a('s_cmp_lt_u32 s91, 0x%x' % o.get('spin', 200000))
            a('s_cbranch_scc1 %s' % lbl)
            a.settle()
            a.label(lbl + '_ok')
            a.restore(snap)

        BUD = o.get('bud', 3)
        P2 = self.p2
        stage_open([0])
        self.stamp(3)
        carry = []
        hooks = {}
        for kap in range(5):
            hooks.setdefault(4 * kap, [])
            hooks[4 * kap] += xread(kap + 1)
            if kap + 5 <= 9:
                for j, grp in enumerate(xrefill(kap + 5)):
                    if 4 * kap + 1 + j < 20:
                        hooks.setdefault(4 * kap + 1 + j, [])
                        hooks[4 * kap + 1 + j] = hooks[4 * kap + 1 + j] + [grp]
                    else:
                        carry.append(grp)
        misc0 = late_scalars() + w2_setup() + item_addrs() + c_setup()
        weave(a, ssm_stage(0, hooks), [Stream(misc0, per=3)], budget=3)
        put_all(carry)
        self.stamp((1, 5))
        stage_open([1])
        self.stamp((1, 6))
        hooks = {4 * k + 2: xread(6 + k) for k in range(4)}
        w2g, c_dma = w2_item(64)
        weave(a, ssm_stage(1, hooks), [Stream(stage_loads(2) + stage_loads(3), every=2), Stream(gate_reads(1), per=1), Stream(w2g, start=5, every=2)], budget=5)
        self.stamp((1, 7))
        stage_open([2])
        self.stamp((1, 8))
        self.stamp((4, 7))
        ld = stage_loads(4) + stage_loads(5) + stage_loads(6) + stage_loads(7)
        cg, c_st = c_item(72, c_dma)
        lc = lane_consts() + params(0)
        late_lc = []
        if o.get('lcafter'):
            late_lc, lc = lc, []
        if o.get('ldafter'):
            late_lc, ld = late_lc + ld, []
        weave(a, ssm_stage(2), [Stream(ld, every=2), Stream(cg, start=7, every=2), Stream(lc, start=1, every=2, per=6)], budget=6)
        self.stamp((4, 5))
        put_all(late_lc)
        self.stamp((4, 6))
        self.stamp((1, 9))
        stage_open([3])
        self.stamp((1, 10))
        rest = gate_math(80) + masks(84)
        weave(a, ssm_stage(3), [Stream((stage_loads(8) + stage_loads(9)) if A else [], every=2), Stream(rest, per=3), Stream(w_flag(64, c_st), start=13, every=2)], budget=5)
        if o.get('detail', 0) != 2:
            self.stamp(4)

        if A:
            SC = [48]
            BUF = 56
            SEL = 72
            WFT = 80
            TMP = 84
            put_all(pass1(0))
            stage_open([4, 5, 6, 7])
            self.stamp((3, 5))
            self.stamp((3, 1), clock=True)
            ops = ffn_ops()
            D = o.get('fdist', 5)
            m, rd = ffn_main(ops, 0, 50, D, 0, 80)
            st_a = [Stream(prefix(0, BUF), per=3), Stream(stage_loads(10)), Stream(P2.tables(), start=20, per=2), Stream(coef(0, TMP), per=3),
                    Stream(wf_issue(WFT), start=38, per=3),
                    Stream(ffn_pack(0) + ffn_store(0), start=41, per=3)]
            weave(a, m, st_a, budget=BUD, flush=False)
            a.put(WaitLG(ops[49][1]))
            a('s_barrier')
            for x in st_a:
                x.start = 0
            m, rd = ffn_main(ops, 50, 76, D, rd, 80)
            st_b = [Stream(stage_loads(11))] + st_a + [Stream(build_sel(SEL, BUF), per=3)]
            weave(a, m, st_b, budget=BUD, flush=True)
            wf_check(WFT, 'L_wfA')
            for c in (8, 9, 10, 11):
                a.put(WaitVM(dma_last[c]))
            a('s_barrier')
            wpre = P2.early_w()
            s_w = Stream(wpre, every=o.get('wevery', 2))
            m, rd = ffn_main(ops, 76, 120, D, rd, 160)
            s_pack1 = Stream(ffn_pack(1), start=6, per=3)
            weave(a, m, [Stream(lb_issue(0, BUF), start=o.get('lbpos', 8), per=3), s_pack1, s_w], budget=BUD + 1, flush=False)
            assert s_pack1.done()
            self.stamp(5)
            self.stamp((3, 6))
            self.stamp((3, 2), clock=True)
            lookback_wait(0, BUF, 'L_lbA')
            self.stamp(6)
            put_all(ffn_store(1))
            s_w.start = 0
            m, rd = ffn_main(ops, 120, 160, D, rd, 160)
            weave(a, m, [Stream(entry_state(0, BUF) + pass2(0, BUF), per=3), s_w,
                         Stream(ffn_pack(2) + ffn_store(2), start=2, per=3)], budget=BUD + 1)
            transpose_store(0, SEL, 96, 112)
            put_all(ffn_pack(3) + ffn_store(3))
        else:
            SC = [48, 52]
            BUF = 56
            SEL = 72
            WFT = 80
            TMP = 84
            put_all(pass1(0))
            stage_open([4])
            weave(a, ssm_stage(4), [Stream(prefix(0, BUF), per=3), Stream(params(1), per=3)], budget=4, flush=True)
            stage_open([5])
            weave(a, ssm_stage(5), [Stream(coef(0, TMP), per=4), Stream(P2.tables(), per=2)], budget=4)
            stage_open([6])
            weave(a, ssm_stage(6), [Stream(wf_issue(WFT), per=3), Stream(build_sel(SEL, BUF), per=3)], budget=4)
            stage_open([7])
            weave(a, ssm_stage(7), [Stream(lb_issue(0, BUF), start=8, per=3)], budget=4)
            put_all(pass1(1))
            wf_check(WFT, 'L_wfB')
            wpre = P2.early_w()
            self.stamp(5)
            lookback_wait(0, BUF, 'L_lbB0')
            self.stamp(6)

            def mix(items, loads, every):
                out = []
                for k, x in enumerate(items):
                    out.append(x)
                    if k % every == every - 1 and loads:
                        out.append(loads.pop(0))
                return out
            put_all(mix(prefix(1, 96), wpre, 5))
            put_all(mix(entry_state(0, BUF) + pass2(0, BUF), wpre, 5))
            transpose_store(0, SEL, 96, 112)
            put_all(lb_issue(1, BUF))
            put_all(mix(coef(1, TMP), wpre, 5))
            put_all(wpre)
            lookback_wait(1, BUF, 'L_lbB1')
            put_all(entry_state(1, BUF))
            put_all(pass2(1, BUF))
            transpose_store(1, SEL, 96, 112)

        self.stamp(7)
        a.waitcnt(vm=0)
        self.stamp(8)
        a('v_mov_b32 %s, s%d' % (vr(RING), sTAG))
        a('v_mov_b32 %s, s%d' % (vr(RING + 1), sTAG2))
        a('s_lshl_b32 s90, s%d, 2' % sR)
        a('s_add_u32 s90, s90, s%d' % sW)
        a('s_lshl_b32 s90, s90, 4')
        a('s_add_u32 s90, s90, s%d' % sC16)
        a('s_lshl_b32 s90, s90, 3')
        a('s_add_u32 s90, s90, 0x%x' % FLAG_OFF)
        a('v_mov_b32 %s, 0' % vr(RING + 2))
        a('buffer_store_dwordx2 %s, %s, %s, s90 offen sc1' % (vr(RING, 2), vr(RING + 2), srd(R_WS)))
        a.waitcnt(lg=0)
        a.settle()

    def poll(self, lbl, voff, soff, tmp):
        a = self.a
        a('s_mov_b32 s91, 0')
        a.drain()
        a.settle()
        a.label(lbl)
        a('buffer_load_dwordx2 %s, %s, %s, s%d offen sc1' % (vr(tmp, 2), vr(voff), srd(R_WS), soff))
        a('s_add_u32 s91, s91, 1')
        a('v_xor_b32 %s, s%d, %s' % (vr(tmp), sTAG, vr(tmp)))
        a('v_xor_b32 %s, s%d, %s' % (vr(tmp + 1), sTAG2, vr(tmp + 1)))
        a('v_or_b32 %s, %s, %s' % (vr(tmp), vr(tmp), vr(tmp + 1)))
        a('v_cmp_ne_u32 vcc, 0, %s' % vr(tmp))
        a('s_cmp_eq_u64 vcc, 0')
        a('s_cbranch_scc1 %s_ok' % lbl)
        a('s_cmp_lt_u32 s91, 0x%x' % self.o.get('spin', 200000))
        a('s_cbranch_scc1 %s' % lbl)
        a.settle()
        a.label(lbl + '_ok')

    def phase2(self):
        a, o, P = self.a, self.o, self.p2
        VL16, VL16B = P.VL16, P.VL16B
        VH, VRW, VRR, VO, VX, VD, VG = 1, 5, 8, 9, 10, 11, 12
        VP, t0, t1, t2 = 96, 98, 99, 13
        ACC = 16
        SK = 100
        KS = P.KS

        def acc(dt, dl):
            return ACC + 4 * (4 * dt + dl)
        early = set(P.early_quads[:5 * P.n_early])
        top = 240 if o.get('stamps') else 256
        pool = [x for x in ([('a', r) for r in range(0, top, 4)] + [('v', r) for r in range(120, 256, 4)]) if x not in early]
        wq = dict(P.wq)
        hq = {}
        q = P.q

        def put_groups(gr):
            for g in gr:
                for x in g:
                    a.put(x)
        put_groups(P.tables(late=True))

        def w_groups(k):
            quads = [pool.pop(0) for dt in range(5)]
            for dt in range(5):
                wq[(k, dt)] = quads[dt]
            return P.w_loads(k, quads)

        def h_groups(k):
            gr = []
            for dl in range(4):
                r = pool.pop(0)
                hq[(k, dl)] = r
                hd = []
                if dl == 0:
                    hd = [Ins('s_lshl_b32 s%d, s%d, 12' % (P.sHk, KS[k])), Ins('s_add_u32 s%d, s%d, s%d' % (P.sHk, P.sHk, P.sHB))]
                gr.append(hd + [Ins('buffer_load_dwordx4 %s, %s, %s, s%d offen sc1' % (q(r), vr(VH + dl), srd(R_WS), P.sHk))])
            return gr

        HD = o.get('hdepth', 4)
        WD = min(22, P.n_early + (len(pool) - 4 * o.get('hres', 6)) // 5)
        for k in range(P.n_early, WD):
            put_groups(w_groups(k))
        self.stamp(9)
        self.build_srd(R_OUT, S_OUT, 5242880)
        for dl in range(4):
            a('s_add_u32 s90, s%d, %d' % (sW, dl))
            a('s_and_b32 s90, s90, 3')
            a('s_lshl_b32 s91, s90, 10')
            a('v_add_u32 %s, s91, %s' % (vr(VH + dl), vr(VL16)))
            if dl:
                a('s_mul_i32 s91, s90, 15360')
                a('s_add_u32 s91, s91, %d' % ((dl - 1) * 5120))
                a('v_add_u32 %s, s91, %s' % (vr(VRW + dl - 1), vr(VL16)))
        a('s_mul_i32 s91, s%d, 15360' % sW)
        a('v_add_u32 %s, s91, %s' % (vr(VRR), vr(VL16)))
        a('v_and_b32 %s, 15, v0' % vr(t0))
        a('v_lshrrev_b32 %s, 4, v0' % vr(t2))
        a('v_bfe_u32 %s, %s, 2, 1' % (vr(t1), vr(t0)))
        a('v_lshlrev_b32 %s, 4, %s' % (vr(t1), vr(t1)))
        a('v_and_b32 %s, 3, %s' % (vr(VP), vr(t0)))
        a('v_add_u32 %s, %s, %s' % (vr(t1), vr(t1), vr(VP)))
        a('v_lshrrev_b32 %s, 3, %s' % (vr(VP), vr(t0)))
        a('v_lshl_add_u32 %s, %s, 2, %s' % (vr(t1), vr(VP), vr(t1)))
        a('s_lshr_b32 s90, s%d, 1' % sW)
        a('s_lshl_b32 s90, s90, 5')
        a('s_and_b32 s91, s%d, 1' % sW)
        a('s_lshl_b32 s91, s91, 3')
        a('s_add_u32 s90, s90, s91')
        a('v_add_u32 %s, s90, %s' % (vr(t1), vr(t1)))
        a('v_mul_u32_u24 %s, 2560, %s' % (vr(VO), vr(t1)))
        a('v_lshl_add_u32 %s, %s, 4, %s' % (vr(VO), vr(t2), vr(VO)))
        a('v_mul_u32_u24 %s, 1280, %s' % (vr(VX), vr(t1)))
        a('v_lshl_add_u32 %s, %s, 3, %s' % (vr(VX), vr(t2), vr(VX)))
        a('s_mul_i32 s90, s%d, 160' % sC2)
        a('v_lshlrev_b32 %s, 3, %s' % (vr(VD), vr(t2)))
        a('v_add_u32 %s, s90, %s' % (vr(VD), vr(VD)))
        a('s_and_b32 s90, s%d, 1' % sR2)
        a('s_lshl_b32 s90, s90, 6')
        a('v_add_u32 %s, s90, %s' % (vr(VG), vr(t1)))
        a('v_lshlrev_b32 %s, 2, %s' % (vr(VG), vr(VG)))
        a('v_add_u32 %s, %d, %s' % (vr(VG), L_GATE, vr(VG)))
        a('s_mul_i32 s90, s%d, %d' % (sR2, 64 * 1280))
        a('s_mul_i32 s91, s%d, 160' % sC2)
        a('s_add_u32 s90, s90, s91')
        for dt in range(5):
            a('buffer_load_dwordx2 %s, %s, %s, s90 offen offset:%d' % (vr(SK + 2 * dt, 2), vr(VX), srd(R_X), 32 * dt))
            a('global_load_dwordx2 %s, %s, s[%d:%d] offset:%d' % (vr(SK + 10 + 2 * dt, 2), vr(VD), S_DSK, S_DSK + 1, 32 * dt))
        a('s_barrier')
        a('ds_read_b32 %s, %s' % (vr(VG), vr(VG)))
        a('s_lshl_b32 s90, s%d, 2' % sR)
        a('s_and_b32 s95, s%d, 1' % sR2)
        a('s_lshl_b32 s95, s95, 1')
        a('s_add_u32 s90, s90, s95')
        a('s_lshl_b32 s90, s90, 7')
        a('s_add_u32 s95, s90, 0x%x' % FLAG_OFF)
        a('v_and_b32 %s, 31, v0' % vr(t0))
        a('v_lshlrev_b32 %s, 3, %s' % (vr(t0), vr(t0)))
        self.poll('L_pfl', t0, 95, VP)
        a('s_cmp_lg_u32 s%d, 31' % sR2)
        a('s_cbranch_scc1 L_noep')
        a('s_cmp_lg_u32 s%d, 0' % sC2)
        a('s_cbranch_scc1 L_noep')
        a('v_mov_b32 %s, s%d' % (vr(t1), sTAG))
        a('v_mov_b32 %s, 0x%x' % (vr(t0), EPOCH_OFF))
        a('buffer_store_dword %s, %s, %s, 0 offen sc1' % (vr(t1), vr(t0), srd(R_WS)))
        a.waitcnt(vm=0)
        a.label('L_noep')
        self.stamp(10)
        self.stamp((2, 4))
        self.stamp((3, 9))
        self.stamp((3, 10), clock=True)
        nh = 0
        while nh < HD:
            put_groups(h_groups(nh))
            nh += 1
        nw = WD

        TS = 96
        skip = []
        for dt in range(5):
            xs, ds = SK + 2 * dt, SK + 10 + 2 * dt
            L = ['v_lshlrev_b32 %s, 16, %s' % (vr(TS), vr(xs)), 'v_lshlrev_b32 %s, 16, %s' % (vr(TS + 1), vr(ds)),
                 'v_and_b32 %s, 0xffff0000, %s' % (vr(xs), vr(xs)), 'v_and_b32 %s, 0xffff0000, %s' % (vr(ds), vr(ds)),
                 'v_mul_f32 %s, %s, %s' % (vr(xs), vr(xs), vr(ds)),
                 'v_mul_f32 %s, %s, %s' % (vr(ds), vr(TS), vr(TS + 1)),
                 'v_lshlrev_b32 %s, 16, %s' % (vr(TS), vr(xs + 1)), 'v_lshlrev_b32 %s, 16, %s' % (vr(TS + 1), vr(ds + 1)),
                 'v_and_b32 %s, 0xffff0000, %s' % (vr(xs + 1), vr(xs + 1)), 'v_and_b32 %s, 0xffff0000, %s' % (vr(ds + 1), vr(ds + 1)),
                 'v_mul_f32 %s, %s, %s' % (vr(xs + 1), vr(xs + 1), vr(ds + 1)),
                 'v_mul_f32 %s, %s, %s' % (vr(ds + 1), vr(TS), vr(TS + 1))]
            skip += [[Ins(x)] for x in L]
        s_skip = Stream(skip, per=1, every=2)

        def skr(dt, r):
            return (SK + 10 + 2 * dt, SK + 2 * dt, SK + 10 + 2 * dt + 1, SK + 2 * dt + 1)[r]

        GAP = o.get('gap', 72)
        HMAX = o.get('hmax', 7)
        st = dict(nh=nh, hj=0, nw=nw, wj=0, t=0)

        def next_load(k):
            can_h = st['nh'] < 22 and st['nh'] <= k + HMAX and pool
            can_w = st['nw'] < 22 and pool
            urgent_w = can_w and st['nw'] <= k + o.get('wlead', 5)
            if can_h and not (urgent_w and st['nw'] <= st['nh']):
                kk, dl = st['nh'], st['hj']
                r = pool.pop(0)
                hq[(kk, dl)] = r
                hd = []
                if dl == 0:
                    hd = [Ins('s_lshl_b32 s%d, s%d, 12' % (P.sHk, KS[kk])), Ins('s_add_u32 s%d, s%d, s%d' % (P.sHk, P.sHk, P.sWB if o.get('fakeH') == 2 else P.sHB))]
                st['hj'] += 1
                if st['hj'] == 4:
                    st['hj'] = 0
                    st['nh'] += 1
                return hd + [Ins('buffer_load_dwordx4 %s, %s, %s, s%d offen sc1' % (q(r), vr(VH + dl), srd(R_WS), P.sHB if o.get('fakeH') == 1 else P.sHk))]
            if can_w:
                kk, dt = st['nw'], st['wj']
                r = pool.pop(0)
                wq[(kk, dt)] = r
                hd = []
                if dt == 0:
                    hd = [Ins('s_mul_i32 s%d, s%d, 5120' % (P.sWk, KS[kk])), Ins('s_add_u32 s%d, s%d, s%d' % (P.sWk, P.sWk, P.sWB))]
                if dt < 4:
                    ld = Ins('buffer_load_dwordx4 %s, %s, %s, s%d offen offset:%d sc1' % (q(r), vr(VL16), srd(R_WS), P.sWk, dt * 1024))
                else:
                    ld = Ins('buffer_load_dwordx4 %s, %s, %s, s%d offen sc1' % (q(r), vr(VL16B), srd(R_WS), P.sWk))
                st['wj'] += 1
                if st['wj'] == 5:
                    st['wj'] = 0
                    st['nw'] += 1
                return hd + [ld]
            return None

        for k in range(22):
            while (st['nh'] <= k) or (st['nw'] <= k):
                g = next_load(k) if st['nh'] <= k else None
                if g is None or st['nh'] > k:
                    save = st['nh']
                    st['nh'] = 22
                    g2 = next_load(k) if g is None else None
                    st['nh'] = save
                    g = g or g2
                assert g is not None
                for x in g:
                    a.put(x)
            n = 0
            for dt in range(5):
                for dl in range(4):
                    c = '0' if k == 0 else vr(acc(dt, dl), 4)
                    a.put(Ins('v_mfma_f32_16x16x32_bf16 %s, %s, %s, %s' % (vr(acc(dt, dl), 4), q(wq[(k, dt)]), q(hq[(k, dl)]), c)))
                    now = (20 * k + n + 1) * 16
                    if now >= st['t']:
                        g = next_load(k)
                        if g is not None:
                            for x in g:
                                a.put(x)
                            st['t'] = max(st['t'] + GAP, now)
                    elif k >= o.get('skipk', 10) and n % 2 == 1 and not s_skip.done():
                        for x in s_skip.groups[s_skip.i]:
                            a.put(x)
                        s_skip.i += 1
                    n += 1
            for dt in range(5):
                pool.append(wq[(k, dt)])
            for dl in range(4):
                pool.append(hq[(k, dl)])
            if k in (0, 2, 5, 9, 13, 17):
                self.stamp((2, 5 + (0, 2, 5, 9, 13, 17).index(k)))
        assert st['nh'] == 22 and st['nw'] == 22
        while not s_skip.done():
            a.put(s_skip.groups[s_skip.i][0])
            s_skip.i += 1
        self.stamp(11)
        self.stamp((2, 11))
        self.stamp((3, 11))
        self.stamp((3, 8), clock=True)
        for dl in range(1, 4):
            for dt in range(5):
                a('ds_write_b128 %s, %s offset:%d' % (vr(VRW + dl - 1), vr(acc(dt, dl), 4), dt * 1024))
        for dt in range(5):
            for r in range(4):
                a('v_fmac_f32 %s, %s, %s' % (vr(acc(dt, 0) + r), vr(VG), vr(skr(dt, r))))
        a('s_mul_i32 s90, s%d, %d' % (sR2, 64 * 2560))
        a('s_mul_i32 s91, s%d, 320' % sC2)
        a('s_add_u32 s90, s90, s91')
        a.waitcnt(lg=0)
        a('s_barrier')
        RB = 128
        for dt in range(5):
            for sl in range(3):
                a('ds_read_b128 %s, %s offset:%d' % (vr(RB + 4 * (3 * dt + sl), 4), vr(VRR), (sl * 5 + dt) * 1024))
        for dt in range(5):
            b = RB + 12 * dt
            for r in range(4):
                a('v_add_f32 %s, %s, %s' % (vr(b + r), vr(b + r), vr(b + 4 + r)))
            for r in range(4):
                a('v_add_f32 %s, %s, %s' % (vr(acc(dt, 0) + r), vr(acc(dt, 0) + r), vr(b + 8 + r)))
            for r in range(4):
                a('v_add_f32 %s, %s, %s' % (vr(acc(dt, 0) + r), vr(acc(dt, 0) + r), vr(b + r)))
            a('buffer_store_dwordx4 %s, %s, %s, s90 offen offset:%d %s' % (vr(acc(dt, 0), 4), vr(VO), srd(R_OUT), 64 * dt, {0: '', 1: 'sc1', 2: 'nt', 3: 'sc0 sc1'}[o.get('outmode', 0)]))

    def weave2(self, main, loads, every, extra):
        a = self.a
        for n, it in enumerate(main):
            a.put(it)
            if n % every == 0 and loads:
                for x in loads.pop(0):
                    a.put(x)
            elif extra is not None and n % 2 == 1 and not extra.done():
                for x in extra.groups[extra.i]:
                    a.put(x)
                extra.i += 1

    def kernel(self):
        a = self.a
        self.prologue()
        a('s_cmp_ge_u32 s%d, 6' % sCC)
        a.settle()
        a('s_cbranch_scc1 L_typeB')
        snap = a.snapshot()
        self.phase1('A')
        a('s_branch L_phase2')
        a.label('L_typeB')
        a.restore(snap)
        self.phase1('B')
        a.label('L_phase2')
        self.phase2()
        self.dump_stamps()
        a.label('L_exit')
        a('s_endpgm')
        head = open('gated_mix__ssm_conv_s5__dense_activation_relu__prompt.s.ref').read().split('\n')
        hdr = [ln for ln in head if ln.startswith(';') and '@launch' not in ln and 'Override' not in ln and 'grid=ceil' not in ln]
        out = '\n'.join(hdr) + '\n'
        out += '; @launch grid=(256,1,1) block=(256,1,1) lds=%d\n' % LDS_BYTES
        out += '.amdgcn_target "amdgcn-amd-amdhsa--gfx950"\n.text\n.globl %s\n.p2align 8\n.type %s,@function\n%s:\n' % (KNAME, KNAME, KNAME)
        out += a.text()
        out += '''.section .rodata,"a"
.p2align 6
.amdhsa_kernel %s
  .amdhsa_next_free_vgpr 512
  .amdhsa_next_free_sgpr 102
  .amdhsa_accum_offset 256
  .amdhsa_group_segment_fixed_size 0
  .amdhsa_kernarg_size 128
  .amdhsa_user_sgpr_count 2
  .amdhsa_user_sgpr_kernarg_segment_ptr 1
  .amdhsa_system_sgpr_workgroup_id_x 1
  .amdhsa_float_denorm_mode_32 3
.end_amdhsa_kernel
''' % KNAME
        return out


if __name__ == '__main__':
    opts = {}
    for arg in sys.argv[2:]:
        k, v = arg.split('=')
        opts[k] = int(v, 0)
    g = Gen(opts)
    txt = g.kernel()
    open(sys.argv[1], 'w').write(txt)
    print('instructions', g.a.n_ins, g.a.stats, 'nop states', g.a.nop_states, 'bytes of text', len(txt))
```

```python
import re

REG = re.compile(r'^(-|\|)?([vas])(\d+)\|?$')
RNG = re.compile(r'^(-|\|)?([vas])\[(\d+):(\d+)\]\|?$')

TRANS = ('v_exp_f32', 'v_log_f32', 'v_rcp_f32', 'v_rsq_f32', 'v_sqrt_f32', 'v_sin_f32', 'v_cos_f32')


def regs_of(tok):
    tok = tok.strip()
    m = REG.match(tok)
    if m:
        return [(m.group(2), int(m.group(3)))]
    m = RNG.match(tok)
    if m:
        return [(m.group(2), i) for i in range(int(m.group(3)), int(m.group(4)) + 1)]
    if tok == 'vcc':
        return [('s', 'vcc')]
    if tok == 'exec':
        return [('s', 'exec')]
    if tok == 'm0':
        return [('s', 'm0')]
    return []


def split_ops(s):
    out, depth, cur = [], 0, ''
    for ch in s:
        if ch in '[(':
            depth += 1
        if ch in '])':
            depth -= 1
        if ch == ',' and depth == 0:
            out.append(cur.strip())
            cur = ''
        else:
            cur += ch
    if cur.strip():
        out.append(cur.strip())
    return out


class Ins:
    __slots__ = ('text', 'mn', 'kind', 'rd', 'wr', 'passes', 'lds_dma', 'wide_store', 'seq', 'cd', 'a_b', 'c',
                 'target', 'trans', 'note')

    def __init__(self, text):
        self.text = text
        self.seq = None
        self.passes = 0
        self.lds_dma = False
        self.wide_store = False
        self.trans = False
        self.target = None
        self.c = []
        self.a_b = []
        self.note = None
        parts = text.split(None, 1)
        mn = parts[0]
        self.mn = mn
        rest = parts[1] if len(parts) > 1 else ''
        ops = split_ops(rest)
        mods = []
        if ops:
            last = ops[-1].split()
            ops[-1] = last[0]
            mods = last[1:]
        R = [regs_of(o) for o in ops]
        flat = lambda L: [r for x in L for r in x]
        rd, wr = [], []
        if mn.startswith('v_mfma'):
            self.kind = 'mfma'
            self.passes = 8 if '32x32x16' in mn else 4
            wr = R[0]
            self.a_b = R[1] + R[2]
            self.c = R[3]
            rd = self.a_b + self.c
        elif mn.startswith('ds_read'):
            self.kind = 'lds'
            wr = R[0]
            rd = R[1]
        elif mn.startswith('ds_write'):
            self.kind = 'lds'
            rd = flat(R)
        elif mn.startswith('buffer_load') or mn.startswith('global_load'):
            self.kind = 'vm'
            if 'lds' in mods:
                self.lds_dma = True
                rd = flat(R) + [('s', 'm0')]
            else:
                wr = R[0]
                rd = flat(R[1:])
        elif mn.startswith('buffer_store') or mn.startswith('global_store'):
            self.kind = 'vm'
            rd = flat(R)
            self.wide_store = mn.endswith('x4') or mn.endswith('x3')
            if self.wide_store:
                self.c = R[0] if mn.startswith('buffer') else R[1]
        elif mn.startswith('v_'):
            self.kind = 'valu'
            if mn.startswith('v_permlane') and 'swap' in mn:
                wr = flat(R)
                rd = flat(R)
            elif mn.startswith('v_cmp'):
                wr = R[0]
                rd = flat(R[1:])
            elif mn.startswith('v_writelane'):
                wr = R[0]
                rd = flat(R)
            elif mn.startswith('v_fmac') or mn.startswith('v_dot2c'):
                wr = R[0]
                rd = flat(R)
            elif mn.startswith('v_cndmask') and len(ops) == 3:
                wr = R[0]
                rd = flat(R[1:]) + [('s', 'vcc')]
            elif mn.startswith('v_add_co') or mn.startswith('v_sub_co'):
                wr = R[0] + R[1]
                rd = flat(R[2:])
            elif mn.startswith('v_addc_co') or mn.startswith('v_subb_co'):
                wr = R[0] + R[1]
                rd = flat(R[2:])
            else:
                wr = R[0]
                rd = flat(R[1:])
            self.trans = mn in TRANS or any(mn == t + '_e32' for t in TRANS)
        elif mn.startswith('s_load') or mn in ('s_memtime', 's_memrealtime'):
            self.kind = 'smem'
            wr = R[0]
            rd = flat(R[1:])
        elif mn in ('s_waitcnt', 's_nop', 's_barrier', 's_endpgm', 's_branch', 's_setprio', 's_sleep') or mn.startswith('s_cbranch'):
            self.kind = 'ctl'
            if mn in ('s_cbranch_vccz', 's_cbranch_vccnz'):
                rd = [('s', 'vcc')]
        elif mn.startswith('s_cmp') or mn.startswith('s_bitcmp'):
            self.kind = 'salu'
            rd = flat(R)
        elif mn.startswith('s_'):
            self.kind = 'salu'
            wr = R[0]
            rd = flat(R[1:])
            if 'saveexec' in mn:
                wr = wr + [('s', 'exec')]
                rd = rd + [('s', 'exec')]
            if mn in ('s_addk_i32', 's_mulk_i32'):
                rd = rd + R[0]
        else:
            raise ValueError('unknown mnemonic ' + text)
        self.rd = set(rd)
        self.wr = set(wr)


class WaitVM:
    def __init__(self, target):
        self.target = target


class WaitLG:
    def __init__(self, target):
        self.target = target


class Asm:
    def __init__(self):
        self.lines = []
        self.hist = []
        self.vm_seq = 0
        self.lg_seq = 0
        self.vm_done = 0
        self.lg_done = 0
        self.vm_pending = {}
        self.lg_pending = {}
        self.smem_pending = set()
        self.n_ins = 0
        self.stats = {}
        self.nop_states = 0
        self.cur_tag = None
        self.last_writer = {}
        self.written_by = {}

    def snapshot(self):
        return dict(hist=[list(x) for x in self.hist], vm_seq=self.vm_seq, lg_seq=self.lg_seq, vm_done=self.vm_done,
                    lg_done=self.lg_done, vm_pending=dict(self.vm_pending), lg_pending=dict(self.lg_pending),
                    smem_pending=set(self.smem_pending))

    def restore(self, s):
        self.hist = [list(x) for x in s['hist']]
        self.vm_seq, self.lg_seq, self.vm_done, self.lg_done = s['vm_seq'], s['lg_seq'], s['vm_done'], s['lg_done']
        self.vm_pending = dict(s['vm_pending'])
        self.lg_pending = dict(s['lg_pending'])
        self.smem_pending = set(s['smem_pending'])

    def raw(self, text):
        self.lines.append(text)

    def comment(self, text):
        self.lines.append('    ; ' + text)

    def label(self, name):
        self.lines.append(name + ':')

    def _advance(self, states):
        for h in self.hist:
            h[1] += states
        self.hist = [h for h in self.hist if h[1] <= 24]

    def _out(self, text, states=1, ins=None):
        self.lines.append('    ' + text)
        self.n_ins += 1
        self._advance(states)
        if ins is not None:
            self.hist.append([ins, 0])

    def nop(self, states):
        while states > 0:
            n = min(states, 16)
            self._out('s_nop %d' % (n - 1), n)
            self.nop_states += n
            states -= n

    def waitcnt(self, vm=None, lg=None):
        parts = []
        if vm is not None:
            vm = min(vm, 63)
            parts.append('vmcnt(%d)' % vm)
            self.vm_done = max(self.vm_done, self.vm_seq - vm)
            self.vm_pending = {r: s for r, s in self.vm_pending.items() if s > self.vm_done}
        if lg is not None:
            lg = min(lg, 15)
            parts.append('lgkmcnt(%d)' % lg)
            self.lg_done = max(self.lg_done, self.lg_seq - lg)
            self.lg_pending = {r: s for r, s in self.lg_pending.items() if s > self.lg_done}
            if lg == 0:
                self.smem_pending = set()
        self._out('s_waitcnt ' + ' '.join(parts))

    def drain(self):
        self.waitcnt(vm=0, lg=0)

    def _need_wait(self, ins):
        touched = ins.rd | ins.wr
        vm_need = max([self.vm_pending[r] for r in touched if r in self.vm_pending], default=0)
        lg_need = max([self.lg_pending[r] for r in touched if r in self.lg_pending], default=0)
        sm = any(r in self.smem_pending for r in touched)
        vm = lg = None
        if vm_need > self.vm_done:
            vm = self.vm_seq - vm_need
        if sm:
            lg = 0
        elif lg_need > self.lg_done:
            lg = self.lg_seq - lg_need
            if self.smem_pending:
                lg = 0
        if vm is not None or lg is not None:
            self.waitcnt(vm, lg)

    def _hazard(self, ins):
        need = 0
        for p, dist in self.hist:
            req = 0
            if p.kind == 'valu':
                vw = {r for r in p.wr if r[0] in 'va'}
                sw = {r for r in p.wr if r[0] == 's'}
                if ins.kind == 'mfma' and vw & ins.rd:
                    req = max(req, 2)
                if ins.kind == 'valu':
                    if ins.mn.startswith('v_permlane') and vw & ins.rd:
                        req = max(req, 2)
                    if ins.mn.startswith('v_readfirstlane') or ins.mn.startswith('v_readlane'):
                        if vw & ins.rd:
                            req = max(req, 1)
                        if sw & ins.rd:
                            req = max(req, 4)
                    if 'dpp' in ins.text or 'row_' in ins.text or 'quad_perm' in ins.text:
                        if vw & ins.rd:
                            req = max(req, 2)
                    if sw & ins.rd:
                        req = max(req, 2)
                    if p.trans and vw & ins.rd:
                        req = max(req, 1)
                if ins.kind == 'vm' and sw & ins.rd:
                    req = max(req, 5)
                if ins.kind in ('salu', 'ctl', 'smem') and sw & ins.rd:
                    req = max(req, 4)
            elif p.kind == 'mfma':
                big = p.passes == 8
                if ins.kind == 'mfma':
                    if p.wr & set(ins.a_b):
                        req = max(req, 12 if big else 8)
                    if p.wr & set(ins.c):
                        same = (p.wr == set(ins.c)) and p.passes == ins.passes
                        if not same:
                            req = max(req, 10 if big else 6)
                    elif p.wr & ins.wr:
                        req = max(req, 12 if big else 8)
                elif ins.kind in ('valu', 'vm', 'lds'):
                    if p.wr & (ins.rd | ins.wr):
                        req = max(req, 12 if big else 8)
                    if ins.kind == 'valu' and set(p.c) & ins.wr:
                        req = max(req, 7 if big else 3)
            elif p.kind == 'salu':
                if ins.lds_dma and ('s', 'm0') in p.wr:
                    req = max(req, 1)
            elif p.kind == 'vm' and p.wide_store:
                if set(p.c) & ins.wr:
                    req = max(req, 2)
            if req > dist:
                need = max(need, req - dist)
        if need:
            self.nop(need)

    def put(self, ins):
        if isinstance(ins, str):
            ins = Ins(ins)
        if isinstance(ins, WaitVM):
            t = ins.target
            assert t.seq is not None, 'wait on an un-issued vm op'
            if t.seq > self.vm_done:
                self.waitcnt(vm=self.vm_seq - t.seq)
            return None
        if isinstance(ins, WaitLG):
            t = ins.target
            assert t.seq is not None
            if t.seq > self.lg_done:
                self.waitcnt(lg=0 if self.smem_pending else self.lg_seq - t.seq)
            return None
        tag = self.cur_tag
        if tag is not None:
            mine = self.written_by.setdefault(tag, set())
            for r in ins.rd:
                if r in mine and self.last_writer.get(r) != tag:
                    raise RuntimeError('stream %s reads %s after another stream overwrote it: %s' % (getattr(tag, 'name', tag), r, ins.text))
            mine |= ins.wr
            if ins.kind == 'salu' and not ins.mn.startswith(('s_mov', 's_cselect', 's_mul', 's_lshl_b64')):
                pass
        for r in ins.wr:
            self.last_writer[r] = tag
        self._need_wait(ins)
        self._hazard(ins)
        if ins.kind == 'vm':
            self.vm_seq += 1
            ins.seq = self.vm_seq
            for r in ins.wr:
                self.vm_pending[r] = ins.seq
        elif ins.kind == 'lds':
            self.lg_seq += 1
            ins.seq = self.lg_seq
            for r in ins.wr:
                self.lg_pending[r] = ins.seq
        elif ins.kind == 'smem':
            for r in ins.wr:
                self.smem_pending.add(r)
            if not ins.wr:
                self.smem_pending.add(('s', 'anon'))
        self.stats[ins.kind] = self.stats.get(ins.kind, 0) + 1
        states = 1
        if ins.mn == 's_nop':
            states = int(ins.text.split()[1]) + 1
        self._out(ins.text, states, ins)
        return ins

    def __call__(self, text):
        return self.put(Ins(text))

    def many(self, text):
        r = None
        for ln in text.strip().split('\n'):
            ln = ln.split(';')[0].strip()
            if ln:
                r = self.put(Ins(ln))
        return r

    def settle(self, states=16):
        worst = 0
        for p, dist in self.hist:
            if p.kind == 'mfma':
                worst = max(worst, (12 if p.passes == 8 else 8) - dist)
            elif p.kind == 'valu':
                worst = max(worst, (5 if any(r[0] == 's' for r in p.wr) else 2) - dist)
            elif p.kind == 'vm' and p.wide_store:
                worst = max(worst, 2 - dist)
            elif p.kind == 'salu' and ('s', 'm0') in p.wr:
                worst = max(worst, 1 - dist)
        if worst > 0:
            self.nop(worst)

    def text(self):
        return '\n'.join(self.lines) + '\n'


def interleave(asm, main, fillers, per_gap):
    fi = 0
    for it in main:
        asm.put(it)
        if isinstance(it, Ins) and it.kind == 'mfma':
            k = 0
            while k < per_gap and fi < len(fillers):
                asm.put(fillers[fi])
                fi += 1
                k += 1
    while fi < len(fillers):
        asm.put(fillers[fi])
        fi += 1


class Stream:
    def __init__(self, groups, start=0, every=1, per=1, name=''):
        self.groups = [g if isinstance(g, list) else [g] for g in groups]
        self.start = start
        self.every = every
        self.per = per
        self.name = name
        self.i = 0

    def done(self):
        return self.i >= len(self.groups)


def group_cost(g):
    c = 0.0
    for x in g:
        if isinstance(x, Ins):
            c += {'valu': 1.0, 'lds': 1.0, 'vm': 1.0, 'mfma': 2.0}.get(x.kind, 0.25)
    return c


def weave(asm, main, streams, budget=3, flush=True):
    n = 0
    debt = 0
    for it in main:
        if callable(it):
            it()
            continue
        asm.put(it)
        if isinstance(it, Ins) and it.kind == 'mfma':
            left = budget - debt
            debt = 0
            for s in streams:
                if n < s.start or (n - s.start) % s.every:
                    continue
                k = 0
                while k < s.per and not s.done() and (left > 0 or group_cost(s.groups[s.i]) <= 0.5):
                    g = s.groups[s.i]
                    s.i += 1
                    asm.cur_tag = s
                    for x in g:
                        if callable(x):
                            x()
                        else:
                            asm.put(x)
                    asm.cur_tag = None
                    left -= group_cost(g)
                    k += 1
            if left < 0:
                debt = -left
            n += 1
    if flush:
        for s in streams:
            while not s.done():
                asm.cur_tag = s
                for x in s.groups[s.i]:
                    if callable(x):
                        x()
                    else:
                        asm.put(x)
                asm.cur_tag = None
                s.i += 1
```

```python
import sys, math, struct
from asmgen import Asm, Ins, WaitVM, WaitLG, Stream, weave

KNAME = 'gated_mix__ssm_conv_s5__dense_activation_relu__prompt_kernel'

EPOCH_OFF = 0
FLAG_OFF = 0x1000
WF_OFF = 0x4000
AGG_OFF = 0x10000
WT_OFF = 0x40000
H_OFF = 0x400000
STAMP_OFF = 0x1000000
WS_BYTES = 268435456
OOB = 0x40000000

SLOT = 20480
MISC = 7 * SLOT
XS = 4 * SLOT
L_GW = MISC + 4096
L_GATE = L_GW + 2048
L_WST = L_GATE + 512
L_SEG = L_WST + 8192
L_LB = L_WST
LDS_BYTES = 163840
assert L_SEG + 5120 <= LDS_BYTES and XS + 65536 <= L_GW

S_X, S_LRE, S_LIM, S_BRE, S_BIM, S_CRE, S_CIM, S_LDT = 4, 6, 8, 10, 12, 14, 16, 18
S_DSK, S_BX, S_W1, S_W2, S_GWP, S_OUT, S_DBG, S_WS = 20, 22, 24, 26, 28, 30, 32, 34
R_X, R_WS, R_BRE, R_BIM, R_W1, R_W2, R_GW = 36, 40, 44, 48, 52, 56, 60
R_CI = 60
R_OUT = 48
sTAG, sTAG2, sW, sR, sG, sA, sR2, sC2, sC16, sHALF, sCC, sRHO = 64, 65, 66, 67, 68, 69, 70, 71, 72, 73, 74, 75
S_MASK = 76
sKO = 76
sE = 3
sW10, sGWI, sHF, sHS = 99, 98, 22, 23
sFB, sXS = 28, 4


def srd(r):
    return 's[%d:%d]' % (r, r + 3)


def vr(b, n=1):
    return 'v%d' % b if n == 1 else 'v[%d:%d]' % (b, b + n - 1)


def ar(b, n=1):
    return 'a%d' % b if n == 1 else 'a[%d:%d]' % (b, b + n - 1)


def f2u(x):
    return struct.unpack('<I', struct.pack('<f', x))[0]


def magic(d):
    return (1 << 32) // d + 1


LOG2E = '0x%08x' % f2u(math.log2(math.e))
INV2PI = '0x%08x' % f2u(1.0 / (2 * math.pi))


class P2:
    VL16, VL16B = 14, 15
    KS = list(range(4, 20)) + list(range(52, 58))
    sWB, sHB, sWk, sHk = 24, 25, 26, 27

    def __init__(self, opts):
        self.o = opts
        top = 240 if opts.get('stamps') else 256
        self.early_quads = [('a', r) for r in range(160, top, 4)] + [('v', r) for r in range(192, 256, 4)]
        self.n_early = min(opts.get('nearly', 22), len(self.early_quads) // 5)
        self.wq = {}
        for k in range(self.n_early):
            for dt in range(5):
                self.wq[(k, dt)] = self.early_quads[5 * k + dt]
        self.n_early2 = opts.get('nearly2', 5)
        self.early2_quads = [('a', 4 * j) for j in range(5 * self.n_early2)]
        for k in range(self.n_early2):
            for dt in range(5):
                self.wq[(self.n_early + k, dt)] = self.early2_quads[5 * k + dt]

    @staticmethod
    def q(x):
        return (vr if x[0] == 'v' else ar)(x[1], 4)

    def tables(self, late=False):
        KS, o = self.KS, self.o
        L = []
        rot = 's_and_b32 s96, s%d, 3' % sC2 if o.get('rot2', 1) else 's_mov_b32 s96, 0'
        if not late:
            L += ['v_add_u32 %s, 4096, %s' % (vr(self.VL16B), vr(self.VL16)),
                  's_mul_i32 s%d, s%d, %d' % (self.sWB, sC2, 88 * 5120), 's_add_u32 s%d, s%d, 0x%x' % (self.sWB, self.sWB, WT_OFF),
                  's_mul_i32 s%d, s%d, %d' % (self.sHB, sR2, 88 * 4096), 's_add_u32 s%d, s%d, 0x%x' % (self.sHB, self.sHB, H_OFF),
                  rot, 's_lshl_b32 s96, s96, 1', 's_mul_i32 s95, s%d, 10' % sW, 's_add_u32 s95, s95, 48']
            gr = [[Ins(x)] for x in L]
            for i in range(10):
                gr.append([Ins('s_add_u32 s%d, s95, s96' % KS[i])])
                if i < 9:
                    gr.append([Ins('s_add_u32 s96, s96, 1')])
                    gr.append([Ins('s_cmp_ge_u32 s96, 10'), Ins('s_cselect_b32 s96, 0, s96')])
            gr += [[Ins(rot)], [Ins('s_mul_i32 s96, s96, 3')], [Ins('s_mul_i32 s95, s%d, 12' % sW)]]
            for i in range(6):
                gr.append([Ins('s_add_u32 s%d, s95, s96' % KS[10 + i])])
                gr.append([Ins('s_add_u32 s96, s96, 1')])
                gr.append([Ins('s_cmp_ge_u32 s96, 12'), Ins('s_cselect_b32 s96, 0, s96')])
            return gr
        gr = [[Ins('s_mul_i32 s95, s%d, 12' % sW)], [Ins('s_sub_u32 s96, s%d, s95' % KS[15])]]
        for i in range(6, 12):
            gr.append([Ins('s_add_u32 s96, s96, 1')])
            gr.append([Ins('s_cmp_ge_u32 s96, 12'), Ins('s_cselect_b32 s96, 0, s96')])
            gr.append([Ins('s_add_u32 s%d, s95, s96' % KS[10 + i])])
        return gr

    def w_loads(self, k, quads):
        gr = []
        for dt in range(5):
            hd = []
            if dt == 0:
                hd = [Ins('s_mul_i32 s%d, s%d, 5120' % (self.sWk, self.KS[k])), Ins('s_add_u32 s%d, s%d, s%d' % (self.sWk, self.sWk, self.sWB))]
            if dt < 4:
                ld = Ins('buffer_load_dwordx4 %s, %s, %s, s%d offen offset:%d sc1' % (self.q(quads[dt]), vr(self.VL16), srd(R_WS), self.sWk, dt * 1024))
            else:
                ld = Ins('buffer_load_dwordx4 %s, %s, %s, s%d offen sc1' % (self.q(quads[dt]), vr(self.VL16B), srd(R_WS), self.sWk))
            gr.append(hd + [ld])
        return gr

    def early2_w(self):
        gr = []
        for k in range(self.n_early, self.n_early + self.n_early2):
            gr += self.w_loads(k, [self.wq[(k, dt)] for dt in range(5)])
        return gr

    def early_w(self):
        gr = []
        for k in range(self.n_early):
            gr += self.w_loads(k, [self.wq[(k, dt)] for dt in range(5)])
        return gr


class Gen:
    def __init__(self, opts):
        self.o = opts
        self.a = Asm()
        self.p2 = P2(opts)

    def stamp(self, k, clock=False):
        if not self.o.get('stamps'):
            return
        det = self.o.get('detail', 0)
        if isinstance(k, tuple):
            if k[0] != det:
                return
            k = k[1]
        elif det and (5 <= k <= 11 or (det == 3 and k in (1, 2, 3))):
            return
        a = self.a
        a('%s s[100:101]' % ('s_memtime' if clock else 's_memrealtime'))
        a.waitcnt(lg=0)
        a('v_accvgpr_write_b32 a%d, s100' % (240 + k))

    def dump_stamps(self):
        if not self.o.get('stamps'):
            return
        a = self.a
        self.stamp(12)
        self.stamp(14, clock=True)
        a.drain()
        for k in range(16):
            a('v_accvgpr_read_b32 v%d, a%d' % (16 + k, 240 + k))
        a('s_lshl_b32 s90, s2, 2')
        a('s_add_u32 s90, s90, s%d' % sW)
        a('s_lshl_b32 s90, s90, 6')
        a('s_add_u32 s90, s90, 0x%x' % STAMP_OFF)
        a('v_mov_b32 v1, 0')
        for k in range(4):
            a('buffer_store_dwordx4 v[%d:%d], v1, %s, s90 offen offset:%d' % (16 + 4 * k, 19 + 4 * k, srd(R_WS), 16 * k))
        a.waitcnt(vm=0)

    def build_srd(self, r, ptr, nbytes):
        a = self.a
        a('s_mov_b32 s%d, s%d' % (r, ptr))
        a('s_and_b32 s%d, s%d, 0xffff' % (r + 1, ptr + 1))
        a('s_mov_b32 s%d, 0x%x' % (r + 2, nbytes))
        a('s_mov_b32 s%d, 0x20000' % (r + 3))

    def swap23(self, dst, src, tmp):
        a = self.a
        a('v_and_b32 %s, 19, %s' % (vr(dst), vr(src)))
        a('v_bfe_u32 %s, %s, 2, 1' % (vr(tmp), vr(src)))
        a('v_lshl_add_u32 %s, %s, 3, %s' % (vr(dst), vr(tmp), vr(dst)))
        a('v_bfe_u32 %s, %s, 3, 1' % (vr(tmp), vr(src)))
        a('v_lshl_add_u32 %s, %s, 2, %s' % (vr(dst), vr(tmp), vr(dst)))

    def lane_t(self, dst, src, tmp):
        a = self.a
        a('v_bfe_u32 %s, %s, 2, 1' % (vr(tmp), vr(src)))
        a('v_lshlrev_b32 %s, 4, %s' % (vr(tmp), vr(tmp)))
        a('v_and_b32 %s, 3, %s' % (vr(dst), vr(src)))
        a('v_add_u32 %s, %s, %s' % (vr(dst), vr(dst), vr(tmp)))
        a('v_lshrrev_b32 %s, 3, %s' % (vr(tmp), vr(src)))
        a('v_lshl_add_u32 %s, %s, 2, %s' % (vr(dst), vr(tmp), vr(dst)))

    XD, XR = 48, 52
    PO, GO0, GO1 = 56, 57, 58
    CD, CR = 60, 62

    def prologue(self):
        a, o = self.a, self.o
        a('s_cmp_ge_u32 s2, 256')
        a('s_cbranch_scc1 L_exit')
        self.stamp(0)
        self.stamp(13, clock=True)
        a('s_load_dwordx16 s[4:19], s[0:1], 0')
        a('s_load_dwordx16 s[20:35], s[0:1], 64')
        if o.get('codepf', 1):
            a('s_getpc_b64 s[92:93]')
            a.label('L_pc')
            a('s_lshr_b32 s90, s2, 3')
            a('s_lshl_b32 s90, s90, 2')
            a('v_lshrrev_b32 v1, 6, v0')
            a('v_add_u32 v1, s90, v1')
            a('v_mul_u32_u24 v1, 3, v1')
            a('v_and_b32 v2, 63, v0')
            a('v_min_u32 v2, 2, v2')
            a('v_add_u32 v1, v1, v2')
            a('v_lshlrev_b32 v1, 7, v1')
            a.raw('    v_min_u32 v1, L_exit-L_pc, v1')
            a('global_load_dword v47, v1, s[92:93]')
        a.many("""
            s_and_b32 s90, s2, 7
            s_lshr_b32 s91, s2, 3
            s_lshr_b32 s92, s90, 1
            s_and_b32 s%(half)d, s90, 1
            s_lshl_b32 s93, s92, 2
            s_lshr_b32 s94, s91, 3
            s_add_u32 s%(r)d, s93, s94
            s_and_b32 s%(cc)d, s91, 7
            s_lshl_b32 s93, s%(half)d, 3
            s_add_u32 s%(c16)d, s93, s%(cc)d
            s_lshl_b32 s93, s92, 3
            s_lshr_b32 s94, s91, 2
            s_add_u32 s%(r2)d, s93, s94
            s_lshl_b32 s93, s%(half)d, 2
            s_and_b32 s94, s91, 3
            s_add_u32 s%(c2)d, s93, s94
        """ % dict(half=sHALF, r=sR, cc=sCC, c16=sC16, r2=sR2, c2=sC2))
        a('v_lshrrev_b32 v1, 6, v0')
        a('v_and_b32 v0, 63, v0')
        a('v_readfirstlane_b32 s%d, v1' % sW)
        a.many("""
            s_mul_i32 s93, s%(half)d, 6
            s_add_u32 s%(A)d, s93, s%(cc)d
            s_lshl_b32 s93, s%(half)d, 1
            s_add_u32 s93, s93, s%(cc)d
            s_sub_u32 s93, s93, 6
            s_lshl_b32 s93, s93, 1
            s_add_u32 s93, s93, 12
            s_cmp_lt_u32 s%(cc)d, 6
            s_cselect_b32 s%(G)d, s%(A)d, s93
        """ % dict(half=sHALF, A=sA, cc=sCC, G=sG))
        a('s_and_b32 s90, s%d, 3' % sR)
        a('s_lshl_b32 s90, s90, 1')
        a('s_add_u32 s90, s90, s%d' % sCC)
        a('s_cmp_ge_u32 s90, 10')
        a('s_cselect_b32 s91, 10, 0')
        a('s_sub_u32 s%d, s90, s91' % sRHO)
        if not o.get('rot', 1):
            a('s_mov_b32 s%d, 0' % sRHO)
        a('s_lshl_b32 s%d, s%d, 7' % (sKO, sRHO))
        for k in range(1, 10):
            a('s_add_u32 s%d, s%d, 128' % (sKO + k, sKO + k - 1))
            a('s_cmp_ge_u32 s%d, 1280' % (sKO + k))
            a('s_cselect_b32 s%d, 0, s%d' % (sKO + k, sKO + k))
        a('s_lshl_b32 s%d, s%d, 10' % (sW10, sW))
        XD, CD = self.XD, self.CD
        a('v_lshrrev_b32 v64, 3, v0')
        a('v_and_b32 v65, 7, v0')
        a('v_lshrrev_b32 v66, 1, v64')
        a('v_xor_b32 v66, v66, v65')
        a('v_mul_u32_u24 v67, 1280, v64')
        a('v_lshl_add_u32 %s, v66, 4, v67' % vr(CD))
        a('v_xor_b32 %s, 64, %s' % (vr(CD + 1), vr(CD)))
        a('v_add_u32 %s, 10240, %s' % (vr(CD + 1), vr(CD + 1)))
        a('s_lshl_b32 s90, s%d, 2' % sR)
        a('s_add_u32 s90, s90, s%d' % sW)
        a('s_mul_i32 s90, s90, 40960')
        a('v_add_u32 %s, s90, %s' % (vr(XD), vr(CD)))
        a('v_add_u32 %s, s90, %s' % (vr(XD + 1), vr(CD + 1)))
        a('v_add_u32 %s, 20480, %s' % (vr(XD + 2), vr(XD)))
        a('v_add_u32 %s, 20480, %s' % (vr(XD + 3), vr(XD + 1)))
        a('s_lshl_b32 s90, s%d, 3' % sW)
        a('v_add_u32 v66, s90, v64')
        self.swap23(67, 66, 68)
        a('v_mul_u32_u24 v67, 1280, v67')
        a('v_bfe_u32 v68, v66, 1, 3')
        a('v_xor_b32 v68, v68, v65')
        a('v_lshl_add_u32 v3, v68, 4, v67')
        a('s_mul_i32 s90, s%d, 40960' % sG)
        a('v_add_u32 v3, s90, v3')
        a('v_and_b32 v66, 31, v0')
        self.swap23(67, 66, 68)
        a('v_lshlrev_b32 %s, 1, v67' % vr(self.PO))
        g0, g1 = self.GO0, self.GO1
        a('s_lshl_b32 s90, s%d, 3' % sRHO)
        a('v_add_u32 %s, s90, v0' % vr(g0))
        a('v_subrev_u32 v66, 80, %s' % vr(g0))
        a('v_cmp_le_u32 vcc, 80, %s' % vr(g0))
        a('v_cndmask_b32 %s, %s, v66, vcc' % (vr(g0), vr(g0)))
        a('v_add_u32 %s, 64, %s' % (vr(g1), vr(g0)))
        a('v_subrev_u32 v66, 80, %s' % vr(g1))
        a('v_cmp_le_u32 vcc, 80, %s' % vr(g1))
        a('v_cndmask_b32 %s, %s, v66, vcc' % (vr(g1), vr(g1)))
        a('v_lshlrev_b32 %s, 4, %s' % (vr(g0), vr(g0)))
        a('v_lshlrev_b32 %s, 4, %s' % (vr(g1), vr(g1)))
        a('v_cmp_gt_u32 vcc, 16, v0')
        a('v_cndmask_b32 %s, 0x%x, %s, vcc' % (vr(g1), OOB, vr(g1)))
        a.waitcnt(lg=0)
        self.stamp(1)
        a('s_load_dword s%d, s[%d:%d], 0x%x' % (sE, S_WS, S_WS + 1, EPOCH_OFF))
        self.build_srd(R_X, S_X, 2621440)
        self.build_srd(R_BRE, S_BRE, 819200)
        self.build_srd(R_GW, S_GWP, 1280)
        a('s_lshl_b32 s%d, s%d, 14' % (sXS, sW))
        a('s_add_u32 s%d, s%d, %d' % (sXS, sXS, XS))

    def phase1(self, typ):
        a, o = self.a, self.o
        A = typ == 'A'
        HST = {0: 'sc1', 1: 'sc0 sc1', 2: 'sc1 nt', 3: 'sc0 sc1 nt'}[o.get('hst', 0)]
        XD, XR, CD, CR = self.XD, self.XR, self.CD, self.CR
        V = {'WS': 3}
        nxt = [4]

        def al(name, n=1):
            V[name] = nxt[0]
            nxt[0] += n
        for nm in ('WF', 'ST', 'AG', 'LB0', 'LB1', 'SEGW', 'SEGR', 'GW', 'G', 'OMG', 'W2D', 'W2R'):
            al(nm)
        al('RS', 4)
        if A:
            al('RF', 6)
        else:
            al('WS2')
        ngrp = 1 if A else 2
        for g in range(ngrp):
            for nm in ('lr', 'li', 'nli', 'l16r', 'l16i', 'lsr', 'lsi', 'p1r', 'p1i', 'p2r', 'p2i', 'cr', 'ci'):
                al('%s%d' % (nm, g))
        assert nxt[0] <= 47, nxt[0]
        RING = 96
        RING_ADDR = 92
        PT = 80
        ACC = [128, 160]
        GACC = 160
        FA = [160, 176]
        A_GW = 160

        def XF(s):
            return ar(4 * s, 4)

        def put_all(items):
            for it in items:
                if isinstance(it, list):
                    put_all(it)
                elif callable(it):
                    it()
                else:
                    a.put(it)

        def ssm_dma(g, stage, slot):
            R = R_BRE if stage % 2 == 0 else R_BIM
            kh = stage // 2
            ws_ = V['WS'] if g == 0 else V['WS2']
            grp = []
            last = None
            for kb in range(5):
                last = Ins('buffer_load_dwordx4 %s, %s, s%d offen lds' % (vr(ws_), srd(R), sKO + 5 * kh + kb))
                grp.append([Ins('s_add_u32 m0, s%d, %d' % (sW10, slot * SLOT + kb * 4096)), Ins('s_nop 0'), last])
            return grp, last

        s_dma = {}

        def s_load(g, m, kap):
            kh, kb = kap // 5, kap % 5
            slot = slot_of[4 * g + 2 * kh + m]
            ws_ = V['WS'] if g == 0 else V['WS2']
            ld = Ins('buffer_load_dwordx4 %s, %s, s%d offen lds' % (vr(ws_), srd(R_BIM if m else R_BRE), sKO + kap))
            s_dma[(g, m, kap)] = ld
            return [Ins('s_add_u32 m0, s%d, %d' % (sW10, slot * SLOT + kb * 4096)), Ins('s_nop 0'), ld]

        def ffn_dma(fst, slot):
            blk, st = fst >> 2, fst & 3
            grp = []
            last = None
            for i2 in range(5):
                c = (160 * st + 32 * i2) * 3072 + 128 * blk
                last = Ins('buffer_load_dwordx4 %s, %s, %s offen lds' % (vr(V['WF']), srd(R_W1), '0' if o.get('fakeF') else 's92'))
                grp.append([Ins('s_add_u32 s92, s%d, %d' % (sFB, c)),
                            Ins('s_cmp_ge_u32 s92, %d' % (640 * 3072)),
                            Ins('s_cselect_b32 s93, %d, 0' % (640 * 3072)),
                            Ins('s_add_u32 m0, s%d, %d' % (sW10, slot * SLOT + i2 * 4096)),
                            Ins('s_sub_u32 s92, s92, s93'),
                            last])
            return grp, last

        x_dma_last, x_rd_last = {}, {}

        def xdma(kap):
            grp = []
            for g in range(4):
                ld = Ins('buffer_load_dwordx4 %s, %s, %s offen lds' % (vr(XD + g), srd(R_X), '0' if (o.get('fakeX') and kap >= 4) else 's%d' % (sKO + kap)))
                grp.append([Ins('s_add_u32 m0, s%d, %d' % (sXS, (kap % 4) * 4096 + g * 1024)), Ins('s_nop 0'), ld])
                x_dma_last[kap] = ld
            return grp

        def xread(kap):
            grp = []
            for j in range(4):
                rd = Ins('ds_read_b128 %s, %s offset:%d' % (XF(4 * kap + j), vr(XR + j), (kap % 4) * 4096))
                grp.append(([WaitVM(x_dma_last[kap])] if j == 0 else []) + [rd])
                x_rd_last[kap] = rd
            return grp

        def xrefill(kap):
            g = xdma(kap)
            g[0] = [WaitLG(x_rd_last[kap - 4])] + g[0]
            return g

        if A:
            seq = [('S', 0, i) for i in range(4)] + [('F', 0, i) for i in range(8)]
            slot_of = [0, 1, 2, 3, 0, 1, 4, 5, 6, 2, 3, 0]
        else:
            seq = [('S', 0, i) for i in range(4)] + [('S', 1, i) for i in range(4)]
            slot_of = [0, 1, 2, 3, 0, 1, 4, 5]
        dma_last = [None] * len(seq)

        def stage_loads(i):
            kind, g, st = seq[i]
            grp, last = ssm_dma(g, st, slot_of[i]) if kind == 'S' else ffn_dma(st, slot_of[i])
            dma_last[i] = last
            return grp

        if not A:
            a('v_add_u32 %s, 40960, %s' % (vr(V['WS2']), vr(V['WS'])))
        self.build_srd(R_BIM, S_BIM, 819200)
        put_all(xdma(0))
        put_all([s_load(0, 0, 0), s_load(0, 1, 0)])
        put_all(xdma(1))
        put_all([s_load(0, 0, 1), s_load(0, 1, 1)])
        for g in range(ngrp):
            a('s_add_u32 s90, s%d, %d' % (sG, g))
            a('s_lshl_b32 s90, s90, 6')
            a('v_add_u32 v59, s90, %s' % vr(self.PO))
            a('global_load_ushort %s, v59, s[%d:%d]' % (vr(V['lr%d' % g]), S_LRE, S_LRE + 1))
            a('global_load_ushort %s, v59, s[%d:%d]' % (vr(V['li%d' % g]), S_LIM, S_LIM + 1))
            a('global_load_ushort %s, v59, s[%d:%d]' % (vr(V['cr%d' % g]), S_LDT, S_LDT + 1))
        a('s_mov_b32 m0, %d' % L_GW)
        a('s_nop 0')
        a('buffer_load_dwordx4 %s, %s, 0 offen lds' % (vr(self.GO0), srd(R_GW)))
        a('s_mov_b32 m0, %d' % (L_GW + 1024))
        a('s_nop 0')
        gw_dma = a('buffer_load_dwordx4 %s, %s, 0 offen lds' % (vr(self.GO1), srd(R_GW)))

        self.stamp(2)

        def G(lines):
            return [[Ins(x)] for x in lines]

        U0, U1, U2, U3, U4 = PT, PT + 1, PT + 2, PT + 3, PT + 4
        a('v_and_b32 %s, 31, v0' % vr(U0))
        a('v_lshrrev_b32 %s, 5, v0' % vr(U1))
        self.lane_t(U2, U0, U3)
        a('v_bfe_u32 %s, %s, 1, 3' % (vr(U3), vr(U2)))
        a('v_lshlrev_b32 %s, 1, %s' % (vr(U4), vr(U1)))
        a('v_xor_b32 %s, %s, %s' % (vr(U3), vr(U3), vr(U4)))
        a('v_lshlrev_b32 %s, 7, %s' % (vr(U2), vr(U2)))
        a('v_add_u32 %s, s%d, %s' % (vr(U2), sXS, vr(U2)))
        for u in range(2):
            for ab in range(2):
                d = XR + 2 * u + ab
                a('v_xor_b32 %s, %d, %s' % (vr(d), 4 * u + ab, vr(U3)))
                a('v_lshl_add_u32 %s, %s, 4, %s' % (vr(d), vr(d), vr(U2)))
        a('v_lshlrev_b32 %s, 5, %s' % (vr(V['GW']), vr(U1)))
        a('v_add_u32 %s, %d, %s' % (vr(V['GW']), L_GW, vr(V['GW'])))
        a('v_bfe_u32 %s, %s, 1, 3' % (vr(U2), vr(U0)))
        a('v_xor_b32 %s, %s, %s' % (vr(U2), vr(U2), vr(U4)))
        a('v_lshlrev_b32 %s, 7, %s' % (vr(U3), vr(U0)))
        for u in range(2):
            for ab in range(2):
                d = V['RS'] + 2 * u + ab
                a('v_xor_b32 %s, %d, %s' % (vr(d), 4 * u + ab, vr(U2)))
                a('v_lshl_add_u32 %s, %s, 4, %s' % (vr(d), vr(d), vr(U3)))

        def gate_reads(half):
            return G(['ds_read_b128 %s, %s offset:%d' % (ar(A_GW + 4 * k, 4), vr(V['GW']), 64 * ((20 * half + k) >> 1) + 16 * (k & 1)) for k in range(20)])
        def late_scalars():
            L = []
            for r, ptr, nb in ((R_WS, S_WS, WS_BYTES), (R_W1, S_W1, 1966080), (R_W2, S_W2, 1966080)):
                L += ['s_mov_b32 s%d, s%d' % (r, ptr), 's_and_b32 s%d, s%d, 0xffff' % (r + 1, ptr + 1),
                      's_mov_b32 s%d, 0x%x' % (r + 2, nb), 's_mov_b32 s%d, 0x20000' % (r + 3)]
            L += ['s_lshl_b32 s90, s%d, 3' % sRHO, 's_add_u32 s90, s90, s%d' % sW, 's_mul_i32 s90, s90, 24576',
                  's_lshl_b32 s91, s%d, 8' % sA, 's_add_u32 s%d, s90, s91' % sFB]
            if A:
                t0, t1, t2 = PT, PT + 1, PT + 2
                L += ['v_lshrrev_b32 %s, 3, v0' % vr(t0),
                      'v_mul_u32_u24 %s, 3072, %s' % (vr(t1), vr(t0)),
                      'v_bfe_u32 %s, %s, 1, 1' % (vr(t0), vr(t0)),
                      'v_lshlrev_b32 %s, 2, %s' % (vr(t0), vr(t0)),
                      'v_and_b32 %s, 7, v0' % vr(t2),
                      'v_xor_b32 %s, %s, %s' % (vr(t0), vr(t0), vr(t2)),
                      'v_lshl_add_u32 %s, %s, 4, %s' % (vr(V['WF']), vr(t0), vr(t1))]
            return G(L)

        w2_dma = []
        c_dma = []

        def w2_setup():
            T0, T1 = PT + 3, PT + 4
            L = ['v_lshrrev_b32 %s, 1, v0' % vr(T0),
                 'v_mul_u32_u24 %s, 1280, %s' % (vr(T0), vr(T0)),
                 'v_and_b32 %s, 1, v0' % vr(T1),
                 'v_lshl_add_u32 %s, %s, 4, %s' % (vr(T0), vr(T1), vr(T0)),
                 's_lshl_b32 s90, s2, 2',
                 's_add_u32 s%d, s90, s%d' % (sGWI, sW),
                 's_cmp_lt_u32 s%d, 960' % sGWI]
            gr = G(L[:-1]) + [[Ins(L[-1]), Ins('s_cselect_b32 s91, 0, 0x%x' % OOB)]]
            gr += G(['v_add_u32 %s, s91, %s' % (vr(T0), vr(T0)),
                     'v_lshlrev_b32 %s, 4, v0' % vr(V['W2D']),
                     'v_add_u32 v1, s91, %s' % vr(V['W2D']),
                     's_min_u32 s91, s%d, 959' % sGWI,
                     's_lshl_b32 s91, s91, 1',
                     's_mul_hi_u32 s90, s91, 0x%x' % magic(240),
                     's_mul_i32 s94, s90, 240',
                     's_sub_u32 s91, s91, s94',
                     's_mul_i32 s94, s90, 440',
                     's_add_u32 s94, s94, s91',
                     's_lshl_b32 s94, s94, 10',
                     's_add_u32 s26, s94, 0x%x' % WT_OFF])
            for e in range(2):
                L = []
                if e:
                    L.append('s_add_u32 s91, s91, 1')
                L += ['s_mul_hi_u32 s94, s91, 0x%x' % magic(5),
                      's_mul_i32 s95, s94, 5',
                      's_sub_u32 s95, s91, s95',
                      's_mul_i32 s94, s94, 40960',
                      's_mul_i32 s96, s90, 160',
                      's_add_u32 s94, s94, s96',
                      's_lshl_b32 s95, s95, 5',
                      's_add_u32 s%d, s94, s95' % (27, 29)[e]]
                gr += G(L)
                ld = Ins('buffer_load_dwordx4 %s, %s, s%d offen lds' % (vr(T0), srd(R_W2), (27, 29)[e]))
                gr.append([Ins('s_add_u32 m0, s%d, %d' % (sW10, 2 * SLOT + 12288 + 4096 * e)), Ins('s_nop 0'), ld])
                w2_dma.append(ld)
            return gr

        _w2 = w2_setup()
        w2_setup_b = [g for g in _w2 if any(x.kind == 'vm' for x in g)]
        w2_setup_a = [g for g in _w2 if not any(x.kind == 'vm' for x in g)]
        assert len(w2_setup_b) == 2

        def c_setup():
            gr = [[Ins('s_cmp_lt_u32 s%d, 800' % sGWI), Ins('s_cselect_b32 s91, 0, 0x%x' % OOB)]]
            gr += G(['v_add_u32 %s, s91, %s' % (vr(CD), vr(CD)),
                     'v_add_u32 %s, s91, %s' % (vr(CD + 1), vr(CD + 1)),
                     'v_add_u32 v2, s91, %s' % vr(V['W2D']),
                     's_min_u32 s91, s%d, 799' % sGWI])
            gr.append([Ins('s_cmp_ge_u32 s91, 400'), Ins('s_cselect_b32 s90, 1, 0'),
                       Ins('s_cselect_b32 s%d, s%d, s%d' % (R_CI, S_CIM, S_CRE)),
                       Ins('s_cselect_b32 s%d, s%d, s%d' % (R_CI + 1, S_CIM + 1, S_CRE + 1))])
            gr += G(['s_and_b32 s%d, s%d, 0xffff' % (R_CI + 1, R_CI + 1),
                     's_mov_b32 s%d, 819200' % (R_CI + 2),
                     's_mov_b32 s%d, 0x20000' % (R_CI + 3),
                     's_mul_i32 s94, s90, 400',
                     's_sub_u32 s91, s91, s94',
                     's_mul_hi_u32 s94, s91, 0x%x' % magic(50),
                     's_mul_i32 s95, s94, 50',
                     's_sub_u32 s91, s91, s95',
                     's_mul_hi_u32 s95, s91, 0x%x' % magic(5),
                     's_mul_i32 s96, s95, 5',
                     's_sub_u32 s96, s91, s96',
                     's_mul_i32 s97, s94, 80',
                     's_lshl_b32 s91, s96, 4',
                     's_add_u32 s97, s97, s91',
                     's_mul_i32 s97, s97, 1280',
                     's_lshl_b32 s91, s95, 7',
                     's_add_u32 s24, s97, s91',
                     's_mul_i32 s90, s90, 20',
                     's_lshl_b32 s95, s95, 1',
                     's_add_u32 s90, s90, s95',
                     's_add_u32 s90, s90, 48',
                     's_mul_i32 s94, s94, 88',
                     's_add_u32 s90, s90, s94',
                     's_mul_i32 s90, s90, 5',
                     's_add_u32 s90, s90, s96',
                     's_lshl_b32 s90, s90, 10',
                     's_add_u32 s25, s90, 0x%x' % WT_OFF])
            return gr

        def item_addrs():
            U2, U3, U4 = PT + 5, PT + 6, PT + 7
            return G(['v_lshrrev_b32 %s, 5, v0' % vr(U2),
                      'v_lshlrev_b32 %s, 4, %s' % (vr(U2), vr(U2)),
                      'v_bfe_u32 %s, v0, 4, 1' % vr(U3),
                      'v_lshl_add_u32 %s, %s, 2, %s' % (vr(U2), vr(U3), vr(U2)),
                      'v_bfe_u32 %s, v0, 2, 2' % vr(U3),
                      'v_add_u32 %s, %s, %s' % (vr(U2), vr(U2), vr(U3)),
                      'v_lshlrev_b32 %s, 5, %s' % (vr(U2), vr(U2)),
                      'v_and_b32 %s, 3, v0' % vr(U3),
                      'v_lshl_add_u32 %s, %s, 3, %s' % (vr(U2), vr(U3), vr(U2)),
                      's_add_u32 s97, s%d, %d' % (sW10, 2 * SLOT + 12288),
                      'v_add_u32 %s, s97, %s' % (vr(V['W2R']), vr(U2)),
                      's_add_u32 s97, s%d, %d' % (sW10, 3 * SLOT + 12288),
                      'v_and_b32 %s, 15, v0' % vr(U2),
                      'v_lshrrev_b32 %s, 4, v0' % vr(U3),
                      'v_lshrrev_b32 %s, 1, %s' % (vr(U4), vr(U2)),
                      'v_xor_b32 %s, %s, %s' % (vr(U3), vr(U3), vr(U4)),
                      'v_lshlrev_b32 %s, 4, %s' % (vr(U3), vr(U3)),
                      'v_xor_b32 %s, 64, %s' % (vr(U4), vr(U3)),
                      'v_and_b32 %s, 7, %s' % (vr(PT + 9), vr(U2)),
                      'v_lshrrev_b32 %s, 3, %s' % (vr(U2), vr(U2)),
                      'v_lshlrev_b32 %s, 12, %s' % (vr(U2), vr(U2)),
                      'v_lshl_add_u32 %s, %s, 7, %s' % (vr(U2), vr(PT + 9), vr(U2)),
                      'v_add_u32 %s, s97, %s' % (vr(U2), vr(U2)),
                      'v_add_u32 %s, %s, %s' % (vr(CR), vr(U3), vr(U2)),
                      'v_add_u32 %s, %s, %s' % (vr(CR + 1), vr(U4), vr(U2))])

        def lane_consts():
            U0, U1, U2, U3 = PT, PT + 1, PT + 2, PT + 3
            SEGV, E0, E1 = PT + 8, PT + 9, PT + 10
            L = ['v_and_b32 %s, 31, v0' % vr(U0),
                 'v_lshrrev_b32 %s, 5, v0' % vr(U1),
                 'v_lshrrev_b32 %s, 4, %s' % (vr(U2), vr(U0)),
                 'v_lshlrev_b32 %s, 10, %s' % (vr(U2), vr(U2)),
                 'v_and_b32 %s, 15, %s' % (vr(U3), vr(U0)),
                 'v_lshl_add_u32 %s, %s, 4, %s' % (vr(U3), vr(U1), vr(U3)),
                 'v_lshl_add_u32 %s, %s, 4, %s' % (vr(V['ST']), vr(U3), vr(U2)),
                 'v_lshlrev_b32 %s, 4, %s' % (vr(V['AG']), vr(U0)),
                 'v_mul_u32_u24 %s, 80, %s' % (vr(V['SEGR']), vr(U0)),
                 'v_add_u32 %s, %d, %s' % (vr(V['SEGR']), MISC, vr(V['SEGR'])),
                 's_lshl_b32 s95, s%d, 1' % sW,
                 'v_add_u32 %s, s95, %s' % (vr(SEGV), vr(U1)),
                 'v_lshl_add_u32 %s, %s, 3, %s' % (vr(V['SEGW']), vr(SEGV), vr(V['SEGR']))]
            gr = G(L)
            for i2, E in ((0, E0), (1, E1)):
                gr += G(['v_add_u32 %s, %d, %s' % (vr(U3), 8 * i2, vr(SEGV)),
                         'v_sub_u32 %s, s%d, %s' % (vr(E), sR, vr(U3)),
                         'v_add_u32 %s, -1, %s' % (vr(E), vr(E))])
                gr.append([Ins('v_cmp_gt_u32 vcc, s%d, %s' % (sR, vr(U3))),
                           Ins('v_cndmask_b32 %s, -1, %s, vcc' % (vr(E), vr(E))),
                           Ins('v_cndmask_b32 %s, 0, %s, vcc' % (vr(U3), vr(U3)))])
                gr += G(['v_lshl_add_u32 %s, %s, 9, %s' % (vr(V['LB%d' % i2]), vr(U3), vr(V['AG']))])
            if A:
                jl, mh, tq = PT + 4, PT + 5, PT + 6
                L = ['v_and_b32 %s, 15, v0' % vr(jl),
                     'v_bfe_u32 %s, v0, 4, 1' % vr(mh),
                     'v_lshrrev_b32 %s, 2, %s' % (vr(U2), vr(jl)),
                     'v_lshl_add_u32 %s, %s, 4, %s' % (vr(U2), vr(U1), vr(U2)),
                     'v_lshlrev_b32 %s, 7, %s' % (vr(U2), vr(U2)),
                     'v_and_b32 %s, 1, %s' % (vr(U3), vr(jl)),
                     'v_lshl_add_u32 %s, %s, 3, %s' % (vr(U2), vr(U3), vr(U2)),
                     'v_bfe_u32 %s, %s, 1, 1' % (vr(U3), vr(jl)),
                     'v_lshl_add_u32 %s, %s, 1, %s' % (vr(U3), vr(mh), vr(U3)),
                     'v_bfe_u32 %s, %s, 3, 1' % (vr(tq), vr(jl)),
                     'v_lshlrev_b32 %s, 2, %s' % (vr(tq), vr(tq)),
                     'v_xor_b32 %s, %s, %s' % (vr(U3), vr(U3), vr(tq))]
                for tp in range(2):
                    d = V['RF'] + tp
                    L += ['v_xor_b32 %s, %d, %s' % (vr(d), 4 * tp, vr(U3)),
                          'v_lshl_add_u32 %s, %s, 4, %s' % (vr(d), vr(d), vr(U2)),
                          'v_add_u32 %s, %d, %s' % (vr(d + 2), 3 * SLOT, vr(d)),
                          'v_add_u32 %s, %d, %s' % (vr(d + 4), 6 * SLOT, vr(d))]
                gr += G(L)
            gr += G(['s_lshr_b32 s90, s%d, 1' % sW, 's_lshl_b32 s91, s%d, 1' % sR, 's_add_u32 s90, s90, s91',
                     's_mul_i32 s90, s90, %d' % (88 * 4096), 's_and_b32 s91, s%d, 1' % sW, 's_lshl_b32 s91, s91, 11',
                     's_add_u32 s90, s90, s91', 's_add_u32 s90, s90, 0x%x' % H_OFF, 's_lshl_b32 s91, s%d, 14' % sA,
                     's_add_u32 s%d, s90, s91' % sHF, 's_lshl_b32 s91, s%d, 12' % sG, 's_add_u32 s%d, s90, s91' % sHS,
                     's_add_u32 s%d, s%d, 1' % (sTAG, sE), 's_xor_b32 s%d, s%d, 0x5bd1e995' % (sTAG2, sTAG)])
            return gr

        def params(g):
            SEGV, E = PT + 8, (PT + 9, PT + 10)
            P0, P1, P2, P3, P4, P5, FM = PT, PT + 1, PT + 2, PT + 3, PT + 4, PT + 5, PT + 6
            lr, li, nli, cr, ci = (V[x + str(g)] for x in ('lr', 'li', 'nli', 'cr', 'ci'))

            def cpow(dr, di, m_reg, m_const):
                if m_reg is not None:
                    L = ['v_mul_f32 %s, %s, %s' % (vr(P2), vr(m_reg), vr(P3)), 'v_mul_f32 %s, %s, %s' % (vr(P5), vr(m_reg), vr(P4))]
                else:
                    L = ['v_mul_f32 %s, 0x%08x, %s' % (vr(P2), f2u(float(m_const)), vr(P3)),
                         'v_mul_f32 %s, 0x%08x, %s' % (vr(P5), f2u(float(m_const)), vr(P4))]
                return L + ['v_exp_f32 %s, %s' % (vr(P2), vr(P2)), 'v_fract_f32 %s, %s' % (vr(P5), vr(P5)),
                            'v_cos_f32 %s, %s' % (vr(dr), vr(P5)), 'v_sin_f32 %s, %s' % (vr(di), vr(P5)),
                            'v_mul_f32 %s, %s, %s' % (vr(dr), vr(P2), vr(dr)), 'v_mul_f32 %s, %s, %s' % (vr(di), vr(P2), vr(di))]
            L = ['v_lshlrev_b32 %s, 16, %s' % (vr(P0), vr(lr)),
                 'v_lshlrev_b32 %s, 16, %s' % (vr(P1), vr(li)),
                 'v_lshlrev_b32 %s, 16, %s' % (vr(P2), vr(cr)),
                 'v_mul_f32 %s, %s, %s' % (vr(P2), LOG2E, vr(P2)),
                 'v_exp_f32 %s, %s' % (vr(P2), vr(P2)),
                 'v_cvt_pk_bf16_f32 %s, %s, %s' % (vr(P2), vr(P2), vr(P2)),
                 'v_lshlrev_b32 %s, 16, %s' % (vr(P2), vr(P2)),
                 'v_mul_f32 %s, %s, %s' % (vr(P3), vr(P2), vr(P0)),
                 'v_mul_f32 %s, %s, %s' % (vr(P4), vr(P2), vr(P1)),
                 'v_mul_f32 %s, %s, %s' % (vr(P3), LOG2E, vr(P3)),
                 'v_mul_f32 %s, %s, %s' % (vr(P4), INV2PI, vr(P4))]
            L += cpow(lr, li, None, 1)
            L += ['v_sub_f32 %s, 0, %s' % (vr(nli), vr(li))]
            L += cpow(V['l16r%d' % g], V['l16i%d' % g], None, 16)
            L += ['v_cvt_f32_u32 %s, %s' % (vr(FM), vr(SEGV)), 'v_mul_f32 %s, 0x41800000, %s' % (vr(FM), vr(FM))]
            L += cpow(V['lsr%d' % g], V['lsi%d' % g], FM, None)
            gr = G(L)
            for k in range(2):
                pr, pi = V['p%dr%d' % (k + 1, g)], V['p%di%d' % (k + 1, g)]
                gr += G(['v_cvt_f32_i32 %s, %s' % (vr(FM), vr(E[k])), 'v_mul_f32 %s, 0x43000000, %s' % (vr(FM), vr(FM))] + cpow(pr, pi, FM, None))
                gr.append([Ins('v_cmp_le_i32 vcc, 0, %s' % vr(E[k])),
                           Ins('v_cndmask_b32 %s, 0, %s, vcc' % (vr(pr), vr(pr))),
                           Ins('v_cndmask_b32 %s, 0, %s, vcc' % (vr(pi), vr(pi)))])
            gr += G(['v_add_f32 %s, -1.0, %s' % (vr(P2), vr(lr)),
                     'v_mul_f32 %s, %s, %s' % (vr(P3), vr(P0), vr(P0)),
                     'v_fmac_f32 %s, %s, %s' % (vr(P3), vr(P1), vr(P1)),
                     'v_rcp_f32 %s, %s' % (vr(P3), vr(P3)),
                     'v_mul_f32 %s, %s, %s' % (vr(P4), vr(P2), vr(P0)),
                     'v_fmac_f32 %s, %s, %s' % (vr(P4), vr(li), vr(P1)),
                     'v_mul_f32 %s, %s, %s' % (vr(P5), vr(li), vr(P0)),
                     'v_fma_f32 %s, -%s, %s, %s' % (vr(P5), vr(P2), vr(P1), vr(P5)),
                     'v_add_f32 %s, %s, %s' % (vr(P3), vr(P3), vr(P3)),
                     'v_mul_f32 %s, %s, %s' % (vr(cr), vr(P4), vr(P3)),
                     'v_mul_f32 %s, %s, %s' % (vr(ci), vr(P5), vr(P3))])
            return gr

        def ssm_ops(i):
            kind, g, st = seq[i]
            slot = slot_of[i]
            acc = ACC[g] + (16 if st % 2 else 0)
            kh = st // 2
            gate = (g == 0 and st % 2 == 0)
            base = slot * SLOT
            rsb = V['RS']
            pre = []
            if base + SLOT > 65536:
                rsb = RING_ADDR
                pre = [Ins('v_add_u32 %s, %d, %s' % (vr(RING_ADDR + k), base, vr(V['RS'] + k))) for k in range(4)]
                base = 0
            ops = []
            for sp in range(20):
                bp, ab = sp >> 1, sp & 1
                kb, u = bp >> 1, bp & 1
                s = 20 * kh + sp
                q = RING + 4 * (sp % 4)
                rd = Ins('ds_read_b128 %s, %s offset:%d' % (vr(q, 4), vr(rsb + 2 * u + ab), base + kb * 4096))
                first = (kh == 0 and sp == 0)
                m = Ins('v_mfma_f32_32x32x16_bf16 %s, %s, %s, %s' % (vr(acc, 16), XF(s), vr(q, 4), '0' if first else vr(acc, 16)))
                gm = None
                if gate:
                    gm = Ins('v_mfma_f32_32x32x16_bf16 %s, %s, %s, %s' % (vr(GACC, 16), ar(A_GW + 4 * sp, 4), XF(s), '0' if s == 0 else vr(GACC, 16)))
                ops.append((rd, m, gm))
            return pre, ops

        def ssm_stage(i, hooks=None):
            pre, ops = ssm_ops(i)
            out = list(pre)
            dist = 3
            for sp in range(dist):
                out.append(ops[sp][0])
            for sp in range(20):
                rd, m, gm = ops[sp]
                out.append(m)
                if sp + dist < 20:
                    out.append(ops[sp + dist][0])
                if hooks and sp in hooks:
                    for grp in hooks[sp]:
                        out += grp
                if gm is not None:
                    out.append(gm)
            return out

        def kstream(g, hooks, dist=3):
            ops = []
            for s_ in range(40):
                kap, kh = s_ >> 2, s_ // 20
                sp = s_ - 20 * kh
                bp, ab = sp >> 1, sp & 1
                kb, u = bp >> 1, bp & 1
                rds, ms = [], []
                for m in range(2):
                    slot = slot_of[4 * g + 2 * kh + m]
                    if slot >= 3:
                        reg, base = RING_ADDR, (slot - 3) * SLOT
                    else:
                        reg, base = V['RS'], slot * SLOT
                    q = RING + 4 * ((2 * s_ + m) % 8)
                    acc = ACC[g] + 16 * m
                    rds.append(Ins('ds_read_b128 %s, %s offset:%d' % (vr(q, 4), vr(reg + 2 * u + ab), base + kb * 4096)))
                    ms.append(Ins('v_mfma_f32_32x32x16_bf16 %s, %s, %s, %s' % (vr(acc, 16), XF(s_), vr(q, 4), '0' if s_ == 0 else vr(acc, 16))))
                if g == 0:
                    ms.append(Ins('v_mfma_f32_32x32x16_bf16 %s, %s, %s, %s' % (vr(GACC, 16), ar(A_GW + 4 * (s_ % 20), 4), XF(s_), '0' if s_ == 0 else vr(GACC, 16))))
                ops.append((rds, ms))
            out = []
            for s_ in range(dist):
                out += hooks.get(('pre', s_), [])
                out += ops[s_][0]
            for s_ in range(40):
                rds, ms = ops[s_]
                out.append(ms[0])
                for grp in hooks.get(s_, []):
                    out += grp
                out.append(ms[1])
                if s_ + dist < 40:
                    out += hooks.get(('pre', s_ + dist), [])
                    out += ops[s_ + dist][0]
                out += ms[2:]
            return out

        def stage_open(covers):
            for c in covers:
                a.put(WaitVM(dma_last[c]))
            a.waitcnt(lg=0)
            a('s_barrier')

        item_rd = []

        def w2_item(T):
            gr = []
            for e in range(2):
                q = T + 4 * e
                g0 = [Ins('ds_read_b64_tr_b16 %s, %s offset:%d' % (vr(q, 2), vr(V['W2R']), 4096 * e))]
                if e == 0:
                    g0 = [WaitVM(w2_dma[1])] + g0
                gr.append(g0)
                rd = Ins('ds_read_b64_tr_b16 %s, %s offset:%d' % (vr(q + 2, 2), vr(V['W2R']), 4096 * e + 256))
                gr.append([rd])
            st = [[Ins('buffer_store_dwordx4 %s, v1, %s, s26 offen sc1' % (vr(T, 4), srd(R_WS)))],
                  [Ins('buffer_store_dwordx4 %s, v1, %s, s26 offen offset:1024 sc1' % (vr(T + 4, 4), srd(R_WS)))]]
            return gr, st

        def c_dmas():
            gr = []
            for e in range(2):
                ld = Ins('buffer_load_dwordx4 %s, %s, s24 offen lds' % (vr(CD + e), srd(R_CI)))
                gr.append([Ins('s_add_u32 m0, s%d, %d' % (sW10, 3 * SLOT + 12288 + 4096 * e)), Ins('s_nop 0'), ld])
                c_dma.append(ld)
            return gr

        def c_item(T):
            gr = [[WaitVM(c_dma[1]), Ins('ds_read_b128 %s, %s' % (vr(T, 4), vr(CR)))],
                  [Ins('ds_read_b128 %s, %s' % (vr(T + 4, 4), vr(CR + 1)))]]
            last = Ins('buffer_store_dwordx4 %s, v2, %s, s96 offen sc1' % (vr(T + 4, 4), srd(R_WS)))
            st = [[Ins('buffer_store_dwordx4 %s, v2, %s, s25 offen sc1' % (vr(T, 4), srd(R_WS)))],
                  [Ins('s_add_u32 s96, s25, 5120'), last]]
            return gr, st, last

        def w1_prefetch(T):
            t0, t1, t2 = T, T + 1, T + 2
            return G(['s_lshr_b32 s90, s2, 3', 's_lshl_b32 s90, s90, 2', 's_add_u32 s90, s90, s%d' % sW, 's_mul_i32 s90, s90, 60',
                      'v_min_u32 %s, 59, v0' % vr(t0), 'v_add_u32 %s, s90, %s' % (vr(t0), vr(t0)),
                      'v_mul_u32_u24 %s, 43691, %s' % (vr(t1), vr(t0)), 'v_lshrrev_b32 %s, 19, %s' % (vr(t1), vr(t1)),
                      'v_mul_u32_u24 %s, 12, %s' % (vr(t2), vr(t1)), 'v_sub_u32 %s, %s, %s' % (vr(t0), vr(t0), vr(t2)),
                      'v_mul_u32_u24 %s, 3072, %s' % (vr(t1), vr(t1)), 'v_lshl_add_u32 %s, %s, 7, %s' % (vr(t0), vr(t0), vr(t1)),
                      's_mul_i32 s90, s%d, 1536' % sHALF,
                      'buffer_load_dword %s, %s, %s, s90 offen' % (vr(T + 3), vr(t0), srd(R_W1))])

        def w_flag(T, st):
            return [[WaitVM(st), Ins('v_mov_b32 %s, s%d' % (vr(T), sTAG))],
                    [Ins('v_mov_b32 %s, s%d' % (vr(T + 1), sTAG2))],
                    [Ins('v_mov_b32 %s, 0' % vr(T + 2))],
                    [Ins('s_lshl_b32 s90, s%d, 3' % sGWI), Ins('s_add_u32 s90, s90, 0x%x' % WF_OFF),
                     Ins('buffer_store_dwordx2 %s, %s, %s, s90 offen sc1' % (vr(T, 2), vr(T + 2), srd(R_WS)))]]

        def masks(T):
            g_ = [[Ins('v_lshrrev_b32 %s, 5, v0' % vr(T))], [Ins('s_lshl_b32 s95, s%d, 1' % sW), Ins('v_add_u32 %s, s95, %s' % (vr(T), vr(T)))]]
            for s_ in range(1, 8):
                g_.append([Ins('v_cmp_eq_u32 s[%d:%d], %d, %s' % (S_MASK + 2 * (s_ - 1), S_MASK + 2 * (s_ - 1) + 1, s_, vr(T)))])
            return g_

        def gate_math(T):
            G, OMG = V['G'], V['OMG']
            t0, t1, t2 = T, T + 1, T + 2
            L = ['v_cvt_pk_bf16_f32 %s, %s, %s' % (vr(t0), vr(GACC), vr(GACC)),
                 'v_lshlrev_b32 %s, 16, %s' % (vr(t0), vr(t0)),
                 'v_mul_f32 %s, 0x%08x, %s' % (vr(t0), f2u(-math.log2(math.e)), vr(t0)),
                 'v_exp_f32 %s, %s' % (vr(t0), vr(t0)),
                 'v_and_b32 %s, 31, v0' % vr(t1),
                 'v_add_f32 %s, 1.0, %s' % (vr(t0), vr(t0)),
                 'v_rcp_f32 %s, %s' % (vr(t0), vr(t0)),
                 'v_bfe_u32 %s, %s, 2, 1' % (vr(t2), vr(t1)),
                 'v_cvt_pk_bf16_f32 %s, %s, %s' % (vr(t0), vr(t0), vr(t0)),
                 'v_lshlrev_b32 %s, 16, %s' % (vr(G), vr(t0)),
                 'v_sub_f32 %s, 1.0, %s' % (vr(t0), vr(G)),
                 'v_cvt_pk_bf16_f32 %s, %s, %s' % (vr(t0), vr(t0), vr(t0)),
                 'v_lshlrev_b32 %s, 16, %s' % (vr(OMG), vr(t0)),
                 'v_lshlrev_b32 %s, 4, %s' % (vr(t2), vr(t2)),
                 'v_and_b32 %s, 3, %s' % (vr(t0), vr(t1)),
                 'v_add_u32 %s, %s, %s' % (vr(t0), vr(t0), vr(t2)),
                 'v_lshrrev_b32 %s, 3, %s' % (vr(t2), vr(t1)),
                 'v_lshl_add_u32 %s, %s, 2, %s' % (vr(t0), vr(t2), vr(t0)),
                 's_lshl_b32 s95, s%d, 5' % sW,
                 'v_add_u32 %s, s95, %s' % (vr(t0), vr(t0)),
                 'v_lshlrev_b32 %s, 2, %s' % (vr(t0), vr(t0)),
                 'v_add_u32 %s, %d, %s' % (vr(t0), L_GATE, vr(t0)),
                 'ds_write_b32 %s, %s' % (vr(t0), vr(G))]
            return [[Ins(x)] for x in L]

        def pass1(g):
            it = []
            RE, IM = ACC[g], ACC[g] + 16
            lr, li, nli = V['lr%d' % g], V['li%d' % g], V['nli%d' % g]
            sa = [SC[g] + 0, SC[g] + 1]
            sb = [SC[g] + 2, SC[g] + 3]
            cur = [RE, IM]
            for t in range(1, 16):
                d = sa if t % 2 else sb
                it.append(Ins('v_fma_f32 %s, %s, %s, %s' % (vr(d[0]), vr(lr), vr(cur[0]), vr(RE + t))))
                it.append(Ins('v_fma_f32 %s, %s, %s, %s' % (vr(d[1]), vr(lr), vr(cur[1]), vr(IM + t))))
                it.append(Ins('v_fmac_f32 %s, %s, %s' % (vr(d[0]), vr(nli), vr(cur[1]))))
                it.append(Ins('v_fmac_f32 %s, %s, %s' % (vr(d[1]), vr(li), vr(cur[0]))))
                cur = d
            it.append(Ins('ds_write_b64 %s, %s offset:%d' % (vr(V['SEGW']), vr(cur[0], 2), L_SEG - MISC + 2560 * g)))
            return [[x] for x in it]

        def prefix(g, buf):
            it = []
            l16r, l16i = V['l16r%d' % g], V['l16i%d' % g]
            Pr, Pi = SC[g] + 0, SC[g] + 1
            for jj in range(4):
                it.append(Ins('ds_read_b128 %s, %s offset:%d' % (vr(buf + 4 * jj, 4), vr(V['SEGR']), L_SEG - MISC + 2560 * g + 16 * jj)))
            it.append(Ins('v_mov_b32 %s, 0' % vr(Pr)))
            it.append(Ins('v_mov_b32 %s, 0' % vr(Pi)))
            sel = []
            for s in range(1, 8):
                m = S_MASK + 2 * (s - 1)
                pr, pi_, cr_, ci_ = buf + 2 * (s - 1), buf + 2 * (s - 1) + 1, buf + 2 * s, buf + 2 * s + 1
                it.append(Ins('v_fmac_f32 %s, %s, %s' % (vr(cr_), vr(l16r), vr(pr))))
                it.append(Ins('v_fmac_f32 %s, %s, %s' % (vr(ci_), vr(l16r), vr(pi_))))
                it.append(Ins('v_fma_f32 %s, -%s, %s, %s' % (vr(cr_), vr(l16i), vr(pi_), vr(cr_))))
                it.append(Ins('v_fmac_f32 %s, %s, %s' % (vr(ci_), vr(l16i), vr(pr))))
                sel.append(Ins('v_cndmask_b32 %s, %s, %s, s[%d:%d]' % (vr(Pr), vr(Pr), vr(pr), m, m + 1)))
                sel.append(Ins('v_cndmask_b32 %s, %s, %s, s[%d:%d]' % (vr(Pi), vr(Pi), vr(pi_), m, m + 1)))
            pb = 52 if A else 88
            it.append(Ins('v_mov_b32 %s, %s' % (vr(pb), vr(buf + 14))))
            it.append(Ins('v_mov_b32 %s, s%d' % (vr(pb + 1), sTAG)))
            it.append(Ins('v_mov_b32 %s, %s' % (vr(pb + 2), vr(buf + 15))))
            it.append(Ins('v_mov_b32 %s, s%d' % (vr(pb + 3), sTAG)))
            it.append(Ins('s_add_u32 s97, s%d, %d' % (sG, g)))
            it.append(Ins('s_lshl_b32 s97, s97, 4'))
            it.append(Ins('s_add_u32 s97, s97, s%d' % sR))
            it.append(Ins('s_lshl_b32 s97, s97, 9'))
            it.append(Ins('s_add_u32 s97, s97, 0x%x' % AGG_OFF))
            it.append(Ins('buffer_store_dwordx4 %s, %s, %s, s97 offen sc1' % (vr(pb, 4), vr(V['AG']), srd(R_WS))))
            return [[x] for x in it + sel]

        def coef(g, t0):
            it = []
            RE, IM = ACC[g], ACC[g] + 16
            cr, ci = V['cr%d' % g], V['ci%d' % g]
            for t in range(16):
                tt = t0 + (t & 1)
                it.append(Ins('v_mul_f32 %s, %s, %s' % (vr(tt), vr(ci), vr(IM + t))))
                it.append(Ins('v_mul_f32 %s, %s, %s' % (vr(IM + t), vr(cr), vr(IM + t))))
                it.append(Ins('v_fmac_f32 %s, %s, %s' % (vr(IM + t), vr(ci), vr(RE + t))))
                it.append(Ins('v_fma_f32 %s, %s, %s, -%s' % (vr(RE + t), vr(cr), vr(RE + t), vr(tt))))
            return [[x] for x in it]

        def lb_issue(g, buf):
            return [[Ins('s_add_u32 s95, s%d, %d' % (sG, g)), Ins('s_lshl_b32 s95, s95, 13'), Ins('s_add_u32 s95, s95, 0x%x' % AGG_OFF)],
                    [Ins('buffer_load_dwordx4 %s, %s, %s, s95 offen sc1' % (vr(buf, 4), vr(V['LB0']), srd(R_WS)))],
                    [Ins('buffer_load_dwordx4 %s, %s, %s, s95 offen sc1' % (vr(buf + 4, 4), vr(V['LB1']), srd(R_WS)))]]

        def lb_check(buf, t):
            a('v_xor_b32 %s, s%d, %s' % (vr(t), sTAG, vr(buf + 1)))
            a('v_xor_b32 %s, s%d, %s' % (vr(t + 1), sTAG, vr(buf + 3)))
            a('v_xor_b32 %s, s%d, %s' % (vr(t + 2), sTAG, vr(buf + 5)))
            a('v_xor_b32 %s, s%d, %s' % (vr(t + 3), sTAG, vr(buf + 7)))
            a('v_or3_b32 %s, %s, %s, %s' % (vr(t), vr(t), vr(t + 1), vr(t + 2)))
            a('v_or_b32 %s, %s, %s' % (vr(t), vr(t), vr(t + 3)))
            a('v_cmp_ne_u32 vcc, 0, %s' % vr(t))
            a('s_cmp_eq_u64 vcc, 0')

        def lookback_wait(g, buf, lbl):
            t = buf + 8
            lb_check(buf, t)
            a.settle()
            a('s_cbranch_scc1 %s_ok' % lbl)
            snap = a.snapshot()
            a('s_mov_b32 s91, 0')
            a.drain()
            a.label(lbl)
            a('buffer_load_dwordx4 %s, %s, %s, s95 offen sc1' % (vr(buf, 4), vr(V['LB0']), srd(R_WS)))
            a('buffer_load_dwordx4 %s, %s, %s, s95 offen sc1' % (vr(buf + 4, 4), vr(V['LB1']), srd(R_WS)))
            a('s_add_u32 s91, s91, 1')
            lb_check(buf, t)
            a('s_cbranch_scc1 %s_ok' % lbl)
            a('s_cmp_lt_u32 s91, 0x%x' % o.get('spin', 200000))
            a('s_cbranch_scc1 %s' % lbl)
            a.settle()
            a.label(lbl + '_ok')
            a.restore(snap)
            p1r, p1i, p2r, p2i = (V['p%s%d' % (x, g)] for x in ('1r', '1i', '2r', '2i'))
            hr, hi = buf + 8, buf + 9
            a('v_mul_f32 %s, %s, %s' % (vr(hr), vr(p1r), vr(buf)))
            a('v_mul_f32 %s, %s, %s' % (vr(hi), vr(p1r), vr(buf + 2)))
            a('v_fma_f32 %s, -%s, %s, %s' % (vr(hr), vr(p1i), vr(buf + 2), vr(hr)))
            a('v_fmac_f32 %s, %s, %s' % (vr(hi), vr(p1i), vr(buf)))
            a('v_fmac_f32 %s, %s, %s' % (vr(hr), vr(p2r), vr(buf + 4)))
            a('v_fmac_f32 %s, %s, %s' % (vr(hi), vr(p2r), vr(buf + 6)))
            a('v_fma_f32 %s, -%s, %s, %s' % (vr(hr), vr(p2i), vr(buf + 6), vr(hr)))
            a('v_fmac_f32 %s, %s, %s' % (vr(hi), vr(p2i), vr(buf + 4)))
            a('ds_write_b64 %s, %s offset:%d' % (vr(V['SEGW']), vr(hr, 2), L_LB - MISC + 2560 * g))
            a.waitcnt(lg=0)
            a('s_barrier')

        def entry_state(g, buf):
            it = []
            for jj in range(4):
                it.append('ds_read_b128 %s, %s offset:%d' % (vr(buf + 4 * jj, 4), vr(V['SEGR']), L_LB - MISC + 2560 * g + 16 * jj))
            for jj in (1, 3, 5, 7):
                it.append('v_add_f32 %s, %s, %s' % (vr(buf + 2 * jj - 2), vr(buf + 2 * jj - 2), vr(buf + 2 * jj)))
                it.append('v_add_f32 %s, %s, %s' % (vr(buf + 2 * jj - 1), vr(buf + 2 * jj - 1), vr(buf + 2 * jj + 1)))
            for (x, y) in ((0, 4), (8, 12), (0, 8)):
                it.append('v_add_f32 %s, %s, %s' % (vr(buf + x), vr(buf + x), vr(buf + y)))
                it.append('v_add_f32 %s, %s, %s' % (vr(buf + x + 1), vr(buf + x + 1), vr(buf + y + 1)))
            Pr, Pi = SC[g] + 0, SC[g] + 1
            lsr, lsi, cr, ci = (V[x + str(g)] for x in ('lsr', 'lsi', 'cr', 'ci'))
            it += ['v_fmac_f32 %s, %s, %s' % (vr(Pr), vr(lsr), vr(buf)),
                   'v_fmac_f32 %s, %s, %s' % (vr(Pi), vr(lsr), vr(buf + 1)),
                   'v_fma_f32 %s, -%s, %s, %s' % (vr(Pr), vr(lsi), vr(buf + 1), vr(Pr)),
                   'v_fmac_f32 %s, %s, %s' % (vr(Pi), vr(lsi), vr(buf)),
                   'v_mul_f32 %s, %s, %s' % (vr(buf + 2), vr(cr), vr(Pr)),
                   'v_mul_f32 %s, %s, %s' % (vr(buf + 3), vr(cr), vr(Pi)),
                   'v_fma_f32 %s, -%s, %s, %s' % (vr(buf + 2), vr(ci), vr(Pi), vr(buf + 2)),
                   'v_fmac_f32 %s, %s, %s' % (vr(buf + 3), vr(ci), vr(Pr))]
            return [[Ins(x)] for x in it]

        def pass2(g, buf):
            it = []
            RE, IM = ACC[g], ACC[g] + 16
            lr, li, nli = V['lr%d' % g], V['li%d' % g], V['nli%d' % g]
            pr, pi_ = buf + 2, buf + 3
            for t in range(16):
                it.append(Ins('v_fmac_f32 %s, %s, %s' % (vr(RE + t), vr(lr), vr(pr))))
                it.append(Ins('v_fmac_f32 %s, %s, %s' % (vr(IM + t), vr(lr), vr(pi_))))
                it.append(Ins('v_fmac_f32 %s, %s, %s' % (vr(RE + t), vr(nli), vr(pi_))))
                it.append(Ins('v_fmac_f32 %s, %s, %s' % (vr(IM + t), vr(li), vr(pr))))
                pr, pi_ = RE + t, IM + t
            for e in range(8):
                it.append(Ins('v_cvt_pk_bf16_f32 %s, %s, %s' % (vr(RE + e), vr(RE + 2 * e), vr(RE + 2 * e + 1))))
            for e in range(8):
                it.append(Ins('v_cvt_pk_bf16_f32 %s, -%s, -%s' % (vr(RE + 8 + e), vr(IM + 2 * e), vr(IM + 2 * e + 1))))
            return [[x] for x in it]

        def build_sel(B, T):
            n_, e_, t_, val = T, T + 1, T + 2, T + 3
            L = ['v_and_b32 %s, 31, v0' % vr(n_),
                 'v_lshrrev_b32 %s, 3, %s' % (vr(t_), vr(n_)),
                 'v_and_b32 %s, 3, %s' % (vr(e_), vr(n_)),
                 'v_lshl_add_u32 %s, %s, 2, %s' % (vr(e_), vr(t_), vr(e_)),
                 'v_bfe_u32 %s, %s, 2, 1' % (vr(t_), vr(n_)),
                 'v_lshrrev_b32 %s, 5, v0' % vr(val),
                 'v_cmp_eq_u32 vcc, %s, %s' % (vr(t_), vr(val)),
                 'v_lshrrev_b32 %s, 16, %s' % (vr(val), vr(V['G'])),
                 'v_cndmask_b32 %s, 31, %s, vcc' % (vr(e_), vr(e_)),
                 'v_and_b32 %s, 1, %s' % (vr(t_), vr(e_)),
                 'v_lshlrev_b32 %s, 4, %s' % (vr(t_), vr(t_)),
                 'v_lshlrev_b32 %s, %s, %s' % (vr(val), vr(t_), vr(val)),
                 'v_lshrrev_b32 %s, 1, %s' % (vr(e_), vr(e_))]
            g = [[Ins(x)] for x in L]
            for k in range(8):
                g.append([Ins('v_cmp_eq_u32 vcc, %d, %s' % (k, vr(e_))),
                          Ins('v_cndmask_b32 %s, 0, %s, vcc' % (vr(B + k), vr(val)))])
            return g

        def transpose_store(g, B, D0, D1):
            RE = ACC[g]
            a('v_mfma_f32_32x32x16_bf16 %s, %s, %s, 0' % (vr(D0, 16), vr(RE, 4), vr(B, 4)))
            a('v_mfma_f32_32x32x16_bf16 %s, %s, %s, 0' % (vr(D1, 16), vr(RE + 8, 4), vr(B, 4)))
            a('v_mfma_f32_32x32x16_bf16 %s, %s, %s, %s' % (vr(D0, 16), vr(RE + 4, 4), vr(B + 4, 4), vr(D0, 16)))
            a('v_mfma_f32_32x32x16_bf16 %s, %s, %s, %s' % (vr(D1, 16), vr(RE + 12, 4), vr(B + 4, 4), vr(D1, 16)))
            a('s_add_u32 s94, s%d, %d' % (sHS, (48 + g) * 4096))
            a('s_add_u32 s95, s%d, %d' % (sHS, (68 + g) * 4096))
            for D, so in ((D0, 94), (D1, 95)):
                for e in range(8):
                    a('v_cvt_pk_bf16_f32 %s, %s, %s' % (vr(D + e), vr(D + 2 * e), vr(D + 2 * e + 1)))
                a('buffer_store_dwordx4 %s, %s, %s, s%d offen %s' % (vr(D, 4), vr(V['ST']), srd(R_WS), so, HST))
                a('buffer_store_dwordx4 %s, %s, %s, s%d offen offset:512 %s' % (vr(D + 4, 4), vr(V['ST']), srd(R_WS), so, HST))

        NQ = 8

        def ffn_ops():
            ops = []
            for n in range(160):
                tile, s = n // 40, n % 40
                blk, tp = tile >> 1, tile & 1
                acc = FA[tile & 1]
                st, sp = s // 10, s % 10
                slot = slot_of[4 + 4 * blk + st]
                reg = slot // 3
                off = (slot % 3) * SLOT + (32 * (sp >> 1) + 8 * (sp & 1)) * 128
                q = RING + 4 * (n % NQ)
                base = V['RF'] + tp + 2 * reg
                r0 = Ins('ds_read_b64_tr_b16 %s, %s offset:%d' % (vr(q, 2), vr(base), off))
                r1 = Ins('ds_read_b64_tr_b16 %s, %s offset:%d' % (vr(q + 2, 2), vr(base), off + 512))
                m = Ins('v_mfma_f32_32x32x16_bf16 %s, %s, %s, %s' % (vr(acc, 16), vr(q, 4), XF(s), '0' if s == 0 else vr(acc, 16)))
                ops.append((r0, r1, m))
            return ops

        def ffn_main(ops, n0, n1, dist, rd_done, rd_limit):
            out = []
            for n in range(n0, n1):
                if n == n0:
                    while rd_done < min(n + dist, rd_limit):
                        out += [ops[rd_done][0], ops[rd_done][1]]
                        rd_done += 1
                out.append(ops[n][2])
                while rd_done < min(n + 1 + dist, rd_limit):
                    out += [ops[rd_done][0], ops[rd_done][1]]
                    rd_done += 1
            return out, rd_done

        def ffn_pack(tile):
            T = FA[tile & 1]
            it = []
            for e in range(16):
                it.append(Ins('v_mul_f32 %s, %s, %s' % (vr(T + e), vr(V['OMG']), vr(T + e))))
            for e in range(8):
                it.append(Ins('v_cvt_pk_bf16_f32 %s, %s, %s' % (vr(T + e), vr(T + 2 * e), vr(T + 2 * e + 1))))
            for e in range(8):
                it.append(Ins('v_pk_max_i16 %s, %s, 0' % (vr(T + e), vr(T + e))))
            return [[x] for x in it]

        def ffn_store(tile):
            T = FA[tile & 1]
            return [[Ins('s_add_u32 s94, s%d, %d' % (sHF, tile * 4096))],
                    [Ins('buffer_store_dwordx4 %s, %s, %s, s94 offen %s' % (vr(T, 4), vr(V['ST']), srd(R_WS), HST))],
                    [Ins('buffer_store_dwordx4 %s, %s, %s, s94 offen offset:512 %s' % (vr(T + 4, 4), vr(V['ST']), srd(R_WS), HST))]]

        def wf_issue(T):
            t0, t1 = T + 2, T + 3
            gr = G(['s_mul_i32 s90, s%d, 120' % sC2, 's_mul_i32 s91, s%d, 30' % sW, 's_add_u32 s90, s90, s91',
                    'v_and_b32 %s, 31, v0' % vr(t1), 'v_min_u32 %s, 29, %s' % (vr(t0), vr(t1)),
                    'v_add_u32 %s, s90, %s' % (vr(t0), vr(t0)),
                    's_lshr_b32 s90, s%d, 1' % sW, 's_mul_i32 s90, s90, 400', 's_mul_i32 s91, s%d, 50' % sC2,
                    's_add_u32 s90, s90, s91', 's_and_b32 s91, s%d, 1' % sW, 's_mul_i32 s91, s91, 25', 's_add_u32 s90, s90, s91',
                    'v_min_u32 %s, 24, %s' % (vr(t1), vr(t1)), 'v_add_u32 %s, s90, %s' % (vr(t1), vr(t1))])
            gr.append([Ins('v_cmp_gt_u32 vcc, 32, v0'), Ins('v_cndmask_b32 %s, %s, %s, vcc' % (vr(t0), vr(t1), vr(t0)))])
            gr += G(['v_lshlrev_b32 %s, 3, %s' % (vr(t0), vr(t0)), 'v_add_u32 %s, 0x%x, %s' % (vr(t0), WF_OFF, vr(t0)),
                     'buffer_load_dwordx2 %s, %s, %s, 0 offen sc1' % (vr(T, 2), vr(t0), srd(R_WS))])
            return gr

        def wf_check(T, lbl):
            t0 = T + 2

            def chk():
                a('v_xor_b32 %s, s%d, %s' % (vr(T), sTAG, vr(T)))
                a('v_xor_b32 %s, s%d, %s' % (vr(T + 1), sTAG2, vr(T + 1)))
                a('v_or_b32 %s, %s, %s' % (vr(T), vr(T), vr(T + 1)))
                a('v_cmp_ne_u32 vcc, 0, %s' % vr(T))
                a('s_cmp_eq_u64 vcc, 0')
            chk()
            a.settle()
            a('s_cbranch_scc1 %s_ok' % lbl)
            snap = a.snapshot()
            a('s_mov_b32 s91, 0')
            a.drain()
            a.label(lbl)
            a('buffer_load_dwordx2 %s, %s, %s, 0 offen sc1' % (vr(T, 2), vr(t0), srd(R_WS)))
            a('s_add_u32 s91, s91, 1')
            chk()
            a('s_cbranch_scc1 %s_ok' % lbl)
            a('s_cmp_lt_u32 s91, 0x%x' % o.get('spin', 200000))
            a('s_cbranch_scc1 %s' % lbl)
            a.settle()
            a.label(lbl + '_ok')
            a.restore(snap)

        BUD = o.get('bud', 3)
        P2 = self.p2
        for k in range(4):
            a('v_add_u32 %s, %d, %s' % (vr(RING_ADDR + k), 3 * SLOT, vr(V['RS'] + k)))
        put_all(late_scalars())
        put_all(w2_setup_a)
        put_all(item_addrs())
        put_all(c_setup())
        put_all(xdma(2))
        put_all([s_load(0, 0, 2), s_load(0, 1, 2)])
        put_all(xdma(3))
        put_all([s_load(0, 0, 3), s_load(0, 1, 3)])
        put_all(w2_setup_b)
        put_all(c_dmas())
        a.put(WaitVM(gw_dma))
        put_all(gate_reads(0))
        put_all(xread(0))
        put_all(xrefill(4))
        a.put(WaitVM(s_dma[(0, 1, 0)]))
        a('s_barrier')
        self.stamp(3)
        hooks = {}

        def hook(pos, groups):
            hooks.setdefault(pos, [])
            hooks[pos] = hooks[pos] + groups
        cg, c_sts, c_st = c_item(72)
        w2g, w2_sts = w2_item(64)
        g1 = gate_reads(1)
        for kap in range(10):
            s0 = 4 * kap
            if kap + 1 <= 7:
                hook(s0, xread(kap + 1))
            if kap + 5 <= 9:
                for j, grp in enumerate(xrefill(kap + 5)):
                    hook(s0 + 1 + j, [grp])
            if kap + 4 <= 9:
                if kap + 4 == 8:
                    hook(s0 + 1, [[WaitLG(cg[1][0])]])
                hook(s0 + 1, [s_load(0, 0, kap + 4)])
                hook(s0 + 3, [s_load(0, 1, kap + 4)])
        hook(25, xread(8))
        hook(27, xread(9))
        for j in range(20):
            hook(j + 1, [g1[j]])
        for kap in range(1, 10):
            pre = [WaitVM(s_dma[(0, 1, kap)])]
            if kap == 8:
                pre.append(WaitLG(x_rd_last[9]))
            pre.append(Ins('s_barrier'))
            hooks[('pre', 4 * kap)] = pre
        ldA = stage_loads(4) + stage_loads(5)
        ldB = stage_loads(6) + stage_loads(7)
        pos = [21, 22, 23, 24, 25, 26, 26, 27, 28, 28]
        for j, grp in enumerate(ldA):
            hook(pos[j] + 1 if pos[j] == 21 else pos[j], [grp])
        for j, grp in enumerate(w2_sts + c_sts):
            hook(29 + j // 4, [grp])
        for j, grp in enumerate(ldB):
            hook(30 + j, [grp])
        main = kstream(0, hooks)
        s_items = Stream(w2g + cg, start=24, every=2)
        s_lc = Stream(lane_consts() + params(0) + ([] if A else params(1)), start=2, per=3)
        weave(a, main, [s_items, s_lc], budget=3)
        put_all(masks(84))
        if o.get('detail', 0) != 2:
            self.stamp(4)

        gm_all = gate_math(72)
        put_all(gm_all[:3])
        gate_math0 = gm_all[3:]
        if A:
            SC = [48]
            BUF = 56
            SEL = 72
            WFT = 80
            TMP = 84
            a.put(WaitVM(dma_last[5]))
            a('s_barrier')
            self.stamp((3, 5))
            self.stamp((6, 5))
            self.stamp((3, 1), clock=True)
            ops = ffn_ops()
            D = o.get('fdist', 5)
            nof = (lambda x: []) if o.get('bare') else (lambda x: x)

            def split_at_read(items, n):
                k = items.index(ops[n][0])
                return items[:k], items[k:]
            m, rd = ffn_main(ops, 0, 40, D, 0, 80)
            m0, m = split_at_read(m, 20)
            m1, m2 = split_at_read(m, 30)
            p1 = nof(pass1(0))
            s_p1 = Stream(p1, per=4)
            s_flag = Stream(w_flag(76, c_st), start=4, per=5)
            s_gate = Stream(nof(gate_math0), per=3)
            s_ld = Stream(stage_loads(8) + stage_loads(9) + stage_loads(10), start=1, every=2)
            s_tab = Stream(P2.tables(), per=3)
            weave(a, m0, [s_flag, s_ld, s_p1, s_tab], budget=5, flush=False)
            put_all(s_p1.groups[s_p1.i:])
            assert s_flag.done()
            a.put(WaitVM(dma_last[6]))
            if p1:
                a.put(WaitLG(p1[-1][0]))
            a('s_barrier')
            s_pre = Stream(nof(prefix(0, BUF)), per=4)
            for x in (s_ld, s_tab):
                x.start = 0
            weave(a, m1, [s_pre, s_ld, s_tab], budget=4, flush=False)
            a.put(WaitVM(dma_last[7]))
            a('s_barrier')
            weave(a, m2, [s_pre, s_gate, s_ld, s_tab], budget=4, flush=False)
            self.stamp((6, 6))
            s_coef = Stream(nof(coef(0, TMP)), per=3)
            s_wfi = Stream(wf_issue(WFT), per=3)
            m, rd = ffn_main(ops, 40, 50, D, rd, 80)
            weave(a, m, [s_pre, s_gate, s_wfi, s_ld, s_tab], budget=BUD + 1, flush=False)
            assert s_pre.done() and s_gate.done() and s_wfi.done() and s_ld.done() and s_tab.done(), (s_pre.i, s_gate.i, s_wfi.i, s_ld.i, s_tab.i)
            a.put(WaitLG(ops[49][1]))
            a('s_barrier')
            self.stamp((6, 8))
            s_p0 = Stream(nof(ffn_pack(0) + ffn_store(0)), per=3)
            WFP = o.get('wfidx', 62)
            m, rd = ffn_main(ops, 50, WFP, D, rd, 80)
            weave(a, m, [Stream(stage_loads(11), every=2), s_p0, s_coef], budget=BUD, flush=False)
            wf_check(WFT, 'L_wfA')
            self.stamp((6, 7))
            wpre = [] if o.get('now') else P2.early_w()
            s_w = Stream(wpre, every=o.get('wevery', 2))
            s_sel = Stream(nof(build_sel(SEL, TMP + 2)), per=3)
            m, rd = ffn_main(ops, WFP, 76, D, rd, 80)
            weave(a, m, [s_p0, s_w, s_coef, s_sel], budget=BUD, flush=False)
            assert s_p0.done()
            self.stamp((6, 9))
            for c in (8, 9, 10, 11):
                a.put(WaitVM(dma_last[c]))
            a('s_barrier')
            self.stamp((6, 10))
            s_w.start = 0
            m, rd = ffn_main(ops, 76, 120, D, rd, 160)
            s_pack1 = Stream(nof(ffn_pack(1)), start=6, per=3)
            s_coef.start = s_sel.start = 0
            weave(a, m, [Stream(lb_issue(0, BUF), start=o.get('lbpos', 10), per=3), s_pack1, s_w, s_coef, s_sel], budget=BUD, flush=False)
            assert s_pack1.done() and s_coef.done() and s_sel.done(), (s_coef.i, s_sel.i)
            self.stamp(5)
            self.stamp((6, 11))
            self.stamp((3, 6))
            self.stamp((3, 2), clock=True)
            lookback_wait(0, BUF, 'L_lbA')
            self.stamp(6)
            put_all(ffn_store(1))
            s_w.start = 0
            m, rd = ffn_main(ops, 120, 160, D, rd, 160)
            w2nd = P2.early2_w()
            paced = []
            nleft = len(s_w.groups) - s_w.i
            pos = 2 * nleft
            slots = {}
            for j, g in enumerate(w2nd):
                pos = max(pos + o.get('w2step', 1), j + 2)
                slots[pos] = g
                pos += (j % 5 in (1, 3))
            late_w2 = [g for p_, g in sorted(slots.items()) if p_ >= 40]
            paced = [slots.get(p_, []) for p_ in range(40)]
            weave(a, m, [s_w, Stream(paced), Stream(entry_state(0, BUF) + pass2(0, BUF), per=3),
                         Stream(ffn_pack(2) + ffn_store(2), start=2, per=3)], budget=BUD + 1)
            put_all(late_w2)
            transpose_store(0, SEL, 96, 112)
            put_all(ffn_pack(3) + ffn_store(3))
        else:
            SC = [48, 52]
            BUF = 56
            SEL = 72
            WFT = 80
            TMP = 84
            put_all(pass1(0))
            stage_open([4, 5])
            main = kstream(1, {('pre', 20): [WaitVM(dma_last[7]), Ins('s_barrier')]})
            s_pre, s_wfi = Stream(prefix(0, BUF), per=3), Stream(wf_issue(WFT), start=22, per=3)
            s_flag, s_gate = Stream(w_flag(76, c_st), start=2, per=5), Stream(gate_math0, per=3)
            s_tab = Stream(P2.tables(), per=3)
            s_coef, s_sel = Stream(coef(0, TMP), per=3), Stream(build_sel(SEL, TMP + 2), per=3)
            wpre = P2.early_w()
            cut = [k for k, x in enumerate(main) if isinstance(x, Ins) and x.kind == 'mfma'][43] + 1
            weave(a, main[:cut], [s_flag, s_pre, s_gate, s_wfi, s_tab], budget=4, flush=False)
            assert s_pre.done() and s_wfi.done() and s_tab.done() and s_gate.done() and s_flag.done()
            wf_check(WFT, 'L_wfB')
            s_w = Stream(wpre, every=2)
            s_lb = Stream(lb_issue(0, BUF), start=16, per=3)
            weave(a, main[cut:], [s_lb, s_w, s_coef, s_sel], budget=4, flush=False)
            assert s_lb.done()
            for x in (s_coef, s_sel):
                put_all(x.groups[x.i:])
            wrest = s_w.groups[s_w.i:]
            put_all(pass1(1))
            self.stamp(5)
            lookback_wait(0, BUF, 'L_lbB0')
            self.stamp(6)

            def mix(items, loads, every):
                out = []
                for k, x in enumerate(items):
                    out.append(x)
                    if k % every == every - 1 and loads:
                        out.append(loads.pop(0))
                return out
            wrest = wrest + P2.early2_w()
            put_all(mix(prefix(1, 96), wrest, 6))
            put_all(mix(entry_state(0, BUF) + pass2(0, BUF), wrest, 6))
            transpose_store(0, SEL, 96, 112)
            put_all(lb_issue(1, BUF))
            put_all(mix(coef(1, TMP), wrest, 6))
            put_all(wrest)
            lookback_wait(1, BUF, 'L_lbB1')
            put_all(entry_state(1, BUF))
            put_all(pass2(1, BUF))
            transpose_store(1, SEL, 96, 112)

        self.stamp(7)
        a.waitcnt(vm=0)
        self.stamp(8)
        a('v_mov_b32 %s, s%d' % (vr(RING), sTAG))
        a('v_mov_b32 %s, s%d' % (vr(RING + 1), sTAG2))
        a('s_lshl_b32 s90, s%d, 2' % sR)
        a('s_add_u32 s90, s90, s%d' % sW)
        a('s_lshl_b32 s90, s90, 4')
        a('s_add_u32 s90, s90, s%d' % sC16)
        a('s_lshl_b32 s90, s90, 3')
        a('s_add_u32 s90, s90, 0x%x' % FLAG_OFF)
        a('v_mov_b32 %s, 0' % vr(RING + 2))
        a('buffer_store_dwordx2 %s, %s, %s, s90 offen sc1' % (vr(RING, 2), vr(RING + 2), srd(R_WS)))
        if o.get('hback', 0):
            t0, t1, t2 = RING + 4, RING + 5, RING + 6
            a('v_and_b32 %s, 15, v0' % vr(t0))
            a('v_lshlrev_b32 %s, 7, %s' % (vr(t0), vr(t0)))
            a('v_lshrrev_b32 %s, 5, v0' % vr(t1))
            a('v_mul_u32_u24 %s, %d, %s' % (vr(t1), 20 * 4096, vr(t1)))
            a('v_add_u32 %s, %s, %s' % (vr(t1), vr(t1), vr(t0)))
            if not A:
                a('v_bfe_u32 %s, v0, 4, 1' % vr(t2))
                a('v_lshl_add_u32 %s, %s, 12, %s' % (vr(t1), vr(t2), vr(t1)))
            a('s_add_u32 s90, s%d, %d' % (sHS, 48 * 4096))
            a('buffer_load_dword v121, %s, %s, s90 offen sc1' % (vr(t1), srd(R_WS)))
            if A:
                a('v_lshrrev_b32 %s, 4, v0' % vr(t2))
                a('v_lshl_add_u32 %s, %s, 12, %s' % (vr(t0), vr(t2), vr(t0)))
                a('buffer_load_dword v122, %s, %s, s%d offen sc1' % (vr(t0), srd(R_WS), sHF))
        a.waitcnt(lg=0)
        a.settle()

    def poll(self, lbl, voff, soff, tmp):
        a = self.a
        a('s_mov_b32 s91, 0')
        a.drain()
        a.settle()
        a.label(lbl)
        a('buffer_load_dwordx2 %s, %s, %s, s%d offen sc1' % (vr(tmp, 2), vr(voff), srd(R_WS), soff))
        a('s_add_u32 s91, s91, 1')
        a('v_xor_b32 %s, s%d, %s' % (vr(tmp), sTAG, vr(tmp)))
        a('v_xor_b32 %s, s%d, %s' % (vr(tmp + 1), sTAG2, vr(tmp + 1)))
        a('v_or_b32 %s, %s, %s' % (vr(tmp), vr(tmp), vr(tmp + 1)))
        a('v_cmp_ne_u32 vcc, 0, %s' % vr(tmp))
        a('s_cmp_eq_u64 vcc, 0')
        a('s_cbranch_scc1 %s_ok' % lbl)
        a('s_cmp_lt_u32 s91, 0x%x' % self.o.get('spin', 200000))
        a('s_cbranch_scc1 %s' % lbl)
        a.settle()
        a.label(lbl + '_ok')

    def phase2(self):
        a, o, P = self.a, self.o, self.p2
        VL16, VL16B = P.VL16, P.VL16B
        VH, VRW, VRR, VO, VX, VD, VG = 1, 5, 8, 9, 10, 11, 12
        VP, t0, t1, t2 = 96, 98, 120, 13
        VLWR = 99
        ACC = 16
        SK = 100
        KS = P.KS
        HLD = {0: 'sc1', 1: 'sc0 sc1', 2: 'sc1 nt', 3: '', 4: 'nt'}[o.get('hld', 0)]

        def acc(dt, dl):
            return ACC + 4 * (4 * dt + dl)
        early = set(P.early_quads[:5 * P.n_early]) | set(P.early2_quads)
        NE = P.n_early + P.n_early2
        top = 240 if o.get('stamps') else 256
        pool = [x for x in ([('a', r) for r in range(0, top, 4)] + [('v', r) for r in range(124, 256, 4)]) if x not in early]
        wq = dict(P.wq)
        hq = {}
        q = P.q

        def put_groups(gr):
            for g in gr:
                for x in g:
                    a.put(x)
        put_groups(P.tables(late=True))
        a('s_barrier')

        def w_groups(k):
            quads = [pool.pop(0) for dt in range(5)]
            for dt in range(5):
                wq[(k, dt)] = quads[dt]
            return P.w_loads(k, quads)

        def h_groups(k):
            gr = []
            for dl in range(4):
                r = pool.pop(0)
                hq[(k, dl)] = r
                hd = []
                if dl == 0:
                    hd = [Ins('s_lshl_b32 s%d, s%d, 12' % (P.sHk, KS[k])), Ins('s_add_u32 s%d, s%d, s%d' % (P.sHk, P.sHk, P.sHB))]
                gr.append(hd + [Ins('buffer_load_dwordx4 %s, %s, %s, s%d offen %s' % (q(r), vr(VH + dl), srd(R_WS), P.sHk, HLD))])
            return gr

        self.build_srd(R_OUT, S_OUT, 5242880)
        for dl in range(4):
            a('s_add_u32 s90, s%d, %d' % (sW, dl))
            a('s_and_b32 s90, s90, 3')
            a('s_lshl_b32 s91, s90, 10')
            a('v_add_u32 %s, s91, %s' % (vr(VH + dl), vr(VL16)))
            if dl:
                a('s_mul_i32 s91, s90, 15360')
                a('s_add_u32 s91, s91, %d' % ((dl - 1) * 5120))
                a('v_add_u32 %s, s91, %s' % (vr(VRW + dl - 1), vr(VL16)))
        a('s_mul_i32 s91, s%d, 15360' % sW)
        a('v_add_u32 %s, s91, %s' % (vr(VRR), vr(VL16)))
        a('v_and_b32 %s, 15, v0' % vr(t0))
        a('v_lshrrev_b32 %s, 4, v0' % vr(t2))
        a('v_bfe_u32 %s, %s, 2, 1' % (vr(t1), vr(t0)))
        a('v_lshlrev_b32 %s, 4, %s' % (vr(t1), vr(t1)))
        a('v_and_b32 %s, 3, %s' % (vr(VP), vr(t0)))
        a('v_add_u32 %s, %s, %s' % (vr(t1), vr(t1), vr(VP)))
        a('v_lshrrev_b32 %s, 3, %s' % (vr(VP), vr(t0)))
        a('v_lshl_add_u32 %s, %s, 2, %s' % (vr(t1), vr(VP), vr(t1)))
        a('s_lshr_b32 s90, s%d, 1' % sW)
        a('s_lshl_b32 s90, s90, 5')
        a('s_and_b32 s91, s%d, 1' % sW)
        a('s_lshl_b32 s91, s91, 3')
        a('s_add_u32 s90, s90, s91')
        a('v_add_u32 %s, s90, %s' % (vr(t1), vr(t1)))
        a('v_mul_u32_u24 %s, 2560, %s' % (vr(VO), vr(t1)))
        a('v_lshl_add_u32 %s, %s, 4, %s' % (vr(VO), vr(t2), vr(VO)))
        a('v_mul_u32_u24 %s, 1280, %s' % (vr(VX), vr(t1)))
        a('v_lshl_add_u32 %s, %s, 3, %s' % (vr(VX), vr(t2), vr(VX)))
        a('s_mul_i32 s90, s%d, 160' % sC2)
        a('v_lshlrev_b32 %s, 3, %s' % (vr(VD), vr(t2)))
        a('v_add_u32 %s, s90, %s' % (vr(VD), vr(VD)))
        a('s_and_b32 s90, s%d, 1' % sR2)
        a('s_lshl_b32 s90, s90, 6')
        a('v_add_u32 %s, s90, %s' % (vr(VG), vr(t1)))
        a('v_lshlrev_b32 %s, 2, %s' % (vr(VG), vr(VG)))
        a('v_add_u32 %s, %d, %s' % (vr(VG), L_GATE, vr(VG)))
        a('s_mul_i32 s90, s%d, %d' % (sR2, 64 * 1280))
        a('s_mul_i32 s91, s%d, 160' % sC2)
        a('s_add_u32 s90, s90, s91')
        for dt in range(5):
            a('buffer_load_dwordx2 %s, %s, %s, s90 offen offset:%d' % (vr(SK + 2 * dt, 2), vr(VX), srd(R_X), 32 * dt))
            a('global_load_dwordx2 %s, %s, s[%d:%d] offset:%d' % (vr(SK + 10 + 2 * dt, 2), vr(VD), S_DSK, S_DSK + 1, 32 * dt))
        HD = o.get('hdepth', 4)
        WD = min(22, NE + (len(pool) - 4 * o.get('hres', 4)) // 5)
        NL = 22 - WD if o.get('wlds', 1) else 0
        assert NL * 5 * 1024 <= 35840
        for k in range(NE, WD):
            put_groups(w_groups(k))
        if NL:
            a('s_mul_i32 s94, s%d, 35840' % sW)
            a('v_add_u32 %s, s94, %s' % (vr(VLWR), vr(VL16)))
            for k in range(WD, 22):
                a('s_mul_i32 s%d, s%d, 5120' % (P.sWk, KS[k]))
                a('s_add_u32 s%d, s%d, s%d' % (P.sWk, P.sWk, P.sWB))
                for dt in range(5):
                    a('s_add_u32 m0, s94, %d' % (((k - WD) * 5 + dt) * 1024))
                    if dt:
                        a('s_add_u32 s%d, s%d, 1024' % (P.sWk, P.sWk))
                    else:
                        a('s_nop 0')
                    a('buffer_load_dwordx4 %s, %s, s%d offen sc1 lds' % (vr(VL16), srd(R_WS), P.sWk))
        self.stamp(9)
        a('ds_read_b32 %s, %s' % (vr(VG), vr(VG)))
        a('s_lshl_b32 s90, s%d, 2' % sR)
        a('s_and_b32 s95, s%d, 1' % sR2)
        a('s_lshl_b32 s95, s95, 1')
        a('s_add_u32 s90, s90, s95')
        a('s_lshl_b32 s90, s90, 7')
        a('s_add_u32 s95, s90, 0x%x' % FLAG_OFF)
        a('v_and_b32 %s, 31, v0' % vr(t0))
        a('v_lshlrev_b32 %s, 3, %s' % (vr(t0), vr(t0)))
        self.poll('L_pfl', t0, 95, VP)
        a('s_cmp_lg_u32 s%d, 31' % sR2)
        a('s_cbranch_scc1 L_noep')
        a('s_cmp_lg_u32 s%d, 0' % sC2)
        a('s_cbranch_scc1 L_noep')
        a('v_mov_b32 %s, s%d' % (vr(t1), sTAG))
        a('v_mov_b32 %s, 0x%x' % (vr(t0), EPOCH_OFF))
        a('buffer_store_dword %s, %s, %s, 0 offen sc1' % (vr(t1), vr(t0), srd(R_WS)))
        a.waitcnt(vm=0)
        a.label('L_noep')
        self.stamp(10)
        self.stamp((2, 4))
        self.stamp((3, 9))
        self.stamp((3, 10), clock=True)
        nh = 0
        while nh < HD:
            put_groups(h_groups(nh))
            nh += 1
        nw = WD

        TS = 96
        skip = []
        for dt in range(5):
            xs, ds = SK + 2 * dt, SK + 10 + 2 * dt
            L = ['v_lshlrev_b32 %s, 16, %s' % (vr(TS), vr(xs)), 'v_lshlrev_b32 %s, 16, %s' % (vr(TS + 1), vr(ds)),
                 'v_and_b32 %s, 0xffff0000, %s' % (vr(xs), vr(xs)), 'v_and_b32 %s, 0xffff0000, %s' % (vr(ds), vr(ds)),
                 'v_mul_f32 %s, %s, %s' % (vr(xs), vr(xs), vr(ds)),
                 'v_mul_f32 %s, %s, %s' % (vr(ds), vr(TS), vr(TS + 1)),
                 'v_lshlrev_b32 %s, 16, %s' % (vr(TS), vr(xs + 1)), 'v_lshlrev_b32 %s, 16, %s' % (vr(TS + 1), vr(ds + 1)),
                 'v_and_b32 %s, 0xffff0000, %s' % (vr(xs + 1), vr(xs + 1)), 'v_and_b32 %s, 0xffff0000, %s' % (vr(ds + 1), vr(ds + 1)),
                 'v_mul_f32 %s, %s, %s' % (vr(xs + 1), vr(xs + 1), vr(ds + 1)),
                 'v_mul_f32 %s, %s, %s' % (vr(ds + 1), vr(TS), vr(TS + 1))]
            skip += [[Ins(x)] for x in L]
        s_skip = Stream(skip, per=1, every=2)

        def skr(dt, r):
            return (SK + 10 + 2 * dt, SK + 2 * dt, SK + 10 + 2 * dt + 1, SK + 2 * dt + 1)[r]

        GAP = o.get('gap', 72)
        HMAX = o.get('hmax', 7)
        st = dict(nh=nh, hj=0, nw=nw, wj=0, t=0)

        def next_load(k):
            can_h = st['nh'] < 22 and st['nh'] <= k + HMAX and pool
            can_w = st['nw'] < 22 and pool
            urgent_w = can_w and st['nw'] <= k + o.get('wlead', 5)
            if can_h and not (urgent_w and st['nw'] <= st['nh']):
                kk, dl = st['nh'], st['hj']
                r = pool.pop(0)
                hq[(kk, dl)] = r
                hd = []
                if dl == 0:
                    hd = [Ins('s_lshl_b32 s%d, s%d, 12' % (P.sHk, KS[kk])), Ins('s_add_u32 s%d, s%d, s%d' % (P.sHk, P.sHk, P.sWB if o.get('fakeH') == 2 else P.sHB))]
                st['hj'] += 1
                if st['hj'] == 4:
                    st['hj'] = 0
                    st['nh'] += 1
                return hd + [Ins('buffer_load_dwordx4 %s, %s, %s, s%d offen %s' % (q(r), vr(VH + dl), srd(R_WS), P.sHB if o.get('fakeH') == 1 else P.sHk, HLD))]
            if can_w:
                kk, dt = st['nw'], st['wj']
                r = pool.pop(0)
                wq[(kk, dt)] = r
                hd = []
                if NL:
                    st['wj'] += 1
                    if st['wj'] == 5:
                        st['wj'] = 0
                        st['nw'] += 1
                    return [Ins('ds_read_b128 %s, %s offset:%d' % (q(r), vr(VLWR), ((kk - WD) * 5 + dt) * 1024))]
                if dt == 0:
                    hd = [Ins('s_mul_i32 s%d, s%d, 5120' % (P.sWk, KS[kk])), Ins('s_add_u32 s%d, s%d, s%d' % (P.sWk, P.sWk, P.sWB))]
                if dt < 4:
                    ld = Ins('buffer_load_dwordx4 %s, %s, %s, s%d offen offset:%d sc1' % (q(r), vr(VL16), srd(R_WS), P.sWk, dt * 1024))
                else:
                    ld = Ins('buffer_load_dwordx4 %s, %s, %s, s%d offen sc1' % (q(r), vr(VL16B), srd(R_WS), P.sWk))
                st['wj'] += 1
                if st['wj'] == 5:
                    st['wj'] = 0
                    st['nw'] += 1
                return hd + [ld]
            return None

        for k in range(22):
            while (st['nh'] <= k) or (st['nw'] <= k):
                g = next_load(k) if st['nh'] <= k else None
                if g is None or st['nh'] > k:
                    save = st['nh']
                    st['nh'] = 22
                    g2 = next_load(k) if g is None else None
                    st['nh'] = save
                    g = g or g2
                assert g is not None
                for x in g:
                    a.put(x)
            n = 0
            for dt in range(5):
                for dl in range(4):
                    c = '0' if k == 0 else vr(acc(dt, dl), 4)
                    a.put(Ins('v_mfma_f32_16x16x32_bf16 %s, %s, %s, %s' % (vr(acc(dt, dl), 4), q(wq[(k, dt)]), q(hq[(k, dl)]), c)))
                    now = (20 * k + n + 1) * 16
                    if NL and st['nw'] < 22 and st['nw'] <= k + 2 and n % 4 == 2 and pool:
                        save = st['nh']
                        st['nh'] = 22
                        g = next_load(k)
                        st['nh'] = save
                        for x in g:
                            a.put(x)
                    elif now >= st['t']:
                        savew = st['nw']
                        if NL:
                            st['nw'] = 22
                        g = next_load(k)
                        if NL:
                            st['nw'] = savew
                        if g is not None:
                            for x in g:
                                a.put(x)
                            st['t'] = max(st['t'] + GAP, now)
                    elif k >= o.get('skipk', 10) and n % 2 == 1 and not s_skip.done():
                        for x in s_skip.groups[s_skip.i]:
                            a.put(x)
                        s_skip.i += 1
                    n += 1
            for dt in range(5):
                pool.append(wq[(k, dt)])
            for dl in range(4):
                pool.append(hq[(k, dl)])
            if k in (0, 2, 5, 9, 13, 17):
                self.stamp((2, 5 + (0, 2, 5, 9, 13, 17).index(k)))
        assert st['nh'] == 22 and st['nw'] == 22
        while not s_skip.done():
            a.put(s_skip.groups[s_skip.i][0])
            s_skip.i += 1
        self.stamp(11)
        self.stamp((2, 11))
        self.stamp((3, 11))
        self.stamp((3, 8), clock=True)
        if NL:
            a.waitcnt(lg=0)
            a('s_barrier')
        for dl in range(1, 4):
            for dt in range(5):
                a('ds_write_b128 %s, %s offset:%d' % (vr(VRW + dl - 1), vr(acc(dt, dl), 4), dt * 1024))
        for dt in range(5):
            for r in range(4):
                a('v_fmac_f32 %s, %s, %s' % (vr(acc(dt, 0) + r), vr(VG), vr(skr(dt, r))))
        a('s_mul_i32 s90, s%d, %d' % (sR2, 64 * 2560))
        a('s_mul_i32 s91, s%d, 320' % sC2)
        a('s_add_u32 s90, s90, s91')
        a.waitcnt(lg=0)
        a('s_barrier')
        RB = 128
        for dt in range(5):
            for sl in range(3):
                a('ds_read_b128 %s, %s offset:%d' % (vr(RB + 4 * (3 * dt + sl), 4), vr(VRR), (sl * 5 + dt) * 1024))
        for dt in range(5):
            b = RB + 12 * dt
            for r in range(4):
                a('v_add_f32 %s, %s, %s' % (vr(b + r), vr(b + r), vr(b + 4 + r)))
            for r in range(4):
                a('v_add_f32 %s, %s, %s' % (vr(acc(dt, 0) + r), vr(acc(dt, 0) + r), vr(b + 8 + r)))
            for r in range(4):
                a('v_add_f32 %s, %s, %s' % (vr(acc(dt, 0) + r), vr(acc(dt, 0) + r), vr(b + r)))
            a('buffer_store_dwordx4 %s, %s, %s, s90 offen offset:%d %s' % (vr(acc(dt, 0), 4), vr(VO), srd(R_OUT), 64 * dt, {0: '', 1: 'sc1', 2: 'nt', 3: 'sc0 sc1'}[o.get('outmode', 0)]))

    def weave2(self, main, loads, every, extra):
        a = self.a
        for n, it in enumerate(main):
            a.put(it)
            if n % every == 0 and loads:
                for x in loads.pop(0):
                    a.put(x)
            elif extra is not None and n % 2 == 1 and not extra.done():
                for x in extra.groups[extra.i]:
                    a.put(x)
                extra.i += 1

    def kernel(self):
        a = self.a
        self.prologue()
        a('s_cmp_ge_u32 s%d, 6' % sCC)
        a.settle()
        a('s_cbranch_scc1 L_typeB')
        snap = a.snapshot()
        self.phase1('A')
        a('s_branch L_phase2')
        a.label('L_typeB')
        a.restore(snap)
        self.phase1('B')
        a.label('L_phase2')
        self.phase2()
        self.dump_stamps()
        a.label('L_exit')
        a('s_endpgm')
        head = open('gated_mix__ssm_conv_s5__dense_activation_relu__prompt.s.ref').read().split('\n')
        hdr = [ln for ln in head if ln.startswith(';') and '@launch' not in ln and 'Override' not in ln and 'grid=ceil' not in ln]
        out = '\n'.join(hdr) + '\n'
        out += '; @launch grid=(256,1,1) block=(256,1,1) lds=%d\n' % LDS_BYTES
        out += '.amdgcn_target "amdgcn-amd-amdhsa--gfx950"\n.text\n.globl %s\n.p2align 8\n.type %s,@function\n%s:\n' % (KNAME, KNAME, KNAME)
        out += a.text()
        out += '''.section .rodata,"a"
.p2align 6
.amdhsa_kernel %s
  .amdhsa_next_free_vgpr 512
  .amdhsa_next_free_sgpr 102
  .amdhsa_accum_offset 256
  .amdhsa_group_segment_fixed_size 0
  .amdhsa_kernarg_size 128
  .amdhsa_user_sgpr_count 2
  .amdhsa_user_sgpr_kernarg_segment_ptr 1
  .amdhsa_system_sgpr_workgroup_id_x 1
  .amdhsa_float_denorm_mode_32 3
.end_amdhsa_kernel
''' % KNAME
        return out


if __name__ == '__main__':
    opts = {}
    for arg in sys.argv[2:]:
        k, v = arg.split('=')
        opts[k] = int(v, 0)
    g = Gen(opts)
    txt = g.kernel()
    open(sys.argv[1], 'w').write(txt)
    print('instructions', g.a.n_ins, g.a.stats, 'nop states', g.a.nop_states, 'bytes of text', len(txt))
```

```python
import sys, math, struct
from asmgen import Asm, Ins, WaitVM, WaitLG, Stream, weave

KNAME = 'gated_mix__ssm_conv_s5__dense_activation_relu__prompt_kernel'

EPOCH_OFF = 0
FLAG_OFF = 0x1000
WF_OFF = 0x4000
AGG_OFF = 0x10000
WT_OFF = 0x40000
H_OFF = 0x400000
STAMP_OFF = 0x1000000
WS_BYTES = 268435456
OOB = 0x40000000

SLOT = 20480
MISC = 7 * SLOT
XS = 4 * SLOT
L_GW = MISC + 4096
L_GATE = L_GW + 2048
L_WST = L_GATE + 512
L_SEG = L_WST + 8192
L_LB = L_WST
LDS_BYTES = 163840
assert L_SEG + 5120 <= LDS_BYTES and XS + 65536 <= L_GW

S_X, S_LRE, S_LIM, S_BRE, S_BIM, S_CRE, S_CIM, S_LDT = 4, 6, 8, 10, 12, 14, 16, 18
S_DSK, S_BX, S_W1, S_W2, S_GWP, S_OUT, S_DBG, S_WS = 20, 22, 24, 26, 28, 30, 32, 34
R_X, R_WS, R_BRE, R_BIM, R_W1, R_W2, R_GW = 36, 40, 44, 48, 52, 56, 60
R_CI = 60
R_OUT = 48
sTAG, sTAG2, sW, sR, sG, sA, sR2, sC2, sC16, sHALF, sCC, sRHO = 64, 65, 66, 67, 68, 69, 70, 71, 72, 73, 74, 75
S_MASK = 76
sKO = 76
sE = 3
sW10, sGWI, sHF, sHS = 99, 98, 22, 23
sFB, sXS = 28, 4


def srd(r):
    return 's[%d:%d]' % (r, r + 3)


def vr(b, n=1):
    return 'v%d' % b if n == 1 else 'v[%d:%d]' % (b, b + n - 1)


def ar(b, n=1):
    return 'a%d' % b if n == 1 else 'a[%d:%d]' % (b, b + n - 1)


def f2u(x):
    return struct.unpack('<I', struct.pack('<f', x))[0]


def magic(d):
    return (1 << 32) // d + 1


LOG2E = '0x%08x' % f2u(math.log2(math.e))
INV2PI = '0x%08x' % f2u(1.0 / (2 * math.pi))


class P2:
    VL16, VL16B = 14, 15
    KS = list(range(4, 20)) + list(range(52, 58))
    sWB, sHB, sWk, sHk = 24, 25, 26, 27

    def __init__(self, opts):
        self.o = opts
        top = 240 if opts.get('stamps') else 256
        self.early_quads = [('a', r) for r in range(160, top, 4)] + [('v', r) for r in range(192, 256, 4)]
        self.n_early = min(opts.get('nearly', 22), len(self.early_quads) // 5)
        self.wq = {}
        for k in range(self.n_early):
            for dt in range(5):
                self.wq[(k, dt)] = self.early_quads[5 * k + dt]
        self.n_early2 = opts.get('nearly2', 5)
        self.early2_quads = [('a', 4 * j) for j in range(5 * self.n_early2)]
        for k in range(self.n_early2):
            for dt in range(5):
                self.wq[(self.n_early + k, dt)] = self.early2_quads[5 * k + dt]

    @staticmethod
    def q(x):
        return (vr if x[0] == 'v' else ar)(x[1], 4)

    def tables(self, late=False):
        KS, o = self.KS, self.o
        gr = []
        if not late:
            L = ['v_add_u32 %s, 4096, %s' % (vr(self.VL16B), vr(self.VL16)),
                 's_mul_i32 s%d, s%d, %d' % (self.sWB, sC2, 88 * 5120), 's_add_u32 s%d, s%d, 0x%x' % (self.sWB, self.sWB, WT_OFF),
                 's_mul_i32 s%d, s%d, %d' % (self.sHB, sR2, 88 * 4096), 's_add_u32 s%d, s%d, 0x%x' % (self.sHB, self.sHB, H_OFF),
                 's_mul_i32 s34, s%d, 10' % sW, 's_add_u32 s34, s34, 48',
                 's_mul_i32 s35, s%d, 12' % sW, 's_sub_u32 s35, s35, 10']
            mode = o.get('rot2', 0)
            if mode == 0:
                L += ['s_mov_b32 s96, 0']
            else:
                L += ['s_and_b32 s96, s%d, 3' % sC2, 's_mul_i32 s96, s96, %d' % o.get('rotc', 5)]
                if mode == 2:
                    L += ['s_and_b32 s95, s%d, 7' % sR2, 's_mul_i32 s95, s95, %d' % o.get('rotr', 3), 's_add_u32 s96, s96, s95']
            gr = [[Ins(x)] for x in L]
            for rep in range(2):
                gr.append([Ins('s_cmp_ge_u32 s96, 22'), Ins('s_cselect_b32 s95, 22, 0'), Ins('s_sub_u32 s96, s96, s95')])
            rng = range(16)
        else:
            gr = [[Ins('s_mov_b32 s96, s29')]]
            rng = range(16, 22)
        for k in rng:
            gr.append([Ins('s_cmp_lt_u32 s96, 10'), Ins('s_cselect_b32 s95, s34, s35'), Ins('s_add_u32 s%d, s95, s96' % KS[k])])
            gr.append([Ins('s_add_u32 s96, s96, 1')])
            gr.append([Ins('s_cmp_eq_u32 s96, 22'), Ins('s_cselect_b32 s96, 0, s96')])
        if not late:
            gr.append([Ins('s_mov_b32 s29, s96')])
        return gr

    def w_loads(self, k, quads):
        gr = []
        for dt in range(5):
            hd = []
            if dt == 0:
                hd = [Ins('s_mul_i32 s%d, s%d, 5120' % (self.sWk, self.KS[k])), Ins('s_add_u32 s%d, s%d, s%d' % (self.sWk, self.sWk, self.sWB))]
            if dt < 4:
                ld = Ins('buffer_load_dwordx4 %s, %s, %s, s%d offen offset:%d sc1' % (self.q(quads[dt]), vr(self.VL16), srd(R_WS), self.sWk, dt * 1024))
            else:
                ld = Ins('buffer_load_dwordx4 %s, %s, %s, s%d offen sc1' % (self.q(quads[dt]), vr(self.VL16B), srd(R_WS), self.sWk))
            gr.append(hd + [ld])
        return gr

    def early2_w(self):
        gr = []
        for k in range(self.n_early, self.n_early + self.n_early2):
            gr += self.w_loads(k, [self.wq[(k, dt)] for dt in range(5)])
        return gr

    def early_w(self):
        gr = []
        for k in range(self.n_early):
            gr += self.w_loads(k, [self.wq[(k, dt)] for dt in range(5)])
        return gr


class Gen:
    def __init__(self, opts):
        self.o = opts
        self.a = Asm()
        self.p2 = P2(opts)

    def stamp(self, k, clock=False):
        if not self.o.get('stamps'):
            return
        det = self.o.get('detail', 0)
        if isinstance(k, tuple):
            if k[0] != det:
                return
            k = k[1]
        elif det and (5 <= k <= 11 or (det == 3 and k in (1, 2, 3))):
            return
        a = self.a
        a('%s s[100:101]' % ('s_memtime' if clock else 's_memrealtime'))
        a.waitcnt(lg=0)
        a('v_accvgpr_write_b32 a%d, s100' % (240 + k))

    def dump_stamps(self):
        if not self.o.get('stamps'):
            return
        a = self.a
        self.stamp(12)
        self.stamp(14, clock=True)
        a.drain()
        for k in range(16):
            a('v_accvgpr_read_b32 v%d, a%d' % (16 + k, 240 + k))
        a('s_lshl_b32 s90, s2, 2')
        a('s_add_u32 s90, s90, s%d' % sW)
        a('s_lshl_b32 s90, s90, 6')
        a('s_add_u32 s90, s90, 0x%x' % STAMP_OFF)
        a('v_mov_b32 v1, 0')
        for k in range(4):
            a('buffer_store_dwordx4 v[%d:%d], v1, %s, s90 offen offset:%d' % (16 + 4 * k, 19 + 4 * k, srd(R_WS), 16 * k))
        a.waitcnt(vm=0)

    def build_srd(self, r, ptr, nbytes):
        a = self.a
        a('s_mov_b32 s%d, s%d' % (r, ptr))
        a('s_and_b32 s%d, s%d, 0xffff' % (r + 1, ptr + 1))
        a('s_mov_b32 s%d, 0x%x' % (r + 2, nbytes))
        a('s_mov_b32 s%d, 0x20000' % (r + 3))

    def swap23(self, dst, src, tmp):
        a = self.a
        a('v_and_b32 %s, 19, %s' % (vr(dst), vr(src)))
        a('v_bfe_u32 %s, %s, 2, 1' % (vr(tmp), vr(src)))
        a('v_lshl_add_u32 %s, %s, 3, %s' % (vr(dst), vr(tmp), vr(dst)))
        a('v_bfe_u32 %s, %s, 3, 1' % (vr(tmp), vr(src)))
        a('v_lshl_add_u32 %s, %s, 2, %s' % (vr(dst), vr(tmp), vr(dst)))

    def lane_t(self, dst, src, tmp):
        a = self.a
        a('v_bfe_u32 %s, %s, 2, 1' % (vr(tmp), vr(src)))
        a('v_lshlrev_b32 %s, 4, %s' % (vr(tmp), vr(tmp)))
        a('v_and_b32 %s, 3, %s' % (vr(dst), vr(src)))
        a('v_add_u32 %s, %s, %s' % (vr(dst), vr(dst), vr(tmp)))
        a('v_lshrrev_b32 %s, 3, %s' % (vr(tmp), vr(src)))
        a('v_lshl_add_u32 %s, %s, 2, %s' % (vr(dst), vr(tmp), vr(dst)))

    XD, XR = 48, 52
    PO, GO0, GO1 = 56, 57, 58
    CD, CR = 60, 62

    def prologue(self):
        a, o = self.a, self.o
        a('s_cmp_ge_u32 s2, 256')
        a('s_cbranch_scc1 L_exit')
        self.stamp(0)
        self.stamp(13, clock=True)
        a('s_load_dwordx16 s[4:19], s[0:1], 0')
        a('s_load_dwordx16 s[20:35], s[0:1], 64')
        if o.get('codepf', 1):
            a('s_getpc_b64 s[92:93]')
            a.label('L_pc')
            a('s_lshr_b32 s90, s2, 3')
            a('s_lshl_b32 s90, s90, 2')
            a('v_lshrrev_b32 v1, 6, v0')
            a('v_add_u32 v1, s90, v1')
            a('v_mul_u32_u24 v1, 3, v1')
            a('v_and_b32 v2, 63, v0')
            a('v_min_u32 v2, 2, v2')
            a('v_add_u32 v1, v1, v2')
            a('v_lshlrev_b32 v1, 7, v1')
            a.raw('    v_min_u32 v1, L_exit-L_pc, v1')
            a('global_load_dword v47, v1, s[92:93]')
        a.many("""
            s_and_b32 s90, s2, 7
            s_lshr_b32 s91, s2, 3
            s_lshr_b32 s92, s90, 1
            s_and_b32 s%(half)d, s90, 1
            s_lshl_b32 s93, s92, 2
            s_lshr_b32 s94, s91, 3
            s_add_u32 s%(r)d, s93, s94
            s_and_b32 s%(cc)d, s91, 7
            s_lshl_b32 s93, s%(half)d, 3
            s_add_u32 s%(c16)d, s93, s%(cc)d
            s_lshl_b32 s93, s92, 3
            s_lshr_b32 s94, s91, 2
            s_add_u32 s%(r2)d, s93, s94
            s_lshl_b32 s93, s%(half)d, 2
            s_and_b32 s94, s91, 3
            s_add_u32 s%(c2)d, s93, s94
        """ % dict(half=sHALF, r=sR, cc=sCC, c16=sC16, r2=sR2, c2=sC2))
        a('v_lshrrev_b32 v1, 6, v0')
        a('v_and_b32 v0, 63, v0')
        a('v_readfirstlane_b32 s%d, v1' % sW)
        a.many("""
            s_mul_i32 s93, s%(half)d, 6
            s_add_u32 s%(A)d, s93, s%(cc)d
            s_lshl_b32 s93, s%(half)d, 1
            s_add_u32 s93, s93, s%(cc)d
            s_sub_u32 s93, s93, 6
            s_lshl_b32 s93, s93, 1
            s_add_u32 s93, s93, 12
            s_cmp_lt_u32 s%(cc)d, 6
            s_cselect_b32 s%(G)d, s%(A)d, s93
        """ % dict(half=sHALF, A=sA, cc=sCC, G=sG))
        a('s_and_b32 s90, s%d, 3' % sR)
        a('s_lshl_b32 s90, s90, 1')
        a('s_add_u32 s90, s90, s%d' % sCC)
        a('s_cmp_ge_u32 s90, 10')
        a('s_cselect_b32 s91, 10, 0')
        a('s_sub_u32 s%d, s90, s91' % sRHO)
        if not o.get('rot', 1):
            a('s_mov_b32 s%d, 0' % sRHO)
        a('s_lshl_b32 s%d, s%d, 7' % (sKO, sRHO))
        for k in range(1, 10):
            a('s_add_u32 s%d, s%d, 128' % (sKO + k, sKO + k - 1))
            a('s_cmp_ge_u32 s%d, 1280' % (sKO + k))
            a('s_cselect_b32 s%d, 0, s%d' % (sKO + k, sKO + k))
        a('s_lshl_b32 s%d, s%d, 10' % (sW10, sW))
        XD, CD = self.XD, self.CD
        a('v_lshrrev_b32 v64, 3, v0')
        a('v_and_b32 v65, 7, v0')
        a('v_lshrrev_b32 v66, 1, v64')
        a('v_xor_b32 v66, v66, v65')
        a('v_mul_u32_u24 v67, 1280, v64')
        a('v_lshl_add_u32 %s, v66, 4, v67' % vr(CD))
        a('v_xor_b32 %s, 64, %s' % (vr(CD + 1), vr(CD)))
        a('v_add_u32 %s, 10240, %s' % (vr(CD + 1), vr(CD + 1)))
        a('s_lshl_b32 s90, s%d, 2' % sR)
        a('s_add_u32 s90, s90, s%d' % sW)
        a('s_mul_i32 s90, s90, 40960')
        a('v_add_u32 %s, s90, %s' % (vr(XD), vr(CD)))
        a('v_add_u32 %s, s90, %s' % (vr(XD + 1), vr(CD + 1)))
        a('v_add_u32 %s, 20480, %s' % (vr(XD + 2), vr(XD)))
        a('v_add_u32 %s, 20480, %s' % (vr(XD + 3), vr(XD + 1)))
        a('s_lshl_b32 s90, s%d, 3' % sW)
        a('v_add_u32 v66, s90, v64')
        self.swap23(67, 66, 68)
        a('v_mul_u32_u24 v67, 1280, v67')
        a('v_bfe_u32 v68, v66, 1, 3')
        a('v_xor_b32 v68, v68, v65')
        a('v_lshl_add_u32 v3, v68, 4, v67')
        a('s_mul_i32 s90, s%d, 40960' % sG)
        a('v_add_u32 v3, s90, v3')
        a('v_and_b32 v66, 31, v0')
        self.swap23(67, 66, 68)
        a('v_lshlrev_b32 %s, 1, v67' % vr(self.PO))
        g0, g1 = self.GO0, self.GO1
        a('s_lshl_b32 s90, s%d, 3' % sRHO)
        a('v_add_u32 %s, s90, v0' % vr(g0))
        a('v_subrev_u32 v66, 80, %s' % vr(g0))
        a('v_cmp_le_u32 vcc, 80, %s' % vr(g0))
        a('v_cndmask_b32 %s, %s, v66, vcc' % (vr(g0), vr(g0)))
        a('v_add_u32 %s, 64, %s' % (vr(g1), vr(g0)))
        a('v_subrev_u32 v66, 80, %s' % vr(g1))
        a('v_cmp_le_u32 vcc, 80, %s' % vr(g1))
        a('v_cndmask_b32 %s, %s, v66, vcc' % (vr(g1), vr(g1)))
        a('v_lshlrev_b32 %s, 4, %s' % (vr(g0), vr(g0)))
        a('v_lshlrev_b32 %s, 4, %s' % (vr(g1), vr(g1)))
        a('v_cmp_gt_u32 vcc, 16, v0')
        a('v_cndmask_b32 %s, 0x%x, %s, vcc' % (vr(g1), OOB, vr(g1)))
        a.waitcnt(lg=0)
        self.stamp(1)
        a('s_load_dword s%d, s[%d:%d], 0x%x' % (sE, S_WS, S_WS + 1, EPOCH_OFF))
        self.build_srd(R_X, S_X, 2621440)
        self.build_srd(R_BRE, S_BRE, 819200)
        self.build_srd(R_GW, S_GWP, 1280)
        a('s_lshl_b32 s%d, s%d, 14' % (sXS, sW))
        a('s_add_u32 s%d, s%d, %d' % (sXS, sXS, XS))

    def phase1(self, typ):
        a, o = self.a, self.o
        A = typ == 'A'
        HST = {0: 'sc1', 1: 'sc0 sc1', 2: 'sc1 nt', 3: 'sc0 sc1 nt'}[o.get('hst', 0)]
        XD, XR, CD, CR = self.XD, self.XR, self.CD, self.CR
        V = {'WS': 3}
        nxt = [4]

        def al(name, n=1):
            V[name] = nxt[0]
            nxt[0] += n
        for nm in ('WF', 'ST', 'AG', 'LB0', 'LB1', 'SEGW', 'SEGR', 'GW', 'G', 'OMG', 'W2D', 'W2R'):
            al(nm)
        al('RS', 4)
        if A:
            al('RF', 6)
        else:
            al('WS2')
        ngrp = 1 if A else 2
        for g in range(ngrp):
            for nm in ('lr', 'li', 'nli', 'l16r', 'l16i', 'lsr', 'lsi', 'p1r', 'p1i', 'p2r', 'p2i', 'cr', 'ci'):
                al('%s%d' % (nm, g))
        assert nxt[0] <= 47, nxt[0]
        RING = 96
        RING_ADDR = 92
        PT = 80
        ACC = [128, 160]
        GACC = 160
        FA = [160, 176]
        A_GW = 160

        def XF(s):
            return ar(4 * s, 4)

        def put_all(items):
            for it in items:
                if isinstance(it, list):
                    put_all(it)
                elif callable(it):
                    it()
                else:
                    a.put(it)

        def ssm_dma(g, stage, slot):
            R = R_BRE if stage % 2 == 0 else R_BIM
            kh = stage // 2
            ws_ = V['WS'] if g == 0 else V['WS2']
            grp = []
            last = None
            for kb in range(5):
                last = Ins('buffer_load_dwordx4 %s, %s, s%d offen lds' % (vr(ws_), srd(R), sKO + 5 * kh + kb))
                grp.append([Ins('s_add_u32 m0, s%d, %d' % (sW10, slot * SLOT + kb * 4096)), Ins('s_nop 0'), last])
            return grp, last

        s_dma = {}

        def s_load(g, m, kap):
            kh, kb = kap // 5, kap % 5
            slot = slot_of[4 * g + 2 * kh + m]
            ws_ = V['WS'] if g == 0 else V['WS2']
            ld = Ins('buffer_load_dwordx4 %s, %s, s%d offen lds' % (vr(ws_), srd(R_BIM if m else R_BRE), sKO + kap))
            s_dma[(g, m, kap)] = ld
            return [Ins('s_add_u32 m0, s%d, %d' % (sW10, slot * SLOT + kb * 4096)), Ins('s_nop 0'), ld]

        def ffn_dma(fst, slot):
            blk, st = fst >> 2, fst & 3
            grp = []
            last = None
            for i2 in range(5):
                c = (160 * st + 32 * i2) * 3072 + 128 * blk
                last = Ins('buffer_load_dwordx4 %s, %s, %s offen lds' % (vr(V['WF']), srd(R_W1), '0' if o.get('fakeF') else 's92'))
                grp.append([Ins('s_add_u32 s92, s%d, %d' % (sFB, c)),
                            Ins('s_cmp_ge_u32 s92, %d' % (640 * 3072)),
                            Ins('s_cselect_b32 s93, %d, 0' % (640 * 3072)),
                            Ins('s_add_u32 m0, s%d, %d' % (sW10, slot * SLOT + i2 * 4096)),
                            Ins('s_sub_u32 s92, s92, s93'),
                            last])
            return grp, last

        x_dma_last, x_rd_last = {}, {}

        def xdma(kap):
            grp = []
            for g in range(4):
                ld = Ins('buffer_load_dwordx4 %s, %s, %s offen lds' % (vr(XD + g), srd(R_X), '0' if (o.get('fakeX') and kap >= 4) else 's%d' % (sKO + kap)))
                grp.append([Ins('s_add_u32 m0, s%d, %d' % (sXS, (kap % 4) * 4096 + g * 1024)), Ins('s_nop 0'), ld])
                x_dma_last[kap] = ld
            return grp

        def xread(kap):
            grp = []
            for j in range(4):
                rd = Ins('ds_read_b128 %s, %s offset:%d' % (XF(4 * kap + j), vr(XR + j), (kap % 4) * 4096))
                grp.append(([WaitVM(x_dma_last[kap])] if j == 0 else []) + [rd])
                x_rd_last[kap] = rd
            return grp

        def xrefill(kap):
            g = xdma(kap)
            g[0] = [WaitLG(x_rd_last[kap - 4])] + g[0]
            return g

        if A:
            seq = [('S', 0, i) for i in range(4)] + [('F', 0, i) for i in range(8)]
            slot_of = [0, 1, 2, 3, 0, 1, 4, 5, 6, 2, 3, 0]
        else:
            seq = [('S', 0, i) for i in range(4)] + [('S', 1, i) for i in range(4)]
            slot_of = [0, 1, 2, 3, 0, 1, 4, 5]
        dma_last = [None] * len(seq)

        def stage_loads(i):
            kind, g, st = seq[i]
            grp, last = ssm_dma(g, st, slot_of[i]) if kind == 'S' else ffn_dma(st, slot_of[i])
            dma_last[i] = last
            return grp

        if not A:
            a('v_add_u32 %s, 40960, %s' % (vr(V['WS2']), vr(V['WS'])))
        self.build_srd(R_BIM, S_BIM, 819200)
        put_all(xdma(0))
        put_all([s_load(0, 0, 0), s_load(0, 1, 0)])
        put_all(xdma(1))
        put_all([s_load(0, 0, 1), s_load(0, 1, 1)])
        for g in range(ngrp):
            a('s_add_u32 s90, s%d, %d' % (sG, g))
            a('s_lshl_b32 s90, s90, 6')
            a('v_add_u32 v59, s90, %s' % vr(self.PO))
            a('global_load_ushort %s, v59, s[%d:%d]' % (vr(V['lr%d' % g]), S_LRE, S_LRE + 1))
            a('global_load_ushort %s, v59, s[%d:%d]' % (vr(V['li%d' % g]), S_LIM, S_LIM + 1))
            a('global_load_ushort %s, v59, s[%d:%d]' % (vr(V['cr%d' % g]), S_LDT, S_LDT + 1))
        a('s_mov_b32 m0, %d' % L_GW)
        a('s_nop 0')
        a('buffer_load_dwordx4 %s, %s, 0 offen lds' % (vr(self.GO0), srd(R_GW)))
        a('s_mov_b32 m0, %d' % (L_GW + 1024))
        a('s_nop 0')
        gw_dma = a('buffer_load_dwordx4 %s, %s, 0 offen lds' % (vr(self.GO1), srd(R_GW)))

        self.stamp(2)

        def G(lines):
            return [[Ins(x)] for x in lines]

        U0, U1, U2, U3, U4 = PT, PT + 1, PT + 2, PT + 3, PT + 4
        a('v_and_b32 %s, 31, v0' % vr(U0))
        a('v_lshrrev_b32 %s, 5, v0' % vr(U1))
        self.lane_t(U2, U0, U3)
        a('v_bfe_u32 %s, %s, 1, 3' % (vr(U3), vr(U2)))
        a('v_lshlrev_b32 %s, 1, %s' % (vr(U4), vr(U1)))
        a('v_xor_b32 %s, %s, %s' % (vr(U3), vr(U3), vr(U4)))
        a('v_lshlrev_b32 %s, 7, %s' % (vr(U2), vr(U2)))
        a('v_add_u32 %s, s%d, %s' % (vr(U2), sXS, vr(U2)))
        for u in range(2):
            for ab in range(2):
                d = XR + 2 * u + ab
                a('v_xor_b32 %s, %d, %s' % (vr(d), 4 * u + ab, vr(U3)))
                a('v_lshl_add_u32 %s, %s, 4, %s' % (vr(d), vr(d), vr(U2)))
        a('v_lshlrev_b32 %s, 5, %s' % (vr(V['GW']), vr(U1)))
        a('v_add_u32 %s, %d, %s' % (vr(V['GW']), L_GW, vr(V['GW'])))
        a('v_bfe_u32 %s, %s, 1, 3' % (vr(U2), vr(U0)))
        a('v_xor_b32 %s, %s, %s' % (vr(U2), vr(U2), vr(U4)))
        a('v_lshlrev_b32 %s, 7, %s' % (vr(U3), vr(U0)))
        for u in range(2):
            for ab in range(2):
                d = V['RS'] + 2 * u + ab
                a('v_xor_b32 %s, %d, %s' % (vr(d), 4 * u + ab, vr(U2)))
                a('v_lshl_add_u32 %s, %s, 4, %s' % (vr(d), vr(d), vr(U3)))

        def gate_reads(half):
            return G(['ds_read_b128 %s, %s offset:%d' % (ar(A_GW + 4 * k, 4), vr(V['GW']), 64 * ((20 * half + k) >> 1) + 16 * (k & 1)) for k in range(20)])
        def late_scalars():
            L = []
            for r, ptr, nb in ((R_WS, S_WS, WS_BYTES), (R_W1, S_W1, 1966080), (R_W2, S_W2, 1966080)):
                L += ['s_mov_b32 s%d, s%d' % (r, ptr), 's_and_b32 s%d, s%d, 0xffff' % (r + 1, ptr + 1),
                      's_mov_b32 s%d, 0x%x' % (r + 2, nb), 's_mov_b32 s%d, 0x20000' % (r + 3)]
            L += ['s_lshl_b32 s90, s%d, 3' % sRHO, 's_add_u32 s90, s90, s%d' % sW, 's_mul_i32 s90, s90, 24576',
                  's_lshl_b32 s91, s%d, 8' % sA, 's_add_u32 s%d, s90, s91' % sFB]
            if A:
                t0, t1, t2 = PT, PT + 1, PT + 2
                L += ['v_lshrrev_b32 %s, 3, v0' % vr(t0),
                      'v_mul_u32_u24 %s, 3072, %s' % (vr(t1), vr(t0)),
                      'v_bfe_u32 %s, %s, 1, 1' % (vr(t0), vr(t0)),
                      'v_lshlrev_b32 %s, 2, %s' % (vr(t0), vr(t0)),
                      'v_and_b32 %s, 7, v0' % vr(t2),
                      'v_xor_b32 %s, %s, %s' % (vr(t0), vr(t0), vr(t2)),
                      'v_lshl_add_u32 %s, %s, 4, %s' % (vr(V['WF']), vr(t0), vr(t1))]
            return G(L)

        w2_dma = []
        c_dma = []

        def w2_setup():
            T0, T1 = PT + 3, PT + 4
            L = ['v_lshrrev_b32 %s, 1, v0' % vr(T0),
                 'v_mul_u32_u24 %s, 1280, %s' % (vr(T0), vr(T0)),
                 'v_and_b32 %s, 1, v0' % vr(T1),
                 'v_lshl_add_u32 %s, %s, 4, %s' % (vr(T0), vr(T1), vr(T0)),
                 's_lshl_b32 s90, s2, 2',
                 's_add_u32 s%d, s90, s%d' % (sGWI, sW),
                 's_cmp_lt_u32 s%d, 960' % sGWI]
            gr = G(L[:-1]) + [[Ins(L[-1]), Ins('s_cselect_b32 s91, 0, 0x%x' % OOB)]]
            gr += G(['v_add_u32 %s, s91, %s' % (vr(T0), vr(T0)),
                     'v_lshlrev_b32 %s, 4, v0' % vr(V['W2D']),
                     'v_add_u32 v1, s91, %s' % vr(V['W2D']),
                     's_min_u32 s91, s%d, 959' % sGWI,
                     's_lshl_b32 s91, s91, 1',
                     's_mul_hi_u32 s90, s91, 0x%x' % magic(240),
                     's_mul_i32 s94, s90, 240',
                     's_sub_u32 s91, s91, s94',
                     's_mul_i32 s94, s90, 440',
                     's_add_u32 s94, s94, s91',
                     's_lshl_b32 s94, s94, 10',
                     's_add_u32 s26, s94, 0x%x' % WT_OFF])
            for e in range(2):
                L = []
                if e:
                    L.append('s_add_u32 s91, s91, 1')
                L += ['s_mul_hi_u32 s94, s91, 0x%x' % magic(5),
                      's_mul_i32 s95, s94, 5',
                      's_sub_u32 s95, s91, s95',
                      's_mul_i32 s94, s94, 40960',
                      's_mul_i32 s96, s90, 160',
                      's_add_u32 s94, s94, s96',
                      's_lshl_b32 s95, s95, 5',
                      's_add_u32 s%d, s94, s95' % (27, 29)[e]]
                gr += G(L)
                ld = Ins('buffer_load_dwordx4 %s, %s, s%d offen lds' % (vr(T0), srd(R_W2), (27, 29)[e]))
                gr.append([Ins('s_add_u32 m0, s%d, %d' % (sW10, 2 * SLOT + 12288 + 4096 * e)), Ins('s_nop 0'), ld])
                w2_dma.append(ld)
            return gr

        _w2 = w2_setup()
        w2_setup_b = [g for g in _w2 if any(x.kind == 'vm' for x in g)]
        w2_setup_a = [g for g in _w2 if not any(x.kind == 'vm' for x in g)]
        assert len(w2_setup_b) == 2

        def c_setup():
            gr = [[Ins('s_cmp_lt_u32 s%d, 800' % sGWI), Ins('s_cselect_b32 s91, 0, 0x%x' % OOB)]]
            gr += G(['v_add_u32 %s, s91, %s' % (vr(CD), vr(CD)),
                     'v_add_u32 %s, s91, %s' % (vr(CD + 1), vr(CD + 1)),
                     'v_add_u32 v2, s91, %s' % vr(V['W2D']),
                     's_min_u32 s91, s%d, 799' % sGWI])
            gr.append([Ins('s_cmp_ge_u32 s91, 400'), Ins('s_cselect_b32 s90, 1, 0'),
                       Ins('s_cselect_b32 s%d, s%d, s%d' % (R_CI, S_CIM, S_CRE)),
                       Ins('s_cselect_b32 s%d, s%d, s%d' % (R_CI + 1, S_CIM + 1, S_CRE + 1))])
            gr += G(['s_and_b32 s%d, s%d, 0xffff' % (R_CI + 1, R_CI + 1),
                     's_mov_b32 s%d, 819200' % (R_CI + 2),
                     's_mov_b32 s%d, 0x20000' % (R_CI + 3),
                     's_mul_i32 s94, s90, 400',
                     's_sub_u32 s91, s91, s94',
                     's_mul_hi_u32 s94, s91, 0x%x' % magic(50),
                     's_mul_i32 s95, s94, 50',
                     's_sub_u32 s91, s91, s95',
                     's_mul_hi_u32 s95, s91, 0x%x' % magic(5),
                     's_mul_i32 s96, s95, 5',
                     's_sub_u32 s96, s91, s96',
                     's_mul_i32 s97, s94, 80',
                     's_lshl_b32 s91, s96, 4',
                     's_add_u32 s97, s97, s91',
                     's_mul_i32 s97, s97, 1280',
                     's_lshl_b32 s91, s95, 7',
                     's_add_u32 s24, s97, s91',
                     's_mul_i32 s90, s90, 20',
                     's_lshl_b32 s95, s95, 1',
                     's_add_u32 s90, s90, s95',
                     's_add_u32 s90, s90, 48',
                     's_mul_i32 s94, s94, 88',
                     's_add_u32 s90, s90, s94',
                     's_mul_i32 s90, s90, 5',
                     's_add_u32 s90, s90, s96',
                     's_lshl_b32 s90, s90, 10',
                     's_add_u32 s25, s90, 0x%x' % WT_OFF])
            return gr

        def item_addrs():
            U2, U3, U4 = PT + 5, PT + 6, PT + 7
            return G(['v_lshrrev_b32 %s, 5, v0' % vr(U2),
                      'v_lshlrev_b32 %s, 4, %s' % (vr(U2), vr(U2)),
                      'v_bfe_u32 %s, v0, 4, 1' % vr(U3),
                      'v_lshl_add_u32 %s, %s, 2, %s' % (vr(U2), vr(U3), vr(U2)),
                      'v_bfe_u32 %s, v0, 2, 2' % vr(U3),
                      'v_add_u32 %s, %s, %s' % (vr(U2), vr(U2), vr(U3)),
                      'v_lshlrev_b32 %s, 5, %s' % (vr(U2), vr(U2)),
                      'v_and_b32 %s, 3, v0' % vr(U3),
                      'v_lshl_add_u32 %s, %s, 3, %s' % (vr(U2), vr(U3), vr(U2)),
                      's_add_u32 s97, s%d, %d' % (sW10, 2 * SLOT + 12288),
                      'v_add_u32 %s, s97, %s' % (vr(V['W2R']), vr(U2)),
                      's_add_u32 s97, s%d, %d' % (sW10, 3 * SLOT + 12288),
                      'v_and_b32 %s, 15, v0' % vr(U2),
                      'v_lshrrev_b32 %s, 4, v0' % vr(U3),
                      'v_lshrrev_b32 %s, 1, %s' % (vr(U4), vr(U2)),
                      'v_xor_b32 %s, %s, %s' % (vr(U3), vr(U3), vr(U4)),
                      'v_lshlrev_b32 %s, 4, %s' % (vr(U3), vr(U3)),
                      'v_xor_b32 %s, 64, %s' % (vr(U4), vr(U3)),
                      'v_and_b32 %s, 7, %s' % (vr(PT + 9), vr(U2)),
                      'v_lshrrev_b32 %s, 3, %s' % (vr(U2), vr(U2)),
                      'v_lshlrev_b32 %s, 12, %s' % (vr(U2), vr(U2)),
                      'v_lshl_add_u32 %s, %s, 7, %s' % (vr(U2), vr(PT + 9), vr(U2)),
                      'v_add_u32 %s, s97, %s' % (vr(U2), vr(U2)),
                      'v_add_u32 %s, %s, %s' % (vr(CR), vr(U3), vr(U2)),
                      'v_add_u32 %s, %s, %s' % (vr(CR + 1), vr(U4), vr(U2))])

        def lane_consts():
            U0, U1, U2, U3 = PT, PT + 1, PT + 2, PT + 3
            SEGV, E0, E1 = PT + 8, PT + 9, PT + 10
            L = ['v_and_b32 %s, 31, v0' % vr(U0),
                 'v_lshrrev_b32 %s, 5, v0' % vr(U1),
                 'v_lshrrev_b32 %s, 4, %s' % (vr(U2), vr(U0)),
                 'v_lshlrev_b32 %s, 10, %s' % (vr(U2), vr(U2)),
                 'v_and_b32 %s, 15, %s' % (vr(U3), vr(U0)),
                 'v_lshl_add_u32 %s, %s, 4, %s' % (vr(U3), vr(U1), vr(U3)),
                 'v_lshl_add_u32 %s, %s, 4, %s' % (vr(V['ST']), vr(U3), vr(U2)),
                 'v_lshlrev_b32 %s, 4, %s' % (vr(V['AG']), vr(U0)),
                 'v_mul_u32_u24 %s, 80, %s' % (vr(V['SEGR']), vr(U0)),
                 'v_add_u32 %s, %d, %s' % (vr(V['SEGR']), MISC, vr(V['SEGR'])),
                 's_lshl_b32 s95, s%d, 1' % sW,
                 'v_add_u32 %s, s95, %s' % (vr(SEGV), vr(U1)),
                 'v_lshl_add_u32 %s, %s, 3, %s' % (vr(V['SEGW']), vr(SEGV), vr(V['SEGR']))]
            gr = G(L)
            for i2, E in ((0, E0), (1, E1)):
                gr += G(['v_add_u32 %s, %d, %s' % (vr(U3), 8 * i2, vr(SEGV)),
                         'v_sub_u32 %s, s%d, %s' % (vr(E), sR, vr(U3)),
                         'v_add_u32 %s, -1, %s' % (vr(E), vr(E))])
                gr.append([Ins('v_cmp_gt_u32 vcc, s%d, %s' % (sR, vr(U3))),
                           Ins('v_cndmask_b32 %s, -1, %s, vcc' % (vr(E), vr(E))),
                           Ins('v_cndmask_b32 %s, 0, %s, vcc' % (vr(U3), vr(U3)))])
                gr += G(['v_lshl_add_u32 %s, %s, 9, %s' % (vr(V['LB%d' % i2]), vr(U3), vr(V['AG']))])
            if A:
                jl, mh, tq = PT + 4, PT + 5, PT + 6
                L = ['v_and_b32 %s, 15, v0' % vr(jl),
                     'v_bfe_u32 %s, v0, 4, 1' % vr(mh),
                     'v_lshrrev_b32 %s, 2, %s' % (vr(U2), vr(jl)),
                     'v_lshl_add_u32 %s, %s, 4, %s' % (vr(U2), vr(U1), vr(U2)),
                     'v_lshlrev_b32 %s, 7, %s' % (vr(U2), vr(U2)),
                     'v_and_b32 %s, 1, %s' % (vr(U3), vr(jl)),
                     'v_lshl_add_u32 %s, %s, 3, %s' % (vr(U2), vr(U3), vr(U2)),
                     'v_bfe_u32 %s, %s, 1, 1' % (vr(U3), vr(jl)),
                     'v_lshl_add_u32 %s, %s, 1, %s' % (vr(U3), vr(mh), vr(U3)),
                     'v_bfe_u32 %s, %s, 3, 1' % (vr(tq), vr(jl)),
                     'v_lshlrev_b32 %s, 2, %s' % (vr(tq), vr(tq)),
                     'v_xor_b32 %s, %s, %s' % (vr(U3), vr(U3), vr(tq))]
                for tp in range(2):
                    d = V['RF'] + tp
                    L += ['v_xor_b32 %s, %d, %s' % (vr(d), 4 * tp, vr(U3)),
                          'v_lshl_add_u32 %s, %s, 4, %s' % (vr(d), vr(d), vr(U2)),
                          'v_add_u32 %s, %d, %s' % (vr(d + 2), 3 * SLOT, vr(d)),
                          'v_add_u32 %s, %d, %s' % (vr(d + 4), 6 * SLOT, vr(d))]
                gr += G(L)
            gr += G(['s_lshr_b32 s90, s%d, 1' % sW, 's_lshl_b32 s91, s%d, 1' % sR, 's_add_u32 s90, s90, s91',
                     's_mul_i32 s90, s90, %d' % (88 * 4096), 's_and_b32 s91, s%d, 1' % sW, 's_lshl_b32 s91, s91, 11',
                     's_add_u32 s90, s90, s91', 's_add_u32 s90, s90, 0x%x' % H_OFF, 's_lshl_b32 s91, s%d, 14' % sA,
                     's_add_u32 s%d, s90, s91' % sHF, 's_lshl_b32 s91, s%d, 12' % sG, 's_add_u32 s%d, s90, s91' % sHS,
                     's_add_u32 s%d, s%d, 1' % (sTAG, sE), 's_xor_b32 s%d, s%d, 0x5bd1e995' % (sTAG2, sTAG)])
            return gr

        def params(g):
            SEGV, E = PT + 8, (PT + 9, PT + 10)
            P0, P1, P2, P3, P4, P5, FM = PT, PT + 1, PT + 2, PT + 3, PT + 4, PT + 5, PT + 6
            lr, li, nli, cr, ci = (V[x + str(g)] for x in ('lr', 'li', 'nli', 'cr', 'ci'))

            def cpow(dr, di, m_reg, m_const):
                if m_reg is not None:
                    L = ['v_mul_f32 %s, %s, %s' % (vr(P2), vr(m_reg), vr(P3)), 'v_mul_f32 %s, %s, %s' % (vr(P5), vr(m_reg), vr(P4))]
                else:
                    L = ['v_mul_f32 %s, 0x%08x, %s' % (vr(P2), f2u(float(m_const)), vr(P3)),
                         'v_mul_f32 %s, 0x%08x, %s' % (vr(P5), f2u(float(m_const)), vr(P4))]
                return L + ['v_exp_f32 %s, %s' % (vr(P2), vr(P2)), 'v_fract_f32 %s, %s' % (vr(P5), vr(P5)),
                            'v_cos_f32 %s, %s' % (vr(dr), vr(P5)), 'v_sin_f32 %s, %s' % (vr(di), vr(P5)),
                            'v_mul_f32 %s, %s, %s' % (vr(dr), vr(P2), vr(dr)), 'v_mul_f32 %s, %s, %s' % (vr(di), vr(P2), vr(di))]
            L = ['v_lshlrev_b32 %s, 16, %s' % (vr(P0), vr(lr)),
                 'v_lshlrev_b32 %s, 16, %s' % (vr(P1), vr(li)),
                 'v_lshlrev_b32 %s, 16, %s' % (vr(P2), vr(cr)),
                 'v_mul_f32 %s, %s, %s' % (vr(P2), LOG2E, vr(P2)),
                 'v_exp_f32 %s, %s' % (vr(P2), vr(P2)),
                 'v_cvt_pk_bf16_f32 %s, %s, %s' % (vr(P2), vr(P2), vr(P2)),
                 'v_lshlrev_b32 %s, 16, %s' % (vr(P2), vr(P2)),
                 'v_mul_f32 %s, %s, %s' % (vr(P3), vr(P2), vr(P0)),
                 'v_mul_f32 %s, %s, %s' % (vr(P4), vr(P2), vr(P1)),
                 'v_mul_f32 %s, %s, %s' % (vr(P3), LOG2E, vr(P3)),
                 'v_mul_f32 %s, %s, %s' % (vr(P4), INV2PI, vr(P4))]
            L += cpow(lr, li, None, 1)
            L += ['v_sub_f32 %s, 0, %s' % (vr(nli), vr(li))]
            L += cpow(V['l16r%d' % g], V['l16i%d' % g], None, 16)
            L += ['v_cvt_f32_u32 %s, %s' % (vr(FM), vr(SEGV)), 'v_mul_f32 %s, 0x41800000, %s' % (vr(FM), vr(FM))]
            L += cpow(V['lsr%d' % g], V['lsi%d' % g], FM, None)
            gr = G(L)
            for k in range(2):
                pr, pi = V['p%dr%d' % (k + 1, g)], V['p%di%d' % (k + 1, g)]
                gr += G(['v_cvt_f32_i32 %s, %s' % (vr(FM), vr(E[k])), 'v_mul_f32 %s, 0x43000000, %s' % (vr(FM), vr(FM))] + cpow(pr, pi, FM, None))
                gr.append([Ins('v_cmp_le_i32 vcc, 0, %s' % vr(E[k])),
                           Ins('v_cndmask_b32 %s, 0, %s, vcc' % (vr(pr), vr(pr))),
                           Ins('v_cndmask_b32 %s, 0, %s, vcc' % (vr(pi), vr(pi)))])
            gr += G(['v_add_f32 %s, -1.0, %s' % (vr(P2), vr(lr)),
                     'v_mul_f32 %s, %s, %s' % (vr(P3), vr(P0), vr(P0)),
                     'v_fmac_f32 %s, %s, %s' % (vr(P3), vr(P1), vr(P1)),
                     'v_rcp_f32 %s, %s' % (vr(P3), vr(P3)),
                     'v_mul_f32 %s, %s, %s' % (vr(P4), vr(P2), vr(P0)),
                     'v_fmac_f32 %s, %s, %s' % (vr(P4), vr(li), vr(P1)),
                     'v_mul_f32 %s, %s, %s' % (vr(P5), vr(li), vr(P0)),
                     'v_fma_f32 %s, -%s, %s, %s' % (vr(P5), vr(P2), vr(P1), vr(P5)),
                     'v_add_f32 %s, %s, %s' % (vr(P3), vr(P3), vr(P3)),
                     'v_mul_f32 %s, %s, %s' % (vr(cr), vr(P4), vr(P3)),
                     'v_mul_f32 %s, %s, %s' % (vr(ci), vr(P5), vr(P3))])
            return gr

        def ssm_ops(i):
            kind, g, st = seq[i]
            slot = slot_of[i]
            acc = ACC[g] + (16 if st % 2 else 0)
            kh = st // 2
            gate = (g == 0 and st % 2 == 0)
            base = slot * SLOT
            rsb = V['RS']
            pre = []
            if base + SLOT > 65536:
                rsb = RING_ADDR
                pre = [Ins('v_add_u32 %s, %d, %s' % (vr(RING_ADDR + k), base, vr(V['RS'] + k))) for k in range(4)]
                base = 0
            ops = []
            for sp in range(20):
                bp, ab = sp >> 1, sp & 1
                kb, u = bp >> 1, bp & 1
                s = 20 * kh + sp
                q = RING + 4 * (sp % 4)
                rd = Ins('ds_read_b128 %s, %s offset:%d' % (vr(q, 4), vr(rsb + 2 * u + ab), base + kb * 4096))
                first = (kh == 0 and sp == 0)
                m = Ins('v_mfma_f32_32x32x16_bf16 %s, %s, %s, %s' % (vr(acc, 16), XF(s), vr(q, 4), '0' if first else vr(acc, 16)))
                gm = None
                if gate:
                    gm = Ins('v_mfma_f32_32x32x16_bf16 %s, %s, %s, %s' % (vr(GACC, 16), ar(A_GW + 4 * sp, 4), XF(s), '0' if s == 0 else vr(GACC, 16)))
                ops.append((rd, m, gm))
            return pre, ops

        def ssm_stage(i, hooks=None):
            pre, ops = ssm_ops(i)
            out = list(pre)
            dist = 3
            for sp in range(dist):
                out.append(ops[sp][0])
            for sp in range(20):
                rd, m, gm = ops[sp]
                out.append(m)
                if sp + dist < 20:
                    out.append(ops[sp + dist][0])
                if hooks and sp in hooks:
                    for grp in hooks[sp]:
                        out += grp
                if gm is not None:
                    out.append(gm)
            return out

        def kstream(g, hooks, dist=3):
            ops = []
            for s_ in range(40):
                kap, kh = s_ >> 2, s_ // 20
                sp = s_ - 20 * kh
                bp, ab = sp >> 1, sp & 1
                kb, u = bp >> 1, bp & 1
                rds, ms = [], []
                for m in range(2):
                    slot = slot_of[4 * g + 2 * kh + m]
                    if slot >= 3:
                        reg, base = RING_ADDR, (slot - 3) * SLOT
                    else:
                        reg, base = V['RS'], slot * SLOT
                    q = RING + 4 * ((2 * s_ + m) % 8)
                    acc = ACC[g] + 16 * m
                    rds.append(Ins('ds_read_b128 %s, %s offset:%d' % (vr(q, 4), vr(reg + 2 * u + ab), base + kb * 4096)))
                    ms.append(Ins('v_mfma_f32_32x32x16_bf16 %s, %s, %s, %s' % (vr(acc, 16), XF(s_), vr(q, 4), '0' if s_ == 0 else vr(acc, 16))))
                if g == 0:
                    ms.append(Ins('v_mfma_f32_32x32x16_bf16 %s, %s, %s, %s' % (vr(GACC, 16), ar(A_GW + 4 * (s_ % 20), 4), XF(s_), '0' if s_ == 0 else vr(GACC, 16))))
                ops.append((rds, ms))
            out = []
            for s_ in range(dist):
                out += hooks.get(('pre', s_), [])
                out += ops[s_][0]
            for s_ in range(40):
                rds, ms = ops[s_]
                out.append(ms[0])
                for grp in hooks.get(s_, []):
                    out += grp
                out.append(ms[1])
                if s_ + dist < 40:
                    out += hooks.get(('pre', s_ + dist), [])
                    out += ops[s_ + dist][0]
                out += ms[2:]
            return out

        def stage_open(covers):
            for c in covers:
                a.put(WaitVM(dma_last[c]))
            a.waitcnt(lg=0)
            a('s_barrier')

        item_rd = []

        def w2_item(T):
            gr = []
            for e in range(2):
                q = T + 4 * e
                g0 = [Ins('ds_read_b64_tr_b16 %s, %s offset:%d' % (vr(q, 2), vr(V['W2R']), 4096 * e))]
                if e == 0:
                    g0 = [WaitVM(w2_dma[1])] + g0
                gr.append(g0)
                rd = Ins('ds_read_b64_tr_b16 %s, %s offset:%d' % (vr(q + 2, 2), vr(V['W2R']), 4096 * e + 256))
                gr.append([rd])
            st = [[Ins('buffer_store_dwordx4 %s, v1, %s, s26 offen sc1' % (vr(T, 4), srd(R_WS)))],
                  [Ins('buffer_store_dwordx4 %s, v1, %s, s26 offen offset:1024 sc1' % (vr(T + 4, 4), srd(R_WS)))]]
            return gr, st

        def c_dmas():
            gr = []
            for e in range(2):
                ld = Ins('buffer_load_dwordx4 %s, %s, s24 offen lds' % (vr(CD + e), srd(R_CI)))
                gr.append([Ins('s_add_u32 m0, s%d, %d' % (sW10, 3 * SLOT + 12288 + 4096 * e)), Ins('s_nop 0'), ld])
                c_dma.append(ld)
            return gr

        def c_item(T):
            gr = [[WaitVM(c_dma[1]), Ins('ds_read_b128 %s, %s' % (vr(T, 4), vr(CR)))],
                  [Ins('ds_read_b128 %s, %s' % (vr(T + 4, 4), vr(CR + 1)))]]
            last = Ins('buffer_store_dwordx4 %s, v2, %s, s96 offen sc1' % (vr(T + 4, 4), srd(R_WS)))
            st = [[Ins('buffer_store_dwordx4 %s, v2, %s, s25 offen sc1' % (vr(T, 4), srd(R_WS)))],
                  [Ins('s_add_u32 s96, s25, 5120'), last]]
            return gr, st, last

        def w1_prefetch(T):
            t0, t1, t2 = T, T + 1, T + 2
            return G(['s_lshr_b32 s90, s2, 3', 's_lshl_b32 s90, s90, 2', 's_add_u32 s90, s90, s%d' % sW, 's_mul_i32 s90, s90, 60',
                      'v_min_u32 %s, 59, v0' % vr(t0), 'v_add_u32 %s, s90, %s' % (vr(t0), vr(t0)),
                      'v_mul_u32_u24 %s, 43691, %s' % (vr(t1), vr(t0)), 'v_lshrrev_b32 %s, 19, %s' % (vr(t1), vr(t1)),
                      'v_mul_u32_u24 %s, 12, %s' % (vr(t2), vr(t1)), 'v_sub_u32 %s, %s, %s' % (vr(t0), vr(t0), vr(t2)),
                      'v_mul_u32_u24 %s, 3072, %s' % (vr(t1), vr(t1)), 'v_lshl_add_u32 %s, %s, 7, %s' % (vr(t0), vr(t0), vr(t1)),
                      's_mul_i32 s90, s%d, 1536' % sHALF,
                      'buffer_load_dword %s, %s, %s, s90 offen' % (vr(T + 3), vr(t0), srd(R_W1))])

        def w_flag(T, st):
            return [[WaitVM(st), Ins('v_mov_b32 %s, s%d' % (vr(T), sTAG))],
                    [Ins('v_mov_b32 %s, s%d' % (vr(T + 1), sTAG2))],
                    [Ins('v_mov_b32 %s, 0' % vr(T + 2))],
                    [Ins('s_lshl_b32 s90, s%d, 3' % sGWI), Ins('s_add_u32 s90, s90, 0x%x' % WF_OFF),
                     Ins('buffer_store_dwordx2 %s, %s, %s, s90 offen sc1' % (vr(T, 2), vr(T + 2), srd(R_WS)))]]

        def masks(T):
            g_ = [[Ins('v_lshrrev_b32 %s, 5, v0' % vr(T))], [Ins('s_lshl_b32 s95, s%d, 1' % sW), Ins('v_add_u32 %s, s95, %s' % (vr(T), vr(T)))]]
            for s_ in range(1, 8):
                g_.append([Ins('v_cmp_eq_u32 s[%d:%d], %d, %s' % (S_MASK + 2 * (s_ - 1), S_MASK + 2 * (s_ - 1) + 1, s_, vr(T)))])
            return g_

        def gate_math(T):
            G, OMG = V['G'], V['OMG']
            t0, t1, t2 = T, T + 1, T + 2
            L = ['v_cvt_pk_bf16_f32 %s, %s, %s' % (vr(t0), vr(GACC), vr(GACC)),
                 'v_lshlrev_b32 %s, 16, %s' % (vr(t0), vr(t0)),
                 'v_mul_f32 %s, 0x%08x, %s' % (vr(t0), f2u(-math.log2(math.e)), vr(t0)),
                 'v_exp_f32 %s, %s' % (vr(t0), vr(t0)),
                 'v_and_b32 %s, 31, v0' % vr(t1),
                 'v_add_f32 %s, 1.0, %s' % (vr(t0), vr(t0)),
                 'v_rcp_f32 %s, %s' % (vr(t0), vr(t0)),
                 'v_bfe_u32 %s, %s, 2, 1' % (vr(t2), vr(t1)),
                 'v_cvt_pk_bf16_f32 %s, %s, %s' % (vr(t0), vr(t0), vr(t0)),
                 'v_lshlrev_b32 %s, 16, %s' % (vr(G), vr(t0)),
                 'v_sub_f32 %s, 1.0, %s' % (vr(t0), vr(G)),
                 'v_cvt_pk_bf16_f32 %s, %s, %s' % (vr(t0), vr(t0), vr(t0)),
                 'v_lshlrev_b32 %s, 16, %s' % (vr(OMG), vr(t0)),
                 'v_lshlrev_b32 %s, 4, %s' % (vr(t2), vr(t2)),
                 'v_and_b32 %s, 3, %s' % (vr(t0), vr(t1)),
                 'v_add_u32 %s, %s, %s' % (vr(t0), vr(t0), vr(t2)),
                 'v_lshrrev_b32 %s, 3, %s' % (vr(t2), vr(t1)),
                 'v_lshl_add_u32 %s, %s, 2, %s' % (vr(t0), vr(t2), vr(t0)),
                 's_lshl_b32 s95, s%d, 5' % sW,
                 'v_add_u32 %s, s95, %s' % (vr(t0), vr(t0)),
                 'v_lshlrev_b32 %s, 2, %s' % (vr(t0), vr(t0)),
                 'v_add_u32 %s, %d, %s' % (vr(t0), L_GATE, vr(t0)),
                 'ds_write_b32 %s, %s' % (vr(t0), vr(G))]
            return [[Ins(x)] for x in L]

        def pass1(g):
            it = []
            RE, IM = ACC[g], ACC[g] + 16
            lr, li, nli = V['lr%d' % g], V['li%d' % g], V['nli%d' % g]
            sa = [SC[g] + 0, SC[g] + 1]
            sb = [SC[g] + 2, SC[g] + 3]
            cur = [RE, IM]
            for t in range(1, 16):
                d = sa if t % 2 else sb
                it.append(Ins('v_fma_f32 %s, %s, %s, %s' % (vr(d[0]), vr(lr), vr(cur[0]), vr(RE + t))))
                it.append(Ins('v_fma_f32 %s, %s, %s, %s' % (vr(d[1]), vr(lr), vr(cur[1]), vr(IM + t))))
                it.append(Ins('v_fmac_f32 %s, %s, %s' % (vr(d[0]), vr(nli), vr(cur[1]))))
                it.append(Ins('v_fmac_f32 %s, %s, %s' % (vr(d[1]), vr(li), vr(cur[0]))))
                cur = d
            it.append(Ins('ds_write_b64 %s, %s offset:%d' % (vr(V['SEGW']), vr(cur[0], 2), L_SEG - MISC + 2560 * g)))
            return [[x] for x in it]

        def prefix(g, buf):
            it = []
            l16r, l16i = V['l16r%d' % g], V['l16i%d' % g]
            Pr, Pi = SC[g] + 0, SC[g] + 1
            for jj in range(4):
                it.append(Ins('ds_read_b128 %s, %s offset:%d' % (vr(buf + 4 * jj, 4), vr(V['SEGR']), L_SEG - MISC + 2560 * g + 16 * jj)))
            it.append(Ins('v_mov_b32 %s, 0' % vr(Pr)))
            it.append(Ins('v_mov_b32 %s, 0' % vr(Pi)))
            sel = []
            for s in range(1, 8):
                m = S_MASK + 2 * (s - 1)
                pr, pi_, cr_, ci_ = buf + 2 * (s - 1), buf + 2 * (s - 1) + 1, buf + 2 * s, buf + 2 * s + 1
                it.append(Ins('v_fmac_f32 %s, %s, %s' % (vr(cr_), vr(l16r), vr(pr))))
                it.append(Ins('v_fmac_f32 %s, %s, %s' % (vr(ci_), vr(l16r), vr(pi_))))
                it.append(Ins('v_fma_f32 %s, -%s, %s, %s' % (vr(cr_), vr(l16i), vr(pi_), vr(cr_))))
                it.append(Ins('v_fmac_f32 %s, %s, %s' % (vr(ci_), vr(l16i), vr(pr))))
                sel.append(Ins('v_cndmask_b32 %s, %s, %s, s[%d:%d]' % (vr(Pr), vr(Pr), vr(pr), m, m + 1)))
                sel.append(Ins('v_cndmask_b32 %s, %s, %s, s[%d:%d]' % (vr(Pi), vr(Pi), vr(pi_), m, m + 1)))
            pb = 52 if A else 88
            it.append(Ins('v_mov_b32 %s, %s' % (vr(pb), vr(buf + 14))))
            it.append(Ins('v_mov_b32 %s, s%d' % (vr(pb + 1), sTAG)))
            it.append(Ins('v_mov_b32 %s, %s' % (vr(pb + 2), vr(buf + 15))))
            it.append(Ins('v_mov_b32 %s, s%d' % (vr(pb + 3), sTAG)))
            it.append(Ins('s_add_u32 s97, s%d, %d' % (sG, g)))
            it.append(Ins('s_lshl_b32 s97, s97, 4'))
            it.append(Ins('s_add_u32 s97, s97, s%d' % sR))
            it.append(Ins('s_lshl_b32 s97, s97, 9'))
            it.append(Ins('s_add_u32 s97, s97, 0x%x' % AGG_OFF))
            it.append(Ins('buffer_store_dwordx4 %s, %s, %s, s97 offen sc1' % (vr(pb, 4), vr(V['AG']), srd(R_WS))))
            return [[x] for x in it + sel]

        def coef(g, t0):
            it = []
            RE, IM = ACC[g], ACC[g] + 16
            cr, ci = V['cr%d' % g], V['ci%d' % g]
            for t in range(16):
                tt = t0 + (t & 1)
                it.append(Ins('v_mul_f32 %s, %s, %s' % (vr(tt), vr(ci), vr(IM + t))))
                it.append(Ins('v_mul_f32 %s, %s, %s' % (vr(IM + t), vr(cr), vr(IM + t))))
                it.append(Ins('v_fmac_f32 %s, %s, %s' % (vr(IM + t), vr(ci), vr(RE + t))))
                it.append(Ins('v_fma_f32 %s, %s, %s, -%s' % (vr(RE + t), vr(cr), vr(RE + t), vr(tt))))
            return [[x] for x in it]

        def lb_issue(g, buf):
            return [[Ins('s_add_u32 s95, s%d, %d' % (sG, g)), Ins('s_lshl_b32 s95, s95, 13'), Ins('s_add_u32 s95, s95, 0x%x' % AGG_OFF)],
                    [Ins('buffer_load_dwordx4 %s, %s, %s, s95 offen sc1' % (vr(buf, 4), vr(V['LB0']), srd(R_WS)))],
                    [Ins('buffer_load_dwordx4 %s, %s, %s, s95 offen sc1' % (vr(buf + 4, 4), vr(V['LB1']), srd(R_WS)))]]

        def lb_check(buf, t):
            a('v_xor_b32 %s, s%d, %s' % (vr(t), sTAG, vr(buf + 1)))
            a('v_xor_b32 %s, s%d, %s' % (vr(t + 1), sTAG, vr(buf + 3)))
            a('v_xor_b32 %s, s%d, %s' % (vr(t + 2), sTAG, vr(buf + 5)))
            a('v_xor_b32 %s, s%d, %s' % (vr(t + 3), sTAG, vr(buf + 7)))
            a('v_or3_b32 %s, %s, %s, %s' % (vr(t), vr(t), vr(t + 1), vr(t + 2)))
            a('v_or_b32 %s, %s, %s' % (vr(t), vr(t), vr(t + 3)))
            a('v_cmp_ne_u32 vcc, 0, %s' % vr(t))
            a('s_cmp_eq_u64 vcc, 0')

        def lookback_wait(g, buf, lbl):
            t = buf + 8
            lb_check(buf, t)
            a.settle()
            a('s_cbranch_scc1 %s_ok' % lbl)
            snap = a.snapshot()
            a('s_mov_b32 s91, 0')
            a.drain()
            a.label(lbl)
            a('buffer_load_dwordx4 %s, %s, %s, s95 offen sc1' % (vr(buf, 4), vr(V['LB0']), srd(R_WS)))
            a('buffer_load_dwordx4 %s, %s, %s, s95 offen sc1' % (vr(buf + 4, 4), vr(V['LB1']), srd(R_WS)))
            a('s_add_u32 s91, s91, 1')
            lb_check(buf, t)
            a('s_cbranch_scc1 %s_ok' % lbl)
            a('s_cmp_lt_u32 s91, 0x%x' % o.get('spin', 200000))
            a('s_cbranch_scc1 %s' % lbl)
            a.settle()
            a.label(lbl + '_ok')
            a.restore(snap)
            p1r, p1i, p2r, p2i = (V['p%s%d' % (x, g)] for x in ('1r', '1i', '2r', '2i'))
            hr, hi = buf + 8, buf + 9
            a('v_mul_f32 %s, %s, %s' % (vr(hr), vr(p1r), vr(buf)))
            a('v_mul_f32 %s, %s, %s' % (vr(hi), vr(p1r), vr(buf + 2)))
            a('v_fma_f32 %s, -%s, %s, %s' % (vr(hr), vr(p1i), vr(buf + 2), vr(hr)))
            a('v_fmac_f32 %s, %s, %s' % (vr(hi), vr(p1i), vr(buf)))
            a('v_fmac_f32 %s, %s, %s' % (vr(hr), vr(p2r), vr(buf + 4)))
            a('v_fmac_f32 %s, %s, %s' % (vr(hi), vr(p2r), vr(buf + 6)))
            a('v_fma_f32 %s, -%s, %s, %s' % (vr(hr), vr(p2i), vr(buf + 6), vr(hr)))
            a('v_fmac_f32 %s, %s, %s' % (vr(hi), vr(p2i), vr(buf + 4)))
            a('ds_write_b64 %s, %s offset:%d' % (vr(V['SEGW']), vr(hr, 2), L_LB - MISC + 2560 * g))
            a.waitcnt(lg=0)
            a('s_barrier')

        def entry_state(g, buf):
            it = []
            for jj in range(4):
                it.append('ds_read_b128 %s, %s offset:%d' % (vr(buf + 4 * jj, 4), vr(V['SEGR']), L_LB - MISC + 2560 * g + 16 * jj))
            for jj in (1, 3, 5, 7):
                it.append('v_add_f32 %s, %s, %s' % (vr(buf + 2 * jj - 2), vr(buf + 2 * jj - 2), vr(buf + 2 * jj)))
                it.append('v_add_f32 %s, %s, %s' % (vr(buf + 2 * jj - 1), vr(buf + 2 * jj - 1), vr(buf + 2 * jj + 1)))
            for (x, y) in ((0, 4), (8, 12), (0, 8)):
                it.append('v_add_f32 %s, %s, %s' % (vr(buf + x), vr(buf + x), vr(buf + y)))
                it.append('v_add_f32 %s, %s, %s' % (vr(buf + x + 1), vr(buf + x + 1), vr(buf + y + 1)))
            Pr, Pi = SC[g] + 0, SC[g] + 1
            lsr, lsi, cr, ci = (V[x + str(g)] for x in ('lsr', 'lsi', 'cr', 'ci'))
            it += ['v_fmac_f32 %s, %s, %s' % (vr(Pr), vr(lsr), vr(buf)),
                   'v_fmac_f32 %s, %s, %s' % (vr(Pi), vr(lsr), vr(buf + 1)),
                   'v_fma_f32 %s, -%s, %s, %s' % (vr(Pr), vr(lsi), vr(buf + 1), vr(Pr)),
                   'v_fmac_f32 %s, %s, %s' % (vr(Pi), vr(lsi), vr(buf)),
                   'v_mul_f32 %s, %s, %s' % (vr(buf + 2), vr(cr), vr(Pr)),
                   'v_mul_f32 %s, %s, %s' % (vr(buf + 3), vr(cr), vr(Pi)),
                   'v_fma_f32 %s, -%s, %s, %s' % (vr(buf + 2), vr(ci), vr(Pi), vr(buf + 2)),
                   'v_fmac_f32 %s, %s, %s' % (vr(buf + 3), vr(ci), vr(Pr))]
            return [[Ins(x)] for x in it]

        def pass2(g, buf):
            it = []
            RE, IM = ACC[g], ACC[g] + 16
            lr, li, nli = V['lr%d' % g], V['li%d' % g], V['nli%d' % g]
            pr, pi_ = buf + 2, buf + 3
            for t in range(16):
                it.append(Ins('v_fmac_f32 %s, %s, %s' % (vr(RE + t), vr(lr), vr(pr))))
                it.append(Ins('v_fmac_f32 %s, %s, %s' % (vr(IM + t), vr(lr), vr(pi_))))
                it.append(Ins('v_fmac_f32 %s, %s, %s' % (vr(RE + t), vr(nli), vr(pi_))))
                it.append(Ins('v_fmac_f32 %s, %s, %s' % (vr(IM + t), vr(li), vr(pr))))
                pr, pi_ = RE + t, IM + t
            for e in range(8):
                it.append(Ins('v_cvt_pk_bf16_f32 %s, %s, %s' % (vr(RE + e), vr(RE + 2 * e), vr(RE + 2 * e + 1))))
            for e in range(8):
                it.append(Ins('v_cvt_pk_bf16_f32 %s, -%s, -%s' % (vr(RE + 8 + e), vr(IM + 2 * e), vr(IM + 2 * e + 1))))
            return [[x] for x in it]

        def build_sel(B, T):
            n_, e_, t_, val = T, T + 1, T + 2, T + 3
            L = ['v_and_b32 %s, 31, v0' % vr(n_),
                 'v_lshrrev_b32 %s, 3, %s' % (vr(t_), vr(n_)),
                 'v_and_b32 %s, 3, %s' % (vr(e_), vr(n_)),
                 'v_lshl_add_u32 %s, %s, 2, %s' % (vr(e_), vr(t_), vr(e_)),
                 'v_bfe_u32 %s, %s, 2, 1' % (vr(t_), vr(n_)),
                 'v_lshrrev_b32 %s, 5, v0' % vr(val),
                 'v_cmp_eq_u32 vcc, %s, %s' % (vr(t_), vr(val)),
                 'v_lshrrev_b32 %s, 16, %s' % (vr(val), vr(V['G'])),
                 'v_cndmask_b32 %s, 31, %s, vcc' % (vr(e_), vr(e_)),
                 'v_and_b32 %s, 1, %s' % (vr(t_), vr(e_)),
                 'v_lshlrev_b32 %s, 4, %s' % (vr(t_), vr(t_)),
                 'v_lshlrev_b32 %s, %s, %s' % (vr(val), vr(t_), vr(val)),
                 'v_lshrrev_b32 %s, 1, %s' % (vr(e_), vr(e_))]
            g = [[Ins(x)] for x in L]
            for k in range(8):
                g.append([Ins('v_cmp_eq_u32 vcc, %d, %s' % (k, vr(e_))),
                          Ins('v_cndmask_b32 %s, 0, %s, vcc' % (vr(B + k), vr(val)))])
            return g

        def transpose_store(g, B, D0, D1):
            RE = ACC[g]
            a('v_mfma_f32_32x32x16_bf16 %s, %s, %s, 0' % (vr(D0, 16), vr(RE, 4), vr(B, 4)))
            a('v_mfma_f32_32x32x16_bf16 %s, %s, %s, 0' % (vr(D1, 16), vr(RE + 8, 4), vr(B, 4)))
            a('v_mfma_f32_32x32x16_bf16 %s, %s, %s, %s' % (vr(D0, 16), vr(RE + 4, 4), vr(B + 4, 4), vr(D0, 16)))
            a('v_mfma_f32_32x32x16_bf16 %s, %s, %s, %s' % (vr(D1, 16), vr(RE + 12, 4), vr(B + 4, 4), vr(D1, 16)))
            a('s_add_u32 s94, s%d, %d' % (sHS, (48 + g) * 4096))
            a('s_add_u32 s95, s%d, %d' % (sHS, (68 + g) * 4096))
            for D, so in ((D0, 94), (D1, 95)):
                for e in range(8):
                    a('v_cvt_pk_bf16_f32 %s, %s, %s' % (vr(D + e), vr(D + 2 * e), vr(D + 2 * e + 1)))
                a('buffer_store_dwordx4 %s, %s, %s, s%d offen %s' % (vr(D, 4), vr(V['ST']), srd(R_WS), so, HST))
                a('buffer_store_dwordx4 %s, %s, %s, s%d offen offset:512 %s' % (vr(D + 4, 4), vr(V['ST']), srd(R_WS), so, HST))

        NQ = 8

        def ffn_ops():
            ops = []
            for n in range(160):
                tile, s = n // 40, n % 40
                blk, tp = tile >> 1, tile & 1
                acc = FA[tile & 1]
                st, sp = s // 10, s % 10
                slot = slot_of[4 + 4 * blk + st]
                reg = slot // 3
                off = (slot % 3) * SLOT + (32 * (sp >> 1) + 8 * (sp & 1)) * 128
                q = RING + 4 * (n % NQ)
                base = V['RF'] + tp + 2 * reg
                r0 = Ins('ds_read_b64_tr_b16 %s, %s offset:%d' % (vr(q, 2), vr(base), off))
                r1 = Ins('ds_read_b64_tr_b16 %s, %s offset:%d' % (vr(q + 2, 2), vr(base), off + 512))
                m = Ins('v_mfma_f32_32x32x16_bf16 %s, %s, %s, %s' % (vr(acc, 16), vr(q, 4), XF(s), '0' if s == 0 else vr(acc, 16)))
                ops.append((r0, r1, m))
            return ops

        def ffn_main(ops, n0, n1, dist, rd_done, rd_limit):
            out = []
            for n in range(n0, n1):
                if n == n0:
                    while rd_done < min(n + dist, rd_limit):
                        out += [ops[rd_done][0], ops[rd_done][1]]
                        rd_done += 1
                out.append(ops[n][2])
                while rd_done < min(n + 1 + dist, rd_limit):
                    out += [ops[rd_done][0], ops[rd_done][1]]
                    rd_done += 1
            return out, rd_done

        def ffn_pack(tile):
            T = FA[tile & 1]
            it = []
            for e in range(16):
                it.append(Ins('v_mul_f32 %s, %s, %s' % (vr(T + e), vr(V['OMG']), vr(T + e))))
            for e in range(8):
                it.append(Ins('v_cvt_pk_bf16_f32 %s, %s, %s' % (vr(T + e), vr(T + 2 * e), vr(T + 2 * e + 1))))
            for e in range(8):
                it.append(Ins('v_pk_max_i16 %s, %s, 0' % (vr(T + e), vr(T + e))))
            return [[x] for x in it]

        def ffn_store(tile):
            T = FA[tile & 1]
            return [[Ins('s_add_u32 s94, s%d, %d' % (sHF, tile * 4096))],
                    [Ins('buffer_store_dwordx4 %s, %s, %s, s94 offen %s' % (vr(T, 4), vr(V['ST']), srd(R_WS), HST))],
                    [Ins('buffer_store_dwordx4 %s, %s, %s, s94 offen offset:512 %s' % (vr(T + 4, 4), vr(V['ST']), srd(R_WS), HST))]]

        def wf_issue(T):
            t0, t1 = T + 2, T + 3
            gr = G(['s_mul_i32 s90, s%d, 120' % sC2, 's_mul_i32 s91, s%d, 30' % sW, 's_add_u32 s90, s90, s91',
                    'v_and_b32 %s, 31, v0' % vr(t1), 'v_min_u32 %s, 29, %s' % (vr(t0), vr(t1)),
                    'v_add_u32 %s, s90, %s' % (vr(t0), vr(t0)),
                    's_lshr_b32 s90, s%d, 1' % sW, 's_mul_i32 s90, s90, 400', 's_mul_i32 s91, s%d, 50' % sC2,
                    's_add_u32 s90, s90, s91', 's_and_b32 s91, s%d, 1' % sW, 's_mul_i32 s91, s91, 25', 's_add_u32 s90, s90, s91',
                    'v_min_u32 %s, 24, %s' % (vr(t1), vr(t1)), 'v_add_u32 %s, s90, %s' % (vr(t1), vr(t1))])
            gr.append([Ins('v_cmp_gt_u32 vcc, 32, v0'), Ins('v_cndmask_b32 %s, %s, %s, vcc' % (vr(t0), vr(t1), vr(t0)))])
            gr += G(['v_lshlrev_b32 %s, 3, %s' % (vr(t0), vr(t0)), 'v_add_u32 %s, 0x%x, %s' % (vr(t0), WF_OFF, vr(t0)),
                     'buffer_load_dwordx2 %s, %s, %s, 0 offen sc1' % (vr(T, 2), vr(t0), srd(R_WS))])
            return gr

        def wf_check(T, lbl):
            t0 = T + 2

            def chk():
                a('v_xor_b32 %s, s%d, %s' % (vr(T), sTAG, vr(T)))
                a('v_xor_b32 %s, s%d, %s' % (vr(T + 1), sTAG2, vr(T + 1)))
                a('v_or_b32 %s, %s, %s' % (vr(T), vr(T), vr(T + 1)))
                a('v_cmp_ne_u32 vcc, 0, %s' % vr(T))
                a('s_cmp_eq_u64 vcc, 0')
            chk()
            a.settle()
            a('s_cbranch_scc1 %s_ok' % lbl)
            snap = a.snapshot()
            a('s_mov_b32 s91, 0')
            a.drain()
            a.label(lbl)
            a('buffer_load_dwordx2 %s, %s, %s, 0 offen sc1' % (vr(T, 2), vr(t0), srd(R_WS)))
            a('s_add_u32 s91, s91, 1')
            chk()
            a('s_cbranch_scc1 %s_ok' % lbl)
            a('s_cmp_lt_u32 s91, 0x%x' % o.get('spin', 200000))
            a('s_cbranch_scc1 %s' % lbl)
            a.settle()
            a.label(lbl + '_ok')
            a.restore(snap)

        BUD = o.get('bud', 3)
        P2 = self.p2
        for k in range(4):
            a('v_add_u32 %s, %d, %s' % (vr(RING_ADDR + k), 3 * SLOT, vr(V['RS'] + k)))
        put_all(late_scalars())
        put_all(w2_setup_a)
        put_all(item_addrs())
        put_all(c_setup())
        put_all(xdma(2))
        put_all([s_load(0, 0, 2), s_load(0, 1, 2)])
        put_all(xdma(3))
        put_all([s_load(0, 0, 3), s_load(0, 1, 3)])
        put_all(w2_setup_b)
        put_all(c_dmas())
        a.put(WaitVM(gw_dma))
        put_all(gate_reads(0))
        put_all(xread(0))
        put_all(xrefill(4))
        a.put(WaitVM(s_dma[(0, 1, 0)]))
        a('s_barrier')
        self.stamp(3)
        hooks = {}

        def hook(pos, groups):
            hooks.setdefault(pos, [])
            hooks[pos] = hooks[pos] + groups
        cg, c_sts, c_st = c_item(72)
        w2g, w2_sts = w2_item(64)
        g1 = gate_reads(1)
        for kap in range(10):
            s0 = 4 * kap
            if kap + 1 <= 7:
                hook(s0, xread(kap + 1))
            if kap + 5 <= 9:
                for j, grp in enumerate(xrefill(kap + 5)):
                    hook(s0 + 1 + j, [grp])
            if kap + 4 <= 9:
                if kap + 4 == 8:
                    hook(s0 + 1, [[WaitLG(cg[1][0])]])
                hook(s0 + 1, [s_load(0, 0, kap + 4)])
                hook(s0 + 3, [s_load(0, 1, kap + 4)])
        hook(25, xread(8))
        hook(27, xread(9))
        for j in range(20):
            hook(j + 1, [g1[j]])
        for kap in range(1, 10):
            pre = [WaitVM(s_dma[(0, 1, kap)])]
            if kap == 8:
                pre.append(WaitLG(x_rd_last[9]))
            pre.append(Ins('s_barrier'))
            hooks[('pre', 4 * kap)] = pre
        ldA = stage_loads(4) + stage_loads(5)
        ldB = stage_loads(6) + stage_loads(7)
        pos = [21, 22, 23, 24, 25, 26, 26, 27, 28, 28]
        for j, grp in enumerate(ldA):
            hook(pos[j] + 1 if pos[j] == 21 else pos[j], [grp])
        for j, grp in enumerate(w2_sts + c_sts):
            hook(29 + j // 4, [grp])
        for j, grp in enumerate(ldB):
            hook(30 + j, [grp])
        main = kstream(0, hooks)
        s_items = Stream(w2g + cg, start=24, every=2)
        s_lc = Stream(lane_consts() + params(0) + ([] if A else params(1)), start=2, per=3)
        weave(a, main, [s_items, s_lc], budget=3)
        put_all(masks(84))
        if o.get('detail', 0) != 2:
            self.stamp(4)

        gm_all = gate_math(72)
        put_all(gm_all[:3])
        gate_math0 = gm_all[3:]
        if A:
            SC = [48]
            BUF = 56
            SEL = 72
            WFT = 80
            TMP = 84
            a.put(WaitVM(dma_last[5]))
            a('s_barrier')
            self.stamp((3, 5))
            self.stamp((6, 5))
            self.stamp((3, 1), clock=True)
            ops = ffn_ops()
            D = o.get('fdist', 5)
            nof = (lambda x: []) if o.get('bare') else (lambda x: x)

            def split_at_read(items, n):
                k = items.index(ops[n][0])
                return items[:k], items[k:]
            m, rd = ffn_main(ops, 0, 40, D, 0, 80)
            m0, m = split_at_read(m, 20)
            m1, m2 = split_at_read(m, 30)
            p1 = nof(pass1(0))
            s_p1 = Stream(p1, per=4)
            s_flag = Stream(w_flag(76, c_st), start=4, per=5)
            s_gate = Stream(nof(gate_math0), per=3)
            s_ld = Stream(stage_loads(8) + stage_loads(9) + stage_loads(10), start=1, every=2)
            s_tab = Stream(P2.tables(), per=3)
            weave(a, m0, [s_flag, s_ld, s_p1, s_tab], budget=5, flush=False)
            put_all(s_p1.groups[s_p1.i:])
            assert s_flag.done()
            a.put(WaitVM(dma_last[6]))
            if p1:
                a.put(WaitLG(p1[-1][0]))
            a('s_barrier')
            s_pre = Stream(nof(prefix(0, BUF)), per=4)
            for x in (s_ld, s_tab):
                x.start = 0
            weave(a, m1, [s_pre, s_ld, s_tab], budget=4, flush=False)
            a.put(WaitVM(dma_last[7]))
            a('s_barrier')
            weave(a, m2, [s_pre, s_gate, s_ld, s_tab], budget=4, flush=False)
            self.stamp((6, 6))
            s_coef = Stream(nof(coef(0, TMP)), per=3)
            s_wfi = Stream(wf_issue(WFT), per=3)
            m, rd = ffn_main(ops, 40, 50, D, rd, 80)
            weave(a, m, [s_pre, s_gate, s_wfi, s_ld, s_tab], budget=BUD + 1, flush=False)
            assert s_pre.done() and s_gate.done() and s_wfi.done() and s_ld.done() and s_tab.done(), (s_pre.i, s_gate.i, s_wfi.i, s_ld.i, s_tab.i)
            a.put(WaitLG(ops[49][1]))
            a('s_barrier')
            self.stamp((6, 8))
            s_p0 = Stream(nof(ffn_pack(0) + ffn_store(0)), per=3)
            WFP = o.get('wfidx', 62)
            m, rd = ffn_main(ops, 50, WFP, D, rd, 80)
            weave(a, m, [Stream(stage_loads(11), every=2), s_p0, s_coef], budget=BUD, flush=False)
            wf_check(WFT, 'L_wfA')
            self.stamp((6, 7))
            wpre = [] if o.get('now') else P2.early_w()
            s_w = Stream(wpre, every=o.get('wevery', 2))
            s_sel = Stream(nof(build_sel(SEL, TMP + 2)), per=3)
            m, rd = ffn_main(ops, WFP, 76, D, rd, 80)
            weave(a, m, [s_p0, s_w, s_coef, s_sel], budget=BUD, flush=False)
            assert s_p0.done()
            self.stamp((6, 9))
            for c in (8, 9, 10, 11):
                a.put(WaitVM(dma_last[c]))
            a('s_barrier')
            self.stamp((6, 10))
            s_w.start = 0
            m, rd = ffn_main(ops, 76, 120, D, rd, 160)
            s_pack1 = Stream(nof(ffn_pack(1)), start=6, per=3)
            s_coef.start = s_sel.start = 0
            weave(a, m, [Stream(lb_issue(0, BUF), start=o.get('lbpos', 10), per=3), s_pack1, s_w, s_coef, s_sel], budget=BUD, flush=False)
            assert s_pack1.done() and s_coef.done() and s_sel.done(), (s_coef.i, s_sel.i)
            self.stamp(5)
            self.stamp((6, 11))
            self.stamp((3, 6))
            self.stamp((3, 2), clock=True)
            lookback_wait(0, BUF, 'L_lbA')
            self.stamp(6)
            put_all(ffn_store(1))
            s_w.start = 0
            m, rd = ffn_main(ops, 120, 160, D, rd, 160)
            w2nd = P2.early2_w()
            paced = []
            nleft = len(s_w.groups) - s_w.i
            pos = 2 * nleft
            slots = {}
            for j, g in enumerate(w2nd):
                pos = max(pos + o.get('w2step', 1), j + 2)
                slots[pos] = g
                pos += (j % 5 in (1, 3))
            late_w2 = [g for p_, g in sorted(slots.items()) if p_ >= 40]
            paced = [slots.get(p_, []) for p_ in range(40)]
            weave(a, m, [s_w, Stream(paced), Stream(entry_state(0, BUF) + pass2(0, BUF), per=3),
                         Stream(ffn_pack(2) + ffn_store(2), start=2, per=3)], budget=BUD + 1)
            put_all(late_w2)
            transpose_store(0, SEL, 96, 112)
            put_all(ffn_pack(3) + ffn_store(3))
        else:
            SC = [48, 52]
            BUF = 56
            SEL = 72
            WFT = 80
            TMP = 84
            put_all(pass1(0))
            stage_open([4, 5])
            main = kstream(1, {('pre', 20): [WaitVM(dma_last[7]), Ins('s_barrier')]})
            s_pre, s_wfi = Stream(prefix(0, BUF), per=3), Stream(wf_issue(WFT), start=22, per=3)
            s_flag, s_gate = Stream(w_flag(76, c_st), start=2, per=5), Stream(gate_math0, per=3)
            s_tab = Stream(P2.tables(), per=3)
            s_coef, s_sel = Stream(coef(0, TMP), per=3), Stream(build_sel(SEL, TMP + 2), per=3)
            wpre = P2.early_w()
            cut = [k for k, x in enumerate(main) if isinstance(x, Ins) and x.kind == 'mfma'][43] + 1
            weave(a, main[:cut], [s_flag, s_pre, s_gate, s_wfi, s_tab], budget=4, flush=False)
            assert s_pre.done() and s_wfi.done() and s_tab.done() and s_gate.done() and s_flag.done()
            wf_check(WFT, 'L_wfB')
            s_w = Stream(wpre, every=2)
            s_lb = Stream(lb_issue(0, BUF), start=16, per=3)
            weave(a, main[cut:], [s_lb, s_w, s_coef, s_sel], budget=4, flush=False)
            assert s_lb.done()
            for x in (s_coef, s_sel):
                put_all(x.groups[x.i:])
            wrest = s_w.groups[s_w.i:]
            put_all(pass1(1))
            self.stamp(5)
            lookback_wait(0, BUF, 'L_lbB0')
            self.stamp(6)

            def mix(items, loads, every):
                out = []
                for k, x in enumerate(items):
                    out.append(x)
                    if k % every == every - 1 and loads:
                        out.append(loads.pop(0))
                return out
            wrest = wrest + P2.early2_w()
            put_all(mix(prefix(1, 96), wrest, 6))
            put_all(mix(entry_state(0, BUF) + pass2(0, BUF), wrest, 6))
            transpose_store(0, SEL, 96, 112)
            put_all(lb_issue(1, BUF))
            put_all(mix(coef(1, TMP), wrest, 6))
            put_all(wrest)
            lookback_wait(1, BUF, 'L_lbB1')
            put_all(entry_state(1, BUF))
            put_all(pass2(1, BUF))
            transpose_store(1, SEL, 96, 112)

        self.stamp(7)
        a.waitcnt(vm=0)
        self.stamp(8)
        a('v_mov_b32 %s, s%d' % (vr(RING), sTAG))
        a('v_mov_b32 %s, s%d' % (vr(RING + 1), sTAG2))
        a('s_lshl_b32 s90, s%d, 2' % sR)
        a('s_add_u32 s90, s90, s%d' % sW)
        a('s_lshl_b32 s90, s90, 4')
        a('s_add_u32 s90, s90, s%d' % sC16)
        a('s_lshl_b32 s90, s90, 3')
        a('s_add_u32 s90, s90, 0x%x' % FLAG_OFF)
        a('v_mov_b32 %s, 0' % vr(RING + 2))
        a('buffer_store_dwordx2 %s, %s, %s, s90 offen sc1' % (vr(RING, 2), vr(RING + 2), srd(R_WS)))
        if o.get('hback', 0):
            t0, t1, t2 = RING + 4, RING + 5, RING + 6
            a('v_and_b32 %s, 15, v0' % vr(t0))
            a('v_lshlrev_b32 %s, 7, %s' % (vr(t0), vr(t0)))
            a('v_lshrrev_b32 %s, 5, v0' % vr(t1))
            a('v_mul_u32_u24 %s, %d, %s' % (vr(t1), 20 * 4096, vr(t1)))
            a('v_add_u32 %s, %s, %s' % (vr(t1), vr(t1), vr(t0)))
            if not A:
                a('v_bfe_u32 %s, v0, 4, 1' % vr(t2))
                a('v_lshl_add_u32 %s, %s, 12, %s' % (vr(t1), vr(t2), vr(t1)))
            a('s_add_u32 s90, s%d, %d' % (sHS, 48 * 4096))
            a('buffer_load_dword v121, %s, %s, s90 offen sc1' % (vr(t1), srd(R_WS)))
            if A:
                a('v_lshrrev_b32 %s, 4, v0' % vr(t2))
                a('v_lshl_add_u32 %s, %s, 12, %s' % (vr(t0), vr(t2), vr(t0)))
                a('buffer_load_dword v122, %s, %s, s%d offen sc1' % (vr(t0), srd(R_WS), sHF))
        a.waitcnt(lg=0)
        a.settle()

    def poll(self, lbl, voff, soff, tmp):
        a = self.a
        a('s_mov_b32 s91, 0')
        a.drain()
        a.settle()
        a.label(lbl)
        a('buffer_load_dwordx2 %s, %s, %s, s%d offen sc1' % (vr(tmp, 2), vr(voff), srd(R_WS), soff))
        a('s_add_u32 s91, s91, 1')
        a('v_xor_b32 %s, s%d, %s' % (vr(tmp), sTAG, vr(tmp)))
        a('v_xor_b32 %s, s%d, %s' % (vr(tmp + 1), sTAG2, vr(tmp + 1)))
        a('v_or_b32 %s, %s, %s' % (vr(tmp), vr(tmp), vr(tmp + 1)))
        a('v_cmp_ne_u32 vcc, 0, %s' % vr(tmp))
        a('s_cmp_eq_u64 vcc, 0')
        a('s_cbranch_scc1 %s_ok' % lbl)
        a('s_cmp_lt_u32 s91, 0x%x' % self.o.get('spin', 200000))
        a('s_cbranch_scc1 %s' % lbl)
        a.settle()
        a.label(lbl + '_ok')

    def phase2(self):
        a, o, P = self.a, self.o, self.p2
        VL16, VL16B = P.VL16, P.VL16B
        VH, VRW, VRR, VO, VX, VD, VG = 1, 5, 8, 9, 10, 11, 12
        VP, t0, t1, t2 = 96, 98, 120, 13
        VLWR = 99
        ACC = 16
        SK = 100
        KS = P.KS
        HLD = {0: 'sc1', 1: 'sc0 sc1', 2: 'sc1 nt', 3: '', 4: 'nt'}[o.get('hld', 0)]

        def acc(dt, dl):
            return ACC + 4 * (4 * dt + dl)
        early = set(P.early_quads[:5 * P.n_early]) | set(P.early2_quads)
        NE = P.n_early + P.n_early2
        top = 240 if o.get('stamps') else 256
        pool = [x for x in ([('a', r) for r in range(0, top, 4)] + [('v', r) for r in range(124, 256, 4)]) if x not in early]
        wq = dict(P.wq)
        hq = {}
        q = P.q

        def put_groups(gr):
            for g in gr:
                for x in g:
                    a.put(x)
        put_groups(P.tables(late=True))
        a('s_barrier')

        def w_groups(k):
            quads = [pool.pop(0) for dt in range(5)]
            for dt in range(5):
                wq[(k, dt)] = quads[dt]
            return P.w_loads(k, quads)

        def h_groups(k):
            gr = []
            for dl in range(4):
                r = pool.pop(0)
                hq[(k, dl)] = r
                hd = []
                if dl == 0:
                    hd = [Ins('s_lshl_b32 s%d, s%d, 12' % (P.sHk, KS[k])), Ins('s_add_u32 s%d, s%d, s%d' % (P.sHk, P.sHk, P.sHB))]
                gr.append(hd + [Ins('buffer_load_dwordx4 %s, %s, %s, s%d offen %s' % (q(r), vr(VH + dl), srd(R_WS), P.sHk, HLD))])
            return gr

        self.build_srd(R_OUT, S_OUT, 5242880)
        for dl in range(4):
            a('s_add_u32 s90, s%d, %d' % (sW, dl))
            a('s_and_b32 s90, s90, 3')
            a('s_lshl_b32 s91, s90, 10')
            a('v_add_u32 %s, s91, %s' % (vr(VH + dl), vr(VL16)))
            if dl:
                a('s_mul_i32 s91, s90, 15360')
                a('s_add_u32 s91, s91, %d' % ((dl - 1) * 5120))
                a('v_add_u32 %s, s91, %s' % (vr(VRW + dl - 1), vr(VL16)))
        a('s_mul_i32 s91, s%d, 15360' % sW)
        a('v_add_u32 %s, s91, %s' % (vr(VRR), vr(VL16)))
        a('v_and_b32 %s, 15, v0' % vr(t0))
        a('v_lshrrev_b32 %s, 4, v0' % vr(t2))
        a('v_bfe_u32 %s, %s, 2, 1' % (vr(t1), vr(t0)))
        a('v_lshlrev_b32 %s, 4, %s' % (vr(t1), vr(t1)))
        a('v_and_b32 %s, 3, %s' % (vr(VP), vr(t0)))
        a('v_add_u32 %s, %s, %s' % (vr(t1), vr(t1), vr(VP)))
        a('v_lshrrev_b32 %s, 3, %s' % (vr(VP), vr(t0)))
        a('v_lshl_add_u32 %s, %s, 2, %s' % (vr(t1), vr(VP), vr(t1)))
        a('s_lshr_b32 s90, s%d, 1' % sW)
        a('s_lshl_b32 s90, s90, 5')
        a('s_and_b32 s91, s%d, 1' % sW)
        a('s_lshl_b32 s91, s91, 3')
        a('s_add_u32 s90, s90, s91')
        a('v_add_u32 %s, s90, %s' % (vr(t1), vr(t1)))
        a('v_mul_u32_u24 %s, 2560, %s' % (vr(VO), vr(t1)))
        a('v_lshl_add_u32 %s, %s, 4, %s' % (vr(VO), vr(t2), vr(VO)))
        a('v_mul_u32_u24 %s, 1280, %s' % (vr(VX), vr(t1)))
        a('v_lshl_add_u32 %s, %s, 3, %s' % (vr(VX), vr(t2), vr(VX)))
        a('s_mul_i32 s90, s%d, 160' % sC2)
        a('v_lshlrev_b32 %s, 3, %s' % (vr(VD), vr(t2)))
        a('v_add_u32 %s, s90, %s' % (vr(VD), vr(VD)))
        a('s_and_b32 s90, s%d, 1' % sR2)
        a('s_lshl_b32 s90, s90, 6')
        a('v_add_u32 %s, s90, %s' % (vr(VG), vr(t1)))
        a('v_lshlrev_b32 %s, 2, %s' % (vr(VG), vr(VG)))
        a('v_add_u32 %s, %d, %s' % (vr(VG), L_GATE, vr(VG)))
        a('s_mul_i32 s90, s%d, %d' % (sR2, 64 * 1280))
        a('s_mul_i32 s91, s%d, 160' % sC2)
        a('s_add_u32 s90, s90, s91')
        for dt in range(5):
            a('buffer_load_dwordx2 %s, %s, %s, s90 offen offset:%d' % (vr(SK + 2 * dt, 2), vr(VX), srd(R_X), 32 * dt))
            a('global_load_dwordx2 %s, %s, s[%d:%d] offset:%d' % (vr(SK + 10 + 2 * dt, 2), vr(VD), S_DSK, S_DSK + 1, 32 * dt))
        HD = o.get('hdepth', 4)
        WD = min(22, NE + (len(pool) - 4 * o.get('hres', 4)) // 5)
        NL = 22 - WD if o.get('wlds', 1) else 0
        assert NL * 5 * 1024 <= 35840
        for k in range(NE, WD):
            put_groups(w_groups(k))
        a('s_lshl_b32 s90, s%d, 2' % sR)
        a('s_and_b32 s95, s%d, 1' % sR2)
        a('s_lshl_b32 s95, s95, 1')
        a('s_add_u32 s90, s90, s95')
        a('s_lshl_b32 s90, s90, 7')
        a('s_add_u32 s95, s90, 0x%x' % FLAG_OFF)
        a('v_and_b32 %s, 31, v0' % vr(t0))
        a('v_lshlrev_b32 %s, 3, %s' % (vr(t0), vr(t0)))
        lds_last = None
        ldsg = []
        if NL:
            a('s_mul_i32 s94, s%d, 35840' % sW)
            a('v_add_u32 %s, s94, %s' % (vr(VLWR), vr(VL16)))
            for k in range(WD, 22):
                for dt in range(5):
                    g = []
                    if dt == 0:
                        g += [Ins('s_mul_i32 s%d, s%d, 5120' % (P.sWk, KS[k])), Ins('s_add_u32 s%d, s%d, s%d' % (P.sWk, P.sWk, P.sWB))]
                    g.append(Ins('s_add_u32 m0, s94, %d' % (((k - WD) * 5 + dt) * 1024)))
                    g.append(Ins('s_add_u32 s%d, s%d, 1024' % (P.sWk, P.sWk)) if dt else Ins('s_nop 0'))
                    lds_last = Ins('buffer_load_dwordx4 %s, %s, s%d offen sc1 lds' % (vr(VL16), srd(R_WS), P.sWk))
                    g.append(lds_last)
                    ldsg.append(g)
        npre = max(0, len(ldsg) - o.get('pollcover', 14))
        put_groups(ldsg[:npre])
        a('buffer_load_dwordx2 %s, %s, %s, s95 offen sc1' % (vr(VP, 2), vr(t0), srd(R_WS)))
        put_groups(ldsg[npre:])
        self.stamp(9)
        a('ds_read_b32 %s, %s' % (vr(VG), vr(VG)))
        def chk():
            a('v_xor_b32 %s, s%d, %s' % (vr(VP), sTAG, vr(VP)))
            a('v_xor_b32 %s, s%d, %s' % (vr(VP + 1), sTAG2, vr(VP + 1)))
            a('v_or_b32 %s, %s, %s' % (vr(VP), vr(VP), vr(VP + 1)))
            a('v_cmp_ne_u32 vcc, 0, %s' % vr(VP))
            a('s_cmp_eq_u64 vcc, 0')
        chk()
        a.settle()
        a('s_cbranch_scc1 L_pfl_ok')
        snap = a.snapshot()
        a('s_mov_b32 s91, 0')
        a.drain()
        a.label('L_pfl')
        a('buffer_load_dwordx2 %s, %s, %s, s95 offen sc1' % (vr(VP, 2), vr(t0), srd(R_WS)))
        a('s_add_u32 s91, s91, 1')
        chk()
        a('s_cbranch_scc1 L_pfl_ok')
        a('s_cmp_lt_u32 s91, 0x%x' % o.get('spin', 200000))
        a('s_cbranch_scc1 L_pfl')
        a.settle()
        a.label('L_pfl_ok')
        a.restore(snap)
        a('s_cmp_lg_u32 s%d, 31' % sR2)
        a('s_cbranch_scc1 L_noep')
        a('s_cmp_lg_u32 s%d, 0' % sC2)
        a('s_cbranch_scc1 L_noep')
        a('v_mov_b32 %s, s%d' % (vr(t1), sTAG))
        a('v_mov_b32 %s, 0x%x' % (vr(t0), EPOCH_OFF))
        a.raw('    buffer_store_dword %s, %s, %s, 0 offen sc1' % (vr(t1), vr(t0), srd(R_WS)))
        a.raw('    s_waitcnt vmcnt(0)')
        a.label('L_noep')
        self.stamp(10)
        self.stamp((2, 4))
        self.stamp((3, 9))
        self.stamp((3, 10), clock=True)
        nh = 0
        while nh < HD:
            put_groups(h_groups(nh))
            nh += 1
        nw = WD

        TS = 96
        skip = []
        for dt in range(5):
            xs, ds = SK + 2 * dt, SK + 10 + 2 * dt
            L = ['v_lshlrev_b32 %s, 16, %s' % (vr(TS), vr(xs)), 'v_lshlrev_b32 %s, 16, %s' % (vr(TS + 1), vr(ds)),
                 'v_and_b32 %s, 0xffff0000, %s' % (vr(xs), vr(xs)), 'v_and_b32 %s, 0xffff0000, %s' % (vr(ds), vr(ds)),
                 'v_mul_f32 %s, %s, %s' % (vr(xs), vr(xs), vr(ds)),
                 'v_mul_f32 %s, %s, %s' % (vr(ds), vr(TS), vr(TS + 1)),
                 'v_lshlrev_b32 %s, 16, %s' % (vr(TS), vr(xs + 1)), 'v_lshlrev_b32 %s, 16, %s' % (vr(TS + 1), vr(ds + 1)),
                 'v_and_b32 %s, 0xffff0000, %s' % (vr(xs + 1), vr(xs + 1)), 'v_and_b32 %s, 0xffff0000, %s' % (vr(ds + 1), vr(ds + 1)),
                 'v_mul_f32 %s, %s, %s' % (vr(xs + 1), vr(xs + 1), vr(ds + 1)),
                 'v_mul_f32 %s, %s, %s' % (vr(ds + 1), vr(TS), vr(TS + 1))]
            skip += [[Ins(x)] for x in L]
        s_skip = Stream(skip, per=1, every=2)

        def skr(dt, r):
            return (SK + 10 + 2 * dt, SK + 2 * dt, SK + 10 + 2 * dt + 1, SK + 2 * dt + 1)[r]

        GAP = o.get('gap', 72)
        HMAX = o.get('hmax', 7)
        st = dict(nh=nh, hj=0, nw=nw, wj=0, t=0)

        def next_load(k):
            can_h = st['nh'] < 22 and st['nh'] <= k + HMAX and pool
            can_w = st['nw'] < 22 and pool
            urgent_w = can_w and st['nw'] <= k + o.get('wlead', 5)
            if can_h and not (urgent_w and st['nw'] <= st['nh']):
                kk, dl = st['nh'], st['hj']
                r = pool.pop(0)
                hq[(kk, dl)] = r
                hd = []
                if dl == 0:
                    hd = [Ins('s_lshl_b32 s%d, s%d, 12' % (P.sHk, KS[kk])), Ins('s_add_u32 s%d, s%d, s%d' % (P.sHk, P.sHk, P.sWB if o.get('fakeH') == 2 else P.sHB))]
                st['hj'] += 1
                if st['hj'] == 4:
                    st['hj'] = 0
                    st['nh'] += 1
                return hd + [Ins('buffer_load_dwordx4 %s, %s, %s, s%d offen %s' % (q(r), vr(VH + dl), srd(R_WS), P.sHB if o.get('fakeH') == 1 else P.sHk, HLD))]
            if can_w:
                kk, dt = st['nw'], st['wj']
                r = pool.pop(0)
                wq[(kk, dt)] = r
                hd = []
                if NL:
                    st['wj'] += 1
                    if st['wj'] == 5:
                        st['wj'] = 0
                        st['nw'] += 1
                    return ([WaitVM(lds_last)] if (kk == WD and dt == 0) else []) + [Ins('ds_read_b128 %s, %s offset:%d' % (q(r), vr(VLWR), ((kk - WD) * 5 + dt) * 1024))]
                if dt == 0:
                    hd = [Ins('s_mul_i32 s%d, s%d, 5120' % (P.sWk, KS[kk])), Ins('s_add_u32 s%d, s%d, s%d' % (P.sWk, P.sWk, P.sWB))]
                if dt < 4:
                    ld = Ins('buffer_load_dwordx4 %s, %s, %s, s%d offen offset:%d sc1' % (q(r), vr(VL16), srd(R_WS), P.sWk, dt * 1024))
                else:
                    ld = Ins('buffer_load_dwordx4 %s, %s, %s, s%d offen sc1' % (q(r), vr(VL16B), srd(R_WS), P.sWk))
                st['wj'] += 1
                if st['wj'] == 5:
                    st['wj'] = 0
                    st['nw'] += 1
                return hd + [ld]
            return None

        for k in range(22):
            while (st['nh'] <= k) or (st['nw'] <= k):
                g = next_load(k) if st['nh'] <= k else None
                if g is None or st['nh'] > k:
                    save = st['nh']
                    st['nh'] = 22
                    g2 = next_load(k) if g is None else None
                    st['nh'] = save
                    g = g or g2
                assert g is not None
                for x in g:
                    a.put(x)
            n = 0
            for dt in range(5):
                for dl in range(4):
                    c = '0' if k == 0 else vr(acc(dt, dl), 4)
                    a.put(Ins('v_mfma_f32_16x16x32_bf16 %s, %s, %s, %s' % (vr(acc(dt, dl), 4), q(wq[(k, dt)]), q(hq[(k, dl)]), c)))
                    now = (20 * k + n + 1) * 16
                    if NL and st['nw'] < 22 and st['nw'] <= k + 2 and n % 4 == 2 and pool:
                        save = st['nh']
                        st['nh'] = 22
                        g = next_load(k)
                        st['nh'] = save
                        for x in g:
                            a.put(x)
                    elif now >= st['t']:
                        savew = st['nw']
                        if NL:
                            st['nw'] = 22
                        g = next_load(k)
                        if NL:
                            st['nw'] = savew
                        if g is not None:
                            for x in g:
                                a.put(x)
                            st['t'] = max(st['t'] + GAP, now)
                    elif k >= o.get('skipk', 10) and n % 2 == 1 and not s_skip.done():
                        for x in s_skip.groups[s_skip.i]:
                            a.put(x)
                        s_skip.i += 1
                    n += 1
            for dt in range(5):
                pool.append(wq[(k, dt)])
            for dl in range(4):
                pool.append(hq[(k, dl)])
            if k in (0, 2, 5, 9, 13, 17):
                self.stamp((2, 5 + (0, 2, 5, 9, 13, 17).index(k)))
        assert st['nh'] == 22 and st['nw'] == 22
        while not s_skip.done():
            a.put(s_skip.groups[s_skip.i][0])
            s_skip.i += 1
        self.stamp(11)
        self.stamp((2, 11))
        self.stamp((3, 11))
        self.stamp((3, 8), clock=True)
        if NL:
            a.waitcnt(lg=0)
            a('s_barrier')
        for dl in range(1, 4):
            for dt in range(5):
                a('ds_write_b128 %s, %s offset:%d' % (vr(VRW + dl - 1), vr(acc(dt, dl), 4), dt * 1024))
        for dt in range(5):
            for r in range(4):
                a('v_fmac_f32 %s, %s, %s' % (vr(acc(dt, 0) + r), vr(VG), vr(skr(dt, r))))
        a('s_mul_i32 s90, s%d, %d' % (sR2, 64 * 2560))
        a('s_mul_i32 s91, s%d, 320' % sC2)
        a('s_add_u32 s90, s90, s91')
        a.waitcnt(lg=0)
        a('s_barrier')
        RB = 128
        for dt in range(5):
            for sl in range(3):
                a('ds_read_b128 %s, %s offset:%d' % (vr(RB + 4 * (3 * dt + sl), 4), vr(VRR), (sl * 5 + dt) * 1024))
        for dt in range(5):
            b = RB + 12 * dt
            for r in range(4):
                a('v_add_f32 %s, %s, %s' % (vr(b + r), vr(b + r), vr(b + 4 + r)))
            for r in range(4):
                a('v_add_f32 %s, %s, %s' % (vr(acc(dt, 0) + r), vr(acc(dt, 0) + r), vr(b + 8 + r)))
            for r in range(4):
                a('v_add_f32 %s, %s, %s' % (vr(acc(dt, 0) + r), vr(acc(dt, 0) + r), vr(b + r)))
            a('buffer_store_dwordx4 %s, %s, %s, s90 offen offset:%d %s' % (vr(acc(dt, 0), 4), vr(VO), srd(R_OUT), 64 * dt, {0: '', 1: 'sc1', 2: 'nt', 3: 'sc0 sc1'}[o.get('outmode', 0)]))

    def weave2(self, main, loads, every, extra):
        a = self.a
        for n, it in enumerate(main):
            a.put(it)
            if n % every == 0 and loads:
                for x in loads.pop(0):
                    a.put(x)
            elif extra is not None and n % 2 == 1 and not extra.done():
                for x in extra.groups[extra.i]:
                    a.put(x)
                extra.i += 1

    def kernel(self):
        a = self.a
        self.prologue()
        a('s_cmp_ge_u32 s%d, 6' % sCC)
        a.settle()
        a('s_cbranch_scc1 L_typeB')
        snap = a.snapshot()
        self.phase1('A')
        a('s_branch L_phase2')
        a.label('L_typeB')
        a.restore(snap)
        self.phase1('B')
        a.label('L_phase2')
        self.phase2()
        self.dump_stamps()
        a.label('L_exit')
        a('s_endpgm')
        head = open('gated_mix__ssm_conv_s5__dense_activation_relu__prompt.s.ref').read().split('\n')
        hdr = [ln for ln in head if ln.startswith(';') and '@launch' not in ln and 'Override' not in ln and 'grid=ceil' not in ln]
        out = '\n'.join(hdr) + '\n'
        out += '; @launch grid=(256,1,1) block=(256,1,1) lds=%d\n' % LDS_BYTES
        out += '.amdgcn_target "amdgcn-amd-amdhsa--gfx950"\n.text\n.globl %s\n.p2align 8\n.type %s,@function\n%s:\n' % (KNAME, KNAME, KNAME)
        out += a.text()
        out += '''.section .rodata,"a"
.p2align 6
.amdhsa_kernel %s
  .amdhsa_next_free_vgpr 512
  .amdhsa_next_free_sgpr 102
  .amdhsa_accum_offset 256
  .amdhsa_group_segment_fixed_size 0
  .amdhsa_kernarg_size 128
  .amdhsa_user_sgpr_count 2
  .amdhsa_user_sgpr_kernarg_segment_ptr 1
  .amdhsa_system_sgpr_workgroup_id_x 1
  .amdhsa_float_denorm_mode_32 3
.end_amdhsa_kernel
''' % KNAME
        return out


if __name__ == '__main__':
    opts = {}
    for arg in sys.argv[2:]:
        k, v = arg.split('=')
        opts[k] = int(v, 0)
    g = Gen(opts)
    txt = g.kernel()
    open(sys.argv[1], 'w').write(txt)
    print('instructions', g.a.n_ins, g.a.stats, 'nop states', g.a.nop_states, 'bytes of text', len(txt))
```

```python
import sys, math, struct
from asmgen import Asm, Ins, WaitVM, WaitLG, Stream, weave

KNAME = 'gated_mix__ssm_conv_s5__dense_activation_relu__prompt_kernel'

EPOCH_OFF = 0
FLAG_OFF = 0x1000
WF_OFF = 0x4000
AGG_OFF = 0x10000
WT_OFF = 0x40000
H_OFF = 0x400000
STAMP_OFF = 0x1000000
WS_BYTES = 268435456
OOB = 0x40000000

SLOT = 20480
MISC = 7 * SLOT
XS = 4 * SLOT
L_GW = MISC + 4096
L_GATE = L_GW + 2048
L_WST = L_GATE + 512
L_SEG = L_WST + 8192
L_LB = L_WST
LDS_BYTES = 163840
assert L_SEG + 5120 <= LDS_BYTES and XS + 65536 <= L_GW

S_X, S_LRE, S_LIM, S_BRE, S_BIM, S_CRE, S_CIM, S_LDT = 4, 6, 8, 10, 12, 14, 16, 18
S_DSK, S_BX, S_W1, S_W2, S_GWP, S_OUT, S_DBG, S_WS = 20, 22, 24, 26, 28, 30, 32, 34
R_X, R_WS, R_BRE, R_BIM, R_W1, R_W2, R_GW = 36, 40, 44, 48, 52, 56, 60
R_CI = 60
R_OUT = 48
sTAG, sTAG2, sW, sR, sG, sA, sR2, sC2, sC16, sHALF, sCC, sRHO = 64, 65, 66, 67, 68, 69, 70, 71, 72, 73, 74, 75
S_MASK = 76
sKO = 76
sE = 3
sW10, sGWI, sHF, sHS = 99, 98, 22, 23
sFB, sXS = 28, 4


def srd(r):
    return 's[%d:%d]' % (r, r + 3)


def vr(b, n=1):
    return 'v%d' % b if n == 1 else 'v[%d:%d]' % (b, b + n - 1)


def ar(b, n=1):
    return 'a%d' % b if n == 1 else 'a[%d:%d]' % (b, b + n - 1)


def f2u(x):
    return struct.unpack('<I', struct.pack('<f', x))[0]


def magic(d):
    return (1 << 32) // d + 1


LOG2E = '0x%08x' % f2u(math.log2(math.e))
INV2PI = '0x%08x' % f2u(1.0 / (2 * math.pi))


class P2:
    VL16, VL16B = 14, 15
    KS = list(range(4, 20)) + list(range(52, 58))
    sWB, sHB, sWk, sHk = 24, 25, 26, 27

    def __init__(self, opts):
        self.o = opts
        top = 240 if opts.get('stamps') else 256
        self.early_quads = [('a', r) for r in range(160, top, 4)] + [('v', r) for r in range(192, 256, 4)]
        self.n_early = min(opts.get('nearly', 22), len(self.early_quads) // 5)
        self.wq = {}
        for k in range(self.n_early):
            for dt in range(5):
                self.wq[(k, dt)] = self.early_quads[5 * k + dt]
        self.n_early2 = opts.get('nearly2', 5)
        self.early2_quads = [('a', 4 * j) for j in range(5 * self.n_early2)]
        for k in range(self.n_early2):
            for dt in range(5):
                self.wq[(self.n_early + k, dt)] = self.early2_quads[5 * k + dt]

    @staticmethod
    def q(x):
        return (vr if x[0] == 'v' else ar)(x[1], 4)

    def tables(self, late=False):
        KS, o = self.KS, self.o
        gr = []
        if not late:
            L = ['v_add_u32 %s, 4096, %s' % (vr(self.VL16B), vr(self.VL16)),
                 's_mul_i32 s%d, s%d, %d' % (self.sWB, sC2, 88 * 5120), 's_add_u32 s%d, s%d, 0x%x' % (self.sWB, self.sWB, WT_OFF),
                 's_mul_i32 s%d, s%d, %d' % (self.sHB, sR2, 88 * 4096), 's_add_u32 s%d, s%d, 0x%x' % (self.sHB, self.sHB, H_OFF),
                 's_mul_i32 s34, s%d, 10' % sW, 's_add_u32 s34, s34, 48',
                 's_mul_i32 s35, s%d, 12' % sW, 's_sub_u32 s35, s35, 10']
            mode = o.get('rot2', 0)
            if mode == 0:
                L += ['s_mov_b32 s96, 0']
            else:
                L += ['s_and_b32 s96, s%d, 3' % sC2, 's_mul_i32 s96, s96, %d' % o.get('rotc', 5)]
                if mode == 2:
                    L += ['s_and_b32 s95, s%d, 7' % sR2, 's_mul_i32 s95, s95, %d' % o.get('rotr', 3), 's_add_u32 s96, s96, s95']
            gr = [[Ins(x)] for x in L]
            for rep in range(2):
                gr.append([Ins('s_cmp_ge_u32 s96, 22'), Ins('s_cselect_b32 s95, 22, 0'), Ins('s_sub_u32 s96, s96, s95')])
            rng = range(16)
        else:
            gr = [[Ins('s_mov_b32 s96, s29')]]
            rng = range(16, 22)
        for k in rng:
            gr.append([Ins('s_cmp_lt_u32 s96, 10'), Ins('s_cselect_b32 s95, s34, s35'), Ins('s_add_u32 s%d, s95, s96' % KS[k])])
            gr.append([Ins('s_add_u32 s96, s96, 1')])
            gr.append([Ins('s_cmp_eq_u32 s96, 22'), Ins('s_cselect_b32 s96, 0, s96')])
        if not late:
            gr.append([Ins('s_mov_b32 s29, s96')])
        return gr

    def w_loads(self, k, quads, sk=None):
        sk = self.sWk if sk is None else sk
        gr = []
        for dt in range(5):
            hd = []
            if dt == 0:
                hd = [Ins('s_mul_i32 s%d, s%d, 5120' % (sk, self.KS[k])), Ins('s_add_u32 s%d, s%d, s%d' % (sk, sk, self.sWB))]
            if dt < 4:
                ld = Ins('buffer_load_dwordx4 %s, %s, %s, s%d offen offset:%d sc1' % (self.q(quads[dt]), vr(self.VL16), srd(R_WS), sk, dt * 1024))
            else:
                ld = Ins('buffer_load_dwordx4 %s, %s, %s, s%d offen sc1' % (self.q(quads[dt]), vr(self.VL16B), srd(R_WS), sk))
            gr.append(hd + [ld])
        return gr

    def early2_w(self):
        gr = []
        for k in range(self.n_early, self.n_early + self.n_early2):
            gr += self.w_loads(k, [self.wq[(k, dt)] for dt in range(5)], self.sHk)
        return gr

    def early_w(self):
        gr = []
        for k in range(self.n_early):
            gr += self.w_loads(k, [self.wq[(k, dt)] for dt in range(5)])
        return gr


class Gen:
    def __init__(self, opts):
        self.o = opts
        self.a = Asm()
        self.p2 = P2(opts)

    def stamp(self, k, clock=False):
        if not self.o.get('stamps'):
            return
        det = self.o.get('detail', 0)
        if isinstance(k, tuple):
            if k[0] != det:
                return
            k = k[1]
        elif det and (5 <= k <= 11 or (det == 3 and k in (1, 2, 3))):
            return
        a = self.a
        a('%s s[100:101]' % ('s_memtime' if clock else 's_memrealtime'))
        a.waitcnt(lg=0)
        a('v_accvgpr_write_b32 a%d, s100' % (240 + k))

    def dump_stamps(self):
        if not self.o.get('stamps'):
            return
        a = self.a
        self.stamp(12)
        self.stamp(14, clock=True)
        a.drain()
        for k in range(16):
            a('v_accvgpr_read_b32 v%d, a%d' % (16 + k, 240 + k))
        a('s_lshl_b32 s90, s2, 2')
        a('s_add_u32 s90, s90, s%d' % sW)
        a('s_lshl_b32 s90, s90, 6')
        a('s_add_u32 s90, s90, 0x%x' % STAMP_OFF)
        a('v_mov_b32 v1, 0')
        for k in range(4):
            a('buffer_store_dwordx4 v[%d:%d], v1, %s, s90 offen offset:%d' % (16 + 4 * k, 19 + 4 * k, srd(R_WS), 16 * k))
        a.waitcnt(vm=0)

    def build_srd(self, r, ptr, nbytes):
        a = self.a
        a('s_mov_b32 s%d, s%d' % (r, ptr))
        a('s_and_b32 s%d, s%d, 0xffff' % (r + 1, ptr + 1))
        a('s_mov_b32 s%d, 0x%x' % (r + 2, nbytes))
        a('s_mov_b32 s%d, 0x20000' % (r + 3))

    def swap23(self, dst, src, tmp):
        a = self.a
        a('v_and_b32 %s, 19, %s' % (vr(dst), vr(src)))
        a('v_bfe_u32 %s, %s, 2, 1' % (vr(tmp), vr(src)))
        a('v_lshl_add_u32 %s, %s, 3, %s' % (vr(dst), vr(tmp), vr(dst)))
        a('v_bfe_u32 %s, %s, 3, 1' % (vr(tmp), vr(src)))
        a('v_lshl_add_u32 %s, %s, 2, %s' % (vr(dst), vr(tmp), vr(dst)))

    def lane_t(self, dst, src, tmp):
        a = self.a
        a('v_bfe_u32 %s, %s, 2, 1' % (vr(tmp), vr(src)))
        a('v_lshlrev_b32 %s, 4, %s' % (vr(tmp), vr(tmp)))
        a('v_and_b32 %s, 3, %s' % (vr(dst), vr(src)))
        a('v_add_u32 %s, %s, %s' % (vr(dst), vr(dst), vr(tmp)))
        a('v_lshrrev_b32 %s, 3, %s' % (vr(tmp), vr(src)))
        a('v_lshl_add_u32 %s, %s, 2, %s' % (vr(dst), vr(tmp), vr(dst)))

    XD, XR = 48, 52
    PO, GO0, GO1 = 56, 57, 58
    CD, CR = 60, 62

    def prologue(self):
        a, o = self.a, self.o
        a('s_cmp_ge_u32 s2, 256')
        a('s_cbranch_scc1 L_exit')
        self.stamp(0)
        self.stamp(13, clock=True)
        a('s_load_dwordx16 s[4:19], s[0:1], 0')
        a('s_load_dwordx16 s[20:35], s[0:1], 64')
        if o.get('codepf', 1):
            a('s_getpc_b64 s[92:93]')
            a.label('L_pc')
            a('s_lshr_b32 s90, s2, 3')
            a('s_lshl_b32 s90, s90, 2')
            a('v_lshrrev_b32 v1, 6, v0')
            a('v_add_u32 v1, s90, v1')
            a('v_mul_u32_u24 v1, 3, v1')
            a('v_and_b32 v2, 63, v0')
            a('v_min_u32 v2, 2, v2')
            a('v_add_u32 v1, v1, v2')
            a('v_lshlrev_b32 v1, 7, v1')
            a.raw('    v_min_u32 v1, L_exit-L_pc, v1')
            a('global_load_dword v47, v1, s[92:93]')
        a.many("""
            s_and_b32 s90, s2, 7
            s_lshr_b32 s91, s2, 3
            s_lshr_b32 s92, s90, 1
            s_and_b32 s%(half)d, s90, 1
            s_lshl_b32 s93, s92, 2
            s_lshr_b32 s94, s91, 3
            s_add_u32 s%(r)d, s93, s94
            s_and_b32 s%(cc)d, s91, 7
            s_lshl_b32 s93, s%(half)d, 3
            s_add_u32 s%(c16)d, s93, s%(cc)d
            s_lshl_b32 s93, s92, 3
            s_lshr_b32 s94, s91, 2
            s_add_u32 s%(r2)d, s93, s94
            s_lshl_b32 s93, s%(half)d, 2
            s_and_b32 s94, s91, 3
            s_add_u32 s%(c2)d, s93, s94
        """ % dict(half=sHALF, r=sR, cc=sCC, c16=sC16, r2=sR2, c2=sC2))
        a('v_lshrrev_b32 v1, 6, v0')
        a('v_and_b32 v0, 63, v0')
        a('v_readfirstlane_b32 s%d, v1' % sW)
        a.many("""
            s_mul_i32 s93, s%(half)d, 6
            s_add_u32 s%(A)d, s93, s%(cc)d
            s_lshl_b32 s93, s%(half)d, 1
            s_add_u32 s93, s93, s%(cc)d
            s_sub_u32 s93, s93, 6
            s_lshl_b32 s93, s93, 1
            s_add_u32 s93, s93, 12
            s_cmp_lt_u32 s%(cc)d, 6
            s_cselect_b32 s%(G)d, s%(A)d, s93
        """ % dict(half=sHALF, A=sA, cc=sCC, G=sG))
        a('s_and_b32 s90, s%d, 3' % sR)
        a('s_lshl_b32 s90, s90, 1')
        a('s_add_u32 s90, s90, s%d' % sCC)
        a('s_cmp_ge_u32 s90, 10')
        a('s_cselect_b32 s91, 10, 0')
        a('s_sub_u32 s%d, s90, s91' % sRHO)
        if not o.get('rot', 1):
            a('s_mov_b32 s%d, 0' % sRHO)
        a('s_lshl_b32 s%d, s%d, 7' % (sKO, sRHO))
        for k in range(1, 10):
            a('s_add_u32 s%d, s%d, 128' % (sKO + k, sKO + k - 1))
            a('s_cmp_ge_u32 s%d, 1280' % (sKO + k))
            a('s_cselect_b32 s%d, 0, s%d' % (sKO + k, sKO + k))
        a('s_lshl_b32 s%d, s%d, 10' % (sW10, sW))
        XD, CD = self.XD, self.CD
        a('v_lshrrev_b32 v64, 3, v0')
        a('v_and_b32 v65, 7, v0')
        a('v_lshrrev_b32 v66, 1, v64')
        a('v_xor_b32 v66, v66, v65')
        a('v_mul_u32_u24 v67, 1280, v64')
        a('v_lshl_add_u32 %s, v66, 4, v67' % vr(CD))
        a('v_xor_b32 %s, 64, %s' % (vr(CD + 1), vr(CD)))
        a('v_add_u32 %s, 10240, %s' % (vr(CD + 1), vr(CD + 1)))
        a('s_lshl_b32 s90, s%d, 2' % sR)
        a('s_add_u32 s90, s90, s%d' % sW)
        a('s_mul_i32 s90, s90, 40960')
        a('v_add_u32 %s, s90, %s' % (vr(XD), vr(CD)))
        a('v_add_u32 %s, s90, %s' % (vr(XD + 1), vr(CD + 1)))
        a('v_add_u32 %s, 20480, %s' % (vr(XD + 2), vr(XD)))
        a('v_add_u32 %s, 20480, %s' % (vr(XD + 3), vr(XD + 1)))
        a('s_lshl_b32 s90, s%d, 3' % sW)
        a('v_add_u32 v66, s90, v64')
        self.swap23(67, 66, 68)
        a('v_mul_u32_u24 v67, 1280, v67')
        a('v_bfe_u32 v68, v66, 1, 3')
        a('v_xor_b32 v68, v68, v65')
        a('v_lshl_add_u32 v3, v68, 4, v67')
        a('s_mul_i32 s90, s%d, 40960' % sG)
        a('v_add_u32 v3, s90, v3')
        a('v_and_b32 v66, 31, v0')
        self.swap23(67, 66, 68)
        a('v_lshlrev_b32 %s, 1, v67' % vr(self.PO))
        g0, g1 = self.GO0, self.GO1
        a('s_lshl_b32 s90, s%d, 3' % sRHO)
        a('v_add_u32 %s, s90, v0' % vr(g0))
        a('v_subrev_u32 v66, 80, %s' % vr(g0))
        a('v_cmp_le_u32 vcc, 80, %s' % vr(g0))
        a('v_cndmask_b32 %s, %s, v66, vcc' % (vr(g0), vr(g0)))
        a('v_add_u32 %s, 64, %s' % (vr(g1), vr(g0)))
        a('v_subrev_u32 v66, 80, %s' % vr(g1))
        a('v_cmp_le_u32 vcc, 80, %s' % vr(g1))
        a('v_cndmask_b32 %s, %s, v66, vcc' % (vr(g1), vr(g1)))
        a('v_lshlrev_b32 %s, 4, %s' % (vr(g0), vr(g0)))
        a('v_lshlrev_b32 %s, 4, %s' % (vr(g1), vr(g1)))
        a('v_cmp_gt_u32 vcc, 16, v0')
        a('v_cndmask_b32 %s, 0x%x, %s, vcc' % (vr(g1), OOB, vr(g1)))
        a.waitcnt(lg=0)
        self.stamp(1)
        a('s_load_dword s%d, s[%d:%d], 0x%x' % (sE, S_WS, S_WS + 1, EPOCH_OFF))
        if o.get('tlb', 0):
            pages = [(S_X, 0), (S_X, 2097152), (S_BRE, 0), (S_BIM, 0), (S_GWP, 0), (S_LRE, 0), (S_LIM, 0), (S_LDT, 0),
                     (S_W1, 0), (S_W1, 1966080 - 64), (S_W2, 0), (S_W2, 1966080 - 64), (S_CRE, 0), (S_CIM, 0), (S_DSK, 0),
                     (S_OUT, 0), (S_OUT, 2097152), (S_OUT, 4194304), (S_OUT, 5242880 - 64)]
            pages += [(S_WS, p * 2097152) for p in range(8)]
            if o.get('tlb') == 2:
                pages = pages[:8]
            a('v_mov_b32 v70, s%d' % S_X)
            a('v_mov_b32 v71, s%d' % (S_X + 1))
            for ln, (ptr, off) in enumerate(pages):
                if ln == 0:
                    continue
                if off:
                    a('s_add_u32 s90, s%d, 0x%x' % (ptr, off))
                    a('s_addc_u32 s91, s%d, 0' % (ptr + 1))
                    a('v_writelane_b32 v70, s90, %d' % ln)
                    a('v_writelane_b32 v71, s91, %d' % ln)
                else:
                    a('v_writelane_b32 v70, s%d, %d' % (ptr, ln))
                    a('v_writelane_b32 v71, s%d, %d' % (ptr + 1, ln))
            a('global_load_dword v46, v[70:71], off')
        self.build_srd(R_X, S_X, 2621440)
        self.build_srd(R_BRE, S_BRE, 819200)
        self.build_srd(R_GW, S_GWP, 1280)
        a('s_lshl_b32 s%d, s%d, 14' % (sXS, sW))
        a('s_add_u32 s%d, s%d, %d' % (sXS, sXS, XS))

    def phase1(self, typ):
        a, o = self.a, self.o
        A = typ == 'A'
        HST = {0: 'sc1', 1: 'sc0 sc1', 2: 'sc1 nt', 3: 'sc0 sc1 nt'}[o.get('hst', 0)]
        XD, XR, CD, CR = self.XD, self.XR, self.CD, self.CR
        V = {'WS': 3}
        nxt = [4]

        def al(name, n=1):
            V[name] = nxt[0]
            nxt[0] += n
        for nm in ('WF', 'ST', 'AG', 'LB0', 'LB1', 'SEGW', 'SEGR', 'GW', 'G', 'OMG', 'W2D', 'W2R'):
            al(nm)
        al('RS', 4)
        if A:
            al('RF', 6)
        else:
            al('WS2')
        ngrp = 1 if A else 2
        for g in range(ngrp):
            for nm in ('lr', 'li', 'nli', 'l16r', 'l16i', 'lsr', 'lsi', 'p1r', 'p1i', 'p2r', 'p2i', 'cr', 'ci'):
                al('%s%d' % (nm, g))
        assert nxt[0] <= 47, nxt[0]
        RING = 96
        RING_ADDR = 92
        PT = 80
        ACC = [128, 160]
        GACC = 160
        FA = [160, 176]
        A_GW = 160

        def XF(s):
            return ar(4 * s, 4)

        def put_all(items):
            for it in items:
                if isinstance(it, list):
                    put_all(it)
                elif callable(it):
                    it()
                else:
                    a.put(it)

        def ssm_dma(g, stage, slot):
            R = R_BRE if stage % 2 == 0 else R_BIM
            kh = stage // 2
            ws_ = V['WS'] if g == 0 else V['WS2']
            grp = []
            last = None
            for kb in range(5):
                last = Ins('buffer_load_dwordx4 %s, %s, s%d offen lds' % (vr(ws_), srd(R), sKO + 5 * kh + kb))
                grp.append([Ins('s_add_u32 m0, s%d, %d' % (sW10, slot * SLOT + kb * 4096)), Ins('s_nop 0'), last])
            return grp, last

        s_dma = {}

        def s_load(g, m, kap):
            kh, kb = kap // 5, kap % 5
            slot = slot_of[4 * g + 2 * kh + m]
            ws_ = V['WS'] if g == 0 else V['WS2']
            ld = Ins('buffer_load_dwordx4 %s, %s, s%d offen lds' % (vr(ws_), srd(R_BIM if m else R_BRE), sKO + kap))
            s_dma[(g, m, kap)] = ld
            return [Ins('s_add_u32 m0, s%d, %d' % (sW10, slot * SLOT + kb * 4096)), Ins('s_nop 0'), ld]

        def ffn_dma(fst, slot):
            blk, st = fst >> 2, fst & 3
            grp = []
            last = None
            for i2 in range(5):
                c = (160 * st + 32 * i2) * 3072 + 128 * blk
                last = Ins('buffer_load_dwordx4 %s, %s, %s offen lds' % (vr(V['WF']), srd(R_W1), '0' if o.get('fakeF') else 's92'))
                grp.append([Ins('s_add_u32 s92, s%d, %d' % (sFB, c)),
                            Ins('s_cmp_ge_u32 s92, %d' % (640 * 3072)),
                            Ins('s_cselect_b32 s93, %d, 0' % (640 * 3072)),
                            Ins('s_add_u32 m0, s%d, %d' % (sW10, slot * SLOT + i2 * 4096)),
                            Ins('s_sub_u32 s92, s92, s93'),
                            last])
            return grp, last

        x_dma_last, x_rd_last = {}, {}

        def xdma(kap):
            grp = []
            for g in range(4):
                ld = Ins('buffer_load_dwordx4 %s, %s, %s offen lds' % (vr(XD + g), srd(R_X), '0' if (o.get('fakeX') and kap >= 4) else 's%d' % (sKO + kap)))
                grp.append([Ins('s_add_u32 m0, s%d, %d' % (sXS, (kap % 4) * 4096 + g * 1024)), Ins('s_nop 0'), ld])
                x_dma_last[kap] = ld
            return grp

        def xread(kap):
            grp = []
            for j in range(4):
                rd = Ins('ds_read_b128 %s, %s offset:%d' % (XF(4 * kap + j), vr(XR + j), (kap % 4) * 4096))
                grp.append(([WaitVM(x_dma_last[kap])] if j == 0 else []) + [rd])
                x_rd_last[kap] = rd
            return grp

        def xrefill(kap):
            g = xdma(kap)
            g[0] = [WaitLG(x_rd_last[kap - 4])] + g[0]
            return g

        if A:
            seq = [('S', 0, i) for i in range(4)] + [('F', 0, i) for i in range(8)]
            slot_of = [0, 1, 2, 3, 0, 1, 4, 5, 6, 2, 3, 0]
        else:
            seq = [('S', 0, i) for i in range(4)] + [('S', 1, i) for i in range(4)]
            slot_of = [0, 1, 2, 3, 0, 1, 4, 5]
        dma_last = [None] * len(seq)

        def stage_loads(i):
            kind, g, st = seq[i]
            grp, last = ssm_dma(g, st, slot_of[i]) if kind == 'S' else ffn_dma(st, slot_of[i])
            dma_last[i] = last
            return grp

        if not A:
            a('v_add_u32 %s, 40960, %s' % (vr(V['WS2']), vr(V['WS'])))
        self.build_srd(R_BIM, S_BIM, 819200)
        PF = o.get('pf', 0)
        if PF:
            a('s_lshr_b32 s90, s2, 3')
            a('s_lshl_b32 s90, s90, 2')
            a('s_add_u32 s90, s90, s%d' % sW)
            a('s_mul_i32 s91, s90, 40')
            a('v_min_u32 v64, 39, v0')
            a('v_add_u32 v64, s91, v64')
            a('v_lshlrev_b32 v64, 7, v64')
            a('s_and_b32 s91, s2, 7')
            a('s_lshr_b32 s91, s91, 1')
            a('s_mul_i32 s91, s91, %d' % (512 * 1280))
            a('buffer_load_dword v68, v64, %s, s91 offen' % srd(R_X))
            a('s_mul_i32 s91, s90, 25')
            a('v_min_u32 v64, 24, v0')
            a('v_add_u32 v64, s91, v64')
            a('v_mul_u32_u24 v65, 6554, v64')
            a('v_lshrrev_b32 v65, 21, v65')
            a('v_mul_u32_u24 v66, 320, v65')
            a('v_sub_u32 v64, v64, v66')
            a('s_mul_i32 s91, s%d, 6' % sHALF)
            a('s_lshl_b32 s92, s%d, 2' % sHALF)
            a('s_add_u32 s92, s92, 6')
            a('v_add_u32 v66, s91, v65')
            a('v_add_u32 v67, s92, v65')
            a('v_cmp_gt_u32 vcc, 6, v65')
            a('v_cndmask_b32 v65, v67, v66, vcc')
            a('v_mul_u32_u24 v65, 40960, v65')
            a('v_lshl_add_u32 v64, v64, 7, v65')
            a('buffer_load_dword v69, v64, %s, 0 offen' % srd(R_BRE))
            a('buffer_load_dword v70, v64, %s, 0 offen' % srd(R_BIM))
        put_all(xdma(0))
        put_all([s_load(0, 0, 0), s_load(0, 1, 0)])
        if PF != 2:
            put_all(xdma(1))
            put_all([s_load(0, 0, 1), s_load(0, 1, 1)])
        for g in range(ngrp):
            a('s_add_u32 s90, s%d, %d' % (sG, g))
            a('s_lshl_b32 s90, s90, 6')
            a('v_add_u32 v59, s90, %s' % vr(self.PO))
            a('global_load_ushort %s, v59, s[%d:%d]' % (vr(V['lr%d' % g]), S_LRE, S_LRE + 1))
            a('global_load_ushort %s, v59, s[%d:%d]' % (vr(V['li%d' % g]), S_LIM, S_LIM + 1))
            a('global_load_ushort %s, v59, s[%d:%d]' % (vr(V['cr%d' % g]), S_LDT, S_LDT + 1))
        a('s_mov_b32 m0, %d' % L_GW)
        a('s_nop 0')
        a('buffer_load_dwordx4 %s, %s, 0 offen lds' % (vr(self.GO0), srd(R_GW)))
        a('s_mov_b32 m0, %d' % (L_GW + 1024))
        a('s_nop 0')
        gw_dma = a('buffer_load_dwordx4 %s, %s, 0 offen lds' % (vr(self.GO1), srd(R_GW)))

        self.stamp(2)

        def G(lines):
            return [[Ins(x)] for x in lines]

        U0, U1, U2, U3, U4 = PT, PT + 1, PT + 2, PT + 3, PT + 4
        a('v_and_b32 %s, 31, v0' % vr(U0))
        a('v_lshrrev_b32 %s, 5, v0' % vr(U1))
        self.lane_t(U2, U0, U3)
        a('v_bfe_u32 %s, %s, 1, 3' % (vr(U3), vr(U2)))
        a('v_lshlrev_b32 %s, 1, %s' % (vr(U4), vr(U1)))
        a('v_xor_b32 %s, %s, %s' % (vr(U3), vr(U3), vr(U4)))
        a('v_lshlrev_b32 %s, 7, %s' % (vr(U2), vr(U2)))
        a('v_add_u32 %s, s%d, %s' % (vr(U2), sXS, vr(U2)))
        for u in range(2):
            for ab in range(2):
                d = XR + 2 * u + ab
                a('v_xor_b32 %s, %d, %s' % (vr(d), 4 * u + ab, vr(U3)))
                a('v_lshl_add_u32 %s, %s, 4, %s' % (vr(d), vr(d), vr(U2)))
        a('v_lshlrev_b32 %s, 5, %s' % (vr(V['GW']), vr(U1)))
        a('v_add_u32 %s, %d, %s' % (vr(V['GW']), L_GW, vr(V['GW'])))
        a('v_bfe_u32 %s, %s, 1, 3' % (vr(U2), vr(U0)))
        a('v_xor_b32 %s, %s, %s' % (vr(U2), vr(U2), vr(U4)))
        a('v_lshlrev_b32 %s, 7, %s' % (vr(U3), vr(U0)))
        for u in range(2):
            for ab in range(2):
                d = V['RS'] + 2 * u + ab
                a('v_xor_b32 %s, %d, %s' % (vr(d), 4 * u + ab, vr(U2)))
                a('v_lshl_add_u32 %s, %s, 4, %s' % (vr(d), vr(d), vr(U3)))

        def gate_reads(half):
            return G(['ds_read_b128 %s, %s offset:%d' % (ar(A_GW + 4 * k, 4), vr(V['GW']), 64 * ((20 * half + k) >> 1) + 16 * (k & 1)) for k in range(20)])
        def late_scalars():
            L = []
            for r, ptr, nb in ((R_WS, S_WS, WS_BYTES), (R_W1, S_W1, 1966080), (R_W2, S_W2, 1966080)):
                L += ['s_mov_b32 s%d, s%d' % (r, ptr), 's_and_b32 s%d, s%d, 0xffff' % (r + 1, ptr + 1),
                      's_mov_b32 s%d, 0x%x' % (r + 2, nb), 's_mov_b32 s%d, 0x20000' % (r + 3)]
            L += ['s_lshl_b32 s90, s%d, 3' % sRHO, 's_add_u32 s90, s90, s%d' % sW, 's_mul_i32 s90, s90, 24576',
                  's_lshl_b32 s91, s%d, 8' % sA, 's_add_u32 s%d, s90, s91' % sFB]
            if A:
                t0, t1, t2 = PT, PT + 1, PT + 2
                L += ['v_lshrrev_b32 %s, 3, v0' % vr(t0),
                      'v_mul_u32_u24 %s, 3072, %s' % (vr(t1), vr(t0)),
                      'v_bfe_u32 %s, %s, 1, 1' % (vr(t0), vr(t0)),
                      'v_lshlrev_b32 %s, 2, %s' % (vr(t0), vr(t0)),
                      'v_and_b32 %s, 7, v0' % vr(t2),
                      'v_xor_b32 %s, %s, %s' % (vr(t0), vr(t0), vr(t2)),
                      'v_lshl_add_u32 %s, %s, 4, %s' % (vr(V['WF']), vr(t0), vr(t1))]
            return G(L)

        w2_dma = []
        c_dma = []

        def w2_setup():
            T0, T1 = 59, PT + 4
            L = ['v_lshrrev_b32 %s, 1, v0' % vr(T0),
                 'v_mul_u32_u24 %s, 1280, %s' % (vr(T0), vr(T0)),
                 'v_and_b32 %s, 1, v0' % vr(T1),
                 'v_lshl_add_u32 %s, %s, 4, %s' % (vr(T0), vr(T1), vr(T0)),
                 's_lshl_b32 s90, s2, 2',
                 's_add_u32 s%d, s90, s%d' % (sGWI, sW),
                 's_cmp_lt_u32 s%d, 960' % sGWI]
            gr = G(L[:-1]) + [[Ins(L[-1]), Ins('s_cselect_b32 s91, 0, 0x%x' % OOB)]]
            gr += G(['v_add_u32 %s, s91, %s' % (vr(T0), vr(T0)),
                     'v_lshlrev_b32 %s, 4, v0' % vr(V['W2D']),
                     'v_add_u32 v1, s91, %s' % vr(V['W2D']),
                     's_min_u32 s91, s%d, 959' % sGWI,
                     's_lshl_b32 s91, s91, 1',
                     's_mul_hi_u32 s90, s91, 0x%x' % magic(240),
                     's_mul_i32 s94, s90, 240',
                     's_sub_u32 s91, s91, s94',
                     's_mul_i32 s94, s90, 440',
                     's_add_u32 s94, s94, s91',
                     's_lshl_b32 s94, s94, 10',
                     's_add_u32 s26, s94, 0x%x' % WT_OFF])
            for e in range(2):
                L = []
                if e:
                    L.append('s_add_u32 s91, s91, 1')
                L += ['s_mul_hi_u32 s94, s91, 0x%x' % magic(5),
                      's_mul_i32 s95, s94, 5',
                      's_sub_u32 s95, s91, s95',
                      's_mul_i32 s94, s94, 40960',
                      's_mul_i32 s96, s90, 160',
                      's_add_u32 s94, s94, s96',
                      's_lshl_b32 s95, s95, 5',
                      's_add_u32 s%d, s94, s95' % (27, 29)[e]]
                gr += G(L)
                ld = Ins('buffer_load_dwordx4 %s, %s, s%d offen lds' % (vr(T0), srd(R_W2), (27, 29)[e]))
                gr.append([Ins('s_add_u32 m0, s%d, %d' % (sW10, 2 * SLOT + 12288 + 4096 * e)), Ins('s_nop 0'), ld])
                w2_dma.append(ld)
            return gr

        _w2 = w2_setup()
        w2_setup_b = [g for g in _w2 if any(x.kind == 'vm' for x in g)]
        w2_setup_a = [g for g in _w2 if not any(x.kind == 'vm' for x in g)]
        assert len(w2_setup_b) == 2

        def c_setup():
            gr = [[Ins('s_cmp_lt_u32 s%d, 800' % sGWI), Ins('s_cselect_b32 s91, 0, 0x%x' % OOB)]]
            gr += G(['v_add_u32 %s, s91, %s' % (vr(CD), vr(CD)),
                     'v_add_u32 %s, s91, %s' % (vr(CD + 1), vr(CD + 1)),
                     'v_add_u32 v2, s91, %s' % vr(V['W2D']),
                     's_min_u32 s91, s%d, 799' % sGWI])
            gr.append([Ins('s_cmp_ge_u32 s91, 400'), Ins('s_cselect_b32 s90, 1, 0'),
                       Ins('s_cselect_b32 s%d, s%d, s%d' % (R_CI, S_CIM, S_CRE)),
                       Ins('s_cselect_b32 s%d, s%d, s%d' % (R_CI + 1, S_CIM + 1, S_CRE + 1))])
            gr += G(['s_and_b32 s%d, s%d, 0xffff' % (R_CI + 1, R_CI + 1),
                     's_mov_b32 s%d, 819200' % (R_CI + 2),
                     's_mov_b32 s%d, 0x20000' % (R_CI + 3),
                     's_mul_i32 s94, s90, 400',
                     's_sub_u32 s91, s91, s94',
                     's_mul_hi_u32 s94, s91, 0x%x' % magic(50),
                     's_mul_i32 s95, s94, 50',
                     's_sub_u32 s91, s91, s95',
                     's_mul_hi_u32 s95, s91, 0x%x' % magic(5),
                     's_mul_i32 s96, s95, 5',
                     's_sub_u32 s96, s91, s96',
                     's_mul_i32 s97, s94, 80',
                     's_lshl_b32 s91, s96, 4',
                     's_add_u32 s97, s97, s91',
                     's_mul_i32 s97, s97, 1280',
                     's_lshl_b32 s91, s95, 7',
                     's_add_u32 s24, s97, s91',
                     's_mul_i32 s90, s90, 20',
                     's_lshl_b32 s95, s95, 1',
                     's_add_u32 s90, s90, s95',
                     's_add_u32 s90, s90, 48',
                     's_mul_i32 s94, s94, 88',
                     's_add_u32 s90, s90, s94',
                     's_mul_i32 s90, s90, 5',
                     's_add_u32 s90, s90, s96',
                     's_lshl_b32 s90, s90, 10',
                     's_add_u32 s25, s90, 0x%x' % WT_OFF])
            return gr

        def item_addrs():
            U2, U3, U4 = PT + 5, PT + 6, PT + 7
            return G(['v_lshrrev_b32 %s, 5, v0' % vr(U2),
                      'v_lshlrev_b32 %s, 4, %s' % (vr(U2), vr(U2)),
                      'v_bfe_u32 %s, v0, 4, 1' % vr(U3),
                      'v_lshl_add_u32 %s, %s, 2, %s' % (vr(U2), vr(U3), vr(U2)),
                      'v_bfe_u32 %s, v0, 2, 2' % vr(U3),
                      'v_add_u32 %s, %s, %s' % (vr(U2), vr(U2), vr(U3)),
                      'v_lshlrev_b32 %s, 5, %s' % (vr(U2), vr(U2)),
                      'v_and_b32 %s, 3, v0' % vr(U3),
                      'v_lshl_add_u32 %s, %s, 3, %s' % (vr(U2), vr(U3), vr(U2)),
                      's_add_u32 s97, s%d, %d' % (sW10, 2 * SLOT + 12288),
                      'v_add_u32 %s, s97, %s' % (vr(V['W2R']), vr(U2)),
                      's_add_u32 s97, s%d, %d' % (sW10, 3 * SLOT + 12288),
                      'v_and_b32 %s, 15, v0' % vr(U2),
                      'v_lshrrev_b32 %s, 4, v0' % vr(U3),
                      'v_lshrrev_b32 %s, 1, %s' % (vr(U4), vr(U2)),
                      'v_xor_b32 %s, %s, %s' % (vr(U3), vr(U3), vr(U4)),
                      'v_lshlrev_b32 %s, 4, %s' % (vr(U3), vr(U3)),
                      'v_xor_b32 %s, 64, %s' % (vr(U4), vr(U3)),
                      'v_and_b32 %s, 7, %s' % (vr(PT + 9), vr(U2)),
                      'v_lshrrev_b32 %s, 3, %s' % (vr(U2), vr(U2)),
                      'v_lshlrev_b32 %s, 12, %s' % (vr(U2), vr(U2)),
                      'v_lshl_add_u32 %s, %s, 7, %s' % (vr(U2), vr(PT + 9), vr(U2)),
                      'v_add_u32 %s, s97, %s' % (vr(U2), vr(U2)),
                      'v_add_u32 %s, %s, %s' % (vr(CR), vr(U3), vr(U2)),
                      'v_add_u32 %s, %s, %s' % (vr(CR + 1), vr(U4), vr(U2))])

        def lane_consts():
            U0, U1, U2, U3 = PT, PT + 1, PT + 2, PT + 3
            SEGV, E0, E1 = PT + 8, PT + 9, PT + 10
            L = ['v_and_b32 %s, 31, v0' % vr(U0),
                 'v_lshrrev_b32 %s, 5, v0' % vr(U1),
                 'v_lshrrev_b32 %s, 4, %s' % (vr(U2), vr(U0)),
                 'v_lshlrev_b32 %s, 10, %s' % (vr(U2), vr(U2)),
                 'v_and_b32 %s, 15, %s' % (vr(U3), vr(U0)),
                 'v_lshl_add_u32 %s, %s, 4, %s' % (vr(U3), vr(U1), vr(U3)),
                 'v_lshl_add_u32 %s, %s, 4, %s' % (vr(V['ST']), vr(U3), vr(U2)),
                 'v_lshlrev_b32 %s, 4, %s' % (vr(V['AG']), vr(U0)),
                 'v_mul_u32_u24 %s, 80, %s' % (vr(V['SEGR']), vr(U0)),
                 'v_add_u32 %s, %d, %s' % (vr(V['SEGR']), MISC, vr(V['SEGR'])),
                 's_lshl_b32 s95, s%d, 1' % sW,
                 'v_add_u32 %s, s95, %s' % (vr(SEGV), vr(U1)),
                 'v_lshl_add_u32 %s, %s, 3, %s' % (vr(V['SEGW']), vr(SEGV), vr(V['SEGR']))]
            gr = G(L)
            for i2, E in ((0, E0), (1, E1)):
                gr += G(['v_add_u32 %s, %d, %s' % (vr(U3), 8 * i2, vr(SEGV)),
                         'v_sub_u32 %s, s%d, %s' % (vr(E), sR, vr(U3)),
                         'v_add_u32 %s, -1, %s' % (vr(E), vr(E))])
                gr.append([Ins('v_cmp_gt_u32 vcc, s%d, %s' % (sR, vr(U3))),
                           Ins('v_cndmask_b32 %s, -1, %s, vcc' % (vr(E), vr(E))),
                           Ins('v_cndmask_b32 %s, 0, %s, vcc' % (vr(U3), vr(U3)))])
                gr += G(['v_lshl_add_u32 %s, %s, 9, %s' % (vr(V['LB%d' % i2]), vr(U3), vr(V['AG']))])
            if A:
                jl, mh, tq = PT + 4, PT + 5, PT + 6
                L = ['v_and_b32 %s, 15, v0' % vr(jl),
                     'v_bfe_u32 %s, v0, 4, 1' % vr(mh),
                     'v_lshrrev_b32 %s, 2, %s' % (vr(U2), vr(jl)),
                     'v_lshl_add_u32 %s, %s, 4, %s' % (vr(U2), vr(U1), vr(U2)),
                     'v_lshlrev_b32 %s, 7, %s' % (vr(U2), vr(U2)),
                     'v_and_b32 %s, 1, %s' % (vr(U3), vr(jl)),
                     'v_lshl_add_u32 %s, %s, 3, %s' % (vr(U2), vr(U3), vr(U2)),
                     'v_bfe_u32 %s, %s, 1, 1' % (vr(U3), vr(jl)),
                     'v_lshl_add_u32 %s, %s, 1, %s' % (vr(U3), vr(mh), vr(U3)),
                     'v_bfe_u32 %s, %s, 3, 1' % (vr(tq), vr(jl)),
                     'v_lshlrev_b32 %s, 2, %s' % (vr(tq), vr(tq)),
                     'v_xor_b32 %s, %s, %s' % (vr(U3), vr(U3), vr(tq))]
                for tp in range(2):
                    d = V['RF'] + tp
                    L += ['v_xor_b32 %s, %d, %s' % (vr(d), 4 * tp, vr(U3)),
                          'v_lshl_add_u32 %s, %s, 4, %s' % (vr(d), vr(d), vr(U2)),
                          'v_add_u32 %s, %d, %s' % (vr(d + 2), 3 * SLOT, vr(d)),
                          'v_add_u32 %s, %d, %s' % (vr(d + 4), 6 * SLOT, vr(d))]
                gr += G(L)
            gr += G(['s_lshr_b32 s90, s%d, 1' % sW, 's_lshl_b32 s91, s%d, 1' % sR, 's_add_u32 s90, s90, s91',
                     's_mul_i32 s90, s90, %d' % (88 * 4096), 's_and_b32 s91, s%d, 1' % sW, 's_lshl_b32 s91, s91, 11',
                     's_add_u32 s90, s90, s91', 's_add_u32 s90, s90, 0x%x' % H_OFF, 's_lshl_b32 s91, s%d, 14' % sA,
                     's_add_u32 s%d, s90, s91' % sHF, 's_lshl_b32 s91, s%d, 12' % sG, 's_add_u32 s%d, s90, s91' % sHS,
                     's_add_u32 s%d, s%d, 1' % (sTAG, sE), 's_xor_b32 s%d, s%d, 0x5bd1e995' % (sTAG2, sTAG)])
            return gr

        def params(g):
            SEGV, E = PT + 8, (PT + 9, PT + 10)
            P0, P1, P2, P3, P4, P5, FM = PT, PT + 1, PT + 2, PT + 3, PT + 4, PT + 5, PT + 6
            lr, li, nli, cr, ci = (V[x + str(g)] for x in ('lr', 'li', 'nli', 'cr', 'ci'))

            def cpow(dr, di, m_reg, m_const):
                if m_reg is not None:
                    L = ['v_mul_f32 %s, %s, %s' % (vr(P2), vr(m_reg), vr(P3)), 'v_mul_f32 %s, %s, %s' % (vr(P5), vr(m_reg), vr(P4))]
                else:
                    L = ['v_mul_f32 %s, 0x%08x, %s' % (vr(P2), f2u(float(m_const)), vr(P3)),
                         'v_mul_f32 %s, 0x%08x, %s' % (vr(P5), f2u(float(m_const)), vr(P4))]
                return L + ['v_exp_f32 %s, %s' % (vr(P2), vr(P2)), 'v_fract_f32 %s, %s' % (vr(P5), vr(P5)),
                            'v_cos_f32 %s, %s' % (vr(dr), vr(P5)), 'v_sin_f32 %s, %s' % (vr(di), vr(P5)),
                            'v_mul_f32 %s, %s, %s' % (vr(dr), vr(P2), vr(dr)), 'v_mul_f32 %s, %s, %s' % (vr(di), vr(P2), vr(di))]
            L = ['v_lshlrev_b32 %s, 16, %s' % (vr(P0), vr(lr)),
                 'v_lshlrev_b32 %s, 16, %s' % (vr(P1), vr(li)),
                 'v_lshlrev_b32 %s, 16, %s' % (vr(P2), vr(cr)),
                 'v_mul_f32 %s, %s, %s' % (vr(P2), LOG2E, vr(P2)),
                 'v_exp_f32 %s, %s' % (vr(P2), vr(P2)),
                 'v_cvt_pk_bf16_f32 %s, %s, %s' % (vr(P2), vr(P2), vr(P2)),
                 'v_lshlrev_b32 %s, 16, %s' % (vr(P2), vr(P2)),
                 'v_mul_f32 %s, %s, %s' % (vr(P3), vr(P2), vr(P0)),
                 'v_mul_f32 %s, %s, %s' % (vr(P4), vr(P2), vr(P1)),
                 'v_mul_f32 %s, %s, %s' % (vr(P3), LOG2E, vr(P3)),
                 'v_mul_f32 %s, %s, %s' % (vr(P4), INV2PI, vr(P4))]
            L += cpow(lr, li, None, 1)
            L += ['v_sub_f32 %s, 0, %s' % (vr(nli), vr(li))]
            L += cpow(V['l16r%d' % g], V['l16i%d' % g], None, 16)
            L += ['v_cvt_f32_u32 %s, %s' % (vr(FM), vr(SEGV)), 'v_mul_f32 %s, 0x41800000, %s' % (vr(FM), vr(FM))]
            L += cpow(V['lsr%d' % g], V['lsi%d' % g], FM, None)
            gr = G(L)
            for k in range(2):
                pr, pi = V['p%dr%d' % (k + 1, g)], V['p%di%d' % (k + 1, g)]
                gr += G(['v_cvt_f32_i32 %s, %s' % (vr(FM), vr(E[k])), 'v_mul_f32 %s, 0x43000000, %s' % (vr(FM), vr(FM))] + cpow(pr, pi, FM, None))
                gr.append([Ins('v_cmp_le_i32 vcc, 0, %s' % vr(E[k])),
                           Ins('v_cndmask_b32 %s, 0, %s, vcc' % (vr(pr), vr(pr))),
                           Ins('v_cndmask_b32 %s, 0, %s, vcc' % (vr(pi), vr(pi)))])
            gr += G(['v_add_f32 %s, -1.0, %s' % (vr(P2), vr(lr)),
                     'v_mul_f32 %s, %s, %s' % (vr(P3), vr(P0), vr(P0)),
                     'v_fmac_f32 %s, %s, %s' % (vr(P3), vr(P1), vr(P1)),
                     'v_rcp_f32 %s, %s' % (vr(P3), vr(P3)),
                     'v_mul_f32 %s, %s, %s' % (vr(P4), vr(P2), vr(P0)),
                     'v_fmac_f32 %s, %s, %s' % (vr(P4), vr(li), vr(P1)),
                     'v_mul_f32 %s, %s, %s' % (vr(P5), vr(li), vr(P0)),
                     'v_fma_f32 %s, -%s, %s, %s' % (vr(P5), vr(P2), vr(P1), vr(P5)),
                     'v_add_f32 %s, %s, %s' % (vr(P3), vr(P3), vr(P3)),
                     'v_mul_f32 %s, %s, %s' % (vr(cr), vr(P4), vr(P3)),
                     'v_mul_f32 %s, %s, %s' % (vr(ci), vr(P5), vr(P3))])
            return gr

        def ssm_ops(i):
            kind, g, st = seq[i]
            slot = slot_of[i]
            acc = ACC[g] + (16 if st % 2 else 0)
            kh = st // 2
            gate = (g == 0 and st % 2 == 0)
            base = slot * SLOT
            rsb = V['RS']
            pre = []
            if base + SLOT > 65536:
                rsb = RING_ADDR
                pre = [Ins('v_add_u32 %s, %d, %s' % (vr(RING_ADDR + k), base, vr(V['RS'] + k))) for k in range(4)]
                base = 0
            ops = []
            for sp in range(20):
                bp, ab = sp >> 1, sp & 1
                kb, u = bp >> 1, bp & 1
                s = 20 * kh + sp
                q = RING + 4 * (sp % 4)
                rd = Ins('ds_read_b128 %s, %s offset:%d' % (vr(q, 4), vr(rsb + 2 * u + ab), base + kb * 4096))
                first = (kh == 0 and sp == 0)
                m = Ins('v_mfma_f32_32x32x16_bf16 %s, %s, %s, %s' % (vr(acc, 16), XF(s), vr(q, 4), '0' if first else vr(acc, 16)))
                gm = None
                if gate:
                    gm = Ins('v_mfma_f32_32x32x16_bf16 %s, %s, %s, %s' % (vr(GACC, 16), ar(A_GW + 4 * sp, 4), XF(s), '0' if s == 0 else vr(GACC, 16)))
                ops.append((rd, m, gm))
            return pre, ops

        def ssm_stage(i, hooks=None):
            pre, ops = ssm_ops(i)
            out = list(pre)
            dist = 3
            for sp in range(dist):
                out.append(ops[sp][0])
            for sp in range(20):
                rd, m, gm = ops[sp]
                out.append(m)
                if sp + dist < 20:
                    out.append(ops[sp + dist][0])
                if hooks and sp in hooks:
                    for grp in hooks[sp]:
                        out += grp
                if gm is not None:
                    out.append(gm)
            return out

        def kstream(g, hooks, dist=3):
            ops = []
            for s_ in range(40):
                kap, kh = s_ >> 2, s_ // 20
                sp = s_ - 20 * kh
                bp, ab = sp >> 1, sp & 1
                kb, u = bp >> 1, bp & 1
                rds, ms = [], []
                for m in range(2):
                    slot = slot_of[4 * g + 2 * kh + m]
                    if slot >= 3:
                        reg, base = RING_ADDR, (slot - 3) * SLOT
                    else:
                        reg, base = V['RS'], slot * SLOT
                    q = RING + 4 * ((2 * s_ + m) % 8)
                    acc = ACC[g] + 16 * m
                    rds.append(Ins('ds_read_b128 %s, %s offset:%d' % (vr(q, 4), vr(reg + 2 * u + ab), base + kb * 4096)))
                    ms.append(Ins('v_mfma_f32_32x32x16_bf16 %s, %s, %s, %s' % (vr(acc, 16), XF(s_), vr(q, 4), '0' if s_ == 0 else vr(acc, 16))))
                if g == 0:
                    ms.append(Ins('v_mfma_f32_32x32x16_bf16 %s, %s, %s, %s' % (vr(GACC, 16), ar(A_GW + 4 * (s_ % 20), 4), XF(s_), '0' if s_ == 0 else vr(GACC, 16))))
                ops.append((rds, ms))
            out = []
            for s_ in range(dist):
                out += hooks.get(('pre', s_), [])
                out += ops[s_][0]
            for s_ in range(40):
                rds, ms = ops[s_]
                out.append(ms[0])
                for grp in hooks.get(s_, []):
                    out += grp
                out.append(ms[1])
                if s_ + dist < 40:
                    out += hooks.get(('pre', s_ + dist), [])
                    out += ops[s_ + dist][0]
                out += ms[2:]
            return out

        def stage_open(covers):
            for c in covers:
                a.put(WaitVM(dma_last[c]))
            a.waitcnt(lg=0)
            a('s_barrier')

        item_rd = []

        def w2_item(T):
            gr = []
            for e in range(2):
                q = T + 4 * e
                g0 = [Ins('ds_read_b64_tr_b16 %s, %s offset:%d' % (vr(q, 2), vr(V['W2R']), 4096 * e))]
                if e == 0:
                    g0 = [WaitVM(w2_dma[1])] + g0
                gr.append(g0)
                rd = Ins('ds_read_b64_tr_b16 %s, %s offset:%d' % (vr(q + 2, 2), vr(V['W2R']), 4096 * e + 256))
                gr.append([rd])
            st = [[Ins('buffer_store_dwordx4 %s, v1, %s, s26 offen sc1' % (vr(T, 4), srd(R_WS)))],
                  [Ins('buffer_store_dwordx4 %s, v1, %s, s26 offen offset:1024 sc1' % (vr(T + 4, 4), srd(R_WS)))]]
            return gr, st

        def c_dmas():
            gr = []
            for e in range(2):
                ld = Ins('buffer_load_dwordx4 %s, %s, s24 offen lds' % (vr(CD + e), srd(R_CI)))
                gr.append([Ins('s_add_u32 m0, s%d, %d' % (sW10, 3 * SLOT + 12288 + 4096 * e)), Ins('s_nop 0'), ld])
                c_dma.append(ld)
            return gr

        def c_item(T):
            gr = [[WaitVM(c_dma[1]), Ins('ds_read_b128 %s, %s' % (vr(T, 4), vr(CR)))],
                  [Ins('ds_read_b128 %s, %s' % (vr(T + 4, 4), vr(CR + 1)))]]
            last = Ins('buffer_store_dwordx4 %s, v2, %s, s96 offen sc1' % (vr(T + 4, 4), srd(R_WS)))
            st = [[Ins('buffer_store_dwordx4 %s, v2, %s, s25 offen sc1' % (vr(T, 4), srd(R_WS)))],
                  [Ins('s_add_u32 s96, s25, 5120'), last]]
            return gr, st, last

        def w1_prefetch(T):
            t0, t1, t2 = T, T + 1, T + 2
            return G(['s_lshr_b32 s90, s2, 3', 's_lshl_b32 s90, s90, 2', 's_add_u32 s90, s90, s%d' % sW, 's_mul_i32 s90, s90, 60',
                      'v_min_u32 %s, 59, v0' % vr(t0), 'v_add_u32 %s, s90, %s' % (vr(t0), vr(t0)),
                      'v_mul_u32_u24 %s, 43691, %s' % (vr(t1), vr(t0)), 'v_lshrrev_b32 %s, 19, %s' % (vr(t1), vr(t1)),
                      'v_mul_u32_u24 %s, 12, %s' % (vr(t2), vr(t1)), 'v_sub_u32 %s, %s, %s' % (vr(t0), vr(t0), vr(t2)),
                      'v_mul_u32_u24 %s, 3072, %s' % (vr(t1), vr(t1)), 'v_lshl_add_u32 %s, %s, 7, %s' % (vr(t0), vr(t0), vr(t1)),
                      's_mul_i32 s90, s%d, 1536' % sHALF,
                      'buffer_load_dword %s, %s, %s, s90 offen' % (vr(T + 3), vr(t0), srd(R_W1))])

        def w_flag(T, st):
            return [[WaitVM(st), Ins('v_mov_b32 %s, s%d' % (vr(T), sTAG))],
                    [Ins('v_mov_b32 %s, s%d' % (vr(T + 1), sTAG2))],
                    [Ins('v_mov_b32 %s, 0' % vr(T + 2))],
                    [Ins('s_lshl_b32 s90, s%d, 3' % sGWI), Ins('s_add_u32 s90, s90, 0x%x' % WF_OFF),
                     Ins('buffer_store_dwordx2 %s, %s, %s, s90 offen sc1' % (vr(T, 2), vr(T + 2), srd(R_WS)))]]

        def masks(T):
            g_ = [[Ins('v_lshrrev_b32 %s, 5, v0' % vr(T))], [Ins('s_lshl_b32 s95, s%d, 1' % sW), Ins('v_add_u32 %s, s95, %s' % (vr(T), vr(T)))]]
            for s_ in range(1, 8):
                g_.append([Ins('v_cmp_eq_u32 s[%d:%d], %d, %s' % (S_MASK + 2 * (s_ - 1), S_MASK + 2 * (s_ - 1) + 1, s_, vr(T)))])
            return g_

        def gate_math(T):
            G, OMG = V['G'], V['OMG']
            t0, t1, t2 = T, T + 1, T + 2
            L = ['v_cvt_pk_bf16_f32 %s, %s, %s' % (vr(t0), vr(GACC), vr(GACC)),
                 'v_lshlrev_b32 %s, 16, %s' % (vr(t0), vr(t0)),
                 'v_mul_f32 %s, 0x%08x, %s' % (vr(t0), f2u(-math.log2(math.e)), vr(t0)),
                 'v_exp_f32 %s, %s' % (vr(t0), vr(t0)),
                 'v_and_b32 %s, 31, v0' % vr(t1),
                 'v_add_f32 %s, 1.0, %s' % (vr(t0), vr(t0)),
                 'v_rcp_f32 %s, %s' % (vr(t0), vr(t0)),
                 'v_bfe_u32 %s, %s, 2, 1' % (vr(t2), vr(t1)),
                 'v_cvt_pk_bf16_f32 %s, %s, %s' % (vr(t0), vr(t0), vr(t0)),
                 'v_lshlrev_b32 %s, 16, %s' % (vr(G), vr(t0)),
                 'v_sub_f32 %s, 1.0, %s' % (vr(t0), vr(G)),
                 'v_cvt_pk_bf16_f32 %s, %s, %s' % (vr(t0), vr(t0), vr(t0)),
                 'v_lshlrev_b32 %s, 16, %s' % (vr(OMG), vr(t0)),
                 'v_lshlrev_b32 %s, 4, %s' % (vr(t2), vr(t2)),
                 'v_and_b32 %s, 3, %s' % (vr(t0), vr(t1)),
                 'v_add_u32 %s, %s, %s' % (vr(t0), vr(t0), vr(t2)),
                 'v_lshrrev_b32 %s, 3, %s' % (vr(t2), vr(t1)),
                 'v_lshl_add_u32 %s, %s, 2, %s' % (vr(t0), vr(t2), vr(t0)),
                 's_lshl_b32 s95, s%d, 5' % sW,
                 'v_add_u32 %s, s95, %s' % (vr(t0), vr(t0)),
                 'v_lshlrev_b32 %s, 2, %s' % (vr(t0), vr(t0)),
                 'v_add_u32 %s, %d, %s' % (vr(t0), L_GATE, vr(t0)),
                 'ds_write_b32 %s, %s' % (vr(t0), vr(G))]
            return [[Ins(x)] for x in L]

        def pass1(g):
            it = []
            RE, IM = ACC[g], ACC[g] + 16
            lr, li, nli = V['lr%d' % g], V['li%d' % g], V['nli%d' % g]
            sa = [SC[g] + 0, SC[g] + 1]
            sb = [SC[g] + 2, SC[g] + 3]
            cur = [RE, IM]
            for t in range(1, 16):
                d = sa if t % 2 else sb
                it.append(Ins('v_fma_f32 %s, %s, %s, %s' % (vr(d[0]), vr(lr), vr(cur[0]), vr(RE + t))))
                it.append(Ins('v_fma_f32 %s, %s, %s, %s' % (vr(d[1]), vr(lr), vr(cur[1]), vr(IM + t))))
                it.append(Ins('v_fmac_f32 %s, %s, %s' % (vr(d[0]), vr(nli), vr(cur[1]))))
                it.append(Ins('v_fmac_f32 %s, %s, %s' % (vr(d[1]), vr(li), vr(cur[0]))))
                cur = d
            it.append(Ins('ds_write_b64 %s, %s offset:%d' % (vr(V['SEGW']), vr(cur[0], 2), L_SEG - MISC + 2560 * g)))
            return [[x] for x in it]

        def prefix(g, buf):
            it = []
            l16r, l16i = V['l16r%d' % g], V['l16i%d' % g]
            Pr, Pi = SC[g] + 0, SC[g] + 1
            for jj in range(4):
                it.append(Ins('ds_read_b128 %s, %s offset:%d' % (vr(buf + 4 * jj, 4), vr(V['SEGR']), L_SEG - MISC + 2560 * g + 16 * jj)))
            it.append(Ins('v_mov_b32 %s, 0' % vr(Pr)))
            it.append(Ins('v_mov_b32 %s, 0' % vr(Pi)))
            sel = []
            for s in range(1, 8):
                m = S_MASK + 2 * (s - 1)
                pr, pi_, cr_, ci_ = buf + 2 * (s - 1), buf + 2 * (s - 1) + 1, buf + 2 * s, buf + 2 * s + 1
                it.append(Ins('v_fmac_f32 %s, %s, %s' % (vr(cr_), vr(l16r), vr(pr))))
                it.append(Ins('v_fmac_f32 %s, %s, %s' % (vr(ci_), vr(l16r), vr(pi_))))
                it.append(Ins('v_fma_f32 %s, -%s, %s, %s' % (vr(cr_), vr(l16i), vr(pi_), vr(cr_))))
                it.append(Ins('v_fmac_f32 %s, %s, %s' % (vr(ci_), vr(l16i), vr(pr))))
                sel.append(Ins('v_cndmask_b32 %s, %s, %s, s[%d:%d]' % (vr(Pr), vr(Pr), vr(pr), m, m + 1)))
                sel.append(Ins('v_cndmask_b32 %s, %s, %s, s[%d:%d]' % (vr(Pi), vr(Pi), vr(pi_), m, m + 1)))
            pb = 52 if A else 88
            it.append(Ins('v_mov_b32 %s, %s' % (vr(pb), vr(buf + 14))))
            it.append(Ins('v_mov_b32 %s, s%d' % (vr(pb + 1), sTAG)))
            it.append(Ins('v_mov_b32 %s, %s' % (vr(pb + 2), vr(buf + 15))))
            it.append(Ins('v_mov_b32 %s, s%d' % (vr(pb + 3), sTAG)))
            it.append(Ins('s_add_u32 s97, s%d, %d' % (sG, g)))
            it.append(Ins('s_lshl_b32 s97, s97, 4'))
            it.append(Ins('s_add_u32 s97, s97, s%d' % sR))
            it.append(Ins('s_lshl_b32 s97, s97, 9'))
            it.append(Ins('s_add_u32 s97, s97, 0x%x' % AGG_OFF))
            it.append(Ins('buffer_store_dwordx4 %s, %s, %s, s97 offen sc1' % (vr(pb, 4), vr(V['AG']), srd(R_WS))))
            return [[x] for x in it + sel]

        def coef(g, t0):
            it = []
            RE, IM = ACC[g], ACC[g] + 16
            cr, ci = V['cr%d' % g], V['ci%d' % g]
            for t in range(16):
                tt = t0 + (t & 1)
                it.append(Ins('v_mul_f32 %s, %s, %s' % (vr(tt), vr(ci), vr(IM + t))))
                it.append(Ins('v_mul_f32 %s, %s, %s' % (vr(IM + t), vr(cr), vr(IM + t))))
                it.append(Ins('v_fmac_f32 %s, %s, %s' % (vr(IM + t), vr(ci), vr(RE + t))))
                it.append(Ins('v_fma_f32 %s, %s, %s, -%s' % (vr(RE + t), vr(cr), vr(RE + t), vr(tt))))
            return [[x] for x in it]

        def lb_issue(g, buf):
            return [[Ins('s_add_u32 s95, s%d, %d' % (sG, g)), Ins('s_lshl_b32 s95, s95, 13'), Ins('s_add_u32 s95, s95, 0x%x' % AGG_OFF)],
                    [Ins('buffer_load_dwordx4 %s, %s, %s, s95 offen sc1' % (vr(buf, 4), vr(V['LB0']), srd(R_WS)))],
                    [Ins('buffer_load_dwordx4 %s, %s, %s, s95 offen sc1' % (vr(buf + 4, 4), vr(V['LB1']), srd(R_WS)))]]

        def lb_check(buf, t):
            a('v_xor_b32 %s, s%d, %s' % (vr(t), sTAG, vr(buf + 1)))
            a('v_xor_b32 %s, s%d, %s' % (vr(t + 1), sTAG, vr(buf + 3)))
            a('v_xor_b32 %s, s%d, %s' % (vr(t + 2), sTAG, vr(buf + 5)))
            a('v_xor_b32 %s, s%d, %s' % (vr(t + 3), sTAG, vr(buf + 7)))
            a('v_or3_b32 %s, %s, %s, %s' % (vr(t), vr(t), vr(t + 1), vr(t + 2)))
            a('v_or_b32 %s, %s, %s' % (vr(t), vr(t), vr(t + 3)))
            a('v_cmp_ne_u32 vcc, 0, %s' % vr(t))
            a('s_cmp_eq_u64 vcc, 0')

        def lookback_wait(g, buf, lbl):
            t = buf + 8
            lb_check(buf, t)
            a.settle()
            a('s_cbranch_scc1 %s_ok' % lbl)
            snap = a.snapshot()
            a('s_mov_b32 s91, 0')
            a.drain()
            a.label(lbl)
            a('buffer_load_dwordx4 %s, %s, %s, s95 offen sc1' % (vr(buf, 4), vr(V['LB0']), srd(R_WS)))
            a('buffer_load_dwordx4 %s, %s, %s, s95 offen sc1' % (vr(buf + 4, 4), vr(V['LB1']), srd(R_WS)))
            a('s_add_u32 s91, s91, 1')
            lb_check(buf, t)
            a('s_cbranch_scc1 %s_ok' % lbl)
            a('s_cmp_lt_u32 s91, 0x%x' % o.get('spin', 200000))
            a('s_cbranch_scc1 %s' % lbl)
            a.settle()
            a.label(lbl + '_ok')
            a.restore(snap)
            p1r, p1i, p2r, p2i = (V['p%s%d' % (x, g)] for x in ('1r', '1i', '2r', '2i'))
            hr, hi = buf + 8, buf + 9
            a('v_mul_f32 %s, %s, %s' % (vr(hr), vr(p1r), vr(buf)))
            a('v_mul_f32 %s, %s, %s' % (vr(hi), vr(p1r), vr(buf + 2)))
            a('v_fma_f32 %s, -%s, %s, %s' % (vr(hr), vr(p1i), vr(buf + 2), vr(hr)))
            a('v_fmac_f32 %s, %s, %s' % (vr(hi), vr(p1i), vr(buf)))
            a('v_fmac_f32 %s, %s, %s' % (vr(hr), vr(p2r), vr(buf + 4)))
            a('v_fmac_f32 %s, %s, %s' % (vr(hi), vr(p2r), vr(buf + 6)))
            a('v_fma_f32 %s, -%s, %s, %s' % (vr(hr), vr(p2i), vr(buf + 6), vr(hr)))
            a('v_fmac_f32 %s, %s, %s' % (vr(hi), vr(p2i), vr(buf + 4)))
            a('ds_write_b64 %s, %s offset:%d' % (vr(V['SEGW']), vr(hr, 2), L_LB - MISC + 2560 * g))
            a.waitcnt(lg=0)
            a('s_barrier')

        def entry_state(g, buf):
            it = []
            for jj in range(4):
                it.append('ds_read_b128 %s, %s offset:%d' % (vr(buf + 4 * jj, 4), vr(V['SEGR']), L_LB - MISC + 2560 * g + 16 * jj))
            for jj in (1, 3, 5, 7):
                it.append('v_add_f32 %s, %s, %s' % (vr(buf + 2 * jj - 2), vr(buf + 2 * jj - 2), vr(buf + 2 * jj)))
                it.append('v_add_f32 %s, %s, %s' % (vr(buf + 2 * jj - 1), vr(buf + 2 * jj - 1), vr(buf + 2 * jj + 1)))
            for (x, y) in ((0, 4), (8, 12), (0, 8)):
                it.append('v_add_f32 %s, %s, %s' % (vr(buf + x), vr(buf + x), vr(buf + y)))
                it.append('v_add_f32 %s, %s, %s' % (vr(buf + x + 1), vr(buf + x + 1), vr(buf + y + 1)))
            Pr, Pi = SC[g] + 0, SC[g] + 1
            lsr, lsi, cr, ci = (V[x + str(g)] for x in ('lsr', 'lsi', 'cr', 'ci'))
            it += ['v_fmac_f32 %s, %s, %s' % (vr(Pr), vr(lsr), vr(buf)),
                   'v_fmac_f32 %s, %s, %s' % (vr(Pi), vr(lsr), vr(buf + 1)),
                   'v_fma_f32 %s, -%s, %s, %s' % (vr(Pr), vr(lsi), vr(buf + 1), vr(Pr)),
                   'v_fmac_f32 %s, %s, %s' % (vr(Pi), vr(lsi), vr(buf)),
                   'v_mul_f32 %s, %s, %s' % (vr(buf + 2), vr(cr), vr(Pr)),
                   'v_mul_f32 %s, %s, %s' % (vr(buf + 3), vr(cr), vr(Pi)),
                   'v_fma_f32 %s, -%s, %s, %s' % (vr(buf + 2), vr(ci), vr(Pi), vr(buf + 2)),
                   'v_fmac_f32 %s, %s, %s' % (vr(buf + 3), vr(ci), vr(Pr))]
            return [[Ins(x)] for x in it]

        def pass2(g, buf):
            it = []
            RE, IM = ACC[g], ACC[g] + 16
            lr, li, nli = V['lr%d' % g], V['li%d' % g], V['nli%d' % g]
            pr, pi_ = buf + 2, buf + 3
            for t in range(16):
                it.append(Ins('v_fmac_f32 %s, %s, %s' % (vr(RE + t), vr(lr), vr(pr))))
                it.append(Ins('v_fmac_f32 %s, %s, %s' % (vr(IM + t), vr(lr), vr(pi_))))
                it.append(Ins('v_fmac_f32 %s, %s, %s' % (vr(RE + t), vr(nli), vr(pi_))))
                it.append(Ins('v_fmac_f32 %s, %s, %s' % (vr(IM + t), vr(li), vr(pr))))
                pr, pi_ = RE + t, IM + t
            for e in range(8):
                it.append(Ins('v_cvt_pk_bf16_f32 %s, %s, %s' % (vr(RE + e), vr(RE + 2 * e), vr(RE + 2 * e + 1))))
            for e in range(8):
                it.append(Ins('v_cvt_pk_bf16_f32 %s, -%s, -%s' % (vr(RE + 8 + e), vr(IM + 2 * e), vr(IM + 2 * e + 1))))
            return [[x] for x in it]

        def build_sel(B, T):
            n_, e_, t_, val = T, T + 1, T + 2, T + 3
            g = G(['v_and_b32 %s, 31, v0' % vr(n_),
                   'v_lshrrev_b32 %s, 3, %s' % (vr(t_), vr(n_)),
                   'v_and_b32 %s, 3, %s' % (vr(e_), vr(n_)),
                   'v_lshl_add_u32 %s, %s, 2, %s' % (vr(e_), vr(t_), vr(e_)),
                   'v_bfe_u32 %s, %s, 2, 1' % (vr(t_), vr(n_)),
                   'v_lshrrev_b32 %s, 5, v0' % vr(val)])
            g.append([Ins('v_cmp_eq_u32 vcc, %s, %s' % (vr(t_), vr(val))), Ins('v_cndmask_b32 %s, 31, %s, vcc' % (vr(e_), vr(e_)))])
            g += G(['v_lshrrev_b32 %s, 16, %s' % (vr(val), vr(V['G'])),
                    'v_and_b32 %s, 1, %s' % (vr(t_), vr(e_)),
                    'v_lshlrev_b32 %s, 4, %s' % (vr(t_), vr(t_)),
                    'v_lshlrev_b32 %s, %s, %s' % (vr(val), vr(t_), vr(val)),
                    'v_lshrrev_b32 %s, 1, %s' % (vr(e_), vr(e_))])
            for k in range(8):
                g.append([Ins('v_cmp_eq_u32 vcc, %d, %s' % (k, vr(e_))),
                          Ins('v_cndmask_b32 %s, 0, %s, vcc' % (vr(B + k), vr(val)))])
            return g

        def transpose_store(g, B, D0, D1):
            RE = ACC[g]
            a('v_mfma_f32_32x32x16_bf16 %s, %s, %s, 0' % (vr(D0, 16), vr(RE, 4), vr(B, 4)))
            a('v_mfma_f32_32x32x16_bf16 %s, %s, %s, 0' % (vr(D1, 16), vr(RE + 8, 4), vr(B, 4)))
            a('v_mfma_f32_32x32x16_bf16 %s, %s, %s, %s' % (vr(D0, 16), vr(RE + 4, 4), vr(B + 4, 4), vr(D0, 16)))
            a('v_mfma_f32_32x32x16_bf16 %s, %s, %s, %s' % (vr(D1, 16), vr(RE + 12, 4), vr(B + 4, 4), vr(D1, 16)))
            a('s_add_u32 s94, s%d, %d' % (sHS, (48 + g) * 4096))
            a('s_add_u32 s95, s%d, %d' % (sHS, (68 + g) * 4096))
            for D, so in ((D0, 94), (D1, 95)):
                for e in range(8):
                    a('v_cvt_pk_bf16_f32 %s, %s, %s' % (vr(D + e), vr(D + 2 * e), vr(D + 2 * e + 1)))
                a('buffer_store_dwordx4 %s, %s, %s, s%d offen %s' % (vr(D, 4), vr(V['ST']), srd(R_WS), so, HST))
                a('buffer_store_dwordx4 %s, %s, %s, s%d offen offset:512 %s' % (vr(D + 4, 4), vr(V['ST']), srd(R_WS), so, HST))

        def transpose_groups(g, B, D0, D1, s0=94, s1=97):
            RE = ACC[g]
            gr = [[Ins('v_mfma_f32_32x32x16_bf16 %s, %s, %s, 0' % (vr(D0, 16), vr(RE, 4), vr(B, 4)))],
                  [Ins('v_mfma_f32_32x32x16_bf16 %s, %s, %s, 0' % (vr(D1, 16), vr(RE + 8, 4), vr(B, 4)))],
                  [Ins('v_mfma_f32_32x32x16_bf16 %s, %s, %s, %s' % (vr(D0, 16), vr(RE + 4, 4), vr(B + 4, 4), vr(D0, 16)))],
                  [Ins('v_mfma_f32_32x32x16_bf16 %s, %s, %s, %s' % (vr(D1, 16), vr(RE + 12, 4), vr(B + 4, 4), vr(D1, 16)))],
                  [], [], []]
            for D, off in ((D0, 48), (D1, 68)):
                for e in range(8):
                    gr.append([Ins('v_cvt_pk_bf16_f32 %s, %s, %s' % (vr(D + e), vr(D + 2 * e), vr(D + 2 * e + 1)))])
                gr.append([Ins('s_add_u32 s97, s%d, %d' % (sHS, (off + g) * 4096)),
                           Ins('buffer_store_dwordx4 %s, %s, %s, s97 offen %s' % (vr(D, 4), vr(V['ST']), srd(R_WS), HST))])
                gr.append([Ins('s_add_u32 s97, s%d, %d' % (sHS, (off + g) * 4096)),
                           Ins('buffer_store_dwordx4 %s, %s, %s, s97 offen offset:512 %s' % (vr(D + 4, 4), vr(V['ST']), srd(R_WS), HST))])
            return gr

        NQ = 8

        def ffn_ops():
            ops = []
            for n in range(160):
                tile, s = n // 40, n % 40
                blk, tp = tile >> 1, tile & 1
                acc = FA[tile & 1]
                st, sp = s // 10, s % 10
                slot = slot_of[4 + 4 * blk + st]
                reg = slot // 3
                off = (slot % 3) * SLOT + (32 * (sp >> 1) + 8 * (sp & 1)) * 128
                q = RING + 4 * (n % NQ)
                base = V['RF'] + tp + 2 * reg
                r0 = Ins('ds_read_b64_tr_b16 %s, %s offset:%d' % (vr(q, 2), vr(base), off))
                r1 = Ins('ds_read_b64_tr_b16 %s, %s offset:%d' % (vr(q + 2, 2), vr(base), off + 512))
                m = Ins('v_mfma_f32_32x32x16_bf16 %s, %s, %s, %s' % (vr(acc, 16), vr(q, 4), XF(s), '0' if s == 0 else vr(acc, 16)))
                ops.append((r0, r1, m))
            return ops

        def ffn_main(ops, n0, n1, dist, rd_done, rd_limit):
            out = []
            for n in range(n0, n1):
                if n == n0:
                    while rd_done < min(n + dist, rd_limit):
                        out += [ops[rd_done][0], ops[rd_done][1]]
                        rd_done += 1
                out.append(ops[n][2])
                while rd_done < min(n + 1 + dist, rd_limit):
                    out += [ops[rd_done][0], ops[rd_done][1]]
                    rd_done += 1
            return out, rd_done

        def ffn_pack(tile):
            T = FA[tile & 1]
            it = []
            for e in range(16):
                it.append(Ins('v_mul_f32 %s, %s, %s' % (vr(T + e), vr(V['OMG']), vr(T + e))))
            for e in range(8):
                it.append(Ins('v_cvt_pk_bf16_f32 %s, %s, %s' % (vr(T + e), vr(T + 2 * e), vr(T + 2 * e + 1))))
            for e in range(8):
                it.append(Ins('v_pk_max_i16 %s, %s, 0' % (vr(T + e), vr(T + e))))
            return [[x] for x in it]

        def ffn_store(tile):
            T = FA[tile & 1]
            return [[Ins('s_add_u32 s94, s%d, %d' % (sHF, tile * 4096))],
                    [Ins('buffer_store_dwordx4 %s, %s, %s, s94 offen %s' % (vr(T, 4), vr(V['ST']), srd(R_WS), HST))],
                    [Ins('buffer_store_dwordx4 %s, %s, %s, s94 offen offset:512 %s' % (vr(T + 4, 4), vr(V['ST']), srd(R_WS), HST))]]

        def wf_issue(T):
            t0, t1 = T + 2, T + 3
            gr = G(['s_mul_i32 s90, s%d, 120' % sC2, 's_mul_i32 s91, s%d, 30' % sW, 's_add_u32 s90, s90, s91',
                    'v_and_b32 %s, 31, v0' % vr(t1), 'v_min_u32 %s, 29, %s' % (vr(t0), vr(t1)),
                    'v_add_u32 %s, s90, %s' % (vr(t0), vr(t0)),
                    's_lshr_b32 s90, s%d, 1' % sW, 's_mul_i32 s90, s90, 400', 's_mul_i32 s91, s%d, 50' % sC2,
                    's_add_u32 s90, s90, s91', 's_and_b32 s91, s%d, 1' % sW, 's_mul_i32 s91, s91, 25', 's_add_u32 s90, s90, s91',
                    'v_min_u32 %s, 24, %s' % (vr(t1), vr(t1)), 'v_add_u32 %s, s90, %s' % (vr(t1), vr(t1))])
            gr.append([Ins('v_cmp_gt_u32 vcc, 32, v0'), Ins('v_cndmask_b32 %s, %s, %s, vcc' % (vr(t0), vr(t1), vr(t0)))])
            gr += G(['v_lshlrev_b32 %s, 3, %s' % (vr(t0), vr(t0)), 'v_add_u32 %s, 0x%x, %s' % (vr(t0), WF_OFF, vr(t0)),
                     'buffer_load_dwordx2 %s, %s, %s, 0 offen sc1' % (vr(T, 2), vr(t0), srd(R_WS))])
            return gr

        def wf_check(T, lbl):
            t0 = T + 2

            def chk():
                a('v_xor_b32 %s, s%d, %s' % (vr(T), sTAG, vr(T)))
                a('v_xor_b32 %s, s%d, %s' % (vr(T + 1), sTAG2, vr(T + 1)))
                a('v_or_b32 %s, %s, %s' % (vr(T), vr(T), vr(T + 1)))
                a('v_cmp_ne_u32 vcc, 0, %s' % vr(T))
                a('s_cmp_eq_u64 vcc, 0')
            chk()
            a.settle()
            a('s_cbranch_scc1 %s_ok' % lbl)
            snap = a.snapshot()
            a('s_mov_b32 s91, 0')
            a.drain()
            a.label(lbl)
            a('buffer_load_dwordx2 %s, %s, %s, 0 offen sc1' % (vr(T, 2), vr(t0), srd(R_WS)))
            a('s_add_u32 s91, s91, 1')
            chk()
            a('s_cbranch_scc1 %s_ok' % lbl)
            a('s_cmp_lt_u32 s91, 0x%x' % o.get('spin', 200000))
            a('s_cbranch_scc1 %s' % lbl)
            a.settle()
            a.label(lbl + '_ok')
            a.restore(snap)

        BUD = o.get('bud', 3)
        P2 = self.p2
        for k in range(4):
            a('v_add_u32 %s, %d, %s' % (vr(RING_ADDR + k), 3 * SLOT, vr(V['RS'] + k)))
        put_all(late_scalars())
        put_all(w2_setup_a)
        put_all(item_addrs())
        put_all(c_setup())
        if PF == 2:
            put_all(xdma(1))
            put_all([s_load(0, 0, 1), s_load(0, 1, 1)])
        put_all(xdma(2))
        put_all([s_load(0, 0, 2), s_load(0, 1, 2)])
        x3s3 = xdma(3) + [s_load(0, 0, 3), s_load(0, 1, 3)]
        if o.get('eopen', 0) < 2:
            put_all(x3s3)
        if o.get('w1pf', 0) == 1:
            put_all(w1_prefetch(PT + 5))
        EO = o.get('eopen', 0)
        late_loads = []
        if EO:
            late_loads = w2_setup_b + c_dmas()
        else:
            put_all(w2_setup_b)
            put_all(c_dmas())
        a.put(WaitVM(gw_dma))
        put_all(gate_reads(0))
        put_all(xread(0))
        x4 = xrefill(4)
        if not EO:
            put_all(x4)
        a.put(WaitVM(s_dma[(0, 1, 0)]))
        a('s_barrier')
        self.stamp(3)
        hooks = {}

        def hook(pos, groups):
            hooks.setdefault(pos, [])
            hooks[pos] = hooks[pos] + groups
        cg, c_sts, c_st = c_item(72)
        w2g, w2_sts = w2_item(64)
        g1 = gate_reads(1)
        for kap in range(10):
            s0 = 4 * kap
            if kap + 1 <= 7:
                hook(s0, xread(kap + 1))
            if kap + 5 <= 9:
                for j, grp in enumerate(xrefill(kap + 5)):
                    hook(s0 + 1 + j, [grp])
            if kap + 4 <= 9:
                if kap + 4 == 8:
                    hook(s0 + 1, [[WaitLG(cg[1][0])]])
                hook(s0 + 1, [s_load(0, 0, kap + 4)])
                hook(s0 + 3, [s_load(0, 1, kap + 4)])
        if EO >= 2:
            for j, grp in enumerate(x3s3):
                hook(j // 3, [grp])
            for j, grp in enumerate(x4):
                hook(2 + j // 2, [grp])
        elif EO:
            for j, grp in enumerate(x4):
                hook(j // 2, [grp])
        if EO:
            for j, grp in enumerate(late_loads):
                hook(o.get('itempos', 5) + j, [grp])
        hook(25, xread(8))
        hook(27, xread(9))
        for j in range(20):
            hook(j + 1, [g1[j]])
        for kap in range(1, 10):
            pre = [WaitVM(s_dma[(0, 1, kap)])]
            if kap == 8:
                pre.append(WaitLG(x_rd_last[9]))
            pre.append(Ins('s_barrier'))
            hooks[('pre', 4 * kap)] = pre
        ldA = stage_loads(4) + stage_loads(5)
        ldB = stage_loads(6) + stage_loads(7)
        pos = [21, 22, 23, 24, 25, 26, 26, 27, 28, 28]
        for j, grp in enumerate(ldA):
            hook(pos[j] + 1 if pos[j] == 21 else pos[j], [grp])
        for j, grp in enumerate(w2_sts + c_sts):
            hook(29 + j // 4, [grp])
        for j, grp in enumerate(ldB):
            hook(30 + j, [grp])
        main = kstream(0, hooks)
        s_items = Stream(w2g + cg, start=(o.get('itemrd', 36) if EO else 24), every=2)
        s_lc = Stream(lane_consts() + params(0) + ([] if A else params(1)), start=2, per=3)
        if o.get('p1nobar'):
            main = [x for x in main if not (isinstance(x, Ins) and x.mn == 's_barrier')]
        if o.get('p1nogate'):
            main = [x for x in main if not (isinstance(x, Ins) and x.kind == 'mfma' and ('v[%d:%d]' % (GACC, GACC + 15)) in x.text.split(',')[0])]
        if o.get('p1nolc'):
            weave(a, main, [s_items], budget=3)
            self.stamp((7, 5))
            put_all(s_lc.groups)
        else:
            weave(a, main, [s_items, s_lc], budget=o.get('p1bud', 3))
            self.stamp((7, 5))
        put_all(masks(84))
        if o.get('detail', 0) != 2:
            self.stamp(4)

        gm_all = gate_math(72)
        put_all(gm_all[:3])
        gate_math0 = gm_all[3:]
        if A:
            SC = [48]
            BUF = 56
            SEL = 72
            WFT = 80
            TMP = 84
            a.put(WaitVM(dma_last[5]))
            a('s_barrier')
            self.stamp((3, 5))
            self.stamp((6, 5))
            self.stamp((3, 1), clock=True)
            ops = ffn_ops()
            D = o.get('fdist', 5)
            nof = (lambda x: []) if o.get('bare') else (lambda x: x)

            def split_at_read(items, n):
                k = items.index(ops[n][0])
                return items[:k], items[k:]
            m, rd = ffn_main(ops, 0, 40, D, 0, 80)
            m0, m = split_at_read(m, 20)
            m1, m2 = split_at_read(m, 30)
            p1 = nof(pass1(0))
            s_p1 = Stream(p1, per=4)
            s_flag = Stream(w_flag(76, c_st), start=4, per=5)
            s_gate = Stream(nof(gate_math0), per=3)
            s_ld = Stream(stage_loads(8) + stage_loads(9) + stage_loads(10), start=1, every=2)
            s_tab = Stream(P2.tables(), per=3)
            weave(a, m0, [s_flag, s_ld, s_p1, s_tab], budget=5, flush=False)
            put_all(s_p1.groups[s_p1.i:])
            assert s_flag.done()
            a.put(WaitVM(dma_last[6]))
            if p1:
                a.put(WaitLG(p1[-1][0]))
            a('s_barrier')
            s_pre = Stream(nof(prefix(0, BUF)), per=4)
            for x in (s_ld, s_tab):
                x.start = 0
            weave(a, m1, [s_pre, s_ld, s_tab], budget=4, flush=False)
            a.put(WaitVM(dma_last[7]))
            a('s_barrier')
            weave(a, m2, [s_pre, s_gate, s_ld, s_tab], budget=4, flush=False)
            self.stamp((6, 6))
            s_coef = Stream(nof(coef(0, TMP)), per=3)
            s_wfi = Stream(wf_issue(WFT), per=3)
            m, rd = ffn_main(ops, 40, 50, D, rd, 80)
            weave(a, m, [s_pre, s_gate, s_wfi, s_ld, s_tab], budget=BUD + 1, flush=False)
            assert s_pre.done() and s_gate.done() and s_wfi.done() and s_ld.done() and s_tab.done(), (s_pre.i, s_gate.i, s_wfi.i, s_ld.i, s_tab.i)
            a.put(WaitLG(ops[49][1]))
            a('s_barrier')
            self.stamp((6, 8))
            s_p0 = Stream(nof(ffn_pack(0) + ffn_store(0)), per=3)
            WFP = o.get('wfidx', 62)
            m, rd = ffn_main(ops, 50, WFP, D, rd, 80)
            weave(a, m, [Stream(stage_loads(11), every=2), s_p0, s_coef], budget=BUD, flush=False)
            wf_check(WFT, 'L_wfA')
            self.stamp((6, 7))
            wpre = [] if o.get('now') else P2.early_w()
            s_w = Stream(wpre, every=o.get('wevery', 2))
            s_sel = Stream(nof(build_sel(SEL, TMP + 2)), per=3)
            m, rd = ffn_main(ops, WFP, 76, D, rd, 80)
            weave(a, m, [s_p0, s_w, s_coef, s_sel], budget=BUD, flush=False)
            assert s_p0.done()
            self.stamp((6, 9))
            for c in (8, 9, 10, 11):
                a.put(WaitVM(dma_last[c]))
            a('s_barrier')
            self.stamp((6, 10))
            s_w.start = 0
            LBX = o.get('lbx', 100)
            m, rd = ffn_main(ops, 76, LBX, D, rd, 160)
            s_lb = Stream(lb_issue(0, BUF), start=o.get('lbpos', 1), per=3)
            s_pack1 = Stream(nof(ffn_pack(1) + ffn_store(1)), start=6, per=3)
            s_coef.start = s_sel.start = 0
            weave(a, m, [s_lb, s_w, s_coef, s_pack1, s_sel], budget=BUD + 1, flush=False)
            assert s_lb.done() and s_coef.done(), (s_coef.i,)
            self.stamp(5)
            self.stamp((6, 11))
            self.stamp((3, 6))
            self.stamp((3, 2), clock=True)
            lookback_wait(0, BUF, 'L_lbA')
            self.stamp(6)
            s_scan = Stream(entry_state(0, BUF) + pass2(0, BUF) + transpose_groups(0, SEL, ACC[0] + 16, BUF), per=4)
            s_pack1.start = s_w.start = 0
            m, rd = ffn_main(ops, LBX, 120, D, rd, 160)
            weave(a, m, [s_pack1, s_w, s_sel, s_scan], budget=BUD + 1, flush=False)
            assert s_pack1.done() and s_sel.done(), (s_pack1.i, s_sel.i)
            m, rd = ffn_main(ops, 120, 160, D, rd, 160)
            w2nd = P2.early2_w()
            nleft = len(s_w.groups) - s_w.i
            pos = 2 * nleft
            slots = {}
            for j, g in enumerate(w2nd):
                pos = max(pos + o.get('w2step', 1), j + 2)
                slots[pos] = g
                pos += (j % 5 in (1, 3))
            late_w2 = [g for p_, g in sorted(slots.items()) if p_ >= 40]
            paced = [slots.get(p_, []) for p_ in range(40)]
            weave(a, m, [s_scan, s_w, Stream(paced), Stream(ffn_pack(2) + ffn_store(2), start=2, per=3)], budget=BUD + 1)
            put_all(late_w2)
            put_all(ffn_pack(3) + ffn_store(3))
        else:
            SC = [48, 52]
            BUF = 56
            SEL = 72
            WFT = 80
            TMP = 84
            put_all(pass1(0))
            stage_open([4, 5])
            main = kstream(1, {('pre', 20): [WaitVM(dma_last[7]), Ins('s_barrier')]})
            s_pre, s_wfi = Stream(prefix(0, BUF), per=3), Stream(wf_issue(WFT), start=22, per=3)
            s_flag, s_gate = Stream(w_flag(76, c_st), start=2, per=5), Stream(gate_math0, per=3)
            s_tab = Stream(P2.tables(), per=3)
            s_coef, s_sel = Stream(coef(0, TMP), per=3), Stream(build_sel(SEL, TMP + 2), per=3)
            wpre = P2.early_w()
            cut = [k for k, x in enumerate(main) if isinstance(x, Ins) and x.kind == 'mfma'][43] + 1
            weave(a, main[:cut], [s_flag, s_pre, s_gate, s_wfi, s_tab], budget=4, flush=False)
            assert s_pre.done() and s_wfi.done() and s_tab.done() and s_gate.done() and s_flag.done()
            wf_check(WFT, 'L_wfB')
            s_w = Stream(wpre, every=2)
            rest = main[cut:]
            mf = [k for k, x in enumerate(rest) if isinstance(x, Ins) and x.kind == 'mfma']
            cut2 = mf[o.get('lbxb', 16) - 1] + 1
            s_lb = Stream(lb_issue(0, BUF), per=3)
            weave(a, rest[:cut2], [s_lb, s_coef, s_w, s_sel], budget=4, flush=False)
            assert s_lb.done()
            put_all(s_coef.groups[s_coef.i:])
            s_coef.i = len(s_coef.groups)
            self.stamp(5)
            lookback_wait(0, BUF, 'L_lbB0')
            self.stamp(6)
            s_scan = Stream(entry_state(0, BUF) + pass2(0, BUF), per=4)
            s_w.start = s_sel.start = 0
            weave(a, rest[cut2:], [s_sel, s_scan, s_w], budget=5, flush=False)
            put_all(s_sel.groups[s_sel.i:])
            wrest = s_w.groups[s_w.i:] + P2.early2_w()

            def mix(items, loads, every):
                out = []
                for k, x in enumerate(items):
                    out.append(x)
                    if k % every == every - 1 and loads:
                        out.append(loads.pop(0))
                return out
            put_all(pass1(1))
            a.waitcnt(lg=0)
            a('s_barrier')
            put_all(mix(prefix(1, 96), wrest, 8))
            put_all(s_scan.groups[s_scan.i:])
            put_all(mix(transpose_groups(0, SEL, ACC[0] + 16, 96), wrest, 6))
            put_all(mix(coef(1, TMP), wrest, 6))
            put_all(lb_issue(1, BUF))
            put_all(wrest)
            lookback_wait(1, BUF, 'L_lbB1')
            put_all(entry_state(1, BUF))
            put_all(pass2(1, BUF))
            transpose_store(1, SEL, 96, 112)

        self.stamp(7)
        a.waitcnt(vm=0)
        self.stamp(8)
        a('v_mov_b32 %s, s%d' % (vr(RING), sTAG))
        a('v_mov_b32 %s, s%d' % (vr(RING + 1), sTAG2))
        a('s_lshl_b32 s90, s%d, 2' % sR)
        a('s_add_u32 s90, s90, s%d' % sW)
        a('s_lshl_b32 s90, s90, 4')
        a('s_add_u32 s90, s90, s%d' % sC16)
        a('s_lshl_b32 s90, s90, 3')
        a('s_add_u32 s90, s90, 0x%x' % FLAG_OFF)
        a('v_mov_b32 %s, 0' % vr(RING + 2))
        a('buffer_store_dwordx2 %s, %s, %s, s90 offen sc1' % (vr(RING, 2), vr(RING + 2), srd(R_WS)))
        if o.get('hback', 0):
            t0, t1, t2 = RING + 4, RING + 5, RING + 6
            a('v_and_b32 %s, 15, v0' % vr(t0))
            a('v_lshlrev_b32 %s, 7, %s' % (vr(t0), vr(t0)))
            a('v_lshrrev_b32 %s, 5, v0' % vr(t1))
            a('v_mul_u32_u24 %s, %d, %s' % (vr(t1), 20 * 4096, vr(t1)))
            a('v_add_u32 %s, %s, %s' % (vr(t1), vr(t1), vr(t0)))
            if not A:
                a('v_bfe_u32 %s, v0, 4, 1' % vr(t2))
                a('v_lshl_add_u32 %s, %s, 12, %s' % (vr(t1), vr(t2), vr(t1)))
            a('s_add_u32 s90, s%d, %d' % (sHS, 48 * 4096))
            a('buffer_load_dword v121, %s, %s, s90 offen sc1' % (vr(t1), srd(R_WS)))
            if A:
                a('v_lshrrev_b32 %s, 4, v0' % vr(t2))
                a('v_lshl_add_u32 %s, %s, 12, %s' % (vr(t0), vr(t2), vr(t0)))
                a('buffer_load_dword v122, %s, %s, s%d offen sc1' % (vr(t0), srd(R_WS), sHF))
        a.waitcnt(lg=0)
        a.settle()

    def poll(self, lbl, voff, soff, tmp):
        a = self.a
        a('s_mov_b32 s91, 0')
        a.drain()
        a.settle()
        a.label(lbl)
        a('buffer_load_dwordx2 %s, %s, %s, s%d offen sc1' % (vr(tmp, 2), vr(voff), srd(R_WS), soff))
        a('s_add_u32 s91, s91, 1')
        a('v_xor_b32 %s, s%d, %s' % (vr(tmp), sTAG, vr(tmp)))
        a('v_xor_b32 %s, s%d, %s' % (vr(tmp + 1), sTAG2, vr(tmp + 1)))
        a('v_or_b32 %s, %s, %s' % (vr(tmp), vr(tmp), vr(tmp + 1)))
        a('v_cmp_ne_u32 vcc, 0, %s' % vr(tmp))
        a('s_cmp_eq_u64 vcc, 0')
        a('s_cbranch_scc1 %s_ok' % lbl)
        a('s_cmp_lt_u32 s91, 0x%x' % self.o.get('spin', 200000))
        a('s_cbranch_scc1 %s' % lbl)
        a.settle()
        a.label(lbl + '_ok')

    def phase2(self):
        a, o, P = self.a, self.o, self.p2
        VL16, VL16B = P.VL16, P.VL16B
        VH, VRW, VRR, VO, VX, VD, VG = 1, 5, 8, 9, 10, 11, 12
        VP, t0, t1, t2 = 96, 98, 120, 13
        VLWR = 99
        ACC = 16
        SK = 100
        KS = P.KS
        HLD = {0: 'sc1', 1: 'sc0 sc1', 2: 'sc1 nt', 3: '', 4: 'nt'}[o.get('hld', 0)]

        def acc(dt, dl):
            return ACC + 4 * (4 * dt + dl)
        early = set(P.early_quads[:5 * P.n_early]) | set(P.early2_quads)
        NE = P.n_early + P.n_early2
        top = 240 if o.get('stamps') else 256
        pool = [x for x in ([('a', r) for r in range(0, top, 4)] + [('v', r) for r in range(124, 256, 4)]) if x not in early]
        wq = dict(P.wq)
        hq = {}
        q = P.q

        def put_groups(gr):
            for g in gr:
                for x in g:
                    a.put(x)
        put_groups(P.tables(late=True))
        a('s_barrier')

        def w_groups(k):
            quads = [pool.pop(0) for dt in range(5)]
            for dt in range(5):
                wq[(k, dt)] = quads[dt]
            return P.w_loads(k, quads)

        def h_groups(k):
            gr = []
            for dl in range(4):
                r = pool.pop(0)
                hq[(k, dl)] = r
                hd = []
                if dl == 0:
                    hd = [Ins('s_lshl_b32 s%d, s%d, 12' % (P.sHk, KS[k])), Ins('s_add_u32 s%d, s%d, s%d' % (P.sHk, P.sHk, P.sHB))]
                gr.append(hd + [Ins('buffer_load_dwordx4 %s, %s, %s, s%d offen %s' % (q(r), vr(VH + dl), srd(R_WS), P.sHk, HLD))])
            return gr

        self.build_srd(R_OUT, S_OUT, 5242880)
        for dl in range(4):
            a('s_add_u32 s90, s%d, %d' % (sW, dl))
            a('s_and_b32 s90, s90, 3')
            a('s_lshl_b32 s91, s90, 10')
            a('v_add_u32 %s, s91, %s' % (vr(VH + dl), vr(VL16)))
            if dl:
                a('s_mul_i32 s91, s90, 15360')
                a('s_add_u32 s91, s91, %d' % ((dl - 1) * 5120))
                a('v_add_u32 %s, s91, %s' % (vr(VRW + dl - 1), vr(VL16)))
        a('s_mul_i32 s91, s%d, 15360' % sW)
        a('v_add_u32 %s, s91, %s' % (vr(VRR), vr(VL16)))
        a('v_and_b32 %s, 15, v0' % vr(t0))
        a('v_lshrrev_b32 %s, 4, v0' % vr(t2))
        a('v_bfe_u32 %s, %s, 2, 1' % (vr(t1), vr(t0)))
        a('v_lshlrev_b32 %s, 4, %s' % (vr(t1), vr(t1)))
        a('v_and_b32 %s, 3, %s' % (vr(VP), vr(t0)))
        a('v_add_u32 %s, %s, %s' % (vr(t1), vr(t1), vr(VP)))
        a('v_lshrrev_b32 %s, 3, %s' % (vr(VP), vr(t0)))
        a('v_lshl_add_u32 %s, %s, 2, %s' % (vr(t1), vr(VP), vr(t1)))
        a('s_lshr_b32 s90, s%d, 1' % sW)
        a('s_lshl_b32 s90, s90, 5')
        a('s_and_b32 s91, s%d, 1' % sW)
        a('s_lshl_b32 s91, s91, 3')
        a('s_add_u32 s90, s90, s91')
        a('v_add_u32 %s, s90, %s' % (vr(t1), vr(t1)))
        a('v_mul_u32_u24 %s, 2560, %s' % (vr(VO), vr(t1)))
        a('v_lshl_add_u32 %s, %s, 4, %s' % (vr(VO), vr(t2), vr(VO)))
        a('v_mul_u32_u24 %s, 1280, %s' % (vr(VX), vr(t1)))
        a('v_lshl_add_u32 %s, %s, 3, %s' % (vr(VX), vr(t2), vr(VX)))
        a('s_mul_i32 s90, s%d, 160' % sC2)
        a('v_lshlrev_b32 %s, 3, %s' % (vr(VD), vr(t2)))
        a('v_add_u32 %s, s90, %s' % (vr(VD), vr(VD)))
        a('s_and_b32 s90, s%d, 1' % sR2)
        a('s_lshl_b32 s90, s90, 6')
        a('v_add_u32 %s, s90, %s' % (vr(VG), vr(t1)))
        a('v_lshlrev_b32 %s, 2, %s' % (vr(VG), vr(VG)))
        a('v_add_u32 %s, %d, %s' % (vr(VG), L_GATE, vr(VG)))
        a('s_mul_i32 s90, s%d, %d' % (sR2, 64 * 1280))
        a('s_mul_i32 s91, s%d, 160' % sC2)
        a('s_add_u32 s90, s90, s91')
        for dt in range(5):
            a('buffer_load_dwordx2 %s, %s, %s, s90 offen offset:%d' % (vr(SK + 2 * dt, 2), vr(VX), srd(R_X), 32 * dt))
            a('global_load_dwordx2 %s, %s, s[%d:%d] offset:%d' % (vr(SK + 10 + 2 * dt, 2), vr(VD), S_DSK, S_DSK + 1, 32 * dt))
        HD = o.get('hdepth', 4)
        WD = min(22, NE + (len(pool) - 4 * o.get('hres', 4)) // 5)
        NL = 22 - WD if o.get('wlds', 1) else 0
        assert NL * 5 * 1024 <= 35840
        for k in range(NE, WD):
            put_groups(w_groups(k))
        a('s_lshl_b32 s90, s%d, 2' % sR)
        a('s_and_b32 s95, s%d, 1' % sR2)
        a('s_lshl_b32 s95, s95, 1')
        a('s_add_u32 s90, s90, s95')
        a('s_lshl_b32 s90, s90, 7')
        a('s_add_u32 s95, s90, 0x%x' % FLAG_OFF)
        a('v_and_b32 %s, 31, v0' % vr(t0))
        a('v_lshlrev_b32 %s, 3, %s' % (vr(t0), vr(t0)))
        lds_last = None
        ldsg = []
        if NL:
            a('s_mul_i32 s94, s%d, 35840' % sW)
            a('v_add_u32 %s, s94, %s' % (vr(VLWR), vr(VL16)))
            for k in range(WD, 22):
                for dt in range(5):
                    g = []
                    if dt == 0:
                        g += [Ins('s_mul_i32 s%d, s%d, 5120' % (P.sWk, KS[k])), Ins('s_add_u32 s%d, s%d, s%d' % (P.sWk, P.sWk, P.sWB))]
                    g.append(Ins('s_add_u32 m0, s94, %d' % (((k - WD) * 5 + dt) * 1024)))
                    g.append(Ins('s_add_u32 s%d, s%d, 1024' % (P.sWk, P.sWk)) if dt else Ins('s_nop 0'))
                    lds_last = Ins('buffer_load_dwordx4 %s, %s, s%d offen sc1 lds' % (vr(VL16), srd(R_WS), P.sWk))
                    g.append(lds_last)
                    ldsg.append(g)
        npre = max(0, len(ldsg) - o.get('pollcover', 14))
        put_groups(ldsg[:npre])
        a('buffer_load_dwordx2 %s, %s, %s, s95 offen sc1' % (vr(VP, 2), vr(t0), srd(R_WS)))
        put_groups(ldsg[npre:])
        self.stamp(9)
        a('ds_read_b32 %s, %s' % (vr(VG), vr(VG)))
        def chk():
            a('v_xor_b32 %s, s%d, %s' % (vr(VP), sTAG, vr(VP)))
            a('v_xor_b32 %s, s%d, %s' % (vr(VP + 1), sTAG2, vr(VP + 1)))
            a('v_or_b32 %s, %s, %s' % (vr(VP), vr(VP), vr(VP + 1)))
            a('v_cmp_ne_u32 vcc, 0, %s' % vr(VP))
            a('s_cmp_eq_u64 vcc, 0')
        chk()
        a.settle()
        a('s_cbranch_scc1 L_pfl_ok')
        snap = a.snapshot()
        a('s_mov_b32 s91, 0')
        a.drain()
        a.label('L_pfl')
        a('buffer_load_dwordx2 %s, %s, %s, s95 offen sc1' % (vr(VP, 2), vr(t0), srd(R_WS)))
        a('s_add_u32 s91, s91, 1')
        chk()
        a('s_cbranch_scc1 L_pfl_ok')
        a('s_cmp_lt_u32 s91, 0x%x' % o.get('spin', 200000))
        a('s_cbranch_scc1 L_pfl')
        a.settle()
        a.label('L_pfl_ok')
        a.restore(snap)
        a('s_cmp_lg_u32 s%d, 31' % sR2)
        a('s_cbranch_scc1 L_noep')
        a('s_cmp_lg_u32 s%d, 0' % sC2)
        a('s_cbranch_scc1 L_noep')
        a('v_mov_b32 %s, s%d' % (vr(t1), sTAG))
        a('v_mov_b32 %s, 0x%x' % (vr(t0), EPOCH_OFF))
        a.raw('    buffer_store_dword %s, %s, %s, 0 offen sc1' % (vr(t1), vr(t0), srd(R_WS)))
        a.raw('    s_waitcnt vmcnt(0)')
        a.label('L_noep')
        self.stamp(10)
        self.stamp((2, 4))
        self.stamp((3, 9))
        self.stamp((3, 10), clock=True)
        nh = 0
        while nh < HD:
            put_groups(h_groups(nh))
            nh += 1
        nw = WD

        TS = 96
        skip = []
        for dt in range(5):
            xs, ds = SK + 2 * dt, SK + 10 + 2 * dt
            L = ['v_lshlrev_b32 %s, 16, %s' % (vr(TS), vr(xs)), 'v_lshlrev_b32 %s, 16, %s' % (vr(TS + 1), vr(ds)),
                 'v_and_b32 %s, 0xffff0000, %s' % (vr(xs), vr(xs)), 'v_and_b32 %s, 0xffff0000, %s' % (vr(ds), vr(ds)),
                 'v_mul_f32 %s, %s, %s' % (vr(xs), vr(xs), vr(ds)),
                 'v_mul_f32 %s, %s, %s' % (vr(ds), vr(TS), vr(TS + 1)),
                 'v_lshlrev_b32 %s, 16, %s' % (vr(TS), vr(xs + 1)), 'v_lshlrev_b32 %s, 16, %s' % (vr(TS + 1), vr(ds + 1)),
                 'v_and_b32 %s, 0xffff0000, %s' % (vr(xs + 1), vr(xs + 1)), 'v_and_b32 %s, 0xffff0000, %s' % (vr(ds + 1), vr(ds + 1)),
                 'v_mul_f32 %s, %s, %s' % (vr(xs + 1), vr(xs + 1), vr(ds + 1)),
                 'v_mul_f32 %s, %s, %s' % (vr(ds + 1), vr(TS), vr(TS + 1))]
            skip += [[Ins(x)] for x in L]
        s_skip = Stream(skip, per=1, every=2)

        def skr(dt, r):
            return (SK + 10 + 2 * dt, SK + 2 * dt, SK + 10 + 2 * dt + 1, SK + 2 * dt + 1)[r]

        GAP = o.get('gap', 72)
        HMAX = o.get('hmax', 7)
        st = dict(nh=nh, hj=0, nw=nw, wj=0, t=0)

        def next_load(k):
            can_h = st['nh'] < 22 and st['nh'] <= k + HMAX and pool
            can_w = st['nw'] < 22 and pool
            urgent_w = can_w and st['nw'] <= k + o.get('wlead', 5)
            if can_h and not (urgent_w and st['nw'] <= st['nh']):
                kk, dl = st['nh'], st['hj']
                r = pool.pop(0)
                hq[(kk, dl)] = r
                hd = []
                if dl == 0:
                    hd = [Ins('s_lshl_b32 s%d, s%d, 12' % (P.sHk, KS[kk])), Ins('s_add_u32 s%d, s%d, s%d' % (P.sHk, P.sHk, P.sWB if o.get('fakeH') == 2 else P.sHB))]
                st['hj'] += 1
                if st['hj'] == 4:
                    st['hj'] = 0
                    st['nh'] += 1
                return hd + [Ins('buffer_load_dwordx4 %s, %s, %s, s%d offen %s' % (q(r), vr(VH + dl), srd(R_WS), P.sHB if o.get('fakeH') == 1 else P.sHk, HLD))]
            if can_w:
                kk, dt = st['nw'], st['wj']
                r = pool.pop(0)
                wq[(kk, dt)] = r
                hd = []
                if NL:
                    st['wj'] += 1
                    if st['wj'] == 5:
                        st['wj'] = 0
                        st['nw'] += 1
                    return ([WaitVM(lds_last)] if (kk == WD and dt == 0) else []) + [Ins('ds_read_b128 %s, %s offset:%d' % (q(r), vr(VLWR), ((kk - WD) * 5 + dt) * 1024))]
                if dt == 0:
                    hd = [Ins('s_mul_i32 s%d, s%d, 5120' % (P.sWk, KS[kk])), Ins('s_add_u32 s%d, s%d, s%d' % (P.sWk, P.sWk, P.sWB))]
                if dt < 4:
                    ld = Ins('buffer_load_dwordx4 %s, %s, %s, s%d offen offset:%d sc1' % (q(r), vr(VL16), srd(R_WS), P.sWk, dt * 1024))
                else:
                    ld = Ins('buffer_load_dwordx4 %s, %s, %s, s%d offen sc1' % (q(r), vr(VL16B), srd(R_WS), P.sWk))
                st['wj'] += 1
                if st['wj'] == 5:
                    st['wj'] = 0
                    st['nw'] += 1
                return hd + [ld]
            return None

        NT = o.get('tilemajor', 3) if not NL else 0
        for k in range(22 - NT):
            while (st['nh'] <= k) or (st['nw'] <= k):
                g = next_load(k) if st['nh'] <= k else None
                if g is None or st['nh'] > k:
                    save = st['nh']
                    st['nh'] = 22
                    g2 = next_load(k) if g is None else None
                    st['nh'] = save
                    g = g or g2
                assert g is not None
                for x in g:
                    a.put(x)
            n = 0
            for dt in range(5):
                for dl in range(4):
                    c = '0' if k == 0 else vr(acc(dt, dl), 4)
                    a.put(Ins('v_mfma_f32_16x16x32_bf16 %s, %s, %s, %s' % (vr(acc(dt, dl), 4), q(wq[(k, dt)]), q(hq[(k, dl)]), c)))
                    now = (20 * k + n + 1) * 16
                    if NL and st['nw'] < 22 and st['nw'] <= k + 2 and n % 4 == 2 and pool:
                        save = st['nh']
                        st['nh'] = 22
                        g = next_load(k)
                        st['nh'] = save
                        for x in g:
                            a.put(x)
                    elif now >= st['t']:
                        savew = st['nw']
                        if NL:
                            st['nw'] = 22
                        g = next_load(k)
                        if NL:
                            st['nw'] = savew
                        if g is not None:
                            for x in g:
                                a.put(x)
                            st['t'] = max(st['t'] + GAP, now)
                    elif k >= o.get('skipk', 10) and n % 2 == 1 and not s_skip.done():
                        for x in s_skip.groups[s_skip.i]:
                            a.put(x)
                        s_skip.i += 1
                    n += 1
            for dt in range(5):
                pool.append(wq[(k, dt)])
            for dl in range(4):
                pool.append(hq[(k, dl)])
            if k in (0, 2, 5, 9, 13, 17):
                self.stamp((2, 5 + (0, 2, 5, 9, 13, 17).index(k)))
        red_done = False
        if NT:
            k0 = 22 - NT
            while st['nh'] < 22 or st['nw'] < 22:
                g = next_load(21)
                assert g is not None
                for x in g:
                    a.put(x)
            while not s_skip.done():
                a.put(s_skip.groups[s_skip.i][0])
                s_skip.i += 1
            order = [(dt, dl) for dl in (1, 2, 3, 0) for dt in range(5)]
            pend = []
            for j, (dt, dl) in enumerate(order):
                for k in range(k0, 22):
                    a.put(Ins('v_mfma_f32_16x16x32_bf16 %s, %s, %s, %s' % (vr(acc(dt, dl), 4), q(wq[(k, dt)]), q(hq[(k, dl)]), vr(acc(dt, dl), 4))))
                if dl:
                    pend.append((dt, dl))
                if len(pend) > 2 or (dl == 0 and pend):
                    pdt, pdl = pend.pop(0)
                    a('ds_write_b128 %s, %s offset:%d' % (vr(VRW + pdl - 1), vr(acc(pdt, pdl), 4), pdt * 1024))
            for pdt, pdl in pend:
                a('ds_write_b128 %s, %s offset:%d' % (vr(VRW + pdl - 1), vr(acc(pdt, pdl), 4), pdt * 1024))
            red_done = True
        assert st['nh'] == 22 and st['nw'] == 22
        while not s_skip.done():
            a.put(s_skip.groups[s_skip.i][0])
            s_skip.i += 1
        self.stamp(11)
        self.stamp((2, 11))
        self.stamp((3, 11))
        self.stamp((3, 8), clock=True)
        if NL:
            a.waitcnt(lg=0)
            a('s_barrier')
        for dl in range(1, 4):
            for dt in range(5):
                if not red_done:
                    a('ds_write_b128 %s, %s offset:%d' % (vr(VRW + dl - 1), vr(acc(dt, dl), 4), dt * 1024))
        for dt in range(5):
            for r in range(4):
                a('v_fmac_f32 %s, %s, %s' % (vr(acc(dt, 0) + r), vr(VG), vr(skr(dt, r))))
        a('s_mul_i32 s90, s%d, %d' % (sR2, 64 * 2560))
        a('s_mul_i32 s91, s%d, 320' % sC2)
        a('s_add_u32 s90, s90, s91')
        a.waitcnt(lg=0)
        a('s_barrier')
        RB = 128
        for dt in range(5):
            for sl in range(3):
                a('ds_read_b128 %s, %s offset:%d' % (vr(RB + 4 * (3 * dt + sl), 4), vr(VRR), (sl * 5 + dt) * 1024))
        for dt in range(5):
            b = RB + 12 * dt
            for r in range(4):
                a('v_add_f32 %s, %s, %s' % (vr(b + r), vr(b + r), vr(b + 4 + r)))
            for r in range(4):
                a('v_add_f32 %s, %s, %s' % (vr(acc(dt, 0) + r), vr(acc(dt, 0) + r), vr(b + 8 + r)))
            for r in range(4):
                a('v_add_f32 %s, %s, %s' % (vr(acc(dt, 0) + r), vr(acc(dt, 0) + r), vr(b + r)))
            a('buffer_store_dwordx4 %s, %s, %s, s90 offen offset:%d %s' % (vr(acc(dt, 0), 4), vr(VO), srd(R_OUT), 64 * dt, {0: '', 1: 'sc1', 2: 'nt', 3: 'sc0 sc1'}[o.get('outmode', 0)]))

    def weave2(self, main, loads, every, extra):
        a = self.a
        for n, it in enumerate(main):
            a.put(it)
            if n % every == 0 and loads:
                for x in loads.pop(0):
                    a.put(x)
            elif extra is not None and n % 2 == 1 and not extra.done():
                for x in extra.groups[extra.i]:
                    a.put(x)
                extra.i += 1

    def kernel(self):
        a = self.a
        self.prologue()
        a('s_cmp_ge_u32 s%d, 6' % sCC)
        a.settle()
        a('s_cbranch_scc1 L_typeB')
        snap = a.snapshot()
        self.phase1('A')
        a('s_branch L_phase2')
        a.label('L_typeB')
        a.restore(snap)
        self.phase1('B')
        a.label('L_phase2')
        self.phase2()
        self.dump_stamps()
        a.label('L_exit')
        a('s_endpgm')
        head = open('gated_mix__ssm_conv_s5__dense_activation_relu__prompt.s.ref').read().split('\n')
        hdr = [ln for ln in head if ln.startswith(';') and '@launch' not in ln and 'Override' not in ln and 'grid=ceil' not in ln]
        out = '\n'.join(hdr) + '\n'
        out += '; @launch grid=(256,1,1) block=(256,1,1) lds=%d\n' % LDS_BYTES
        out += '.amdgcn_target "amdgcn-amd-amdhsa--gfx950"\n.text\n.globl %s\n.p2align 8\n.type %s,@function\n%s:\n' % (KNAME, KNAME, KNAME)
        out += a.text()
        out += '''.section .rodata,"a"
.p2align 6
.amdhsa_kernel %s
  .amdhsa_next_free_vgpr 512
  .amdhsa_next_free_sgpr 102
  .amdhsa_accum_offset 256
  .amdhsa_group_segment_fixed_size 0
  .amdhsa_kernarg_size 128
  .amdhsa_user_sgpr_count 2
  .amdhsa_user_sgpr_kernarg_segment_ptr 1
  .amdhsa_system_sgpr_workgroup_id_x 1
  .amdhsa_float_denorm_mode_32 3
.end_amdhsa_kernel
''' % KNAME
        return out


if __name__ == '__main__':
    opts = {}
    for arg in sys.argv[2:]:
        k, v = arg.split('=')
        opts[k] = int(v, 0)
    g = Gen(opts)
    txt = g.kernel()
    open(sys.argv[1], 'w').write(txt)
    print('instructions', g.a.n_ins, g.a.stats, 'nop states', g.a.nop_states, 'bytes of text', len(txt))
```

```python
import sys, math, struct
from asmgen import Asm, Ins, WaitVM, WaitLG, Stream, weave

KNAME = 'gated_mix__ssm_conv_s5__dense_activation_relu__prompt_kernel'

EPOCH_OFF = 0
FLAG_OFF = 0x1000
WF_OFF = 0x4000
AGG_OFF = 0x10000
WT_OFF = 0x40000
H_OFF = 0x400000
STAMP_OFF = 0x1000000
WS_BYTES = 268435456
OOB = 0x40000000

SLOT = 20480
MISC = 7 * SLOT
XS = 4 * SLOT
L_GW = MISC + 4096
L_GATE = L_GW + 2048
L_WST = L_GATE + 512
L_SEG = L_WST + 8192
L_LB = L_WST
LDS_BYTES = 163840
assert L_SEG + 5120 <= LDS_BYTES and XS + 65536 <= L_GW

S_X, S_LRE, S_LIM, S_BRE, S_BIM, S_CRE, S_CIM, S_LDT = 4, 6, 8, 10, 12, 14, 16, 18
S_DSK, S_BX, S_W1, S_W2, S_GWP, S_OUT, S_DBG, S_WS = 20, 22, 24, 26, 28, 30, 32, 34
R_X, R_WS, R_BRE, R_BIM, R_W1, R_W2, R_GW = 36, 40, 44, 48, 52, 56, 60
R_CI = 60
R_OUT = 48
sTAG, sTAG2, sW, sR, sG, sA, sR2, sC2, sC16, sHALF, sCC, sRHO = 64, 65, 66, 67, 68, 69, 70, 71, 72, 73, 74, 75
S_MASK = 76
sKO = 76
sE = 3
sW10, sGWI, sHF, sHS = 99, 98, 22, 23
sFB, sXS = 28, 4


def srd(r):
    return 's[%d:%d]' % (r, r + 3)


def vr(b, n=1):
    return 'v%d' % b if n == 1 else 'v[%d:%d]' % (b, b + n - 1)


def ar(b, n=1):
    return 'a%d' % b if n == 1 else 'a[%d:%d]' % (b, b + n - 1)


def f2u(x):
    return struct.unpack('<I', struct.pack('<f', x))[0]


def magic(d):
    return (1 << 32) // d + 1


LOG2E = '0x%08x' % f2u(math.log2(math.e))
INV2PI = '0x%08x' % f2u(1.0 / (2 * math.pi))


class P2:
    VL16, VL16B = 14, 15
    KS = list(range(4, 20)) + list(range(52, 58))
    sWB, sHB, sWk, sHk = 24, 25, 26, 27

    def __init__(self, opts):
        self.o = opts
        top = 240 if opts.get('stamps') else 256
        self.early_quads = [('a', r) for r in range(160, top, 4)] + [('v', r) for r in range(192, 256, 4)]
        self.n_early = min(opts.get('nearly', 22), len(self.early_quads) // 5)
        self.wq = {}
        for k in range(self.n_early):
            for dt in range(5):
                self.wq[(k, dt)] = self.early_quads[5 * k + dt]
        self.n_early2 = opts.get('nearly2', 5)
        self.early2_quads = [('a', 4 * j) for j in range(5 * self.n_early2)]
        for k in range(self.n_early2):
            for dt in range(5):
                self.wq[(self.n_early + k, dt)] = self.early2_quads[5 * k + dt]

    @staticmethod
    def q(x):
        return (vr if x[0] == 'v' else ar)(x[1], 4)

    def tables(self, late=False):
        KS, o = self.KS, self.o
        gr = []
        if not late:
            L = ['v_add_u32 %s, 4096, %s' % (vr(self.VL16B), vr(self.VL16)),
                 's_mul_i32 s%d, s%d, %d' % (self.sWB, sC2, 88 * 5120), 's_add_u32 s%d, s%d, 0x%x' % (self.sWB, self.sWB, WT_OFF),
                 's_mul_i32 s%d, s%d, %d' % (self.sHB, sR2, 88 * 4096), 's_add_u32 s%d, s%d, 0x%x' % (self.sHB, self.sHB, H_OFF),
                 's_mul_i32 s34, s%d, 10' % sW, 's_add_u32 s34, s34, 48',
                 's_mul_i32 s35, s%d, 12' % sW, 's_sub_u32 s35, s35, 10']
            mode = o.get('rot2', 0)
            if mode == 0:
                L += ['s_mov_b32 s96, 0']
            else:
                L += ['s_and_b32 s96, s%d, 3' % sC2, 's_mul_i32 s96, s96, %d' % o.get('rotc', 5)]
                if mode == 2:
                    L += ['s_and_b32 s95, s%d, 7' % sR2, 's_mul_i32 s95, s95, %d' % o.get('rotr', 3), 's_add_u32 s96, s96, s95']
            gr = [[Ins(x)] for x in L]
            for rep in range(2):
                gr.append([Ins('s_cmp_ge_u32 s96, 22'), Ins('s_cselect_b32 s95, 22, 0'), Ins('s_sub_u32 s96, s96, s95')])
            rng = range(16)
        else:
            gr = [[Ins('s_mov_b32 s96, s29')]]
            rng = range(16, 22)
        for k in rng:
            gr.append([Ins('s_cmp_lt_u32 s96, 10'), Ins('s_cselect_b32 s95, s34, s35'), Ins('s_add_u32 s%d, s95, s96' % KS[k])])
            gr.append([Ins('s_add_u32 s96, s96, 1')])
            gr.append([Ins('s_cmp_eq_u32 s96, 22'), Ins('s_cselect_b32 s96, 0, s96')])
        if not late:
            gr.append([Ins('s_mov_b32 s29, s96')])
        return gr

    def w_loads(self, k, quads, sk=None):
        sk = self.sWk if sk is None else sk
        gr = []
        for dt in range(5):
            hd = []
            if dt == 0:
                hd = [Ins('s_mul_i32 s%d, s%d, 5120' % (sk, self.KS[k])), Ins('s_add_u32 s%d, s%d, s%d' % (sk, sk, self.sWB))]
            if dt < 4:
                ld = Ins('buffer_load_dwordx4 %s, %s, %s, s%d offen offset:%d sc1' % (self.q(quads[dt]), vr(self.VL16), srd(R_WS), sk, dt * 1024))
            else:
                ld = Ins('buffer_load_dwordx4 %s, %s, %s, s%d offen sc1' % (self.q(quads[dt]), vr(self.VL16B), srd(R_WS), sk))
            gr.append(hd + [ld])
        return gr

    def early2_w(self):
        gr = []
        for k in range(self.n_early, self.n_early + self.n_early2):
            gr += self.w_loads(k, [self.wq[(k, dt)] for dt in range(5)], self.sHk)
        return gr

    def early_w(self):
        gr = []
        for k in range(self.n_early):
            gr += self.w_loads(k, [self.wq[(k, dt)] for dt in range(5)])
        return gr


class Gen:
    def __init__(self, opts):
        self.o = opts
        self.a = Asm()
        self.p2 = P2(opts)

    def stamp(self, k, clock=False):
        if not self.o.get('stamps'):
            return
        det = self.o.get('detail', 0)
        if isinstance(k, tuple):
            if k[0] != det:
                return
            k = k[1]
        elif det and (5 <= k <= 11 or (det == 3 and k in (1, 2, 3))):
            return
        a = self.a
        a('%s s[100:101]' % ('s_memtime' if clock else 's_memrealtime'))
        a.waitcnt(lg=0)
        a('v_accvgpr_write_b32 a%d, s100' % (240 + k))

    def dump_stamps(self):
        if not self.o.get('stamps'):
            return
        a = self.a
        self.stamp(12)
        self.stamp(14, clock=True)
        a.drain()
        for k in range(16):
            a('v_accvgpr_read_b32 v%d, a%d' % (16 + k, 240 + k))
        a('s_lshl_b32 s90, s2, 2')
        a('s_add_u32 s90, s90, s%d' % sW)
        a('s_lshl_b32 s90, s90, 6')
        a('s_add_u32 s90, s90, 0x%x' % STAMP_OFF)
        a('v_mov_b32 v1, 0')
        for k in range(4):
            a('buffer_store_dwordx4 v[%d:%d], v1, %s, s90 offen offset:%d' % (16 + 4 * k, 19 + 4 * k, srd(R_WS), 16 * k))
        a.waitcnt(vm=0)

    def build_srd(self, r, ptr, nbytes):
        a = self.a
        a('s_mov_b32 s%d, s%d' % (r, ptr))
        a('s_and_b32 s%d, s%d, 0xffff' % (r + 1, ptr + 1))
        a('s_mov_b32 s%d, 0x%x' % (r + 2, nbytes))
        a('s_mov_b32 s%d, 0x20000' % (r + 3))

    def swap23(self, dst, src, tmp):
        a = self.a
        a('v_and_b32 %s, 19, %s' % (vr(dst), vr(src)))
        a('v_bfe_u32 %s, %s, 2, 1' % (vr(tmp), vr(src)))
        a('v_lshl_add_u32 %s, %s, 3, %s' % (vr(dst), vr(tmp), vr(dst)))
        a('v_bfe_u32 %s, %s, 3, 1' % (vr(tmp), vr(src)))
        a('v_lshl_add_u32 %s, %s, 2, %s' % (vr(dst), vr(tmp), vr(dst)))

    def lane_t(self, dst, src, tmp):
        a = self.a
        a('v_bfe_u32 %s, %s, 2, 1' % (vr(tmp), vr(src)))
        a('v_lshlrev_b32 %s, 4, %s' % (vr(tmp), vr(tmp)))
        a('v_and_b32 %s, 3, %s' % (vr(dst), vr(src)))
        a('v_add_u32 %s, %s, %s' % (vr(dst), vr(dst), vr(tmp)))
        a('v_lshrrev_b32 %s, 3, %s' % (vr(tmp), vr(src)))
        a('v_lshl_add_u32 %s, %s, 2, %s' % (vr(dst), vr(tmp), vr(dst)))

    XD, XR = 48, 52
    PO, GO0, GO1 = 56, 57, 58
    CD, CR = 60, 62

    def prologue(self):
        a, o = self.a, self.o
        a('s_cmp_ge_u32 s2, 256')
        a('s_cbranch_scc1 L_exit')
        self.stamp(0)
        self.stamp(13, clock=True)
        a('s_load_dwordx16 s[4:19], s[0:1], 0')
        a('s_load_dwordx16 s[20:35], s[0:1], 64')
        if o.get('codepf', 1):
            a('s_getpc_b64 s[92:93]')
            a.label('L_pc')
            a('s_lshr_b32 s90, s2, 3')
            a('s_lshl_b32 s90, s90, 2')
            a('v_lshrrev_b32 v1, 6, v0')
            a('v_add_u32 v1, s90, v1')
            a('v_mul_u32_u24 v1, 3, v1')
            a('v_and_b32 v2, 63, v0')
            a('v_min_u32 v2, 2, v2')
            a('v_add_u32 v1, v1, v2')
            a('v_lshlrev_b32 v1, 7, v1')
            a.raw('    v_min_u32 v1, L_exit-L_pc, v1')
            a('global_load_dword v47, v1, s[92:93]')
        a.many("""
            s_and_b32 s90, s2, 7
            s_lshr_b32 s91, s2, 3
            s_lshr_b32 s92, s90, 1
            s_and_b32 s%(half)d, s90, 1
            s_lshl_b32 s93, s92, 2
            s_lshr_b32 s94, s91, 3
            s_add_u32 s%(r)d, s93, s94
            s_and_b32 s%(cc)d, s91, 7
            s_lshl_b32 s93, s%(half)d, 3
            s_add_u32 s%(c16)d, s93, s%(cc)d
            s_lshl_b32 s93, s92, 3
            s_lshr_b32 s94, s91, 2
            s_add_u32 s%(r2)d, s93, s94
            s_lshl_b32 s93, s%(half)d, 2
            s_and_b32 s94, s91, 3
            s_add_u32 s%(c2)d, s93, s94
        """ % dict(half=sHALF, r=sR, cc=sCC, c16=sC16, r2=sR2, c2=sC2))
        a('v_lshrrev_b32 v1, 6, v0')
        a('v_and_b32 v0, 63, v0')
        a('v_readfirstlane_b32 s%d, v1' % sW)
        a.many("""
            s_mul_i32 s93, s%(half)d, 6
            s_add_u32 s%(A)d, s93, s%(cc)d
            s_lshl_b32 s93, s%(half)d, 1
            s_add_u32 s93, s93, s%(cc)d
            s_sub_u32 s93, s93, 6
            s_lshl_b32 s93, s93, 1
            s_add_u32 s93, s93, 12
            s_cmp_lt_u32 s%(cc)d, 6
            s_cselect_b32 s%(G)d, s%(A)d, s93
        """ % dict(half=sHALF, A=sA, cc=sCC, G=sG))
        a('s_and_b32 s90, s%d, 3' % sR)
        a('s_lshl_b32 s90, s90, 1')
        a('s_add_u32 s90, s90, s%d' % sCC)
        a('s_cmp_ge_u32 s90, 10')
        a('s_cselect_b32 s91, 10, 0')
        a('s_sub_u32 s%d, s90, s91' % sRHO)
        if not o.get('rot', 1):
            a('s_mov_b32 s%d, 0' % sRHO)
        a('s_lshl_b32 s%d, s%d, 7' % (sKO, sRHO))
        for k in range(1, 10):
            a('s_add_u32 s%d, s%d, 128' % (sKO + k, sKO + k - 1))
            a('s_cmp_ge_u32 s%d, 1280' % (sKO + k))
            a('s_cselect_b32 s%d, 0, s%d' % (sKO + k, sKO + k))
        a('s_lshl_b32 s%d, s%d, 10' % (sW10, sW))
        XD, CD = self.XD, self.CD
        a('v_lshrrev_b32 v64, 3, v0')
        a('v_and_b32 v65, 7, v0')
        a('v_lshrrev_b32 v66, 1, v64')
        a('v_xor_b32 v66, v66, v65')
        a('v_mul_u32_u24 v67, 1280, v64')
        a('v_lshl_add_u32 %s, v66, 4, v67' % vr(CD))
        a('v_xor_b32 %s, 64, %s' % (vr(CD + 1), vr(CD)))
        a('v_add_u32 %s, 10240, %s' % (vr(CD + 1), vr(CD + 1)))
        a('s_lshl_b32 s90, s%d, 2' % sR)
        a('s_add_u32 s90, s90, s%d' % sW)
        a('s_mul_i32 s90, s90, 40960')
        a('v_add_u32 %s, s90, %s' % (vr(XD), vr(CD)))
        a('v_add_u32 %s, s90, %s' % (vr(XD + 1), vr(CD + 1)))
        a('v_add_u32 %s, 20480, %s' % (vr(XD + 2), vr(XD)))
        a('v_add_u32 %s, 20480, %s' % (vr(XD + 3), vr(XD + 1)))
        a('s_lshl_b32 s90, s%d, 3' % sW)
        a('v_add_u32 v66, s90, v64')
        self.swap23(67, 66, 68)
        a('v_mul_u32_u24 v67, 1280, v67')
        a('v_bfe_u32 v68, v66, 1, 3')
        a('v_xor_b32 v68, v68, v65')
        a('v_lshl_add_u32 v3, v68, 4, v67')
        a('s_mul_i32 s90, s%d, 40960' % sG)
        a('v_add_u32 v3, s90, v3')
        a('v_and_b32 v66, 31, v0')
        self.swap23(67, 66, 68)
        a('v_lshlrev_b32 %s, 1, v67' % vr(self.PO))
        g0, g1 = self.GO0, self.GO1
        a('s_lshl_b32 s90, s%d, 3' % sRHO)
        a('v_add_u32 %s, s90, v0' % vr(g0))
        a('v_subrev_u32 v66, 80, %s' % vr(g0))
        a('v_cmp_le_u32 vcc, 80, %s' % vr(g0))
        a('v_cndmask_b32 %s, %s, v66, vcc' % (vr(g0), vr(g0)))
        a('v_add_u32 %s, 64, %s' % (vr(g1), vr(g0)))
        a('v_subrev_u32 v66, 80, %s' % vr(g1))
        a('v_cmp_le_u32 vcc, 80, %s' % vr(g1))
        a('v_cndmask_b32 %s, %s, v66, vcc' % (vr(g1), vr(g1)))
        a('v_lshlrev_b32 %s, 4, %s' % (vr(g0), vr(g0)))
        a('v_lshlrev_b32 %s, 4, %s' % (vr(g1), vr(g1)))
        a('v_cmp_gt_u32 vcc, 16, v0')
        a('v_cndmask_b32 %s, 0x%x, %s, vcc' % (vr(g1), OOB, vr(g1)))
        a.waitcnt(lg=0)
        self.stamp(1)
        a('s_load_dword s%d, s[%d:%d], 0x%x' % (sE, S_WS, S_WS + 1, EPOCH_OFF))
        if o.get('tlb', 0):
            pages = [(S_X, 0), (S_X, 2097152), (S_BRE, 0), (S_BIM, 0), (S_GWP, 0), (S_LRE, 0), (S_LIM, 0), (S_LDT, 0),
                     (S_W1, 0), (S_W1, 1966080 - 64), (S_W2, 0), (S_W2, 1966080 - 64), (S_CRE, 0), (S_CIM, 0), (S_DSK, 0),
                     (S_OUT, 0), (S_OUT, 2097152), (S_OUT, 4194304), (S_OUT, 5242880 - 64)]
            pages += [(S_WS, p * 2097152) for p in range(8)]
            if o.get('tlb') == 2:
                pages = pages[:8]
            a('v_mov_b32 v70, s%d' % S_X)
            a('v_mov_b32 v71, s%d' % (S_X + 1))
            for ln, (ptr, off) in enumerate(pages):
                if ln == 0:
                    continue
                if off:
                    a('s_add_u32 s90, s%d, 0x%x' % (ptr, off))
                    a('s_addc_u32 s91, s%d, 0' % (ptr + 1))
                    a('v_writelane_b32 v70, s90, %d' % ln)
                    a('v_writelane_b32 v71, s91, %d' % ln)
                else:
                    a('v_writelane_b32 v70, s%d, %d' % (ptr, ln))
                    a('v_writelane_b32 v71, s%d, %d' % (ptr + 1, ln))
            a('global_load_dword v46, v[70:71], off')
        self.build_srd(R_X, S_X, 2621440)
        self.build_srd(R_BRE, S_BRE, 819200)
        self.build_srd(R_GW, S_GWP, 1280)
        a('s_lshl_b32 s%d, s%d, 14' % (sXS, sW))
        a('s_add_u32 s%d, s%d, %d' % (sXS, sXS, XS))

    def phase1(self, typ):
        a, o = self.a, self.o
        A = typ == 'A'
        HST = {0: 'sc1', 1: 'sc0 sc1', 2: 'sc1 nt', 3: 'sc0 sc1 nt'}[o.get('hst', 0)]
        XD, XR, CD, CR = self.XD, self.XR, self.CD, self.CR
        V = {'WS': 3}
        nxt = [4]

        def al(name, n=1):
            V[name] = nxt[0]
            nxt[0] += n
        for nm in ('WF', 'ST', 'AG', 'LB0', 'LB1', 'SEGW', 'SEGR', 'GW', 'G', 'OMG', 'W2D', 'W2R'):
            al(nm)
        al('RS', 4)
        if A:
            al('RF', 6)
        else:
            al('WS2')
        ngrp = 1 if A else 2
        for g in range(ngrp):
            for nm in ('lr', 'li', 'nli', 'l16r', 'l16i', 'lsr', 'lsi', 'p1r', 'p1i', 'p2r', 'p2i', 'cr', 'ci'):
                al('%s%d' % (nm, g))
        assert nxt[0] <= 47, nxt[0]
        RING = 96
        RING_ADDR = 92
        PT = 80
        ACC = [128, 160]
        GACC = 160
        FA = [160, 176]
        A_GW = 160

        def XF(s):
            return ar(4 * s, 4)

        def put_all(items):
            for it in items:
                if isinstance(it, list):
                    put_all(it)
                elif callable(it):
                    it()
                else:
                    a.put(it)

        def ssm_dma(g, stage, slot):
            R = R_BRE if stage % 2 == 0 else R_BIM
            kh = stage // 2
            ws_ = V['WS'] if g == 0 else V['WS2']
            grp = []
            last = None
            for kb in range(5):
                last = Ins('buffer_load_dwordx4 %s, %s, s%d offen lds' % (vr(ws_), srd(R), sKO + 5 * kh + kb))
                grp.append([Ins('s_add_u32 m0, s%d, %d' % (sW10, slot * SLOT + kb * 4096)), Ins('s_nop 0'), last])
            return grp, last

        s_dma = {}

        def s_load(g, m, kap):
            kh, kb = kap // 5, kap % 5
            slot = slot_of[4 * g + 2 * kh + m]
            ws_ = V['WS'] if g == 0 else V['WS2']
            ld = Ins('buffer_load_dwordx4 %s, %s, s%d offen lds' % (vr(ws_), srd(R_BIM if m else R_BRE), sKO + kap))
            s_dma[(g, m, kap)] = ld
            return [Ins('s_add_u32 m0, s%d, %d' % (sW10, slot * SLOT + kb * 4096)), Ins('s_nop 0'), ld]

        def ffn_dma(fst, slot):
            blk, st = fst >> 2, fst & 3
            grp = []
            last = None
            for i2 in range(5):
                c = (160 * st + 32 * i2) * 3072 + 128 * blk
                last = Ins('buffer_load_dwordx4 %s, %s, %s offen lds' % (vr(V['WF']), srd(R_W1), '0' if o.get('fakeF') else 's92'))
                grp.append([Ins('s_add_u32 s92, s%d, %d' % (sFB, c)),
                            Ins('s_cmp_ge_u32 s92, %d' % (640 * 3072)),
                            Ins('s_cselect_b32 s93, %d, 0' % (640 * 3072)),
                            Ins('s_add_u32 m0, s%d, %d' % (sW10, slot * SLOT + i2 * 4096)),
                            Ins('s_sub_u32 s92, s92, s93'),
                            last])
            return grp, last

        x_dma_last, x_rd_last = {}, {}

        def xdma(kap):
            grp = []
            for g in range(4):
                ld = Ins('buffer_load_dwordx4 %s, %s, %s offen lds' % (vr(XD + g), srd(R_X), '0' if (o.get('fakeX') and kap >= 4) else 's%d' % (sKO + kap)))
                grp.append([Ins('s_add_u32 m0, s%d, %d' % (sXS, (kap % 4) * 4096 + g * 1024)), Ins('s_nop 0'), ld])
                x_dma_last[kap] = ld
            return grp

        def xread(kap):
            grp = []
            for j in range(4):
                rd = Ins('ds_read_b128 %s, %s offset:%d' % (XF(4 * kap + j), vr(XR + j), (kap % 4) * 4096))
                grp.append(([WaitVM(x_dma_last[kap])] if j == 0 else []) + [rd])
                x_rd_last[kap] = rd
            return grp

        def xrefill(kap):
            g = xdma(kap)
            g[0] = [WaitLG(x_rd_last[kap - 4])] + g[0]
            return g

        if A:
            seq = [('S', 0, i) for i in range(4)] + [('F', 0, i) for i in range(8)]
            slot_of = [0, 1, 2, 3, 0, 1, 4, 5, 6, 2, 3, 0]
        else:
            seq = [('S', 0, i) for i in range(4)] + [('S', 1, i) for i in range(4)]
            slot_of = [0, 1, 2, 3, 0, 1, 4, 5]
        dma_last = [None] * len(seq)

        def stage_loads(i):
            kind, g, st = seq[i]
            grp, last = ssm_dma(g, st, slot_of[i]) if kind == 'S' else ffn_dma(st, slot_of[i])
            dma_last[i] = last
            return grp

        if not A:
            a('v_add_u32 %s, 40960, %s' % (vr(V['WS2']), vr(V['WS'])))
        self.build_srd(R_BIM, S_BIM, 819200)
        PF = o.get('pf', 0)
        if PF:
            a('s_lshr_b32 s90, s2, 3')
            a('s_lshl_b32 s90, s90, 2')
            a('s_add_u32 s90, s90, s%d' % sW)
            a('s_mul_i32 s91, s90, 40')
            a('v_min_u32 v64, 39, v0')
            a('v_add_u32 v64, s91, v64')
            a('v_lshlrev_b32 v64, 7, v64')
            a('s_and_b32 s91, s2, 7')
            a('s_lshr_b32 s91, s91, 1')
            a('s_mul_i32 s91, s91, %d' % (512 * 1280))
            a('buffer_load_dword v68, v64, %s, s91 offen' % srd(R_X))
            a('s_mul_i32 s91, s90, 25')
            a('v_min_u32 v64, 24, v0')
            a('v_add_u32 v64, s91, v64')
            a('v_mul_u32_u24 v65, 6554, v64')
            a('v_lshrrev_b32 v65, 21, v65')
            a('v_mul_u32_u24 v66, 320, v65')
            a('v_sub_u32 v64, v64, v66')
            a('s_mul_i32 s91, s%d, 6' % sHALF)
            a('s_lshl_b32 s92, s%d, 2' % sHALF)
            a('s_add_u32 s92, s92, 6')
            a('v_add_u32 v66, s91, v65')
            a('v_add_u32 v67, s92, v65')
            a('v_cmp_gt_u32 vcc, 6, v65')
            a('v_cndmask_b32 v65, v67, v66, vcc')
            a('v_mul_u32_u24 v65, 40960, v65')
            a('v_lshl_add_u32 v64, v64, 7, v65')
            a('buffer_load_dword v69, v64, %s, 0 offen' % srd(R_BRE))
            a('buffer_load_dword v70, v64, %s, 0 offen' % srd(R_BIM))
        put_all(xdma(0))
        put_all([s_load(0, 0, 0), s_load(0, 1, 0)])
        if PF != 2:
            put_all(xdma(1))
            put_all([s_load(0, 0, 1), s_load(0, 1, 1)])
        for g in range(ngrp):
            a('s_add_u32 s90, s%d, %d' % (sG, g))
            a('s_lshl_b32 s90, s90, 6')
            a('v_add_u32 v59, s90, %s' % vr(self.PO))
            a('global_load_ushort %s, v59, s[%d:%d]' % (vr(V['lr%d' % g]), S_LRE, S_LRE + 1))
            a('global_load_ushort %s, v59, s[%d:%d]' % (vr(V['li%d' % g]), S_LIM, S_LIM + 1))
            a('global_load_ushort %s, v59, s[%d:%d]' % (vr(V['cr%d' % g]), S_LDT, S_LDT + 1))
        a('s_mov_b32 m0, %d' % L_GW)
        a('s_nop 0')
        a('buffer_load_dwordx4 %s, %s, 0 offen lds' % (vr(self.GO0), srd(R_GW)))
        a('s_mov_b32 m0, %d' % (L_GW + 1024))
        a('s_nop 0')
        gw_dma = a('buffer_load_dwordx4 %s, %s, 0 offen lds' % (vr(self.GO1), srd(R_GW)))

        self.stamp(2)

        def G(lines):
            return [[Ins(x)] for x in lines]

        U0, U1, U2, U3, U4 = PT, PT + 1, PT + 2, PT + 3, PT + 4
        a('v_and_b32 %s, 31, v0' % vr(U0))
        a('v_lshrrev_b32 %s, 5, v0' % vr(U1))
        self.lane_t(U2, U0, U3)
        a('v_bfe_u32 %s, %s, 1, 3' % (vr(U3), vr(U2)))
        a('v_lshlrev_b32 %s, 1, %s' % (vr(U4), vr(U1)))
        a('v_xor_b32 %s, %s, %s' % (vr(U3), vr(U3), vr(U4)))
        a('v_lshlrev_b32 %s, 7, %s' % (vr(U2), vr(U2)))
        a('v_add_u32 %s, s%d, %s' % (vr(U2), sXS, vr(U2)))
        for u in range(2):
            for ab in range(2):
                d = XR + 2 * u + ab
                a('v_xor_b32 %s, %d, %s' % (vr(d), 4 * u + ab, vr(U3)))
                a('v_lshl_add_u32 %s, %s, 4, %s' % (vr(d), vr(d), vr(U2)))
        a('v_lshlrev_b32 %s, 5, %s' % (vr(V['GW']), vr(U1)))
        a('v_add_u32 %s, %d, %s' % (vr(V['GW']), L_GW, vr(V['GW'])))
        a('v_bfe_u32 %s, %s, 1, 3' % (vr(U2), vr(U0)))
        a('v_xor_b32 %s, %s, %s' % (vr(U2), vr(U2), vr(U4)))
        a('v_lshlrev_b32 %s, 7, %s' % (vr(U3), vr(U0)))
        for u in range(2):
            for ab in range(2):
                d = V['RS'] + 2 * u + ab
                a('v_xor_b32 %s, %d, %s' % (vr(d), 4 * u + ab, vr(U2)))
                a('v_lshl_add_u32 %s, %s, 4, %s' % (vr(d), vr(d), vr(U3)))

        def gate_reads(half):
            return G(['ds_read_b128 %s, %s offset:%d' % (ar(A_GW + 4 * k, 4), vr(V['GW']), 64 * ((20 * half + k) >> 1) + 16 * (k & 1)) for k in range(20)])
        def late_scalars():
            L = []
            for r, ptr, nb in ((R_WS, S_WS, WS_BYTES), (R_W1, S_W1, 1966080), (R_W2, S_W2, 1966080)):
                L += ['s_mov_b32 s%d, s%d' % (r, ptr), 's_and_b32 s%d, s%d, 0xffff' % (r + 1, ptr + 1),
                      's_mov_b32 s%d, 0x%x' % (r + 2, nb), 's_mov_b32 s%d, 0x20000' % (r + 3)]
            L += ['s_lshl_b32 s90, s%d, 3' % sRHO, 's_add_u32 s90, s90, s%d' % sW, 's_mul_i32 s90, s90, 24576',
                  's_lshl_b32 s91, s%d, 8' % sA, 's_add_u32 s%d, s90, s91' % sFB]
            if A:
                t0, t1, t2 = PT, PT + 1, PT + 2
                L += ['v_lshrrev_b32 %s, 3, v0' % vr(t0),
                      'v_mul_u32_u24 %s, 3072, %s' % (vr(t1), vr(t0)),
                      'v_bfe_u32 %s, %s, 1, 1' % (vr(t0), vr(t0)),
                      'v_lshlrev_b32 %s, 2, %s' % (vr(t0), vr(t0)),
                      'v_and_b32 %s, 7, v0' % vr(t2),
                      'v_xor_b32 %s, %s, %s' % (vr(t0), vr(t0), vr(t2)),
                      'v_lshl_add_u32 %s, %s, 4, %s' % (vr(V['WF']), vr(t0), vr(t1))]
            return G(L)

        w2_dma = []
        c_dma = []

        def w2_setup():
            T0, T1 = 59, PT + 4
            L = ['v_lshrrev_b32 %s, 1, v0' % vr(T0),
                 'v_mul_u32_u24 %s, 1280, %s' % (vr(T0), vr(T0)),
                 'v_and_b32 %s, 1, v0' % vr(T1),
                 'v_lshl_add_u32 %s, %s, 4, %s' % (vr(T0), vr(T1), vr(T0)),
                 's_lshl_b32 s90, s2, 2',
                 's_add_u32 s%d, s90, s%d' % (sGWI, sW),
                 's_cmp_lt_u32 s%d, 960' % sGWI]
            gr = G(L[:-1]) + [[Ins(L[-1]), Ins('s_cselect_b32 s91, 0, 0x%x' % OOB)]]
            gr += G(['v_add_u32 %s, s91, %s' % (vr(T0), vr(T0)),
                     'v_lshlrev_b32 %s, 4, v0' % vr(V['W2D']),
                     'v_add_u32 v1, s91, %s' % vr(V['W2D']),
                     's_min_u32 s91, s%d, 959' % sGWI,
                     's_lshl_b32 s91, s91, 1',
                     's_mul_hi_u32 s90, s91, 0x%x' % magic(240),
                     's_mul_i32 s94, s90, 240',
                     's_sub_u32 s91, s91, s94',
                     's_mul_i32 s94, s90, 440',
                     's_add_u32 s94, s94, s91',
                     's_lshl_b32 s94, s94, 10',
                     's_add_u32 s26, s94, 0x%x' % WT_OFF])
            for e in range(2):
                L = []
                if e:
                    L.append('s_add_u32 s91, s91, 1')
                L += ['s_mul_hi_u32 s94, s91, 0x%x' % magic(5),
                      's_mul_i32 s95, s94, 5',
                      's_sub_u32 s95, s91, s95',
                      's_mul_i32 s94, s94, 40960',
                      's_mul_i32 s96, s90, 160',
                      's_add_u32 s94, s94, s96',
                      's_lshl_b32 s95, s95, 5',
                      's_add_u32 s%d, s94, s95' % (27, 29)[e]]
                gr += G(L)
                ld = Ins('buffer_load_dwordx4 %s, %s, s%d offen lds' % (vr(T0), srd(R_W2), (27, 29)[e]))
                gr.append([Ins('s_add_u32 m0, s%d, %d' % (sW10, 2 * SLOT + 12288 + 4096 * e)), Ins('s_nop 0'), ld])
                w2_dma.append(ld)
            return gr

        _w2 = w2_setup()
        w2_setup_b = [g for g in _w2 if any(x.kind == 'vm' for x in g)]
        w2_setup_a = [g for g in _w2 if not any(x.kind == 'vm' for x in g)]
        assert len(w2_setup_b) == 2

        def c_setup():
            gr = [[Ins('s_cmp_lt_u32 s%d, 800' % sGWI), Ins('s_cselect_b32 s91, 0, 0x%x' % OOB)]]
            gr += G(['v_add_u32 %s, s91, %s' % (vr(CD), vr(CD)),
                     'v_add_u32 %s, s91, %s' % (vr(CD + 1), vr(CD + 1)),
                     'v_add_u32 v2, s91, %s' % vr(V['W2D']),
                     's_min_u32 s91, s%d, 799' % sGWI])
            gr.append([Ins('s_cmp_ge_u32 s91, 400'), Ins('s_cselect_b32 s90, 1, 0'),
                       Ins('s_cselect_b32 s%d, s%d, s%d' % (R_CI, S_CIM, S_CRE)),
                       Ins('s_cselect_b32 s%d, s%d, s%d' % (R_CI + 1, S_CIM + 1, S_CRE + 1))])
            gr += G(['s_and_b32 s%d, s%d, 0xffff' % (R_CI + 1, R_CI + 1),
                     's_mov_b32 s%d, 819200' % (R_CI + 2),
                     's_mov_b32 s%d, 0x20000' % (R_CI + 3),
                     's_mul_i32 s94, s90, 400',
                     's_sub_u32 s91, s91, s94',
                     's_mul_hi_u32 s94, s91, 0x%x' % magic(50),
                     's_mul_i32 s95, s94, 50',
                     's_sub_u32 s91, s91, s95',
                     's_mul_hi_u32 s95, s91, 0x%x' % magic(5),
                     's_mul_i32 s96, s95, 5',
                     's_sub_u32 s96, s91, s96',
                     's_mul_i32 s97, s94, 80',
                     's_lshl_b32 s91, s96, 4',
                     's_add_u32 s97, s97, s91',
                     's_mul_i32 s97, s97, 1280',
                     's_lshl_b32 s91, s95, 7',
                     's_add_u32 s24, s97, s91',
                     's_mul_i32 s90, s90, 20',
                     's_lshl_b32 s95, s95, 1',
                     's_add_u32 s90, s90, s95',
                     's_add_u32 s90, s90, 48',
                     's_mul_i32 s94, s94, 88',
                     's_add_u32 s90, s90, s94',
                     's_mul_i32 s90, s90, 5',
                     's_add_u32 s90, s90, s96',
                     's_lshl_b32 s90, s90, 10',
                     's_add_u32 s25, s90, 0x%x' % WT_OFF])
            return gr

        def item_addrs():
            U2, U3, U4 = PT + 5, PT + 6, PT + 7
            return G(['v_lshrrev_b32 %s, 5, v0' % vr(U2),
                      'v_lshlrev_b32 %s, 4, %s' % (vr(U2), vr(U2)),
                      'v_bfe_u32 %s, v0, 4, 1' % vr(U3),
                      'v_lshl_add_u32 %s, %s, 2, %s' % (vr(U2), vr(U3), vr(U2)),
                      'v_bfe_u32 %s, v0, 2, 2' % vr(U3),
                      'v_add_u32 %s, %s, %s' % (vr(U2), vr(U2), vr(U3)),
                      'v_lshlrev_b32 %s, 5, %s' % (vr(U2), vr(U2)),
                      'v_and_b32 %s, 3, v0' % vr(U3),
                      'v_lshl_add_u32 %s, %s, 3, %s' % (vr(U2), vr(U3), vr(U2)),
                      's_add_u32 s97, s%d, %d' % (sW10, 2 * SLOT + 12288),
                      'v_add_u32 %s, s97, %s' % (vr(V['W2R']), vr(U2)),
                      's_add_u32 s97, s%d, %d' % (sW10, 3 * SLOT + 12288),
                      'v_and_b32 %s, 15, v0' % vr(U2),
                      'v_lshrrev_b32 %s, 4, v0' % vr(U3),
                      'v_lshrrev_b32 %s, 1, %s' % (vr(U4), vr(U2)),
                      'v_xor_b32 %s, %s, %s' % (vr(U3), vr(U3), vr(U4)),
                      'v_lshlrev_b32 %s, 4, %s' % (vr(U3), vr(U3)),
                      'v_xor_b32 %s, 64, %s' % (vr(U4), vr(U3)),
                      'v_and_b32 %s, 7, %s' % (vr(PT + 9), vr(U2)),
                      'v_lshrrev_b32 %s, 3, %s' % (vr(U2), vr(U2)),
                      'v_lshlrev_b32 %s, 12, %s' % (vr(U2), vr(U2)),
                      'v_lshl_add_u32 %s, %s, 7, %s' % (vr(U2), vr(PT + 9), vr(U2)),
                      'v_add_u32 %s, s97, %s' % (vr(U2), vr(U2)),
                      'v_add_u32 %s, %s, %s' % (vr(CR), vr(U3), vr(U2)),
                      'v_add_u32 %s, %s, %s' % (vr(CR + 1), vr(U4), vr(U2))])

        def lane_consts():
            U0, U1, U2, U3 = PT, PT + 1, PT + 2, PT + 3
            SEGV, E0, E1 = PT + 8, PT + 9, PT + 10
            L = ['v_and_b32 %s, 31, v0' % vr(U0),
                 'v_lshrrev_b32 %s, 5, v0' % vr(U1),
                 'v_lshrrev_b32 %s, 4, %s' % (vr(U2), vr(U0)),
                 'v_lshlrev_b32 %s, 10, %s' % (vr(U2), vr(U2)),
                 'v_and_b32 %s, 15, %s' % (vr(U3), vr(U0)),
                 'v_lshl_add_u32 %s, %s, 4, %s' % (vr(U3), vr(U1), vr(U3)),
                 'v_lshl_add_u32 %s, %s, 4, %s' % (vr(V['ST']), vr(U3), vr(U2)),
                 'v_lshlrev_b32 %s, 4, %s' % (vr(V['AG']), vr(U0)),
                 'v_mul_u32_u24 %s, 80, %s' % (vr(V['SEGR']), vr(U0)),
                 'v_add_u32 %s, %d, %s' % (vr(V['SEGR']), MISC, vr(V['SEGR'])),
                 's_lshl_b32 s95, s%d, 1' % sW,
                 'v_add_u32 %s, s95, %s' % (vr(SEGV), vr(U1)),
                 'v_lshl_add_u32 %s, %s, 3, %s' % (vr(V['SEGW']), vr(SEGV), vr(V['SEGR']))]
            gr = G(L)
            for i2, E in ((0, E0), (1, E1)):
                gr += G(['v_add_u32 %s, %d, %s' % (vr(U3), 8 * i2, vr(SEGV)),
                         'v_sub_u32 %s, s%d, %s' % (vr(E), sR, vr(U3)),
                         'v_add_u32 %s, -1, %s' % (vr(E), vr(E))])
                gr.append([Ins('v_cmp_gt_u32 vcc, s%d, %s' % (sR, vr(U3))),
                           Ins('v_cndmask_b32 %s, -1, %s, vcc' % (vr(E), vr(E))),
                           Ins('v_cndmask_b32 %s, 0, %s, vcc' % (vr(U3), vr(U3)))])
                gr += G(['v_lshl_add_u32 %s, %s, 9, %s' % (vr(V['LB%d' % i2]), vr(U3), vr(V['AG']))])
            if A:
                jl, mh, tq = PT + 4, PT + 5, PT + 6
                L = ['v_and_b32 %s, 15, v0' % vr(jl),
                     'v_bfe_u32 %s, v0, 4, 1' % vr(mh),
                     'v_lshrrev_b32 %s, 2, %s' % (vr(U2), vr(jl)),
                     'v_lshl_add_u32 %s, %s, 4, %s' % (vr(U2), vr(U1), vr(U2)),
                     'v_lshlrev_b32 %s, 7, %s' % (vr(U2), vr(U2)),
                     'v_and_b32 %s, 1, %s' % (vr(U3), vr(jl)),
                     'v_lshl_add_u32 %s, %s, 3, %s' % (vr(U2), vr(U3), vr(U2)),
                     'v_bfe_u32 %s, %s, 1, 1' % (vr(U3), vr(jl)),
                     'v_lshl_add_u32 %s, %s, 1, %s' % (vr(U3), vr(mh), vr(U3)),
                     'v_bfe_u32 %s, %s, 3, 1' % (vr(tq), vr(jl)),
                     'v_lshlrev_b32 %s, 2, %s' % (vr(tq), vr(tq)),
                     'v_xor_b32 %s, %s, %s' % (vr(U3), vr(U3), vr(tq))]
                for tp in range(2):
                    d = V['RF'] + tp
                    L += ['v_xor_b32 %s, %d, %s' % (vr(d), 4 * tp, vr(U3)),
                          'v_lshl_add_u32 %s, %s, 4, %s' % (vr(d), vr(d), vr(U2)),
                          'v_add_u32 %s, %d, %s' % (vr(d + 2), 3 * SLOT, vr(d)),
                          'v_add_u32 %s, %d, %s' % (vr(d + 4), 6 * SLOT, vr(d))]
                gr += G(L)
            gr += G(['s_lshr_b32 s90, s%d, 1' % sW, 's_lshl_b32 s91, s%d, 1' % sR, 's_add_u32 s90, s90, s91',
                     's_mul_i32 s90, s90, %d' % (88 * 4096), 's_and_b32 s91, s%d, 1' % sW, 's_lshl_b32 s91, s91, 11',
                     's_add_u32 s90, s90, s91', 's_add_u32 s90, s90, 0x%x' % H_OFF, 's_lshl_b32 s91, s%d, 14' % sA,
                     's_add_u32 s%d, s90, s91' % sHF, 's_lshl_b32 s91, s%d, 12' % sG, 's_add_u32 s%d, s90, s91' % sHS,
                     's_add_u32 s%d, s%d, 1' % (sTAG, sE), 's_xor_b32 s%d, s%d, 0x5bd1e995' % (sTAG2, sTAG)])
            return gr

        def params(g):
            SEGV, E = PT + 8, (PT + 9, PT + 10)
            P0, P1, P2, P3, P4, P5, FM = PT, PT + 1, PT + 2, PT + 3, PT + 4, PT + 5, PT + 6
            lr, li, nli, cr, ci = (V[x + str(g)] for x in ('lr', 'li', 'nli', 'cr', 'ci'))

            def cpow(dr, di, m_reg, m_const):
                if m_reg is not None:
                    L = ['v_mul_f32 %s, %s, %s' % (vr(P2), vr(m_reg), vr(P3)), 'v_mul_f32 %s, %s, %s' % (vr(P5), vr(m_reg), vr(P4))]
                else:
                    L = ['v_mul_f32 %s, 0x%08x, %s' % (vr(P2), f2u(float(m_const)), vr(P3)),
                         'v_mul_f32 %s, 0x%08x, %s' % (vr(P5), f2u(float(m_const)), vr(P4))]
                return L + ['v_exp_f32 %s, %s' % (vr(P2), vr(P2)), 'v_fract_f32 %s, %s' % (vr(P5), vr(P5)),
                            'v_cos_f32 %s, %s' % (vr(dr), vr(P5)), 'v_sin_f32 %s, %s' % (vr(di), vr(P5)),
                            'v_mul_f32 %s, %s, %s' % (vr(dr), vr(P2), vr(dr)), 'v_mul_f32 %s, %s, %s' % (vr(di), vr(P2), vr(di))]
            L = ['v_lshlrev_b32 %s, 16, %s' % (vr(P0), vr(lr)),
                 'v_lshlrev_b32 %s, 16, %s' % (vr(P1), vr(li)),
                 'v_lshlrev_b32 %s, 16, %s' % (vr(P2), vr(cr)),
                 'v_mul_f32 %s, %s, %s' % (vr(P2), LOG2E, vr(P2)),
                 'v_exp_f32 %s, %s' % (vr(P2), vr(P2)),
                 'v_cvt_pk_bf16_f32 %s, %s, %s' % (vr(P2), vr(P2), vr(P2)),
                 'v_lshlrev_b32 %s, 16, %s' % (vr(P2), vr(P2)),
                 'v_mul_f32 %s, %s, %s' % (vr(P3), vr(P2), vr(P0)),
                 'v_mul_f32 %s, %s, %s' % (vr(P4), vr(P2), vr(P1)),
                 'v_mul_f32 %s, %s, %s' % (vr(P3), LOG2E, vr(P3)),
                 'v_mul_f32 %s, %s, %s' % (vr(P4), INV2PI, vr(P4))]
            L += cpow(lr, li, None, 1)
            L += ['v_sub_f32 %s, 0, %s' % (vr(nli), vr(li))]
            L += cpow(V['l16r%d' % g], V['l16i%d' % g], None, 16)
            L += ['v_cvt_f32_u32 %s, %s' % (vr(FM), vr(SEGV)), 'v_mul_f32 %s, 0x41800000, %s' % (vr(FM), vr(FM))]
            L += cpow(V['lsr%d' % g], V['lsi%d' % g], FM, None)
            gr = G(L)
            for k in range(2):
                pr, pi = V['p%dr%d' % (k + 1, g)], V['p%di%d' % (k + 1, g)]
                gr += G(['v_cvt_f32_i32 %s, %s' % (vr(FM), vr(E[k])), 'v_mul_f32 %s, 0x43000000, %s' % (vr(FM), vr(FM))] + cpow(pr, pi, FM, None))
                gr.append([Ins('v_cmp_le_i32 vcc, 0, %s' % vr(E[k])),
                           Ins('v_cndmask_b32 %s, 0, %s, vcc' % (vr(pr), vr(pr))),
                           Ins('v_cndmask_b32 %s, 0, %s, vcc' % (vr(pi), vr(pi)))])
            gr += G(['v_add_f32 %s, -1.0, %s' % (vr(P2), vr(lr)),
                     'v_mul_f32 %s, %s, %s' % (vr(P3), vr(P0), vr(P0)),
                     'v_fmac_f32 %s, %s, %s' % (vr(P3), vr(P1), vr(P1)),
                     'v_rcp_f32 %s, %s' % (vr(P3), vr(P3)),
                     'v_mul_f32 %s, %s, %s' % (vr(P4), vr(P2), vr(P0)),
                     'v_fmac_f32 %s, %s, %s' % (vr(P4), vr(li), vr(P1)),
                     'v_mul_f32 %s, %s, %s' % (vr(P5), vr(li), vr(P0)),
                     'v_fma_f32 %s, -%s, %s, %s' % (vr(P5), vr(P2), vr(P1), vr(P5)),
                     'v_add_f32 %s, %s, %s' % (vr(P3), vr(P3), vr(P3)),
                     'v_mul_f32 %s, %s, %s' % (vr(cr), vr(P4), vr(P3)),
                     'v_mul_f32 %s, %s, %s' % (vr(ci), vr(P5), vr(P3))])
            return gr

        def ssm_ops(i):
            kind, g, st = seq[i]
            slot = slot_of[i]
            acc = ACC[g] + (16 if st % 2 else 0)
            kh = st // 2
            gate = (g == 0 and st % 2 == 0)
            base = slot * SLOT
            rsb = V['RS']
            pre = []
            if base + SLOT > 65536:
                rsb = RING_ADDR
                pre = [Ins('v_add_u32 %s, %d, %s' % (vr(RING_ADDR + k), base, vr(V['RS'] + k))) for k in range(4)]
                base = 0
            ops = []
            for sp in range(20):
                bp, ab = sp >> 1, sp & 1
                kb, u = bp >> 1, bp & 1
                s = 20 * kh + sp
                q = RING + 4 * (sp % 4)
                rd = Ins('ds_read_b128 %s, %s offset:%d' % (vr(q, 4), vr(rsb + 2 * u + ab), base + kb * 4096))
                first = (kh == 0 and sp == 0)
                m = Ins('v_mfma_f32_32x32x16_bf16 %s, %s, %s, %s' % (vr(acc, 16), XF(s), vr(q, 4), '0' if first else vr(acc, 16)))
                gm = None
                if gate:
                    gm = Ins('v_mfma_f32_32x32x16_bf16 %s, %s, %s, %s' % (vr(GACC, 16), ar(A_GW + 4 * sp, 4), XF(s), '0' if s == 0 else vr(GACC, 16)))
                ops.append((rd, m, gm))
            return pre, ops

        def ssm_stage(i, hooks=None):
            pre, ops = ssm_ops(i)
            out = list(pre)
            dist = 3
            for sp in range(dist):
                out.append(ops[sp][0])
            for sp in range(20):
                rd, m, gm = ops[sp]
                out.append(m)
                if sp + dist < 20:
                    out.append(ops[sp + dist][0])
                if hooks and sp in hooks:
                    for grp in hooks[sp]:
                        out += grp
                if gm is not None:
                    out.append(gm)
            return out

        def kstream(g, hooks, dist=3):
            ops = []
            for s_ in range(40):
                kap, kh = s_ >> 2, s_ // 20
                sp = s_ - 20 * kh
                bp, ab = sp >> 1, sp & 1
                kb, u = bp >> 1, bp & 1
                rds, ms = [], []
                for m in range(2):
                    slot = slot_of[4 * g + 2 * kh + m]
                    if slot >= 3:
                        reg, base = RING_ADDR, (slot - 3) * SLOT
                    else:
                        reg, base = V['RS'], slot * SLOT
                    q = RING + 4 * ((2 * s_ + m) % 8)
                    acc = ACC[g] + 16 * m
                    rds.append(Ins('ds_read_b128 %s, %s offset:%d' % (vr(q, 4), vr(reg + 2 * u + ab), base + kb * 4096)))
                    ms.append(Ins('v_mfma_f32_32x32x16_bf16 %s, %s, %s, %s' % (vr(acc, 16), XF(s_), vr(q, 4), '0' if s_ == 0 else vr(acc, 16))))
                if g == 0:
                    ms.append(Ins('v_mfma_f32_32x32x16_bf16 %s, %s, %s, %s' % (vr(GACC, 16), ar(A_GW + 4 * (s_ % 20), 4), XF(s_), '0' if s_ == 0 else vr(GACC, 16))))
                ops.append((rds, ms))
            out = []
            for s_ in range(dist):
                out += hooks.get(('pre', s_), [])
                out += ops[s_][0]
            for s_ in range(40):
                rds, ms = ops[s_]
                out.append(ms[0])
                for grp in hooks.get(s_, []):
                    out += grp
                out.append(ms[1])
                if s_ + dist < 40:
                    out += hooks.get(('pre', s_ + dist), [])
                    out += ops[s_ + dist][0]
                out += ms[2:]
            return out

        def stage_open(covers):
            for c in covers:
                a.put(WaitVM(dma_last[c]))
            a.waitcnt(lg=0)
            a('s_barrier')

        item_rd = []

        def w2_item(T):
            gr = []
            for e in range(2):
                q = T + 4 * e
                g0 = [Ins('ds_read_b64_tr_b16 %s, %s offset:%d' % (vr(q, 2), vr(V['W2R']), 4096 * e))]
                if e == 0:
                    g0 = [WaitVM(w2_dma[1])] + g0
                gr.append(g0)
                rd = Ins('ds_read_b64_tr_b16 %s, %s offset:%d' % (vr(q + 2, 2), vr(V['W2R']), 4096 * e + 256))
                gr.append([rd])
            st = [[Ins('buffer_store_dwordx4 %s, v1, %s, s26 offen sc1' % (vr(T, 4), srd(R_WS)))],
                  [Ins('buffer_store_dwordx4 %s, v1, %s, s26 offen offset:1024 sc1' % (vr(T + 4, 4), srd(R_WS)))]]
            return gr, st

        def c_dmas():
            gr = []
            for e in range(2):
                ld = Ins('buffer_load_dwordx4 %s, %s, s24 offen lds' % (vr(CD + e), srd(R_CI)))
                gr.append([Ins('s_add_u32 m0, s%d, %d' % (sW10, 3 * SLOT + 12288 + 4096 * e)), Ins('s_nop 0'), ld])
                c_dma.append(ld)
            return gr

        def c_item(T):
            gr = [[WaitVM(c_dma[1]), Ins('ds_read_b128 %s, %s' % (vr(T, 4), vr(CR)))],
                  [Ins('ds_read_b128 %s, %s' % (vr(T + 4, 4), vr(CR + 1)))]]
            last = Ins('buffer_store_dwordx4 %s, v2, %s, s96 offen sc1' % (vr(T + 4, 4), srd(R_WS)))
            st = [[Ins('buffer_store_dwordx4 %s, v2, %s, s25 offen sc1' % (vr(T, 4), srd(R_WS)))],
                  [Ins('s_add_u32 s96, s25, 5120'), last]]
            return gr, st, last

        def w1_prefetch(T):
            t0, t1, t2 = T, T + 1, T + 2
            return G(['s_lshr_b32 s90, s2, 3', 's_lshl_b32 s90, s90, 2', 's_add_u32 s90, s90, s%d' % sW, 's_mul_i32 s90, s90, 60',
                      'v_min_u32 %s, 59, v0' % vr(t0), 'v_add_u32 %s, s90, %s' % (vr(t0), vr(t0)),
                      'v_mul_u32_u24 %s, 43691, %s' % (vr(t1), vr(t0)), 'v_lshrrev_b32 %s, 19, %s' % (vr(t1), vr(t1)),
                      'v_mul_u32_u24 %s, 12, %s' % (vr(t2), vr(t1)), 'v_sub_u32 %s, %s, %s' % (vr(t0), vr(t0), vr(t2)),
                      'v_mul_u32_u24 %s, 3072, %s' % (vr(t1), vr(t1)), 'v_lshl_add_u32 %s, %s, 7, %s' % (vr(t0), vr(t0), vr(t1)),
                      's_mul_i32 s90, s%d, 1536' % sHALF,
                      'buffer_load_dword %s, %s, %s, s90 offen' % (vr(T + 3), vr(t0), srd(R_W1))])

        def w_flag(T, st):
            return [[WaitVM(st), Ins('v_mov_b32 %s, s%d' % (vr(T), sTAG))],
                    [Ins('v_mov_b32 %s, s%d' % (vr(T + 1), sTAG2))],
                    [Ins('v_mov_b32 %s, 0' % vr(T + 2))],
                    [Ins('s_lshl_b32 s90, s%d, 3' % sGWI), Ins('s_add_u32 s90, s90, 0x%x' % WF_OFF),
                     Ins('buffer_store_dwordx2 %s, %s, %s, s90 offen sc1' % (vr(T, 2), vr(T + 2), srd(R_WS)))]]

        def masks(T):
            g_ = [[Ins('v_lshrrev_b32 %s, 5, v0' % vr(T))], [Ins('s_lshl_b32 s95, s%d, 1' % sW), Ins('v_add_u32 %s, s95, %s' % (vr(T), vr(T)))]]
            for s_ in range(1, 8):
                g_.append([Ins('v_cmp_eq_u32 s[%d:%d], %d, %s' % (S_MASK + 2 * (s_ - 1), S_MASK + 2 * (s_ - 1) + 1, s_, vr(T)))])
            return g_

        def gate_math(T):
            G, OMG = V['G'], V['OMG']
            t0, t1, t2 = T, T + 1, T + 2
            L = ['v_cvt_pk_bf16_f32 %s, %s, %s' % (vr(t0), vr(GACC), vr(GACC)),
                 'v_lshlrev_b32 %s, 16, %s' % (vr(t0), vr(t0)),
                 'v_mul_f32 %s, 0x%08x, %s' % (vr(t0), f2u(-math.log2(math.e)), vr(t0)),
                 'v_exp_f32 %s, %s' % (vr(t0), vr(t0)),
                 'v_and_b32 %s, 31, v0' % vr(t1),
                 'v_add_f32 %s, 1.0, %s' % (vr(t0), vr(t0)),
                 'v_rcp_f32 %s, %s' % (vr(t0), vr(t0)),
                 'v_bfe_u32 %s, %s, 2, 1' % (vr(t2), vr(t1)),
                 'v_cvt_pk_bf16_f32 %s, %s, %s' % (vr(t0), vr(t0), vr(t0)),
                 'v_lshlrev_b32 %s, 16, %s' % (vr(G), vr(t0)),
                 'v_sub_f32 %s, 1.0, %s' % (vr(t0), vr(G)),
                 'v_cvt_pk_bf16_f32 %s, %s, %s' % (vr(t0), vr(t0), vr(t0)),
                 'v_lshlrev_b32 %s, 16, %s' % (vr(OMG), vr(t0)),
                 'v_lshlrev_b32 %s, 4, %s' % (vr(t2), vr(t2)),
                 'v_and_b32 %s, 3, %s' % (vr(t0), vr(t1)),
                 'v_add_u32 %s, %s, %s' % (vr(t0), vr(t0), vr(t2)),
                 'v_lshrrev_b32 %s, 3, %s' % (vr(t2), vr(t1)),
                 'v_lshl_add_u32 %s, %s, 2, %s' % (vr(t0), vr(t2), vr(t0)),
                 's_lshl_b32 s95, s%d, 5' % sW,
                 'v_add_u32 %s, s95, %s' % (vr(t0), vr(t0)),
                 'v_lshlrev_b32 %s, 2, %s' % (vr(t0), vr(t0)),
                 'v_add_u32 %s, %d, %s' % (vr(t0), L_GATE, vr(t0)),
                 'ds_write_b32 %s, %s' % (vr(t0), vr(G))]
            return [[Ins(x)] for x in L]

        def pass1(g):
            it = []
            RE, IM = ACC[g], ACC[g] + 16
            lr, li, nli = V['lr%d' % g], V['li%d' % g], V['nli%d' % g]
            sa = [SC[g] + 0, SC[g] + 1]
            sb = [SC[g] + 2, SC[g] + 3]
            cur = [RE, IM]
            for t in range(1, 16):
                d = sa if t % 2 else sb
                it.append(Ins('v_fma_f32 %s, %s, %s, %s' % (vr(d[0]), vr(lr), vr(cur[0]), vr(RE + t))))
                it.append(Ins('v_fma_f32 %s, %s, %s, %s' % (vr(d[1]), vr(lr), vr(cur[1]), vr(IM + t))))
                it.append(Ins('v_fmac_f32 %s, %s, %s' % (vr(d[0]), vr(nli), vr(cur[1]))))
                it.append(Ins('v_fmac_f32 %s, %s, %s' % (vr(d[1]), vr(li), vr(cur[0]))))
                cur = d
            it.append(Ins('ds_write_b64 %s, %s offset:%d' % (vr(V['SEGW']), vr(cur[0], 2), L_SEG - MISC + 2560 * g)))
            return [[x] for x in it]

        def prefix(g, buf):
            it = []
            l16r, l16i = V['l16r%d' % g], V['l16i%d' % g]
            Pr, Pi = SC[g] + 0, SC[g] + 1
            for jj in range(4):
                it.append(Ins('ds_read_b128 %s, %s offset:%d' % (vr(buf + 4 * jj, 4), vr(V['SEGR']), L_SEG - MISC + 2560 * g + 16 * jj)))
            it.append(Ins('v_mov_b32 %s, 0' % vr(Pr)))
            it.append(Ins('v_mov_b32 %s, 0' % vr(Pi)))
            sel = []
            for s in range(1, 8):
                m = S_MASK + 2 * (s - 1)
                pr, pi_, cr_, ci_ = buf + 2 * (s - 1), buf + 2 * (s - 1) + 1, buf + 2 * s, buf + 2 * s + 1
                it.append(Ins('v_fmac_f32 %s, %s, %s' % (vr(cr_), vr(l16r), vr(pr))))
                it.append(Ins('v_fmac_f32 %s, %s, %s' % (vr(ci_), vr(l16r), vr(pi_))))
                it.append(Ins('v_fma_f32 %s, -%s, %s, %s' % (vr(cr_), vr(l16i), vr(pi_), vr(cr_))))
                it.append(Ins('v_fmac_f32 %s, %s, %s' % (vr(ci_), vr(l16i), vr(pr))))
                sel.append(Ins('v_cndmask_b32 %s, %s, %s, s[%d:%d]' % (vr(Pr), vr(Pr), vr(pr), m, m + 1)))
                sel.append(Ins('v_cndmask_b32 %s, %s, %s, s[%d:%d]' % (vr(Pi), vr(Pi), vr(pi_), m, m + 1)))
            pb = 52 if A else 88
            it.append(Ins('v_mov_b32 %s, %s' % (vr(pb), vr(buf + 14))))
            it.append(Ins('v_mov_b32 %s, s%d' % (vr(pb + 1), sTAG)))
            it.append(Ins('v_mov_b32 %s, %s' % (vr(pb + 2), vr(buf + 15))))
            it.append(Ins('v_mov_b32 %s, s%d' % (vr(pb + 3), sTAG)))
            it.append(Ins('s_add_u32 s97, s%d, %d' % (sG, g)))
            it.append(Ins('s_lshl_b32 s97, s97, 4'))
            it.append(Ins('s_add_u32 s97, s97, s%d' % sR))
            it.append(Ins('s_lshl_b32 s97, s97, 9'))
            it.append(Ins('s_add_u32 s97, s97, 0x%x' % AGG_OFF))
            it.append(Ins('buffer_store_dwordx4 %s, %s, %s, s97 offen sc1' % (vr(pb, 4), vr(V['AG']), srd(R_WS))))
            return [[x] for x in it + sel]

        def coef(g, t0):
            it = []
            RE, IM = ACC[g], ACC[g] + 16
            cr, ci = V['cr%d' % g], V['ci%d' % g]
            for t in range(16):
                tt = t0 + (t & 1)
                it.append(Ins('v_mul_f32 %s, %s, %s' % (vr(tt), vr(ci), vr(IM + t))))
                it.append(Ins('v_mul_f32 %s, %s, %s' % (vr(IM + t), vr(cr), vr(IM + t))))
                it.append(Ins('v_fmac_f32 %s, %s, %s' % (vr(IM + t), vr(ci), vr(RE + t))))
                it.append(Ins('v_fma_f32 %s, %s, %s, -%s' % (vr(RE + t), vr(cr), vr(RE + t), vr(tt))))
            return [[x] for x in it]

        def lb_issue(g, buf):
            return [[Ins('s_add_u32 s95, s%d, %d' % (sG, g)), Ins('s_lshl_b32 s95, s95, 13'), Ins('s_add_u32 s95, s95, 0x%x' % AGG_OFF)],
                    [Ins('buffer_load_dwordx4 %s, %s, %s, s95 offen sc1' % (vr(buf, 4), vr(V['LB0']), srd(R_WS)))],
                    [Ins('buffer_load_dwordx4 %s, %s, %s, s95 offen sc1' % (vr(buf + 4, 4), vr(V['LB1']), srd(R_WS)))]]

        def lb_check(buf, t):
            a('v_xor_b32 %s, s%d, %s' % (vr(t), sTAG, vr(buf + 1)))
            a('v_xor_b32 %s, s%d, %s' % (vr(t + 1), sTAG, vr(buf + 3)))
            a('v_xor_b32 %s, s%d, %s' % (vr(t + 2), sTAG, vr(buf + 5)))
            a('v_xor_b32 %s, s%d, %s' % (vr(t + 3), sTAG, vr(buf + 7)))
            a('v_or3_b32 %s, %s, %s, %s' % (vr(t), vr(t), vr(t + 1), vr(t + 2)))
            a('v_or_b32 %s, %s, %s' % (vr(t), vr(t), vr(t + 3)))
            a('v_cmp_ne_u32 vcc, 0, %s' % vr(t))
            a('s_cmp_eq_u64 vcc, 0')

        def lookback_wait(g, buf, lbl):
            t = buf + 8
            lb_check(buf, t)
            a.settle()
            a('s_cbranch_scc1 %s_ok' % lbl)
            snap = a.snapshot()
            a('s_mov_b32 s91, 0')
            a.drain()
            a.label(lbl)
            a('buffer_load_dwordx4 %s, %s, %s, s95 offen sc1' % (vr(buf, 4), vr(V['LB0']), srd(R_WS)))
            a('buffer_load_dwordx4 %s, %s, %s, s95 offen sc1' % (vr(buf + 4, 4), vr(V['LB1']), srd(R_WS)))
            a('s_add_u32 s91, s91, 1')
            lb_check(buf, t)
            a('s_cbranch_scc1 %s_ok' % lbl)
            a('s_cmp_lt_u32 s91, 0x%x' % o.get('spin', 200000))
            a('s_cbranch_scc1 %s' % lbl)
            a.settle()
            a.label(lbl + '_ok')
            a.restore(snap)
            p1r, p1i, p2r, p2i = (V['p%s%d' % (x, g)] for x in ('1r', '1i', '2r', '2i'))
            hr, hi = buf + 8, buf + 9
            a('v_mul_f32 %s, %s, %s' % (vr(hr), vr(p1r), vr(buf)))
            a('v_mul_f32 %s, %s, %s' % (vr(hi), vr(p1r), vr(buf + 2)))
            a('v_fma_f32 %s, -%s, %s, %s' % (vr(hr), vr(p1i), vr(buf + 2), vr(hr)))
            a('v_fmac_f32 %s, %s, %s' % (vr(hi), vr(p1i), vr(buf)))
            a('v_fmac_f32 %s, %s, %s' % (vr(hr), vr(p2r), vr(buf + 4)))
            a('v_fmac_f32 %s, %s, %s' % (vr(hi), vr(p2r), vr(buf + 6)))
            a('v_fma_f32 %s, -%s, %s, %s' % (vr(hr), vr(p2i), vr(buf + 6), vr(hr)))
            a('v_fmac_f32 %s, %s, %s' % (vr(hi), vr(p2i), vr(buf + 4)))
            a('ds_write_b64 %s, %s offset:%d' % (vr(V['SEGW']), vr(hr, 2), L_LB - MISC + 2560 * g))
            a.waitcnt(lg=0)
            a('s_barrier')

        def entry_state(g, buf):
            it = []
            for jj in range(4):
                it.append('ds_read_b128 %s, %s offset:%d' % (vr(buf + 4 * jj, 4), vr(V['SEGR']), L_LB - MISC + 2560 * g + 16 * jj))
            for jj in (1, 3, 5, 7):
                it.append('v_add_f32 %s, %s, %s' % (vr(buf + 2 * jj - 2), vr(buf + 2 * jj - 2), vr(buf + 2 * jj)))
                it.append('v_add_f32 %s, %s, %s' % (vr(buf + 2 * jj - 1), vr(buf + 2 * jj - 1), vr(buf + 2 * jj + 1)))
            for (x, y) in ((0, 4), (8, 12), (0, 8)):
                it.append('v_add_f32 %s, %s, %s' % (vr(buf + x), vr(buf + x), vr(buf + y)))
                it.append('v_add_f32 %s, %s, %s' % (vr(buf + x + 1), vr(buf + x + 1), vr(buf + y + 1)))
            Pr, Pi = SC[g] + 0, SC[g] + 1
            lsr, lsi, cr, ci = (V[x + str(g)] for x in ('lsr', 'lsi', 'cr', 'ci'))
            it += ['v_fmac_f32 %s, %s, %s' % (vr(Pr), vr(lsr), vr(buf)),
                   'v_fmac_f32 %s, %s, %s' % (vr(Pi), vr(lsr), vr(buf + 1)),
                   'v_fma_f32 %s, -%s, %s, %s' % (vr(Pr), vr(lsi), vr(buf + 1), vr(Pr)),
                   'v_fmac_f32 %s, %s, %s' % (vr(Pi), vr(lsi), vr(buf)),
                   'v_mul_f32 %s, %s, %s' % (vr(buf + 2), vr(cr), vr(Pr)),
                   'v_mul_f32 %s, %s, %s' % (vr(buf + 3), vr(cr), vr(Pi)),
                   'v_fma_f32 %s, -%s, %s, %s' % (vr(buf + 2), vr(ci), vr(Pi), vr(buf + 2)),
                   'v_fmac_f32 %s, %s, %s' % (vr(buf + 3), vr(ci), vr(Pr))]
            return [[Ins(x)] for x in it]

        def pass2(g, buf):
            it = []
            RE, IM = ACC[g], ACC[g] + 16
            lr, li, nli = V['lr%d' % g], V['li%d' % g], V['nli%d' % g]
            pr, pi_ = buf + 2, buf + 3
            for t in range(16):
                it.append(Ins('v_fmac_f32 %s, %s, %s' % (vr(RE + t), vr(lr), vr(pr))))
                it.append(Ins('v_fmac_f32 %s, %s, %s' % (vr(IM + t), vr(lr), vr(pi_))))
                it.append(Ins('v_fmac_f32 %s, %s, %s' % (vr(RE + t), vr(nli), vr(pi_))))
                it.append(Ins('v_fmac_f32 %s, %s, %s' % (vr(IM + t), vr(li), vr(pr))))
                pr, pi_ = RE + t, IM + t
            for e in range(8):
                it.append(Ins('v_cvt_pk_bf16_f32 %s, %s, %s' % (vr(RE + e), vr(RE + 2 * e), vr(RE + 2 * e + 1))))
            for e in range(8):
                it.append(Ins('v_cvt_pk_bf16_f32 %s, -%s, -%s' % (vr(RE + 8 + e), vr(IM + 2 * e), vr(IM + 2 * e + 1))))
            return [[x] for x in it]

        def build_sel(B, T):
            n_, e_, t_, val = T, T + 1, T + 2, T + 3
            g = G(['v_and_b32 %s, 31, v0' % vr(n_),
                   'v_lshrrev_b32 %s, 3, %s' % (vr(t_), vr(n_)),
                   'v_and_b32 %s, 3, %s' % (vr(e_), vr(n_)),
                   'v_lshl_add_u32 %s, %s, 2, %s' % (vr(e_), vr(t_), vr(e_)),
                   'v_bfe_u32 %s, %s, 2, 1' % (vr(t_), vr(n_)),
                   'v_lshrrev_b32 %s, 5, v0' % vr(val)])
            g.append([Ins('v_cmp_eq_u32 vcc, %s, %s' % (vr(t_), vr(val))), Ins('v_cndmask_b32 %s, 31, %s, vcc' % (vr(e_), vr(e_)))])
            g += G(['v_lshrrev_b32 %s, 16, %s' % (vr(val), vr(V['G'])),
                    'v_and_b32 %s, 1, %s' % (vr(t_), vr(e_)),
                    'v_lshlrev_b32 %s, 4, %s' % (vr(t_), vr(t_)),
                    'v_lshlrev_b32 %s, %s, %s' % (vr(val), vr(t_), vr(val)),
                    'v_lshrrev_b32 %s, 1, %s' % (vr(e_), vr(e_))])
            for k in range(8):
                g.append([Ins('v_cmp_eq_u32 vcc, %d, %s' % (k, vr(e_))),
                          Ins('v_cndmask_b32 %s, 0, %s, vcc' % (vr(B + k), vr(val)))])
            return g

        def transpose_store(g, B, D0, D1):
            RE = ACC[g]
            a('v_mfma_f32_32x32x16_bf16 %s, %s, %s, 0' % (vr(D0, 16), vr(RE, 4), vr(B, 4)))
            a('v_mfma_f32_32x32x16_bf16 %s, %s, %s, 0' % (vr(D1, 16), vr(RE + 8, 4), vr(B, 4)))
            a('v_mfma_f32_32x32x16_bf16 %s, %s, %s, %s' % (vr(D0, 16), vr(RE + 4, 4), vr(B + 4, 4), vr(D0, 16)))
            a('v_mfma_f32_32x32x16_bf16 %s, %s, %s, %s' % (vr(D1, 16), vr(RE + 12, 4), vr(B + 4, 4), vr(D1, 16)))
            a('s_add_u32 s94, s%d, %d' % (sHS, (48 + g) * 4096))
            a('s_add_u32 s95, s%d, %d' % (sHS, (68 + g) * 4096))
            for D, so in ((D0, 94), (D1, 95)):
                for e in range(8):
                    a('v_cvt_pk_bf16_f32 %s, %s, %s' % (vr(D + e), vr(D + 2 * e), vr(D + 2 * e + 1)))
                a('buffer_store_dwordx4 %s, %s, %s, s%d offen %s' % (vr(D, 4), vr(V['ST']), srd(R_WS), so, HST))
                last = a('buffer_store_dwordx4 %s, %s, %s, s%d offen offset:512 %s' % (vr(D + 4, 4), vr(V['ST']), srd(R_WS), so, HST))
            return last

        def transpose_groups(g, B, D0, D1, s0=94, s1=97):
            RE = ACC[g]
            gr = [[Ins('v_mfma_f32_32x32x16_bf16 %s, %s, %s, 0' % (vr(D0, 16), vr(RE, 4), vr(B, 4)))],
                  [Ins('v_mfma_f32_32x32x16_bf16 %s, %s, %s, 0' % (vr(D1, 16), vr(RE + 8, 4), vr(B, 4)))],
                  [Ins('v_mfma_f32_32x32x16_bf16 %s, %s, %s, %s' % (vr(D0, 16), vr(RE + 4, 4), vr(B + 4, 4), vr(D0, 16)))],
                  [Ins('v_mfma_f32_32x32x16_bf16 %s, %s, %s, %s' % (vr(D1, 16), vr(RE + 12, 4), vr(B + 4, 4), vr(D1, 16)))],
                  [], [], []]
            for D, off in ((D0, 48), (D1, 68)):
                for e in range(8):
                    gr.append([Ins('v_cvt_pk_bf16_f32 %s, %s, %s' % (vr(D + e), vr(D + 2 * e), vr(D + 2 * e + 1)))])
                gr.append([Ins('s_add_u32 s97, s%d, %d' % (sHS, (off + g) * 4096)),
                           Ins('buffer_store_dwordx4 %s, %s, %s, s97 offen %s' % (vr(D, 4), vr(V['ST']), srd(R_WS), HST))])
                gr.append([Ins('s_add_u32 s97, s%d, %d' % (sHS, (off + g) * 4096)),
                           Ins('buffer_store_dwordx4 %s, %s, %s, s97 offen offset:512 %s' % (vr(D + 4, 4), vr(V['ST']), srd(R_WS), HST))])
            return gr

        NQ = 8

        def ffn_ops():
            ops = []
            for n in range(160):
                tile, s = n // 40, n % 40
                blk, tp = tile >> 1, tile & 1
                acc = FA[tile & 1]
                st, sp = s // 10, s % 10
                slot = slot_of[4 + 4 * blk + st]
                reg = slot // 3
                off = (slot % 3) * SLOT + (32 * (sp >> 1) + 8 * (sp & 1)) * 128
                q = RING + 4 * (n % NQ)
                base = V['RF'] + tp + 2 * reg
                r0 = Ins('ds_read_b64_tr_b16 %s, %s offset:%d' % (vr(q, 2), vr(base), off))
                r1 = Ins('ds_read_b64_tr_b16 %s, %s offset:%d' % (vr(q + 2, 2), vr(base), off + 512))
                m = Ins('v_mfma_f32_32x32x16_bf16 %s, %s, %s, %s' % (vr(acc, 16), vr(q, 4), XF(s), '0' if s == 0 else vr(acc, 16)))
                ops.append((r0, r1, m))
            return ops

        def ffn_main(ops, n0, n1, dist, rd_done, rd_limit):
            out = []
            for n in range(n0, n1):
                if n == n0:
                    while rd_done < min(n + dist, rd_limit):
                        out += [ops[rd_done][0], ops[rd_done][1]]
                        rd_done += 1
                out.append(ops[n][2])
                while rd_done < min(n + 1 + dist, rd_limit):
                    out += [ops[rd_done][0], ops[rd_done][1]]
                    rd_done += 1
            return out, rd_done

        def ffn_pack(tile):
            T = FA[tile & 1]
            it = []
            for e in range(16):
                it.append(Ins('v_mul_f32 %s, %s, %s' % (vr(T + e), vr(V['OMG']), vr(T + e))))
            for e in range(8):
                it.append(Ins('v_cvt_pk_bf16_f32 %s, %s, %s' % (vr(T + e), vr(T + 2 * e), vr(T + 2 * e + 1))))
            for e in range(8):
                it.append(Ins('v_pk_max_i16 %s, %s, 0' % (vr(T + e), vr(T + e))))
            return [[x] for x in it]

        last_store = {}

        def ffn_store(tile):
            r = ffn_store0(tile)
            last_store[tile] = r[-1][-1]
            return r

        def ffn_store0(tile):
            T = FA[tile & 1]
            return [[Ins('s_add_u32 s94, s%d, %d' % (sHF, tile * 4096))],
                    [Ins('buffer_store_dwordx4 %s, %s, %s, s94 offen %s' % (vr(T, 4), vr(V['ST']), srd(R_WS), HST))],
                    [Ins('buffer_store_dwordx4 %s, %s, %s, s94 offen offset:512 %s' % (vr(T + 4, 4), vr(V['ST']), srd(R_WS), HST))]]

        def wf_issue(T):
            t0, t1 = T + 2, T + 3
            gr = G(['s_mul_i32 s90, s%d, 120' % sC2, 's_mul_i32 s91, s%d, 30' % sW, 's_add_u32 s90, s90, s91',
                    'v_and_b32 %s, 31, v0' % vr(t1), 'v_min_u32 %s, 29, %s' % (vr(t0), vr(t1)),
                    'v_add_u32 %s, s90, %s' % (vr(t0), vr(t0)),
                    's_lshr_b32 s90, s%d, 1' % sW, 's_mul_i32 s90, s90, 400', 's_mul_i32 s91, s%d, 50' % sC2,
                    's_add_u32 s90, s90, s91', 's_and_b32 s91, s%d, 1' % sW, 's_mul_i32 s91, s91, 25', 's_add_u32 s90, s90, s91',
                    'v_min_u32 %s, 24, %s' % (vr(t1), vr(t1)), 'v_add_u32 %s, s90, %s' % (vr(t1), vr(t1))])
            gr.append([Ins('v_cmp_gt_u32 vcc, 32, v0'), Ins('v_cndmask_b32 %s, %s, %s, vcc' % (vr(t0), vr(t1), vr(t0)))])
            gr += G(['v_lshlrev_b32 %s, 3, %s' % (vr(t0), vr(t0)), 'v_add_u32 %s, 0x%x, %s' % (vr(t0), WF_OFF, vr(t0)),
                     'buffer_load_dwordx2 %s, %s, %s, 0 offen sc1' % (vr(T, 2), vr(t0), srd(R_WS))])
            return gr

        def wt_prefetch(T):
            j, t, ad = T, T + 1, T + 2
            gr = G(['s_and_b32 s90, s%d, 7' % sR2, 's_mul_i32 s90, s90, 110',
                    's_mul_i32 s91, s%d, 88' % sC2, 's_mul_i32 s95, s%d, 12' % sW, 's_add_u32 s95, s95, s91', 's_mul_i32 s95, s95, 5120',
                    's_mul_i32 s96, s%d, 10' % sW, 's_add_u32 s96, s96, s91', 's_add_u32 s96, s96, 48', 's_mul_i32 s96, s96, 5120',
                    's_sub_u32 s96, s96, %d' % (480 * 128), 's_add_u32 s95, s95, 0x%x' % WT_OFF, 's_add_u32 s96, s96, 0x%x' % WT_OFF])
            for e in range(2):
                gr += G(['v_min_u32 %s, %d, v0' % (vr(j), 63 if e == 0 else 45), 'v_add_u32 %s, s90, %s' % (vr(j), vr(j))])
                if e:
                    gr += G(['v_add_u32 %s, 64, %s' % (vr(j), vr(j))])
                gr += G(['v_mov_b32 %s, s95' % vr(t), 'v_mov_b32 %s, s96' % vr(ad)])
                gr.append([Ins('v_cmp_gt_u32 vcc, 480, %s' % vr(j)), Ins('v_cndmask_b32 %s, %s, %s, vcc' % (vr(ad), vr(ad), vr(t)))])
                gr += G(['v_lshl_add_u32 %s, %s, 7, %s' % (vr(ad), vr(j), vr(ad)),
                         'buffer_load_dword %s, %s, %s, 0 offen sc1' % (vr(T + 3 + e), vr(ad), srd(R_WS))])
            return gr

        def wf_check(T, lbl):
            t0 = T + 2

            def chk():
                a('v_xor_b32 %s, s%d, %s' % (vr(T), sTAG, vr(T)))
                a('v_xor_b32 %s, s%d, %s' % (vr(T + 1), sTAG2, vr(T + 1)))
                a('v_or_b32 %s, %s, %s' % (vr(T), vr(T), vr(T + 1)))
                a('v_cmp_ne_u32 vcc, 0, %s' % vr(T))
                a('s_cmp_eq_u64 vcc, 0')
            chk()
            a.settle()
            a('s_cbranch_scc1 %s_ok' % lbl)
            snap = a.snapshot()
            a('s_mov_b32 s91, 0')
            a.drain()
            a.label(lbl)
            a('buffer_load_dwordx2 %s, %s, %s, 0 offen sc1' % (vr(T, 2), vr(t0), srd(R_WS)))
            a('s_add_u32 s91, s91, 1')
            chk()
            a('s_cbranch_scc1 %s_ok' % lbl)
            a('s_cmp_lt_u32 s91, 0x%x' % o.get('spin', 200000))
            a('s_cbranch_scc1 %s' % lbl)
            a.settle()
            a.label(lbl + '_ok')
            a.restore(snap)

        BUD = o.get('bud', 3)
        P2 = self.p2
        for k in range(4):
            a('v_add_u32 %s, %d, %s' % (vr(RING_ADDR + k), 3 * SLOT, vr(V['RS'] + k)))
        put_all(late_scalars())
        put_all(w2_setup_a)
        put_all(item_addrs())
        put_all(c_setup())
        if PF == 2:
            put_all(xdma(1))
            put_all([s_load(0, 0, 1), s_load(0, 1, 1)])
        put_all(xdma(2))
        put_all([s_load(0, 0, 2), s_load(0, 1, 2)])
        x3s3 = xdma(3) + [s_load(0, 0, 3), s_load(0, 1, 3)]
        if o.get('eopen', 0) < 2:
            put_all(x3s3)
        if o.get('w1pf', 0) == 1:
            put_all(w1_prefetch(PT + 5))
        EO = o.get('eopen', 0)
        late_loads = []
        if EO:
            late_loads = w2_setup_b + c_dmas()
        else:
            put_all(w2_setup_b)
            put_all(c_dmas())
        a.put(WaitVM(gw_dma))
        put_all(gate_reads(0))
        put_all(xread(0))
        x4 = xrefill(4)
        if not EO:
            put_all(x4)
        a.put(WaitVM(s_dma[(0, 1, 0)]))
        a('s_barrier')
        self.stamp(3)
        hooks = {}

        def hook(pos, groups):
            hooks.setdefault(pos, [])
            hooks[pos] = hooks[pos] + groups
        cg, c_sts, c_st = c_item(72)
        w2g, w2_sts = w2_item(64)
        g1 = gate_reads(1)
        for kap in range(10):
            s0 = 4 * kap
            if kap + 1 <= 7:
                hook(s0, xread(kap + 1))
            if kap + 5 <= 9:
                for j, grp in enumerate(xrefill(kap + 5)):
                    hook(s0 + 1 + j, [grp])
            if kap + 4 <= 9:
                if kap + 4 == 8:
                    hook(s0 + 1, [[WaitLG(cg[1][0])]])
                hook(s0 + 1, [s_load(0, 0, kap + 4)])
                hook(s0 + 3, [s_load(0, 1, kap + 4)])
        if EO >= 2:
            for j, grp in enumerate(x3s3):
                hook(j // 3, [grp])
            for j, grp in enumerate(x4):
                hook(2 + j // 2, [grp])
        elif EO:
            for j, grp in enumerate(x4):
                hook(j // 2, [grp])
        if EO:
            for j, grp in enumerate(late_loads):
                hook(o.get('itempos', 5) + j, [grp])
        hook(25, xread(8))
        hook(27, xread(9))
        for j in range(20):
            hook(j + 1, [g1[j]])
        for kap in range(1, 10):
            pre = [WaitVM(s_dma[(0, 1, kap)])]
            if kap == 8:
                pre.append(WaitLG(x_rd_last[9]))
            pre.append(Ins('s_barrier'))
            hooks[('pre', 4 * kap)] = pre
        ldA = stage_loads(4) + stage_loads(5)
        ldB = stage_loads(6) + stage_loads(7)
        pos = [21, 22, 23, 24, 25, 26, 26, 27, 28, 28]
        for j, grp in enumerate(ldA):
            hook(pos[j] + 1 if pos[j] == 21 else pos[j], [grp])
        for j, grp in enumerate(w2_sts + c_sts):
            hook(29 + j // 4, [grp])
        for j, grp in enumerate(ldB):
            hook(30 + j, [grp])
        main = kstream(0, hooks)
        s_items = Stream(w2g + cg, start=(o.get('itemrd', 36) if EO else 24), every=2)
        s_lc = Stream(lane_consts() + params(0) + ([] if A else params(1)), start=2, per=3)
        if o.get('p1nobar'):
            main = [x for x in main if not (isinstance(x, Ins) and x.mn == 's_barrier')]
        if o.get('p1nogate'):
            main = [x for x in main if not (isinstance(x, Ins) and x.kind == 'mfma' and ('v[%d:%d]' % (GACC, GACC + 15)) in x.text.split(',')[0])]
        if o.get('p1nolc'):
            weave(a, main, [s_items], budget=3)
            self.stamp((7, 5))
            put_all(s_lc.groups)
        else:
            weave(a, main, [s_items, s_lc], budget=o.get('p1bud', 3))
            self.stamp((7, 5))
        put_all(masks(84))
        if o.get('detail', 0) != 2:
            self.stamp(4)

        gm_all = gate_math(72)
        put_all(gm_all[:3])
        gate_math0 = gm_all[3:]
        if A:
            SC = [48]
            BUF = 56
            SEL = 72
            WFT = 80
            TMP = 84
            a.put(WaitVM(dma_last[5]))
            a('s_barrier')
            self.stamp((3, 5))
            self.stamp((6, 5))
            self.stamp((3, 1), clock=True)
            ops = ffn_ops()
            D = o.get('fdist', 5)
            nof = (lambda x: []) if o.get('bare') else (lambda x: x)

            def split_at_read(items, n):
                k = items.index(ops[n][0])
                return items[:k], items[k:]
            m, rd = ffn_main(ops, 0, 40, D, 0, 80)
            m0, m = split_at_read(m, 20)
            m1, m2 = split_at_read(m, 30)
            p1 = nof(pass1(0))
            s_p1 = Stream(p1, per=4)
            s_flag = Stream(w_flag(76, c_st), start=4, per=5)
            s_gate = Stream(nof(gate_math0), per=3)
            s_ld = Stream(stage_loads(8) + stage_loads(9) + stage_loads(10), start=1, every=2)
            s_tab = Stream(P2.tables(), per=3)
            weave(a, m0, [s_flag, s_ld, s_p1, s_tab], budget=5, flush=False)
            put_all(s_p1.groups[s_p1.i:])
            assert s_flag.done()
            a.put(WaitVM(dma_last[6]))
            if p1:
                a.put(WaitLG(p1[-1][0]))
            a('s_barrier')
            s_pre = Stream(nof(prefix(0, BUF)), per=4)
            for x in (s_ld, s_tab):
                x.start = 0
            weave(a, m1, [s_pre, s_ld, s_tab], budget=4, flush=False)
            a.put(WaitVM(dma_last[7]))
            a('s_barrier')
            weave(a, m2, [s_pre, s_gate, s_ld, s_tab], budget=4, flush=False)
            self.stamp((6, 6))
            s_coef = Stream(nof(coef(0, TMP)), per=3)
            s_wfi = Stream(wf_issue(WFT), per=3)
            m, rd = ffn_main(ops, 40, 50, D, rd, 80)
            weave(a, m, [s_pre, s_gate, s_wfi, s_ld, s_tab], budget=BUD + 1, flush=False)
            assert s_pre.done() and s_gate.done() and s_wfi.done() and s_ld.done() and s_tab.done(), (s_pre.i, s_gate.i, s_wfi.i, s_ld.i, s_tab.i)
            a.put(WaitLG(ops[49][1]))
            a('s_barrier')
            self.stamp((6, 8))
            s_p0 = Stream(nof(ffn_pack(0) + ffn_store(0)), per=3)
            WFP = o.get('wfidx', 62)
            m, rd = ffn_main(ops, 50, WFP, D, rd, 80)
            weave(a, m, [Stream(stage_loads(11), every=2), s_p0, s_coef], budget=BUD, flush=False)
            wf_check(WFT, 'L_wfA')
            if o.get('wtpf'):
                put_all(wt_prefetch(90))
            self.stamp((6, 7))
            wpre = [] if o.get('now') else P2.early_w()
            s_w = Stream(wpre, every=o.get('wevery', 2))
            s_sel = Stream(nof(build_sel(SEL, TMP + 2)), per=3)
            m, rd = ffn_main(ops, WFP, 76, D, rd, 80)
            weave(a, m, [s_p0, s_w, s_coef, s_sel], budget=BUD, flush=False)
            assert s_p0.done()
            self.stamp((6, 9))
            for c in (8, 9, 10, 11):
                a.put(WaitVM(dma_last[c]))
            a('s_barrier')
            self.stamp((6, 10))
            s_w.start = 0
            LBX = o.get('lbx', 100)
            m, rd = ffn_main(ops, 76, LBX, D, rd, 160)
            s_lb = Stream(lb_issue(0, BUF), start=o.get('lbpos', 1), per=3)
            s_pack1 = Stream(nof(ffn_pack(1) + ffn_store(1)), start=6, per=3)
            s_coef.start = s_sel.start = 0
            weave(a, m, [s_lb, s_w, s_coef, s_pack1, s_sel], budget=BUD + 1, flush=False)
            assert s_lb.done() and s_coef.done(), (s_coef.i,)
            self.stamp(5)
            self.stamp((6, 11))
            self.stamp((3, 6))
            self.stamp((3, 2), clock=True)
            lookback_wait(0, BUF, 'L_lbA')
            self.stamp(6)
            s_scan = Stream(entry_state(0, BUF) + pass2(0, BUF) + transpose_groups(0, SEL, ACC[0] + 16, BUF), per=4)
            s_pack1.start = s_w.start = 0
            m, rd = ffn_main(ops, LBX, 120, D, rd, 160)
            weave(a, m, [s_pack1, s_w, s_sel, s_scan], budget=BUD + 1, flush=False)
            assert s_pack1.done() and s_sel.done(), (s_pack1.i, s_sel.i)
            m, rd = ffn_main(ops, 120, 160, D, rd, 160)
            w2nd = P2.early2_w()
            nleft = len(s_w.groups) - s_w.i
            pos = 2 * nleft
            slots = {}
            for j, g in enumerate(w2nd):
                pos = max(pos + o.get('w2step', 1), j + 2)
                slots[pos] = g
                pos += (j % 5 in (1, 3))
            keep = sorted(slots)[:o.get('w2in', 10)]
            late_w2 = [g for p_, g in sorted(slots.items()) if p_ >= 40 or p_ not in keep]
            paced = [slots.get(p_, []) if p_ in keep else [] for p_ in range(40)]
            weave(a, m, [s_scan, s_w, Stream(paced), Stream(ffn_pack(2) + ffn_store(2), start=2, per=3)], budget=BUD + 1)
            put_all(ffn_pack(3) + ffn_store(3))
            final_store = last_store[3]
            tail_loads = late_w2
        else:
            SC = [48, 52]
            BUF = 56
            SEL = 72
            WFT = 80
            TMP = 84
            put_all(pass1(0))
            stage_open([4, 5])
            main = kstream(1, {('pre', 20): [WaitVM(dma_last[7]), Ins('s_barrier')]})
            s_pre, s_wfi = Stream(prefix(0, BUF), per=3), Stream(wf_issue(WFT), start=22, per=3)
            s_flag, s_gate = Stream(w_flag(76, c_st), start=2, per=5), Stream(gate_math0, per=3)
            s_tab = Stream(P2.tables(), per=3)
            s_coef, s_sel = Stream(coef(0, TMP), per=3), Stream(build_sel(SEL, TMP + 2), per=3)
            wpre = P2.early_w()
            cut = [k for k, x in enumerate(main) if isinstance(x, Ins) and x.kind == 'mfma'][43] + 1
            weave(a, main[:cut], [s_flag, s_pre, s_gate, s_wfi, s_tab], budget=4, flush=False)
            assert s_pre.done() and s_wfi.done() and s_tab.done() and s_gate.done() and s_flag.done()
            wf_check(WFT, 'L_wfB')
            if o.get('wtpf'):
                put_all(wt_prefetch(66))
            s_w = Stream(wpre, every=2)
            rest = main[cut:]
            mf = [k for k, x in enumerate(rest) if isinstance(x, Ins) and x.kind == 'mfma']
            cut2 = mf[o.get('lbxb', 16) - 1] + 1
            s_lb = Stream(lb_issue(0, BUF), per=3)
            weave(a, rest[:cut2], [s_lb, s_coef, s_w, s_sel], budget=4, flush=False)
            assert s_lb.done()
            put_all(s_coef.groups[s_coef.i:])
            s_coef.i = len(s_coef.groups)
            self.stamp(5)
            lookback_wait(0, BUF, 'L_lbB0')
            self.stamp(6)
            s_scan = Stream(entry_state(0, BUF) + pass2(0, BUF), per=4)
            s_w.start = s_sel.start = 0
            weave(a, rest[cut2:], [s_sel, s_scan, s_w], budget=5, flush=False)
            put_all(s_sel.groups[s_sel.i:])
            wrest = s_w.groups[s_w.i:] + P2.early2_w()

            def mix(items, loads, every):
                out = []
                for k, x in enumerate(items):
                    out.append(x)
                    if k % every == every - 1 and loads:
                        out.append(loads.pop(0))
                return out
            put_all(pass1(1))
            a.waitcnt(lg=0)
            a('s_barrier')
            put_all(mix(prefix(1, 96), wrest, 8))
            put_all(s_scan.groups[s_scan.i:])
            put_all(mix(transpose_groups(0, SEL, ACC[0] + 16, 96), wrest, 6))
            put_all(mix(coef(1, TMP), wrest, o.get('bmix', 6)))
            put_all(lb_issue(1, BUF))
            for _ in range(min(o.get('bcover', 10), len(wrest))):
                put_all(wrest.pop(0))
            lookback_wait(1, BUF, 'L_lbB1')
            put_all(mix(entry_state(1, BUF) + pass2(1, BUF), wrest, o.get('bmix2', 10)))
            final_store = transpose_store(1, SEL, 96, 112)
            tail_loads = wrest

        self.stamp(7)
        put_all(tail_loads[:o.get('tailpre', 10)])
        tail_loads = tail_loads[o.get('tailpre', 10):]
        a.put(WaitVM(final_store))
        self.stamp(8)
        a('v_mov_b32 %s, s%d' % (vr(RING), sTAG))
        a('v_mov_b32 %s, s%d' % (vr(RING + 1), sTAG2))
        a('s_lshl_b32 s90, s%d, 2' % sR)
        a('s_add_u32 s90, s90, s%d' % sW)
        a('s_lshl_b32 s90, s90, 4')
        a('s_add_u32 s90, s90, s%d' % sC16)
        a('s_lshl_b32 s90, s90, 3')
        a('s_add_u32 s90, s90, 0x%x' % FLAG_OFF)
        a('v_mov_b32 %s, 0' % vr(RING + 2))
        a('buffer_store_dwordx2 %s, %s, %s, s90 offen sc1' % (vr(RING, 2), vr(RING + 2), srd(R_WS)))
        put_all(tail_loads)
        if o.get('hback', 0):
            t0, t1, t2 = RING + 4, RING + 5, RING + 6
            a('v_and_b32 %s, 15, v0' % vr(t0))
            a('v_lshlrev_b32 %s, 7, %s' % (vr(t0), vr(t0)))
            a('v_lshrrev_b32 %s, 5, v0' % vr(t1))
            a('v_mul_u32_u24 %s, %d, %s' % (vr(t1), 20 * 4096, vr(t1)))
            a('v_add_u32 %s, %s, %s' % (vr(t1), vr(t1), vr(t0)))
            if not A:
                a('v_bfe_u32 %s, v0, 4, 1' % vr(t2))
                a('v_lshl_add_u32 %s, %s, 12, %s' % (vr(t1), vr(t2), vr(t1)))
            a('s_add_u32 s90, s%d, %d' % (sHS, 48 * 4096))
            a('buffer_load_dword v121, %s, %s, s90 offen sc1' % (vr(t1), srd(R_WS)))
            if A:
                a('v_lshrrev_b32 %s, 4, v0' % vr(t2))
                a('v_lshl_add_u32 %s, %s, 12, %s' % (vr(t0), vr(t2), vr(t0)))
                a('buffer_load_dword v122, %s, %s, s%d offen sc1' % (vr(t0), srd(R_WS), sHF))
        a.waitcnt(lg=0)
        a.settle()

    def poll(self, lbl, voff, soff, tmp):
        a = self.a
        a('s_mov_b32 s91, 0')
        a.drain()
        a.settle()
        a.label(lbl)
        a('buffer_load_dwordx2 %s, %s, %s, s%d offen sc1' % (vr(tmp, 2), vr(voff), srd(R_WS), soff))
        a('s_add_u32 s91, s91, 1')
        a('v_xor_b32 %s, s%d, %s' % (vr(tmp), sTAG, vr(tmp)))
        a('v_xor_b32 %s, s%d, %s' % (vr(tmp + 1), sTAG2, vr(tmp + 1)))
        a('v_or_b32 %s, %s, %s' % (vr(tmp), vr(tmp), vr(tmp + 1)))
        a('v_cmp_ne_u32 vcc, 0, %s' % vr(tmp))
        a('s_cmp_eq_u64 vcc, 0')
        a('s_cbranch_scc1 %s_ok' % lbl)
        a('s_cmp_lt_u32 s91, 0x%x' % self.o.get('spin', 200000))
        a('s_cbranch_scc1 %s' % lbl)
        a.settle()
        a.label(lbl + '_ok')

    def phase2(self):
        a, o, P = self.a, self.o, self.p2
        VL16, VL16B = P.VL16, P.VL16B
        VH, VRW, VRR, VO, VX, VD, VG = 1, 5, 8, 9, 10, 11, 12
        VP, t0, t1, t2 = 96, 98, 120, 13
        VLWR = 99
        ACC = 16
        SK = 100
        KS = P.KS
        HLD = {0: 'sc1', 1: 'sc0 sc1', 2: 'sc1 nt', 3: '', 4: 'nt'}[o.get('hld', 0)]

        def acc(dt, dl):
            return ACC + 4 * (4 * dt + dl)
        early = set(P.early_quads[:5 * P.n_early]) | set(P.early2_quads)
        NE = P.n_early + P.n_early2
        top = 240 if o.get('stamps') else 256
        pool = [x for x in ([('a', r) for r in range(0, top, 4)] + [('v', r) for r in range(124, 256, 4)]) if x not in early]
        wq = dict(P.wq)
        hq = {}
        q = P.q

        def put_groups(gr):
            for g in gr:
                for x in g:
                    a.put(x)
        put_groups(P.tables(late=True))
        a('s_barrier')

        def w_groups(k):
            quads = [pool.pop(0) for dt in range(5)]
            for dt in range(5):
                wq[(k, dt)] = quads[dt]
            return P.w_loads(k, quads)

        def h_groups(k):
            gr = []
            for dl in range(4):
                r = pool.pop(0)
                hq[(k, dl)] = r
                hd = []
                if dl == 0:
                    hd = [Ins('s_lshl_b32 s%d, s%d, 12' % (P.sHk, KS[k])), Ins('s_add_u32 s%d, s%d, s%d' % (P.sHk, P.sHk, P.sHB))]
                gr.append(hd + [Ins('buffer_load_dwordx4 %s, %s, %s, s%d offen %s' % (q(r), vr(VH + dl), srd(R_WS), P.sHk, HLD))])
            return gr

        self.build_srd(R_OUT, S_OUT, 5242880)
        for dl in range(4):
            a('s_add_u32 s90, s%d, %d' % (sW, dl))
            a('s_and_b32 s90, s90, 3')
            a('s_lshl_b32 s91, s90, 10')
            a('v_add_u32 %s, s91, %s' % (vr(VH + dl), vr(VL16)))
            if dl:
                a('s_mul_i32 s91, s90, 15360')
                a('s_add_u32 s91, s91, %d' % ((dl - 1) * 5120))
                a('v_add_u32 %s, s91, %s' % (vr(VRW + dl - 1), vr(VL16)))
        a('s_mul_i32 s91, s%d, 15360' % sW)
        a('v_add_u32 %s, s91, %s' % (vr(VRR), vr(VL16)))
        a('v_and_b32 %s, 15, v0' % vr(t0))
        a('v_lshrrev_b32 %s, 4, v0' % vr(t2))
        a('v_bfe_u32 %s, %s, 2, 1' % (vr(t1), vr(t0)))
        a('v_lshlrev_b32 %s, 4, %s' % (vr(t1), vr(t1)))
        a('v_and_b32 %s, 3, %s' % (vr(VP), vr(t0)))
        a('v_add_u32 %s, %s, %s' % (vr(t1), vr(t1), vr(VP)))
        a('v_lshrrev_b32 %s, 3, %s' % (vr(VP), vr(t0)))
        a('v_lshl_add_u32 %s, %s, 2, %s' % (vr(t1), vr(VP), vr(t1)))
        a('s_lshr_b32 s90, s%d, 1' % sW)
        a('s_lshl_b32 s90, s90, 5')
        a('s_and_b32 s91, s%d, 1' % sW)
        a('s_lshl_b32 s91, s91, 3')
        a('s_add_u32 s90, s90, s91')
        a('v_add_u32 %s, s90, %s' % (vr(t1), vr(t1)))
        a('v_mul_u32_u24 %s, 2560, %s' % (vr(VO), vr(t1)))
        a('v_lshl_add_u32 %s, %s, 4, %s' % (vr(VO), vr(t2), vr(VO)))
        a('v_mul_u32_u24 %s, 1280, %s' % (vr(VX), vr(t1)))
        a('v_lshl_add_u32 %s, %s, 3, %s' % (vr(VX), vr(t2), vr(VX)))
        a('s_mul_i32 s90, s%d, 160' % sC2)
        a('v_lshlrev_b32 %s, 3, %s' % (vr(VD), vr(t2)))
        a('v_add_u32 %s, s90, %s' % (vr(VD), vr(VD)))
        a('s_and_b32 s90, s%d, 1' % sR2)
        a('s_lshl_b32 s90, s90, 6')
        a('v_add_u32 %s, s90, %s' % (vr(VG), vr(t1)))
        a('v_lshlrev_b32 %s, 2, %s' % (vr(VG), vr(VG)))
        a('v_add_u32 %s, %d, %s' % (vr(VG), L_GATE, vr(VG)))
        a('s_mul_i32 s90, s%d, %d' % (sR2, 64 * 1280))
        a('s_mul_i32 s91, s%d, 160' % sC2)
        a('s_add_u32 s90, s90, s91')
        for dt in range(5):
            a('buffer_load_dwordx2 %s, %s, %s, s90 offen offset:%d' % (vr(SK + 2 * dt, 2), vr(VX), srd(R_X), 32 * dt))
            a('global_load_dwordx2 %s, %s, s[%d:%d] offset:%d' % (vr(SK + 10 + 2 * dt, 2), vr(VD), S_DSK, S_DSK + 1, 32 * dt))
        HD = o.get('hdepth', 4)
        WD = min(22, NE + (len(pool) - 4 * o.get('hres', 4)) // 5)
        NL = min(o.get('wlds', 0), 22 - WD)
        L0 = 22 - NL
        assert NL * 5 * 1024 <= 35840
        for k in range(NE, WD):
            put_groups(w_groups(k))
        a('s_lshl_b32 s90, s%d, 2' % sR)
        a('s_and_b32 s95, s%d, 1' % sR2)
        a('s_lshl_b32 s95, s95, 1')
        a('s_add_u32 s90, s90, s95')
        a('s_lshl_b32 s90, s90, 7')
        a('s_add_u32 s95, s90, 0x%x' % FLAG_OFF)
        a('v_and_b32 %s, 31, v0' % vr(t0))
        a('v_lshlrev_b32 %s, 3, %s' % (vr(t0), vr(t0)))
        lds_last = None
        ldsg = []
        if NL:
            a('s_mul_i32 s94, s%d, 35840' % sW)
            a('v_add_u32 %s, s94, %s' % (vr(VLWR), vr(VL16)))
            for k in range(L0, 22):
                for dt in range(5):
                    g = []
                    if dt == 0:
                        g += [Ins('s_mul_i32 s%d, s%d, 5120' % (P.sWk, KS[k])), Ins('s_add_u32 s%d, s%d, s%d' % (P.sWk, P.sWk, P.sWB))]
                    g.append(Ins('s_add_u32 m0, s94, %d' % (((k - L0) * 5 + dt) * 1024)))
                    g.append(Ins('s_add_u32 s%d, s%d, 1024' % (P.sWk, P.sWk)) if dt else Ins('s_nop 0'))
                    lds_last = Ins('buffer_load_dwordx4 %s, %s, s%d offen sc1 lds' % (vr(VL16), srd(R_WS), P.sWk))
                    g.append(lds_last)
                    ldsg.append(g)
        npre = max(0, len(ldsg) - o.get('pollcover', 14))
        put_groups(ldsg[:npre])
        a('buffer_load_dwordx2 %s, %s, %s, s95 offen sc1' % (vr(VP, 2), vr(t0), srd(R_WS)))
        put_groups(ldsg[npre:])
        self.stamp(9)
        a('ds_read_b32 %s, %s' % (vr(VG), vr(VG)))
        def chk():
            a('v_xor_b32 %s, s%d, %s' % (vr(VP), sTAG, vr(VP)))
            a('v_xor_b32 %s, s%d, %s' % (vr(VP + 1), sTAG2, vr(VP + 1)))
            a('v_or_b32 %s, %s, %s' % (vr(VP), vr(VP), vr(VP + 1)))
            a('v_cmp_ne_u32 vcc, 0, %s' % vr(VP))
            a('s_cmp_eq_u64 vcc, 0')
        chk()
        a.settle()
        a('s_cbranch_scc1 L_pfl_ok')
        snap = a.snapshot()
        a('s_mov_b32 s91, 0')
        a.drain()
        a.label('L_pfl')
        a('buffer_load_dwordx2 %s, %s, %s, s95 offen sc1' % (vr(VP, 2), vr(t0), srd(R_WS)))
        a('s_add_u32 s91, s91, 1')
        chk()
        a('s_cbranch_scc1 L_pfl_ok')
        a('s_cmp_lt_u32 s91, 0x%x' % o.get('spin', 200000))
        a('s_cbranch_scc1 L_pfl')
        a.settle()
        a.label('L_pfl_ok')
        a.restore(snap)
        a('s_cmp_lg_u32 s%d, 31' % sR2)
        a('s_cbranch_scc1 L_noep')
        a('s_cmp_lg_u32 s%d, 0' % sC2)
        a('s_cbranch_scc1 L_noep')
        a('v_mov_b32 %s, s%d' % (vr(t1), sTAG))
        a('v_mov_b32 %s, 0x%x' % (vr(t0), EPOCH_OFF))
        a.raw('    buffer_store_dword %s, %s, %s, 0 offen sc1' % (vr(t1), vr(t0), srd(R_WS)))
        a.raw('    s_waitcnt vmcnt(0)')
        a.label('L_noep')
        self.stamp(10)
        self.stamp((2, 4))
        self.stamp((3, 9))
        self.stamp((3, 10), clock=True)
        nh = 0
        while nh < HD:
            put_groups(h_groups(nh))
            nh += 1
        nw = WD

        TS = 96
        skip = []
        for dt in range(5):
            xs, ds = SK + 2 * dt, SK + 10 + 2 * dt
            L = ['v_lshlrev_b32 %s, 16, %s' % (vr(TS), vr(xs)), 'v_lshlrev_b32 %s, 16, %s' % (vr(TS + 1), vr(ds)),
                 'v_and_b32 %s, 0xffff0000, %s' % (vr(xs), vr(xs)), 'v_and_b32 %s, 0xffff0000, %s' % (vr(ds), vr(ds)),
                 'v_mul_f32 %s, %s, %s' % (vr(xs), vr(xs), vr(ds)),
                 'v_mul_f32 %s, %s, %s' % (vr(ds), vr(TS), vr(TS + 1)),
                 'v_lshlrev_b32 %s, 16, %s' % (vr(TS), vr(xs + 1)), 'v_lshlrev_b32 %s, 16, %s' % (vr(TS + 1), vr(ds + 1)),
                 'v_and_b32 %s, 0xffff0000, %s' % (vr(xs + 1), vr(xs + 1)), 'v_and_b32 %s, 0xffff0000, %s' % (vr(ds + 1), vr(ds + 1)),
                 'v_mul_f32 %s, %s, %s' % (vr(xs + 1), vr(xs + 1), vr(ds + 1)),
                 'v_mul_f32 %s, %s, %s' % (vr(ds + 1), vr(TS), vr(TS + 1))]
            skip += [[Ins(x)] for x in L]
        s_skip = Stream(skip, per=1, every=2)

        def skr(dt, r):
            return (SK + 10 + 2 * dt, SK + 2 * dt, SK + 10 + 2 * dt + 1, SK + 2 * dt + 1)[r]

        GAP = o.get('gap', 72)
        HMAX = o.get('hmax', 7)
        st = dict(nh=nh, hj=0, nw=nw, wj=0, t=0)

        def next_load(k):
            can_h = st['nh'] < 22 and st['nh'] <= k + HMAX and pool
            can_w = st['nw'] < 22 and pool
            urgent_w = can_w and st['nw'] <= k + o.get('wlead', 5)
            if can_h and not (urgent_w and st['nw'] <= st['nh']):
                kk, dl = st['nh'], st['hj']
                r = pool.pop(0)
                hq[(kk, dl)] = r
                hd = []
                if dl == 0:
                    hd = [Ins('s_lshl_b32 s%d, s%d, 12' % (P.sHk, KS[kk])), Ins('s_add_u32 s%d, s%d, s%d' % (P.sHk, P.sHk, P.sWB if o.get('fakeH') == 2 else P.sHB))]
                st['hj'] += 1
                if st['hj'] == 4:
                    st['hj'] = 0
                    st['nh'] += 1
                return hd + [Ins('buffer_load_dwordx4 %s, %s, %s, s%d offen %s' % (q(r), vr(VH + dl), srd(R_WS), P.sHB if o.get('fakeH') == 1 else P.sHk, HLD))]
            if can_w:
                kk, dt = st['nw'], st['wj']
                r = pool.pop(0)
                wq[(kk, dt)] = r
                hd = []
                if NL and kk >= L0:
                    st['wj'] += 1
                    if st['wj'] == 5:
                        st['wj'] = 0
                        st['nw'] += 1
                    return ([WaitVM(lds_last)] if (kk == L0 and dt == 0) else []) + [Ins('ds_read_b128 %s, %s offset:%d' % (q(r), vr(VLWR), ((kk - L0) * 5 + dt) * 1024))]
                if dt == 0:
                    hd = [Ins('s_mul_i32 s%d, s%d, 5120' % (P.sWk, KS[kk])), Ins('s_add_u32 s%d, s%d, s%d' % (P.sWk, P.sWk, P.sWB))]
                if dt < 4:
                    ld = Ins('buffer_load_dwordx4 %s, %s, %s, s%d offen offset:%d sc1' % (q(r), vr(VL16), srd(R_WS), P.sWk, dt * 1024))
                else:
                    ld = Ins('buffer_load_dwordx4 %s, %s, %s, s%d offen sc1' % (q(r), vr(VL16B), srd(R_WS), P.sWk))
                st['wj'] += 1
                if st['wj'] == 5:
                    st['wj'] = 0
                    st['nw'] += 1
                return hd + [ld]
            return None

        NT = o.get('tilemajor', 3) if not NL else 0
        for k in range(22 - NT):
            while (st['nh'] <= k) or (st['nw'] <= k):
                g = next_load(k) if st['nh'] <= k else None
                if g is None or st['nh'] > k:
                    save = st['nh']
                    st['nh'] = 22
                    g2 = next_load(k) if g is None else None
                    st['nh'] = save
                    g = g or g2
                assert g is not None
                for x in g:
                    a.put(x)
            n = 0
            for dt in range(5):
                for dl in range(4):
                    c = '0' if k == 0 else vr(acc(dt, dl), 4)
                    a.put(Ins('v_mfma_f32_16x16x32_bf16 %s, %s, %s, %s' % (vr(acc(dt, dl), 4), q(wq[(k, dt)]), q(hq[(k, dl)]), c)))
                    now = (20 * k + n + 1) * 16
                    if NL and L0 <= st['nw'] < 22 and st['nw'] <= k + 2 and n % 4 == 2 and pool:
                        save = st['nh']
                        st['nh'] = 22
                        g = next_load(k)
                        st['nh'] = save
                        for x in g:
                            a.put(x)
                    elif now >= st['t']:
                        savew = st['nw']
                        staged = NL and savew >= L0
                        if staged:
                            st['nw'] = 22
                        g = next_load(k)
                        if staged:
                            st['nw'] = savew
                        if g is not None:
                            for x in g:
                                a.put(x)
                            st['t'] = max(st['t'] + GAP, now)
                    elif k >= o.get('skipk', 10) and n % 2 == 1 and not s_skip.done():
                        for x in s_skip.groups[s_skip.i]:
                            a.put(x)
                        s_skip.i += 1
                    n += 1
            for dt in range(5):
                pool.append(wq[(k, dt)])
            for dl in range(4):
                pool.append(hq[(k, dl)])
            if k in (0, 2, 5, 9, 13, 17):
                self.stamp((2, 5 + (0, 2, 5, 9, 13, 17).index(k)))
        red_done = False
        if NT:
            k0 = 22 - NT
            while st['nh'] < 22 or st['nw'] < 22:
                g = next_load(21)
                assert g is not None
                for x in g:
                    a.put(x)
            while not s_skip.done():
                a.put(s_skip.groups[s_skip.i][0])
                s_skip.i += 1
            order = [(dt, dl) for dl in (1, 2, 3, 0) for dt in range(5)]
            pend = []
            for j, (dt, dl) in enumerate(order):
                for k in range(k0, 22):
                    a.put(Ins('v_mfma_f32_16x16x32_bf16 %s, %s, %s, %s' % (vr(acc(dt, dl), 4), q(wq[(k, dt)]), q(hq[(k, dl)]), vr(acc(dt, dl), 4))))
                if dl:
                    pend.append((dt, dl))
                if len(pend) > 2 or (dl == 0 and pend):
                    pdt, pdl = pend.pop(0)
                    a('ds_write_b128 %s, %s offset:%d' % (vr(VRW + pdl - 1), vr(acc(pdt, pdl), 4), pdt * 1024))
            for pdt, pdl in pend:
                a('ds_write_b128 %s, %s offset:%d' % (vr(VRW + pdl - 1), vr(acc(pdt, pdl), 4), pdt * 1024))
            red_done = True
        assert st['nh'] == 22 and st['nw'] == 22
        while not s_skip.done():
            a.put(s_skip.groups[s_skip.i][0])
            s_skip.i += 1
        self.stamp(11)
        self.stamp((2, 11))
        self.stamp((3, 11))
        self.stamp((3, 8), clock=True)
        if NL:
            a.waitcnt(lg=0)
            a('s_barrier')
        for dl in range(1, 4):
            for dt in range(5):
                if not red_done:
                    a('ds_write_b128 %s, %s offset:%d' % (vr(VRW + dl - 1), vr(acc(dt, dl), 4), dt * 1024))
        for dt in range(5):
            for r in range(4):
                a('v_fmac_f32 %s, %s, %s' % (vr(acc(dt, 0) + r), vr(VG), vr(skr(dt, r))))
        a('s_mul_i32 s90, s%d, %d' % (sR2, 64 * 2560))
        a('s_mul_i32 s91, s%d, 320' % sC2)
        a('s_add_u32 s90, s90, s91')
        a.waitcnt(lg=0)
        a('s_barrier')
        RB = 128
        for dt in range(5):
            for sl in range(3):
                a('ds_read_b128 %s, %s offset:%d' % (vr(RB + 4 * (3 * dt + sl), 4), vr(VRR), (sl * 5 + dt) * 1024))
        for dt in range(5):
            b = RB + 12 * dt
            for r in range(4):
                a('v_add_f32 %s, %s, %s' % (vr(b + r), vr(b + r), vr(b + 4 + r)))
            for r in range(4):
                a('v_add_f32 %s, %s, %s' % (vr(acc(dt, 0) + r), vr(acc(dt, 0) + r), vr(b + 8 + r)))
            for r in range(4):
                a('v_add_f32 %s, %s, %s' % (vr(acc(dt, 0) + r), vr(acc(dt, 0) + r), vr(b + r)))
            a('buffer_store_dwordx4 %s, %s, %s, s90 offen offset:%d %s' % (vr(acc(dt, 0), 4), vr(VO), srd(R_OUT), 64 * dt, {0: '', 1: 'sc1', 2: 'nt', 3: 'sc0 sc1'}[o.get('outmode', 0)]))

    def weave2(self, main, loads, every, extra):
        a = self.a
        for n, it in enumerate(main):
            a.put(it)
            if n % every == 0 and loads:
                for x in loads.pop(0):
                    a.put(x)
            elif extra is not None and n % 2 == 1 and not extra.done():
                for x in extra.groups[extra.i]:
                    a.put(x)
                extra.i += 1

    def kernel(self):
        a = self.a
        self.prologue()
        a('s_cmp_ge_u32 s%d, 6' % sCC)
        a.settle()
        a('s_cbranch_scc1 L_typeB')
        snap = a.snapshot()
        self.phase1('A')
        a('s_branch L_phase2')
        a.label('L_typeB')
        a.restore(snap)
        self.phase1('B')
        a.label('L_phase2')
        self.phase2()
        self.dump_stamps()
        a.label('L_exit')
        a('s_endpgm')
        head = open('gated_mix__ssm_conv_s5__dense_activation_relu__prompt.s.ref').read().split('\n')
        hdr = [ln for ln in head if ln.startswith(';') and '@launch' not in ln and 'Override' not in ln and 'grid=ceil' not in ln]
        out = '\n'.join(hdr) + '\n'
        out += '; @launch grid=(256,1,1) block=(256,1,1) lds=%d\n' % LDS_BYTES
        out += '.amdgcn_target "amdgcn-amd-amdhsa--gfx950"\n.text\n.globl %s\n.p2align 8\n.type %s,@function\n%s:\n' % (KNAME, KNAME, KNAME)
        out += a.text()
        out += '''.section .rodata,"a"
.p2align 6
.amdhsa_kernel %s
  .amdhsa_next_free_vgpr 512
  .amdhsa_next_free_sgpr 102
  .amdhsa_accum_offset 256
  .amdhsa_group_segment_fixed_size 0
  .amdhsa_kernarg_size 128
  .amdhsa_user_sgpr_count 2
  .amdhsa_user_sgpr_kernarg_segment_ptr 1
  .amdhsa_system_sgpr_workgroup_id_x 1
  .amdhsa_float_denorm_mode_32 3
.end_amdhsa_kernel
''' % KNAME
        return out


if __name__ == '__main__':
    opts = {}
    for arg in sys.argv[2:]:
        k, v = arg.split('=')
        opts[k] = int(v, 0)
    g = Gen(opts)
    txt = g.kernel()
    open(sys.argv[1], 'w').write(txt)
    print('instructions', g.a.n_ins, g.a.stats, 'nop states', g.a.nop_states, 'bytes of text', len(txt))
```

```python
import sys, math, struct
from asmgen import Asm, Ins, WaitVM, WaitLG, Stream, weave

KNAME = 'gated_mix__ssm_conv_s5__dense_activation_relu__prompt_kernel'

EPOCH_OFF = 0
FLAG_OFF = 0x1000
WF_OFF = 0x4000
AGG_OFF = 0x10000
WT_OFF = 0x40000
H_OFF = 0x400000
STAMP_OFF = 0x1000000
WS_BYTES = 268435456
OOB = 0x40000000

SLOT = 20480
MISC = 7 * SLOT
XS = 4 * SLOT
L_GW = MISC + 4096
L_GATE = L_GW + 2048
L_WST = L_GATE + 512
L_SEG = L_WST + 8192
L_LB = L_WST
LDS_BYTES = 163840
assert L_SEG + 5120 <= LDS_BYTES and XS + 65536 <= L_GW

S_X, S_LRE, S_LIM, S_BRE, S_BIM, S_CRE, S_CIM, S_LDT = 4, 6, 8, 10, 12, 14, 16, 18
S_DSK, S_BX, S_W1, S_W2, S_GWP, S_OUT, S_DBG, S_WS = 20, 22, 24, 26, 28, 30, 32, 34
R_X, R_WS, R_BRE, R_BIM, R_W1, R_W2, R_GW = 36, 40, 44, 48, 52, 56, 60
R_CI = 60
R_OUT = 48
sTAG, sTAG2, sW, sR, sG, sA, sR2, sC2, sC16, sHALF, sCC, sRHO = 64, 65, 66, 67, 68, 69, 70, 71, 72, 73, 74, 75
S_MASK = 76
sKO = 76
sE = 3
sW10, sGWI, sHF, sHS = 99, 98, 22, 23
sFB, sXS = 28, 4


def srd(r):
    return 's[%d:%d]' % (r, r + 3)


def vr(b, n=1):
    return 'v%d' % b if n == 1 else 'v[%d:%d]' % (b, b + n - 1)


def ar(b, n=1):
    return 'a%d' % b if n == 1 else 'a[%d:%d]' % (b, b + n - 1)


def f2u(x):
    return struct.unpack('<I', struct.pack('<f', x))[0]


def magic(d):
    return (1 << 32) // d + 1


LOG2E = '0x%08x' % f2u(math.log2(math.e))
INV2PI = '0x%08x' % f2u(1.0 / (2 * math.pi))


class P2:
    VL16, VL16B = 14, 15
    KS = list(range(4, 20)) + list(range(52, 58))
    sWB, sHB, sWk, sHk = 24, 25, 26, 27

    def __init__(self, opts):
        self.o = opts
        top = 240 if opts.get('stamps') else 256
        self.early_quads = [('a', r) for r in range(160, top, 4)] + [('v', r) for r in range(192, 256, 4)]
        self.n_early = min(opts.get('nearly', 22), len(self.early_quads) // 5)
        self.wq = {}
        for k in range(self.n_early):
            for dt in range(5):
                self.wq[(k, dt)] = self.early_quads[5 * k + dt]
        self.n_early2 = opts.get('nearly2', 5)
        self.early2_quads = [('a', 4 * j) for j in range(5 * self.n_early2)]
        for k in range(self.n_early2):
            for dt in range(5):
                self.wq[(self.n_early + k, dt)] = self.early2_quads[5 * k + dt]

    @staticmethod
    def q(x):
        return (vr if x[0] == 'v' else ar)(x[1], 4)

    def tables(self, late=False):
        KS, o = self.KS, self.o
        gr = []
        if not late:
            L = ['v_add_u32 %s, 4096, %s' % (vr(self.VL16B), vr(self.VL16)),
                 's_mul_i32 s%d, s%d, %d' % (self.sWB, sC2, 88 * 5120), 's_add_u32 s%d, s%d, 0x%x' % (self.sWB, self.sWB, WT_OFF),
                 's_mul_i32 s%d, s%d, %d' % (self.sHB, sR2, 88 * 4096), 's_add_u32 s%d, s%d, 0x%x' % (self.sHB, self.sHB, H_OFF),
                 's_mul_i32 s34, s%d, 10' % sW, 's_add_u32 s34, s34, 48',
                 's_mul_i32 s35, s%d, 12' % sW, 's_sub_u32 s35, s35, 10']
            mode = o.get('rot2', 0)
            if mode == 0:
                L += ['s_mov_b32 s96, 0']
            else:
                L += ['s_and_b32 s96, s%d, 3' % sC2, 's_mul_i32 s96, s96, %d' % o.get('rotc', 5)]
                if mode == 2:
                    L += ['s_and_b32 s95, s%d, 7' % sR2, 's_mul_i32 s95, s95, %d' % o.get('rotr', 3), 's_add_u32 s96, s96, s95']
            gr = [[Ins(x)] for x in L]
            for rep in range(2):
                gr.append([Ins('s_cmp_ge_u32 s96, 22'), Ins('s_cselect_b32 s95, 22, 0'), Ins('s_sub_u32 s96, s96, s95')])
            rng = range(16)
        else:
            gr = [[Ins('s_mov_b32 s96, s29')]]
            rng = range(16, 22)
        for k in rng:
            gr.append([Ins('s_cmp_lt_u32 s96, 10'), Ins('s_cselect_b32 s95, s34, s35'), Ins('s_add_u32 s%d, s95, s96' % KS[k])])
            gr.append([Ins('s_add_u32 s96, s96, 1')])
            gr.append([Ins('s_cmp_eq_u32 s96, 22'), Ins('s_cselect_b32 s96, 0, s96')])
        if not late:
            gr.append([Ins('s_mov_b32 s29, s96')])
        return gr

    def w_loads(self, k, quads, sk=None):
        sk = self.sWk if sk is None else sk
        gr = []
        for dt in range(5):
            hd = []
            if dt == 0:
                hd = [Ins('s_mul_i32 s%d, s%d, 5120' % (sk, self.KS[k])), Ins('s_add_u32 s%d, s%d, s%d' % (sk, sk, self.sWB))]
            if dt < 4:
                ld = Ins('buffer_load_dwordx4 %s, %s, %s, s%d offen offset:%d sc1' % (self.q(quads[dt]), vr(self.VL16), srd(R_WS), sk, dt * 1024))
            else:
                ld = Ins('buffer_load_dwordx4 %s, %s, %s, s%d offen sc1' % (self.q(quads[dt]), vr(self.VL16B), srd(R_WS), sk))
            gr.append(hd + [ld])
        return gr

    def early2_w(self):
        gr = []
        for k in range(self.n_early, self.n_early + self.n_early2):
            gr += self.w_loads(k, [self.wq[(k, dt)] for dt in range(5)], self.sHk)
        return gr

    def early_w(self):
        gr = []
        for k in range(self.n_early):
            gr += self.w_loads(k, [self.wq[(k, dt)] for dt in range(5)])
        return gr


class Gen:
    def __init__(self, opts):
        self.o = opts
        self.a = Asm()
        self.p2 = P2(opts)

    def stamp(self, k, clock=False):
        if not self.o.get('stamps'):
            return
        det = self.o.get('detail', 0)
        if isinstance(k, tuple):
            if k[0] != det:
                return
            k = k[1]
        elif det and (5 <= k <= 11 or (det == 3 and k in (1, 2, 3))):
            return
        a = self.a
        a('%s s[100:101]' % ('s_memtime' if clock else 's_memrealtime'))
        a.waitcnt(lg=0)
        a('v_accvgpr_write_b32 a%d, s100' % (240 + k))

    def dump_stamps(self):
        if not self.o.get('stamps'):
            return
        a = self.a
        self.stamp(12)
        self.stamp(14, clock=True)
        a.drain()
        for k in range(16):
            a('v_accvgpr_read_b32 v%d, a%d' % (16 + k, 240 + k))
        a('s_lshl_b32 s90, s2, 2')
        a('s_add_u32 s90, s90, s%d' % sW)
        a('s_lshl_b32 s90, s90, 6')
        a('s_add_u32 s90, s90, 0x%x' % STAMP_OFF)
        a('v_mov_b32 v1, 0')
        for k in range(4):
            a('buffer_store_dwordx4 v[%d:%d], v1, %s, s90 offen offset:%d' % (16 + 4 * k, 19 + 4 * k, srd(R_WS), 16 * k))
        a.waitcnt(vm=0)

    def build_srd(self, r, ptr, nbytes):
        a = self.a
        a('s_mov_b32 s%d, s%d' % (r, ptr))
        a('s_and_b32 s%d, s%d, 0xffff' % (r + 1, ptr + 1))
        a('s_mov_b32 s%d, 0x%x' % (r + 2, nbytes))
        a('s_mov_b32 s%d, 0x20000' % (r + 3))

    def swap23(self, dst, src, tmp):
        a = self.a
        a('v_and_b32 %s, 19, %s' % (vr(dst), vr(src)))
        a('v_bfe_u32 %s, %s, 2, 1' % (vr(tmp), vr(src)))
        a('v_lshl_add_u32 %s, %s, 3, %s' % (vr(dst), vr(tmp), vr(dst)))
        a('v_bfe_u32 %s, %s, 3, 1' % (vr(tmp), vr(src)))
        a('v_lshl_add_u32 %s, %s, 2, %s' % (vr(dst), vr(tmp), vr(dst)))

    def lane_t(self, dst, src, tmp):
        a = self.a
        a('v_bfe_u32 %s, %s, 2, 1' % (vr(tmp), vr(src)))
        a('v_lshlrev_b32 %s, 4, %s' % (vr(tmp), vr(tmp)))
        a('v_and_b32 %s, 3, %s' % (vr(dst), vr(src)))
        a('v_add_u32 %s, %s, %s' % (vr(dst), vr(dst), vr(tmp)))
        a('v_lshrrev_b32 %s, 3, %s' % (vr(tmp), vr(src)))
        a('v_lshl_add_u32 %s, %s, 2, %s' % (vr(dst), vr(tmp), vr(dst)))

    XD, XR = 48, 52
    PO, GO0, GO1 = 56, 57, 58
    CD, CR = 60, 62

    def prologue(self):
        a, o = self.a, self.o
        a('s_cmp_ge_u32 s2, 256')
        a('s_cbranch_scc1 L_exit')
        self.stamp(0)
        self.stamp(13, clock=True)
        a('s_load_dwordx16 s[4:19], s[0:1], 0')
        a('s_load_dwordx16 s[20:35], s[0:1], 64')
        if o.get('codepf', 1):
            a('s_getpc_b64 s[92:93]')
            a.label('L_pc')
            a('s_lshr_b32 s90, s2, 3')
            a('s_lshl_b32 s90, s90, 2')
            a('v_lshrrev_b32 v1, 6, v0')
            a('v_add_u32 v1, s90, v1')
            a('v_mul_u32_u24 v1, 3, v1')
            a('v_and_b32 v2, 63, v0')
            a('v_min_u32 v2, 2, v2')
            a('v_add_u32 v1, v1, v2')
            a('v_lshlrev_b32 v1, 7, v1')
            a.raw('    v_min_u32 v1, L_exit-L_pc, v1')
            a('global_load_dword v47, v1, s[92:93]')
        a.many("""
            s_and_b32 s90, s2, 7
            s_lshr_b32 s91, s2, 3
            s_lshr_b32 s92, s90, 1
            s_and_b32 s%(half)d, s90, 1
            s_lshl_b32 s93, s92, 2
            s_lshr_b32 s94, s91, 3
            s_add_u32 s%(r)d, s93, s94
            s_and_b32 s%(cc)d, s91, 7
            s_lshl_b32 s93, s%(half)d, 3
            s_add_u32 s%(c16)d, s93, s%(cc)d
            s_lshl_b32 s93, s92, 3
            s_lshr_b32 s94, s91, 2
            s_add_u32 s%(r2)d, s93, s94
            s_lshl_b32 s93, s%(half)d, 2
            s_and_b32 s94, s91, 3
            s_add_u32 s%(c2)d, s93, s94
        """ % dict(half=sHALF, r=sR, cc=sCC, c16=sC16, r2=sR2, c2=sC2))
        a('v_lshrrev_b32 v1, 6, v0')
        a('v_and_b32 v0, 63, v0')
        a('v_readfirstlane_b32 s%d, v1' % sW)
        a.many("""
            s_mul_i32 s93, s%(half)d, 6
            s_add_u32 s%(A)d, s93, s%(cc)d
            s_lshl_b32 s93, s%(half)d, 1
            s_add_u32 s93, s93, s%(cc)d
            s_sub_u32 s93, s93, 6
            s_lshl_b32 s93, s93, 1
            s_add_u32 s93, s93, 12
            s_cmp_lt_u32 s%(cc)d, 6
            s_cselect_b32 s%(G)d, s%(A)d, s93
        """ % dict(half=sHALF, A=sA, cc=sCC, G=sG))
        rm = o.get('rotmode', 1)
        a('s_and_b32 s90, s%d, 3' % sR)
        if rm == 1:
            a('s_lshl_b32 s90, s90, 1')
            a('s_add_u32 s90, s90, s%d' % sCC)
        elif rm == 2:
            a('s_mov_b32 s90, s%d' % sCC)
        elif rm == 3:
            a('s_lshl_b32 s90, s90, 1')
        elif rm == 4:
            a('s_mul_i32 s90, s90, 3')
        elif rm == 5:
            a('s_lshr_b32 s91, s%d, 1' % sCC)
            a('s_lshl_b32 s91, s91, 1')
            a('s_add_u32 s90, s90, s91')
        elif rm == 7:
            a('s_add_u32 s90, s90, s%d' % sCC)
        elif rm == 8:
            a('s_mul_i32 s90, s90, 3')
            a('s_add_u32 s90, s90, s%d' % sCC)
        elif rm == 9:
            a('s_lshr_b32 s91, s%d, 1' % sCC)
            a('s_lshl_b32 s91, s91, 1')
            a('s_add_u32 s90, s90, s91')
            a('s_add_u32 s90, s90, s%d' % sHALF)
        elif rm == 10:
            a('s_lshr_b32 s91, s%d, 1' % sCC)
            a('s_lshl_b32 s90, s90, 1')
            a('s_add_u32 s90, s90, s91')
        elif rm == 11:
            a('s_lshr_b32 s91, s%d, 2' % sCC)
            a('s_mul_i32 s91, s91, 5')
            a('s_add_u32 s90, s90, s91')
        elif rm == 12:
            a('s_lshr_b32 s91, s%d, 1' % sCC)
            a('s_lshl_b32 s91, s91, 1')
            a('s_add_u32 s90, s90, s91')
            a('s_mul_i32 s91, s%d, 5' % sHALF)
            a('s_add_u32 s90, s90, s91')
        elif rm == 6:
            a('s_lshl_b32 s90, s90, 1')
            a('s_add_u32 s90, s90, s%d' % sCC)
            a('s_mul_i32 s91, s%d, 5' % sHALF)
            a('s_add_u32 s90, s90, s91')
            a('s_cmp_ge_u32 s90, 10')
            a('s_cselect_b32 s91, 10, 0')
            a('s_sub_u32 s90, s90, s91')
        a('s_cmp_ge_u32 s90, 10')
        a('s_cselect_b32 s91, 10, 0')
        a('s_sub_u32 s%d, s90, s91' % sRHO)
        if not o.get('rot', 1):
            a('s_mov_b32 s%d, 0' % sRHO)
        a('s_lshl_b32 s%d, s%d, 7' % (sKO, sRHO))
        for k in range(1, 10):
            a('s_add_u32 s%d, s%d, 128' % (sKO + k, sKO + k - 1))
            a('s_cmp_ge_u32 s%d, 1280' % (sKO + k))
            a('s_cselect_b32 s%d, 0, s%d' % (sKO + k, sKO + k))
        a('s_lshl_b32 s%d, s%d, 10' % (sW10, sW))
        XD, CD = self.XD, self.CD
        a('v_lshrrev_b32 v64, 3, v0')
        a('v_and_b32 v65, 7, v0')
        a('v_lshrrev_b32 v66, 1, v64')
        a('v_xor_b32 v66, v66, v65')
        a('v_mul_u32_u24 v67, 1280, v64')
        a('v_lshl_add_u32 %s, v66, 4, v67' % vr(CD))
        a('v_xor_b32 %s, 64, %s' % (vr(CD + 1), vr(CD)))
        a('v_add_u32 %s, 10240, %s' % (vr(CD + 1), vr(CD + 1)))
        a('s_lshl_b32 s90, s%d, 2' % sR)
        a('s_add_u32 s90, s90, s%d' % sW)
        a('s_mul_i32 s90, s90, 40960')
        a('v_add_u32 %s, s90, %s' % (vr(XD), vr(CD)))
        a('v_add_u32 %s, s90, %s' % (vr(XD + 1), vr(CD + 1)))
        a('v_add_u32 %s, 20480, %s' % (vr(XD + 2), vr(XD)))
        a('v_add_u32 %s, 20480, %s' % (vr(XD + 3), vr(XD + 1)))
        a('s_lshl_b32 s90, s%d, 3' % sW)
        a('v_add_u32 v66, s90, v64')
        self.swap23(67, 66, 68)
        a('v_mul_u32_u24 v67, 1280, v67')
        a('v_bfe_u32 v68, v66, 1, 3')
        a('v_xor_b32 v68, v68, v65')
        a('v_lshl_add_u32 v3, v68, 4, v67')
        a('s_mul_i32 s90, s%d, 40960' % sG)
        a('v_add_u32 v3, s90, v3')
        a('v_and_b32 v66, 31, v0')
        self.swap23(67, 66, 68)
        a('v_lshlrev_b32 %s, 1, v67' % vr(self.PO))
        g0, g1 = self.GO0, self.GO1
        a('s_lshl_b32 s90, s%d, 3' % sRHO)
        a('v_add_u32 %s, s90, v0' % vr(g0))
        a('v_subrev_u32 v66, 80, %s' % vr(g0))
        a('v_cmp_le_u32 vcc, 80, %s' % vr(g0))
        a('v_cndmask_b32 %s, %s, v66, vcc' % (vr(g0), vr(g0)))
        a('v_add_u32 %s, 64, %s' % (vr(g1), vr(g0)))
        a('v_subrev_u32 v66, 80, %s' % vr(g1))
        a('v_cmp_le_u32 vcc, 80, %s' % vr(g1))
        a('v_cndmask_b32 %s, %s, v66, vcc' % (vr(g1), vr(g1)))
        a('v_lshlrev_b32 %s, 4, %s' % (vr(g0), vr(g0)))
        a('v_lshlrev_b32 %s, 4, %s' % (vr(g1), vr(g1)))
        a('v_cmp_gt_u32 vcc, 16, v0')
        a('v_cndmask_b32 %s, 0x%x, %s, vcc' % (vr(g1), OOB, vr(g1)))
        a.waitcnt(lg=0)
        self.stamp(1)
        a('s_load_dword s%d, s[%d:%d], 0x%x' % (sE, S_WS, S_WS + 1, EPOCH_OFF))
        if o.get('tlb', 0):
            pages = [(S_X, 0), (S_X, 2097152), (S_BRE, 0), (S_BIM, 0), (S_GWP, 0), (S_LRE, 0), (S_LIM, 0), (S_LDT, 0),
                     (S_W1, 0), (S_W1, 1966080 - 64), (S_W2, 0), (S_W2, 1966080 - 64), (S_CRE, 0), (S_CIM, 0), (S_DSK, 0),
                     (S_OUT, 0), (S_OUT, 2097152), (S_OUT, 4194304), (S_OUT, 5242880 - 64)]
            pages += [(S_WS, p * 2097152) for p in range(8)]
            if o.get('tlb') == 2:
                pages = pages[:8]
            a('v_mov_b32 v70, s%d' % S_X)
            a('v_mov_b32 v71, s%d' % (S_X + 1))
            for ln, (ptr, off) in enumerate(pages):
                if ln == 0:
                    continue
                if off:
                    a('s_add_u32 s90, s%d, 0x%x' % (ptr, off))
                    a('s_addc_u32 s91, s%d, 0' % (ptr + 1))
                    a('v_writelane_b32 v70, s90, %d' % ln)
                    a('v_writelane_b32 v71, s91, %d' % ln)
                else:
                    a('v_writelane_b32 v70, s%d, %d' % (ptr, ln))
                    a('v_writelane_b32 v71, s%d, %d' % (ptr + 1, ln))
            a('global_load_dword v46, v[70:71], off')
        self.build_srd(R_X, S_X, 2621440)
        self.build_srd(R_BRE, S_BRE, 819200)
        self.build_srd(R_GW, S_GWP, 1280)
        a('s_lshl_b32 s%d, s%d, 14' % (sXS, sW))
        a('s_add_u32 s%d, s%d, %d' % (sXS, sXS, XS))

    def phase1(self, typ):
        a, o = self.a, self.o
        A = typ == 'A'
        HST = {0: 'sc1', 1: 'sc0 sc1', 2: 'sc1 nt', 3: 'sc0 sc1 nt'}[o.get('hst', 0)]
        XD, XR, CD, CR = self.XD, self.XR, self.CD, self.CR
        V = {'WS': 3}
        nxt = [4]

        def al(name, n=1):
            V[name] = nxt[0]
            nxt[0] += n
        for nm in ('WF', 'ST', 'AG', 'LB0', 'LB1', 'SEGW', 'SEGR', 'GW', 'G', 'OMG', 'W2D', 'W2R'):
            al(nm)
        al('RS', 4)
        if A:
            al('RF', 6)
        else:
            al('WS2')
        ngrp = 1 if A else 2
        for g in range(ngrp):
            for nm in ('lr', 'li', 'nli', 'l16r', 'l16i', 'lsr', 'lsi', 'p1r', 'p1i', 'p2r', 'p2i', 'cr', 'ci'):
                al('%s%d' % (nm, g))
        assert nxt[0] <= 47, nxt[0]
        RING = 96
        RING_ADDR = 92
        PT = 80
        ACC = [128, 160]
        GACC = 160
        FA = [160, 176]
        A_GW = 160

        def XF(s):
            return ar(4 * s, 4)

        def put_all(items):
            for it in items:
                if isinstance(it, list):
                    put_all(it)
                elif callable(it):
                    it()
                else:
                    a.put(it)

        def ssm_dma(g, stage, slot):
            R = R_BRE if stage % 2 == 0 else R_BIM
            kh = stage // 2
            ws_ = V['WS'] if g == 0 else V['WS2']
            grp = []
            last = None
            for kb in range(5):
                last = Ins('buffer_load_dwordx4 %s, %s, s%d offen lds' % (vr(ws_), srd(R), sKO + 5 * kh + kb))
                grp.append([Ins('s_add_u32 m0, s%d, %d' % (sW10, slot * SLOT + kb * 4096)), Ins('s_nop 0'), last])
            return grp, last

        s_dma = {}

        def s_load(g, m, kap):
            kh, kb = kap // 5, kap % 5
            slot = slot_of[4 * g + 2 * kh + m]
            ws_ = V['WS'] if g == 0 else V['WS2']
            ld = Ins('buffer_load_dwordx4 %s, %s, s%d offen lds' % (vr(ws_), srd(R_BIM if m else R_BRE), sKO + kap))
            s_dma[(g, m, kap)] = ld
            return [Ins('s_add_u32 m0, s%d, %d' % (sW10, slot * SLOT + kb * 4096)), Ins('s_nop 0'), ld]

        def ffn_dma(fst, slot):
            blk, st = fst >> 2, fst & 3
            grp = []
            last = None
            for i2 in range(5):
                c = (160 * st + 32 * i2) * 3072 + 128 * blk
                last = Ins('buffer_load_dwordx4 %s, %s, %s offen lds' % (vr(V['WF']), srd(R_W1), '0' if o.get('fakeF') else 's92'))
                grp.append([Ins('s_add_u32 s92, s%d, %d' % (sFB, c)),
                            Ins('s_cmp_ge_u32 s92, %d' % (640 * 3072)),
                            Ins('s_cselect_b32 s93, %d, 0' % (640 * 3072)),
                            Ins('s_add_u32 m0, s%d, %d' % (sW10, slot * SLOT + i2 * 4096)),
                            Ins('s_sub_u32 s92, s92, s93'),
                            last])
            return grp, last

        x_dma_last, x_rd_last = {}, {}

        def xdma(kap):
            grp = []
            for g in range(4):
                ld = Ins('buffer_load_dwordx4 %s, %s, %s offen lds' % (vr(XD + g), srd(R_X), '0' if (o.get('fakeX') and kap >= 4) else 's%d' % (sKO + kap)))
                grp.append([Ins('s_add_u32 m0, s%d, %d' % (sXS, (kap % 4) * 4096 + g * 1024)), Ins('s_nop 0'), ld])
                x_dma_last[kap] = ld
            return grp

        def xread(kap):
            grp = []
            for j in range(4):
                rd = Ins('ds_read_b128 %s, %s offset:%d' % (XF(4 * kap + j), vr(XR + j), (kap % 4) * 4096))
                grp.append(([WaitVM(x_dma_last[kap])] if j == 0 else []) + [rd])
                x_rd_last[kap] = rd
            return grp

        def xrefill(kap):
            g = xdma(kap)
            g[0] = [WaitLG(x_rd_last[kap - 4])] + g[0]
            return g

        if A:
            seq = [('S', 0, i) for i in range(4)] + [('F', 0, i) for i in range(8)]
            slot_of = [0, 1, 2, 3, 0, 1, 4, 5, 6, 2, 3, 0]
        else:
            seq = [('S', 0, i) for i in range(4)] + [('S', 1, i) for i in range(4)]
            slot_of = [0, 1, 2, 3, 0, 1, 4, 5]
        dma_last = [None] * len(seq)

        def stage_loads(i):
            kind, g, st = seq[i]
            grp, last = ssm_dma(g, st, slot_of[i]) if kind == 'S' else ffn_dma(st, slot_of[i])
            dma_last[i] = last
            return grp

        if not A:
            a('v_add_u32 %s, 40960, %s' % (vr(V['WS2']), vr(V['WS'])))
        self.build_srd(R_BIM, S_BIM, 819200)
        PF = o.get('pf', 0)
        if PF:
            a('s_lshr_b32 s90, s2, 3')
            a('s_lshl_b32 s90, s90, 2')
            a('s_add_u32 s90, s90, s%d' % sW)
            a('s_mul_i32 s91, s90, 40')
            a('v_min_u32 v64, 39, v0')
            a('v_add_u32 v64, s91, v64')
            a('v_lshlrev_b32 v64, 7, v64')
            a('s_and_b32 s91, s2, 7')
            a('s_lshr_b32 s91, s91, 1')
            a('s_mul_i32 s91, s91, %d' % (512 * 1280))
            a('buffer_load_dword v68, v64, %s, s91 offen' % srd(R_X))
            a('s_mul_i32 s91, s90, 25')
            a('v_min_u32 v64, 24, v0')
            a('v_add_u32 v64, s91, v64')
            a('v_mul_u32_u24 v65, 6554, v64')
            a('v_lshrrev_b32 v65, 21, v65')
            a('v_mul_u32_u24 v66, 320, v65')
            a('v_sub_u32 v64, v64, v66')
            a('s_mul_i32 s91, s%d, 6' % sHALF)
            a('s_lshl_b32 s92, s%d, 2' % sHALF)
            a('s_add_u32 s92, s92, 6')
            a('v_add_u32 v66, s91, v65')
            a('v_add_u32 v67, s92, v65')
            a('v_cmp_gt_u32 vcc, 6, v65')
            a('v_cndmask_b32 v65, v67, v66, vcc')
            a('v_mul_u32_u24 v65, 40960, v65')
            a('v_lshl_add_u32 v64, v64, 7, v65')
            a('buffer_load_dword v69, v64, %s, 0 offen' % srd(R_BRE))
            a('buffer_load_dword v70, v64, %s, 0 offen' % srd(R_BIM))
        put_all(xdma(0))
        put_all([s_load(0, 0, 0), s_load(0, 1, 0)])
        if PF != 2:
            put_all(xdma(1))
            put_all([s_load(0, 0, 1), s_load(0, 1, 1)])
        for g in range(ngrp):
            a('s_add_u32 s90, s%d, %d' % (sG, g))
            a('s_lshl_b32 s90, s90, 6')
            a('v_add_u32 v59, s90, %s' % vr(self.PO))
            a('global_load_ushort %s, v59, s[%d:%d]' % (vr(V['lr%d' % g]), S_LRE, S_LRE + 1))
            a('global_load_ushort %s, v59, s[%d:%d]' % (vr(V['li%d' % g]), S_LIM, S_LIM + 1))
            a('global_load_ushort %s, v59, s[%d:%d]' % (vr(V['cr%d' % g]), S_LDT, S_LDT + 1))
        a('s_mov_b32 m0, %d' % L_GW)
        a('s_nop 0')
        a('buffer_load_dwordx4 %s, %s, 0 offen lds' % (vr(self.GO0), srd(R_GW)))
        a('s_mov_b32 m0, %d' % (L_GW + 1024))
        a('s_nop 0')
        gw_dma = a('buffer_load_dwordx4 %s, %s, 0 offen lds' % (vr(self.GO1), srd(R_GW)))

        self.stamp(2)

        def G(lines):
            return [[Ins(x)] for x in lines]

        U0, U1, U2, U3, U4 = PT, PT + 1, PT + 2, PT + 3, PT + 4
        a('v_and_b32 %s, 31, v0' % vr(U0))
        a('v_lshrrev_b32 %s, 5, v0' % vr(U1))
        self.lane_t(U2, U0, U3)
        a('v_bfe_u32 %s, %s, 1, 3' % (vr(U3), vr(U2)))
        a('v_lshlrev_b32 %s, 1, %s' % (vr(U4), vr(U1)))
        a('v_xor_b32 %s, %s, %s' % (vr(U3), vr(U3), vr(U4)))
        a('v_lshlrev_b32 %s, 7, %s' % (vr(U2), vr(U2)))
        a('v_add_u32 %s, s%d, %s' % (vr(U2), sXS, vr(U2)))
        for u in range(2):
            for ab in range(2):
                d = XR + 2 * u + ab
                a('v_xor_b32 %s, %d, %s' % (vr(d), 4 * u + ab, vr(U3)))
                a('v_lshl_add_u32 %s, %s, 4, %s' % (vr(d), vr(d), vr(U2)))
        a('v_lshlrev_b32 %s, 5, %s' % (vr(V['GW']), vr(U1)))
        a('v_add_u32 %s, %d, %s' % (vr(V['GW']), L_GW, vr(V['GW'])))
        a('v_bfe_u32 %s, %s, 1, 3' % (vr(U2), vr(U0)))
        a('v_xor_b32 %s, %s, %s' % (vr(U2), vr(U2), vr(U4)))
        a('v_lshlrev_b32 %s, 7, %s' % (vr(U3), vr(U0)))
        for u in range(2):
            for ab in range(2):
                d = V['RS'] + 2 * u + ab
                a('v_xor_b32 %s, %d, %s' % (vr(d), 4 * u + ab, vr(U2)))
                a('v_lshl_add_u32 %s, %s, 4, %s' % (vr(d), vr(d), vr(U3)))

        def gate_reads(half):
            return G(['ds_read_b128 %s, %s offset:%d' % (ar(A_GW + 4 * k, 4), vr(V['GW']), 64 * ((20 * half + k) >> 1) + 16 * (k & 1)) for k in range(20)])
        def late_scalars():
            L = []
            for r, ptr, nb in ((R_WS, S_WS, WS_BYTES), (R_W1, S_W1, 1966080), (R_W2, S_W2, 1966080)):
                L += ['s_mov_b32 s%d, s%d' % (r, ptr), 's_and_b32 s%d, s%d, 0xffff' % (r + 1, ptr + 1),
                      's_mov_b32 s%d, 0x%x' % (r + 2, nb), 's_mov_b32 s%d, 0x20000' % (r + 3)]
            L += ['s_lshl_b32 s90, s%d, 3' % sRHO, 's_add_u32 s90, s90, s%d' % sW, 's_mul_i32 s90, s90, 24576',
                  's_lshl_b32 s91, s%d, 8' % sA, 's_add_u32 s%d, s90, s91' % sFB]
            if A:
                t0, t1, t2 = PT, PT + 1, PT + 2
                L += ['v_lshrrev_b32 %s, 3, v0' % vr(t0),
                      'v_mul_u32_u24 %s, 3072, %s' % (vr(t1), vr(t0)),
                      'v_bfe_u32 %s, %s, 1, 1' % (vr(t0), vr(t0)),
                      'v_lshlrev_b32 %s, 2, %s' % (vr(t0), vr(t0)),
                      'v_and_b32 %s, 7, v0' % vr(t2),
                      'v_xor_b32 %s, %s, %s' % (vr(t0), vr(t0), vr(t2)),
                      'v_lshl_add_u32 %s, %s, 4, %s' % (vr(V['WF']), vr(t0), vr(t1))]
            return G(L)

        w2_dma = []
        c_dma = []

        def w2_setup():
            T0, T1 = 59, PT + 4
            L = ['v_lshrrev_b32 %s, 1, v0' % vr(T0),
                 'v_mul_u32_u24 %s, 1280, %s' % (vr(T0), vr(T0)),
                 'v_and_b32 %s, 1, v0' % vr(T1),
                 'v_lshl_add_u32 %s, %s, 4, %s' % (vr(T0), vr(T1), vr(T0)),
                 's_lshl_b32 s90, s2, 2',
                 's_add_u32 s%d, s90, s%d' % (sGWI, sW),
                 's_cmp_lt_u32 s%d, 960' % sGWI]
            gr = G(L[:-1]) + [[Ins(L[-1]), Ins('s_cselect_b32 s91, 0, 0x%x' % OOB)]]
            gr += G(['v_add_u32 %s, s91, %s' % (vr(T0), vr(T0)),
                     'v_lshlrev_b32 %s, 4, v0' % vr(V['W2D']),
                     'v_add_u32 v1, s91, %s' % vr(V['W2D']),
                     's_min_u32 s91, s%d, 959' % sGWI,
                     's_lshl_b32 s91, s91, 1',
                     's_mul_hi_u32 s90, s91, 0x%x' % magic(240),
                     's_mul_i32 s94, s90, 240',
                     's_sub_u32 s91, s91, s94',
                     's_mul_i32 s94, s90, 440',
                     's_add_u32 s94, s94, s91',
                     's_lshl_b32 s94, s94, 10',
                     's_add_u32 s26, s94, 0x%x' % WT_OFF])
            for e in range(2):
                L = []
                if e:
                    L.append('s_add_u32 s91, s91, 1')
                L += ['s_mul_hi_u32 s94, s91, 0x%x' % magic(5),
                      's_mul_i32 s95, s94, 5',
                      's_sub_u32 s95, s91, s95',
                      's_mul_i32 s94, s94, 40960',
                      's_mul_i32 s96, s90, 160',
                      's_add_u32 s94, s94, s96',
                      's_lshl_b32 s95, s95, 5',
                      's_add_u32 s%d, s94, s95' % (27, 29)[e]]
                gr += G(L)
                ld = Ins('buffer_load_dwordx4 %s, %s, s%d offen lds' % (vr(T0), srd(R_W2), (27, 29)[e]))
                gr.append([Ins('s_add_u32 m0, s%d, %d' % (sW10, 2 * SLOT + 12288 + 4096 * e)), Ins('s_nop 0'), ld])
                w2_dma.append(ld)
            return gr

        _w2 = w2_setup()
        w2_setup_b = [g for g in _w2 if any(x.kind == 'vm' for x in g)]
        w2_setup_a = [g for g in _w2 if not any(x.kind == 'vm' for x in g)]
        assert len(w2_setup_b) == 2

        def c_setup():
            gr = [[Ins('s_cmp_lt_u32 s%d, 800' % sGWI), Ins('s_cselect_b32 s91, 0, 0x%x' % OOB)]]
            gr += G(['v_add_u32 %s, s91, %s' % (vr(CD), vr(CD)),
                     'v_add_u32 %s, s91, %s' % (vr(CD + 1), vr(CD + 1)),
                     'v_add_u32 v2, s91, %s' % vr(V['W2D']),
                     's_min_u32 s91, s%d, 799' % sGWI])
            gr.append([Ins('s_cmp_ge_u32 s91, 400'), Ins('s_cselect_b32 s90, 1, 0'),
                       Ins('s_cselect_b32 s%d, s%d, s%d' % (R_CI, S_CIM, S_CRE)),
                       Ins('s_cselect_b32 s%d, s%d, s%d' % (R_CI + 1, S_CIM + 1, S_CRE + 1))])
            gr += G(['s_and_b32 s%d, s%d, 0xffff' % (R_CI + 1, R_CI + 1),
                     's_mov_b32 s%d, 819200' % (R_CI + 2),
                     's_mov_b32 s%d, 0x20000' % (R_CI + 3),
                     's_mul_i32 s94, s90, 400',
                     's_sub_u32 s91, s91, s94',
                     's_mul_hi_u32 s94, s91, 0x%x' % magic(50),
                     's_mul_i32 s95, s94, 50',
                     's_sub_u32 s91, s91, s95',
                     's_mul_hi_u32 s95, s91, 0x%x' % magic(5),
                     's_mul_i32 s96, s95, 5',
                     's_sub_u32 s96, s91, s96',
                     's_mul_i32 s97, s94, 80',
                     's_lshl_b32 s91, s96, 4',
                     's_add_u32 s97, s97, s91',
                     's_mul_i32 s97, s97, 1280',
                     's_lshl_b32 s91, s95, 7',
                     's_add_u32 s24, s97, s91',
                     's_mul_i32 s90, s90, 20',
                     's_lshl_b32 s95, s95, 1',
                     's_add_u32 s90, s90, s95',
                     's_add_u32 s90, s90, 48',
                     's_mul_i32 s94, s94, 88',
                     's_add_u32 s90, s90, s94',
                     's_mul_i32 s90, s90, 5',
                     's_add_u32 s90, s90, s96',
                     's_lshl_b32 s90, s90, 10',
                     's_add_u32 s25, s90, 0x%x' % WT_OFF])
            return gr

        def item_addrs():
            U2, U3, U4 = PT + 5, PT + 6, PT + 7
            return G(['v_lshrrev_b32 %s, 5, v0' % vr(U2),
                      'v_lshlrev_b32 %s, 4, %s' % (vr(U2), vr(U2)),
                      'v_bfe_u32 %s, v0, 4, 1' % vr(U3),
                      'v_lshl_add_u32 %s, %s, 2, %s' % (vr(U2), vr(U3), vr(U2)),
                      'v_bfe_u32 %s, v0, 2, 2' % vr(U3),
                      'v_add_u32 %s, %s, %s' % (vr(U2), vr(U2), vr(U3)),
                      'v_lshlrev_b32 %s, 5, %s' % (vr(U2), vr(U2)),
                      'v_and_b32 %s, 3, v0' % vr(U3),
                      'v_lshl_add_u32 %s, %s, 3, %s' % (vr(U2), vr(U3), vr(U2)),
                      's_add_u32 s97, s%d, %d' % (sW10, 2 * SLOT + 12288),
                      'v_add_u32 %s, s97, %s' % (vr(V['W2R']), vr(U2)),
                      's_add_u32 s97, s%d, %d' % (sW10, 3 * SLOT + 12288),
                      'v_and_b32 %s, 15, v0' % vr(U2),
                      'v_lshrrev_b32 %s, 4, v0' % vr(U3),
                      'v_lshrrev_b32 %s, 1, %s' % (vr(U4), vr(U2)),
                      'v_xor_b32 %s, %s, %s' % (vr(U3), vr(U3), vr(U4)),
                      'v_lshlrev_b32 %s, 4, %s' % (vr(U3), vr(U3)),
                      'v_xor_b32 %s, 64, %s' % (vr(U4), vr(U3)),
                      'v_and_b32 %s, 7, %s' % (vr(PT + 9), vr(U2)),
                      'v_lshrrev_b32 %s, 3, %s' % (vr(U2), vr(U2)),
                      'v_lshlrev_b32 %s, 12, %s' % (vr(U2), vr(U2)),
                      'v_lshl_add_u32 %s, %s, 7, %s' % (vr(U2), vr(PT + 9), vr(U2)),
                      'v_add_u32 %s, s97, %s' % (vr(U2), vr(U2)),
                      'v_add_u32 %s, %s, %s' % (vr(CR), vr(U3), vr(U2)),
                      'v_add_u32 %s, %s, %s' % (vr(CR + 1), vr(U4), vr(U2))])

        def lane_consts():
            U0, U1, U2, U3 = PT, PT + 1, PT + 2, PT + 3
            SEGV, E0, E1 = PT + 8, PT + 9, PT + 10
            L = ['v_and_b32 %s, 31, v0' % vr(U0),
                 'v_lshrrev_b32 %s, 5, v0' % vr(U1),
                 'v_lshrrev_b32 %s, 4, %s' % (vr(U2), vr(U0)),
                 'v_lshlrev_b32 %s, 10, %s' % (vr(U2), vr(U2)),
                 'v_and_b32 %s, 15, %s' % (vr(U3), vr(U0)),
                 'v_lshl_add_u32 %s, %s, 4, %s' % (vr(U3), vr(U1), vr(U3)),
                 'v_lshl_add_u32 %s, %s, 4, %s' % (vr(V['ST']), vr(U3), vr(U2)),
                 'v_lshlrev_b32 %s, 4, %s' % (vr(V['AG']), vr(U0)),
                 'v_mul_u32_u24 %s, 80, %s' % (vr(V['SEGR']), vr(U0)),
                 'v_add_u32 %s, %d, %s' % (vr(V['SEGR']), MISC, vr(V['SEGR'])),
                 's_lshl_b32 s95, s%d, 1' % sW,
                 'v_add_u32 %s, s95, %s' % (vr(SEGV), vr(U1)),
                 'v_lshl_add_u32 %s, %s, 3, %s' % (vr(V['SEGW']), vr(SEGV), vr(V['SEGR']))]
            gr = G(L)
            for i2, E in ((0, E0), (1, E1)):
                gr += G(['v_add_u32 %s, %d, %s' % (vr(U3), 8 * i2, vr(SEGV)),
                         'v_sub_u32 %s, s%d, %s' % (vr(E), sR, vr(U3)),
                         'v_add_u32 %s, -1, %s' % (vr(E), vr(E))])
                gr.append([Ins('v_cmp_gt_u32 vcc, s%d, %s' % (sR, vr(U3))),
                           Ins('v_cndmask_b32 %s, -1, %s, vcc' % (vr(E), vr(E))),
                           Ins('v_cndmask_b32 %s, 0, %s, vcc' % (vr(U3), vr(U3)))])
                gr += G(['v_lshl_add_u32 %s, %s, 9, %s' % (vr(V['LB%d' % i2]), vr(U3), vr(V['AG']))])
            if A:
                jl, mh, tq = PT + 4, PT + 5, PT + 6
                L = ['v_and_b32 %s, 15, v0' % vr(jl),
                     'v_bfe_u32 %s, v0, 4, 1' % vr(mh),
                     'v_lshrrev_b32 %s, 2, %s' % (vr(U2), vr(jl)),
                     'v_lshl_add_u32 %s, %s, 4, %s' % (vr(U2), vr(U1), vr(U2)),
                     'v_lshlrev_b32 %s, 7, %s' % (vr(U2), vr(U2)),
                     'v_and_b32 %s, 1, %s' % (vr(U3), vr(jl)),
                     'v_lshl_add_u32 %s, %s, 3, %s' % (vr(U2), vr(U3), vr(U2)),
                     'v_bfe_u32 %s, %s, 1, 1' % (vr(U3), vr(jl)),
                     'v_lshl_add_u32 %s, %s, 1, %s' % (vr(U3), vr(mh), vr(U3)),
                     'v_bfe_u32 %s, %s, 3, 1' % (vr(tq), vr(jl)),
                     'v_lshlrev_b32 %s, 2, %s' % (vr(tq), vr(tq)),
                     'v_xor_b32 %s, %s, %s' % (vr(U3), vr(U3), vr(tq))]
                for tp in range(2):
                    d = V['RF'] + tp
                    L += ['v_xor_b32 %s, %d, %s' % (vr(d), 4 * tp, vr(U3)),
                          'v_lshl_add_u32 %s, %s, 4, %s' % (vr(d), vr(d), vr(U2)),
                          'v_add_u32 %s, %d, %s' % (vr(d + 2), 3 * SLOT, vr(d)),
                          'v_add_u32 %s, %d, %s' % (vr(d + 4), 6 * SLOT, vr(d))]
                gr += G(L)
            gr += G(['s_lshr_b32 s90, s%d, 1' % sW, 's_lshl_b32 s91, s%d, 1' % sR, 's_add_u32 s90, s90, s91',
                     's_mul_i32 s90, s90, %d' % (88 * 4096), 's_and_b32 s91, s%d, 1' % sW, 's_lshl_b32 s91, s91, 11',
                     's_add_u32 s90, s90, s91', 's_add_u32 s90, s90, 0x%x' % H_OFF, 's_lshl_b32 s91, s%d, 14' % sA,
                     's_add_u32 s%d, s90, s91' % sHF, 's_lshl_b32 s91, s%d, 12' % sG, 's_add_u32 s%d, s90, s91' % sHS,
                     's_add_u32 s%d, s%d, 1' % (sTAG, sE), 's_xor_b32 s%d, s%d, 0x5bd1e995' % (sTAG2, sTAG)])
            return gr

        def params(g):
            SEGV, E = PT + 8, (PT + 9, PT + 10)
            P0, P1, P2, P3, P4, P5, FM = PT, PT + 1, PT + 2, PT + 3, PT + 4, PT + 5, PT + 6
            lr, li, nli, cr, ci = (V[x + str(g)] for x in ('lr', 'li', 'nli', 'cr', 'ci'))

            def cpow(dr, di, m_reg, m_const):
                if m_reg is not None:
                    L = ['v_mul_f32 %s, %s, %s' % (vr(P2), vr(m_reg), vr(P3)), 'v_mul_f32 %s, %s, %s' % (vr(P5), vr(m_reg), vr(P4))]
                else:
                    L = ['v_mul_f32 %s, 0x%08x, %s' % (vr(P2), f2u(float(m_const)), vr(P3)),
                         'v_mul_f32 %s, 0x%08x, %s' % (vr(P5), f2u(float(m_const)), vr(P4))]
                return L + ['v_exp_f32 %s, %s' % (vr(P2), vr(P2)), 'v_fract_f32 %s, %s' % (vr(P5), vr(P5)),
                            'v_cos_f32 %s, %s' % (vr(dr), vr(P5)), 'v_sin_f32 %s, %s' % (vr(di), vr(P5)),
                            'v_mul_f32 %s, %s, %s' % (vr(dr), vr(P2), vr(dr)), 'v_mul_f32 %s, %s, %s' % (vr(di), vr(P2), vr(di))]
            L = ['v_lshlrev_b32 %s, 16, %s' % (vr(P0), vr(lr)),
                 'v_lshlrev_b32 %s, 16, %s' % (vr(P1), vr(li)),
                 'v_lshlrev_b32 %s, 16, %s' % (vr(P2), vr(cr)),
                 'v_mul_f32 %s, %s, %s' % (vr(P2), LOG2E, vr(P2)),
                 'v_exp_f32 %s, %s' % (vr(P2), vr(P2)),
                 'v_cvt_pk_bf16_f32 %s, %s, %s' % (vr(P2), vr(P2), vr(P2)),
                 'v_lshlrev_b32 %s, 16, %s' % (vr(P2), vr(P2)),
                 'v_mul_f32 %s, %s, %s' % (vr(P3), vr(P2), vr(P0)),
                 'v_mul_f32 %s, %s, %s' % (vr(P4), vr(P2), vr(P1)),
                 'v_mul_f32 %s, %s, %s' % (vr(P3), LOG2E, vr(P3)),
                 'v_mul_f32 %s, %s, %s' % (vr(P4), INV2PI, vr(P4))]
            L += cpow(lr, li, None, 1)
            L += ['v_sub_f32 %s, 0, %s' % (vr(nli), vr(li))]
            L += cpow(V['l16r%d' % g], V['l16i%d' % g], None, 16)
            L += ['v_cvt_f32_u32 %s, %s' % (vr(FM), vr(SEGV)), 'v_mul_f32 %s, 0x41800000, %s' % (vr(FM), vr(FM))]
            L += cpow(V['lsr%d' % g], V['lsi%d' % g], FM, None)
            gr = G(L)
            for k in range(2):
                pr, pi = V['p%dr%d' % (k + 1, g)], V['p%di%d' % (k + 1, g)]
                gr += G(['v_cvt_f32_i32 %s, %s' % (vr(FM), vr(E[k])), 'v_mul_f32 %s, 0x43000000, %s' % (vr(FM), vr(FM))] + cpow(pr, pi, FM, None))
                gr.append([Ins('v_cmp_le_i32 vcc, 0, %s' % vr(E[k])),
                           Ins('v_cndmask_b32 %s, 0, %s, vcc' % (vr(pr), vr(pr))),
                           Ins('v_cndmask_b32 %s, 0, %s, vcc' % (vr(pi), vr(pi)))])
            gr += G(['v_add_f32 %s, -1.0, %s' % (vr(P2), vr(lr)),
                     'v_mul_f32 %s, %s, %s' % (vr(P3), vr(P0), vr(P0)),
                     'v_fmac_f32 %s, %s, %s' % (vr(P3), vr(P1), vr(P1)),
                     'v_rcp_f32 %s, %s' % (vr(P3), vr(P3)),
                     'v_mul_f32 %s, %s, %s' % (vr(P4), vr(P2), vr(P0)),
                     'v_fmac_f32 %s, %s, %s' % (vr(P4), vr(li), vr(P1)),
                     'v_mul_f32 %s, %s, %s' % (vr(P5), vr(li), vr(P0)),
                     'v_fma_f32 %s, -%s, %s, %s' % (vr(P5), vr(P2), vr(P1), vr(P5)),
                     'v_add_f32 %s, %s, %s' % (vr(P3), vr(P3), vr(P3)),
                     'v_mul_f32 %s, %s, %s' % (vr(cr), vr(P4), vr(P3)),
                     'v_mul_f32 %s, %s, %s' % (vr(ci), vr(P5), vr(P3))])
            return gr

        def ssm_ops(i):
            kind, g, st = seq[i]
            slot = slot_of[i]
            acc = ACC[g] + (16 if st % 2 else 0)
            kh = st // 2
            gate = (g == 0 and st % 2 == 0)
            base = slot * SLOT
            rsb = V['RS']
            pre = []
            if base + SLOT > 65536:
                rsb = RING_ADDR
                pre = [Ins('v_add_u32 %s, %d, %s' % (vr(RING_ADDR + k), base, vr(V['RS'] + k))) for k in range(4)]
                base = 0
            ops = []
            for sp in range(20):
                bp, ab = sp >> 1, sp & 1
                kb, u = bp >> 1, bp & 1
                s = 20 * kh + sp
                q = RING + 4 * (sp % 4)
                rd = Ins('ds_read_b128 %s, %s offset:%d' % (vr(q, 4), vr(rsb + 2 * u + ab), base + kb * 4096))
                first = (kh == 0 and sp == 0)
                m = Ins('v_mfma_f32_32x32x16_bf16 %s, %s, %s, %s' % (vr(acc, 16), XF(s), vr(q, 4), '0' if first else vr(acc, 16)))
                gm = None
                if gate:
                    gm = Ins('v_mfma_f32_32x32x16_bf16 %s, %s, %s, %s' % (vr(GACC, 16), ar(A_GW + 4 * sp, 4), XF(s), '0' if s == 0 else vr(GACC, 16)))
                ops.append((rd, m, gm))
            return pre, ops

        def ssm_stage(i, hooks=None):
            pre, ops = ssm_ops(i)
            out = list(pre)
            dist = 3
            for sp in range(dist):
                out.append(ops[sp][0])
            for sp in range(20):
                rd, m, gm = ops[sp]
                out.append(m)
                if sp + dist < 20:
                    out.append(ops[sp + dist][0])
                if hooks and sp in hooks:
                    for grp in hooks[sp]:
                        out += grp
                if gm is not None:
                    out.append(gm)
            return out

        def kstream(g, hooks, dist=3):
            ops = []
            for s_ in range(40):
                kap, kh = s_ >> 2, s_ // 20
                sp = s_ - 20 * kh
                bp, ab = sp >> 1, sp & 1
                kb, u = bp >> 1, bp & 1
                rds, ms = [], []
                for m in range(2):
                    slot = slot_of[4 * g + 2 * kh + m]
                    if slot >= 3:
                        reg, base = RING_ADDR, (slot - 3) * SLOT
                    else:
                        reg, base = V['RS'], slot * SLOT
                    q = RING + 4 * ((2 * s_ + m) % 8)
                    acc = ACC[g] + 16 * m
                    rds.append(Ins('ds_read_b128 %s, %s offset:%d' % (vr(q, 4), vr(reg + 2 * u + ab), base + kb * 4096)))
                    ms.append(Ins('v_mfma_f32_32x32x16_bf16 %s, %s, %s, %s' % (vr(acc, 16), XF(s_), vr(q, 4), '0' if s_ == 0 else vr(acc, 16))))
                if g == 0:
                    ms.append(Ins('v_mfma_f32_32x32x16_bf16 %s, %s, %s, %s' % (vr(GACC, 16), ar(A_GW + 4 * (s_ % 20), 4), XF(s_), '0' if s_ == 0 else vr(GACC, 16))))
                ops.append((rds, ms))
            out = []
            for s_ in range(dist):
                out += hooks.get(('pre', s_), [])
                out += ops[s_][0]
            for s_ in range(40):
                rds, ms = ops[s_]
                out.append(ms[0])
                for grp in hooks.get(s_, []):
                    out += grp
                out.append(ms[1])
                if s_ + dist < 40:
                    out += hooks.get(('pre', s_ + dist), [])
                    out += ops[s_ + dist][0]
                out += ms[2:]
            return out

        def stage_open(covers):
            for c in covers:
                a.put(WaitVM(dma_last[c]))
            a.waitcnt(lg=0)
            a('s_barrier')

        item_rd = []

        def w2_item(T):
            gr = []
            for e in range(2):
                q = T + 4 * e
                g0 = [Ins('ds_read_b64_tr_b16 %s, %s offset:%d' % (vr(q, 2), vr(V['W2R']), 4096 * e))]
                if e == 0:
                    g0 = [WaitVM(w2_dma[1])] + g0
                gr.append(g0)
                rd = Ins('ds_read_b64_tr_b16 %s, %s offset:%d' % (vr(q + 2, 2), vr(V['W2R']), 4096 * e + 256))
                gr.append([rd])
            st = [[Ins('buffer_store_dwordx4 %s, v1, %s, s26 offen sc1' % (vr(T, 4), srd(R_WS)))],
                  [Ins('buffer_store_dwordx4 %s, v1, %s, s26 offen offset:1024 sc1' % (vr(T + 4, 4), srd(R_WS)))]]
            return gr, st

        def c_dmas():
            gr = []
            for e in range(2):
                ld = Ins('buffer_load_dwordx4 %s, %s, s24 offen lds' % (vr(CD + e), srd(R_CI)))
                gr.append([Ins('s_add_u32 m0, s%d, %d' % (sW10, 3 * SLOT + 12288 + 4096 * e)), Ins('s_nop 0'), ld])
                c_dma.append(ld)
            return gr

        def c_item(T):
            gr = [[WaitVM(c_dma[1]), Ins('ds_read_b128 %s, %s' % (vr(T, 4), vr(CR)))],
                  [Ins('ds_read_b128 %s, %s' % (vr(T + 4, 4), vr(CR + 1)))]]
            last = Ins('buffer_store_dwordx4 %s, v2, %s, s96 offen sc1' % (vr(T + 4, 4), srd(R_WS)))
            st = [[Ins('buffer_store_dwordx4 %s, v2, %s, s25 offen sc1' % (vr(T, 4), srd(R_WS)))],
                  [Ins('s_add_u32 s96, s25, 5120'), last]]
            return gr, st, last

        def w1_prefetch(T):
            t0, t1, t2 = T, T + 1, T + 2
            return G(['s_lshr_b32 s90, s2, 3', 's_lshl_b32 s90, s90, 2', 's_add_u32 s90, s90, s%d' % sW, 's_mul_i32 s90, s90, 60',
                      'v_min_u32 %s, 59, v0' % vr(t0), 'v_add_u32 %s, s90, %s' % (vr(t0), vr(t0)),
                      'v_mul_u32_u24 %s, 43691, %s' % (vr(t1), vr(t0)), 'v_lshrrev_b32 %s, 19, %s' % (vr(t1), vr(t1)),
                      'v_mul_u32_u24 %s, 12, %s' % (vr(t2), vr(t1)), 'v_sub_u32 %s, %s, %s' % (vr(t0), vr(t0), vr(t2)),
                      'v_mul_u32_u24 %s, 3072, %s' % (vr(t1), vr(t1)), 'v_lshl_add_u32 %s, %s, 7, %s' % (vr(t0), vr(t0), vr(t1)),
                      's_mul_i32 s90, s%d, 1536' % sHALF,
                      'buffer_load_dword %s, %s, %s, s90 offen' % (vr(T + 3), vr(t0), srd(R_W1))])

        def w_flag(T, st):
            return [[WaitVM(st), Ins('v_mov_b32 %s, s%d' % (vr(T), sTAG))],
                    [Ins('v_mov_b32 %s, s%d' % (vr(T + 1), sTAG2))],
                    [Ins('v_mov_b32 %s, 0' % vr(T + 2))],
                    [Ins('s_lshl_b32 s90, s%d, 3' % sGWI), Ins('s_add_u32 s90, s90, 0x%x' % WF_OFF),
                     Ins('buffer_store_dwordx2 %s, %s, %s, s90 offen sc1' % (vr(T, 2), vr(T + 2), srd(R_WS)))]]

        def masks(T):
            g_ = [[Ins('v_lshrrev_b32 %s, 5, v0' % vr(T))], [Ins('s_lshl_b32 s95, s%d, 1' % sW), Ins('v_add_u32 %s, s95, %s' % (vr(T), vr(T)))]]
            for s_ in range(1, 8):
                g_.append([Ins('v_cmp_eq_u32 s[%d:%d], %d, %s' % (S_MASK + 2 * (s_ - 1), S_MASK + 2 * (s_ - 1) + 1, s_, vr(T)))])
            return g_

        def gate_math(T):
            G, OMG = V['G'], V['OMG']
            t0, t1, t2 = T, T + 1, T + 2
            L = ['v_cvt_pk_bf16_f32 %s, %s, %s' % (vr(t0), vr(GACC), vr(GACC)),
                 'v_lshlrev_b32 %s, 16, %s' % (vr(t0), vr(t0)),
                 'v_mul_f32 %s, 0x%08x, %s' % (vr(t0), f2u(-math.log2(math.e)), vr(t0)),
                 'v_exp_f32 %s, %s' % (vr(t0), vr(t0)),
                 'v_and_b32 %s, 31, v0' % vr(t1),
                 'v_add_f32 %s, 1.0, %s' % (vr(t0), vr(t0)),
                 'v_rcp_f32 %s, %s' % (vr(t0), vr(t0)),
                 'v_bfe_u32 %s, %s, 2, 1' % (vr(t2), vr(t1)),
                 'v_cvt_pk_bf16_f32 %s, %s, %s' % (vr(t0), vr(t0), vr(t0)),
                 'v_lshlrev_b32 %s, 16, %s' % (vr(G), vr(t0)),
                 'v_sub_f32 %s, 1.0, %s' % (vr(t0), vr(G)),
                 'v_cvt_pk_bf16_f32 %s, %s, %s' % (vr(t0), vr(t0), vr(t0)),
                 'v_lshlrev_b32 %s, 16, %s' % (vr(OMG), vr(t0)),
                 'v_lshlrev_b32 %s, 4, %s' % (vr(t2), vr(t2)),
                 'v_and_b32 %s, 3, %s' % (vr(t0), vr(t1)),
                 'v_add_u32 %s, %s, %s' % (vr(t0), vr(t0), vr(t2)),
                 'v_lshrrev_b32 %s, 3, %s' % (vr(t2), vr(t1)),
                 'v_lshl_add_u32 %s, %s, 2, %s' % (vr(t0), vr(t2), vr(t0)),
                 's_lshl_b32 s95, s%d, 5' % sW,
                 'v_add_u32 %s, s95, %s' % (vr(t0), vr(t0)),
                 'v_lshlrev_b32 %s, 2, %s' % (vr(t0), vr(t0)),
                 'v_add_u32 %s, %d, %s' % (vr(t0), L_GATE, vr(t0)),
                 'ds_write_b32 %s, %s' % (vr(t0), vr(G))]
            return [[Ins(x)] for x in L]

        def pass1(g):
            it = []
            RE, IM = ACC[g], ACC[g] + 16
            lr, li, nli = V['lr%d' % g], V['li%d' % g], V['nli%d' % g]
            sa = [SC[g] + 0, SC[g] + 1]
            sb = [SC[g] + 2, SC[g] + 3]
            cur = [RE, IM]
            for t in range(1, 16):
                d = sa if t % 2 else sb
                it.append(Ins('v_fma_f32 %s, %s, %s, %s' % (vr(d[0]), vr(lr), vr(cur[0]), vr(RE + t))))
                it.append(Ins('v_fma_f32 %s, %s, %s, %s' % (vr(d[1]), vr(lr), vr(cur[1]), vr(IM + t))))
                it.append(Ins('v_fmac_f32 %s, %s, %s' % (vr(d[0]), vr(nli), vr(cur[1]))))
                it.append(Ins('v_fmac_f32 %s, %s, %s' % (vr(d[1]), vr(li), vr(cur[0]))))
                cur = d
            it.append(Ins('ds_write_b64 %s, %s offset:%d' % (vr(V['SEGW']), vr(cur[0], 2), L_SEG - MISC + 2560 * g)))
            return [[x] for x in it]

        def prefix(g, buf):
            it = []
            l16r, l16i = V['l16r%d' % g], V['l16i%d' % g]
            Pr, Pi = SC[g] + 0, SC[g] + 1
            for jj in range(4):
                it.append(Ins('ds_read_b128 %s, %s offset:%d' % (vr(buf + 4 * jj, 4), vr(V['SEGR']), L_SEG - MISC + 2560 * g + 16 * jj)))
            it.append(Ins('v_mov_b32 %s, 0' % vr(Pr)))
            it.append(Ins('v_mov_b32 %s, 0' % vr(Pi)))
            sel = []
            for s in range(1, 8):
                m = S_MASK + 2 * (s - 1)
                pr, pi_, cr_, ci_ = buf + 2 * (s - 1), buf + 2 * (s - 1) + 1, buf + 2 * s, buf + 2 * s + 1
                it.append(Ins('v_fmac_f32 %s, %s, %s' % (vr(cr_), vr(l16r), vr(pr))))
                it.append(Ins('v_fmac_f32 %s, %s, %s' % (vr(ci_), vr(l16r), vr(pi_))))
                it.append(Ins('v_fma_f32 %s, -%s, %s, %s' % (vr(cr_), vr(l16i), vr(pi_), vr(cr_))))
                it.append(Ins('v_fmac_f32 %s, %s, %s' % (vr(ci_), vr(l16i), vr(pr))))
                sel.append(Ins('v_cndmask_b32 %s, %s, %s, s[%d:%d]' % (vr(Pr), vr(Pr), vr(pr), m, m + 1)))
                sel.append(Ins('v_cndmask_b32 %s, %s, %s, s[%d:%d]' % (vr(Pi), vr(Pi), vr(pi_), m, m + 1)))
            pb = 52 if A else 88
            it.append(Ins('v_mov_b32 %s, %s' % (vr(pb), vr(buf + 14))))
            it.append(Ins('v_mov_b32 %s, s%d' % (vr(pb + 1), sTAG)))
            it.append(Ins('v_mov_b32 %s, %s' % (vr(pb + 2), vr(buf + 15))))
            it.append(Ins('v_mov_b32 %s, s%d' % (vr(pb + 3), sTAG)))
            it.append(Ins('s_add_u32 s97, s%d, %d' % (sG, g)))
            it.append(Ins('s_lshl_b32 s97, s97, 4'))
            it.append(Ins('s_add_u32 s97, s97, s%d' % sR))
            it.append(Ins('s_lshl_b32 s97, s97, 9'))
            it.append(Ins('s_add_u32 s97, s97, 0x%x' % AGG_OFF))
            it.append(Ins('buffer_store_dwordx4 %s, %s, %s, s97 offen sc1' % (vr(pb, 4), vr(V['AG']), srd(R_WS))))
            return [[x] for x in it + sel]

        def coef(g, t0):
            it = []
            RE, IM = ACC[g], ACC[g] + 16
            cr, ci = V['cr%d' % g], V['ci%d' % g]
            for t in range(16):
                tt = t0 + (t & 1)
                it.append(Ins('v_mul_f32 %s, %s, %s' % (vr(tt), vr(ci), vr(IM + t))))
                it.append(Ins('v_mul_f32 %s, %s, %s' % (vr(IM + t), vr(cr), vr(IM + t))))
                it.append(Ins('v_fmac_f32 %s, %s, %s' % (vr(IM + t), vr(ci), vr(RE + t))))
                it.append(Ins('v_fma_f32 %s, %s, %s, -%s' % (vr(RE + t), vr(cr), vr(RE + t), vr(tt))))
            return [[x] for x in it]

        def lb_issue(g, buf):
            return [[Ins('s_add_u32 s95, s%d, %d' % (sG, g)), Ins('s_lshl_b32 s95, s95, 13'), Ins('s_add_u32 s95, s95, 0x%x' % AGG_OFF)],
                    [Ins('buffer_load_dwordx4 %s, %s, %s, s95 offen sc1' % (vr(buf, 4), vr(V['LB0']), srd(R_WS)))],
                    [Ins('buffer_load_dwordx4 %s, %s, %s, s95 offen sc1' % (vr(buf + 4, 4), vr(V['LB1']), srd(R_WS)))]]

        def lb_check(buf, t):
            a('v_xor_b32 %s, s%d, %s' % (vr(t), sTAG, vr(buf + 1)))
            a('v_xor_b32 %s, s%d, %s' % (vr(t + 1), sTAG, vr(buf + 3)))
            a('v_xor_b32 %s, s%d, %s' % (vr(t + 2), sTAG, vr(buf + 5)))
            a('v_xor_b32 %s, s%d, %s' % (vr(t + 3), sTAG, vr(buf + 7)))
            a('v_or3_b32 %s, %s, %s, %s' % (vr(t), vr(t), vr(t + 1), vr(t + 2)))
            a('v_or_b32 %s, %s, %s' % (vr(t), vr(t), vr(t + 3)))
            a('v_cmp_ne_u32 vcc, 0, %s' % vr(t))
            a('s_cmp_eq_u64 vcc, 0')

        def lookback_wait(g, buf, lbl):
            t = buf + 8
            lb_check(buf, t)
            a.settle()
            a('s_cbranch_scc1 %s_ok' % lbl)
            snap = a.snapshot()
            a('s_mov_b32 s91, 0')
            a.drain()
            a.label(lbl)
            a('buffer_load_dwordx4 %s, %s, %s, s95 offen sc1' % (vr(buf, 4), vr(V['LB0']), srd(R_WS)))
            a('buffer_load_dwordx4 %s, %s, %s, s95 offen sc1' % (vr(buf + 4, 4), vr(V['LB1']), srd(R_WS)))
            a('s_add_u32 s91, s91, 1')
            lb_check(buf, t)
            a('s_cbranch_scc1 %s_ok' % lbl)
            a('s_cmp_lt_u32 s91, 0x%x' % o.get('spin', 200000))
            a('s_cbranch_scc1 %s' % lbl)
            a.settle()
            a.label(lbl + '_ok')
            a.restore(snap)
            p1r, p1i, p2r, p2i = (V['p%s%d' % (x, g)] for x in ('1r', '1i', '2r', '2i'))
            hr, hi = buf + 8, buf + 9
            a('v_mul_f32 %s, %s, %s' % (vr(hr), vr(p1r), vr(buf)))
            a('v_mul_f32 %s, %s, %s' % (vr(hi), vr(p1r), vr(buf + 2)))
            a('v_fma_f32 %s, -%s, %s, %s' % (vr(hr), vr(p1i), vr(buf + 2), vr(hr)))
            a('v_fmac_f32 %s, %s, %s' % (vr(hi), vr(p1i), vr(buf)))
            a('v_fmac_f32 %s, %s, %s' % (vr(hr), vr(p2r), vr(buf + 4)))
            a('v_fmac_f32 %s, %s, %s' % (vr(hi), vr(p2r), vr(buf + 6)))
            a('v_fma_f32 %s, -%s, %s, %s' % (vr(hr), vr(p2i), vr(buf + 6), vr(hr)))
            a('v_fmac_f32 %s, %s, %s' % (vr(hi), vr(p2i), vr(buf + 4)))
            a('ds_write_b64 %s, %s offset:%d' % (vr(V['SEGW']), vr(hr, 2), L_LB - MISC + 2560 * g))
            a.waitcnt(lg=0)
            a('s_barrier')

        def entry_state(g, buf):
            it = []
            for jj in range(4):
                it.append('ds_read_b128 %s, %s offset:%d' % (vr(buf + 4 * jj, 4), vr(V['SEGR']), L_LB - MISC + 2560 * g + 16 * jj))
            for jj in (1, 3, 5, 7):
                it.append('v_add_f32 %s, %s, %s' % (vr(buf + 2 * jj - 2), vr(buf + 2 * jj - 2), vr(buf + 2 * jj)))
                it.append('v_add_f32 %s, %s, %s' % (vr(buf + 2 * jj - 1), vr(buf + 2 * jj - 1), vr(buf + 2 * jj + 1)))
            for (x, y) in ((0, 4), (8, 12), (0, 8)):
                it.append('v_add_f32 %s, %s, %s' % (vr(buf + x), vr(buf + x), vr(buf + y)))
                it.append('v_add_f32 %s, %s, %s' % (vr(buf + x + 1), vr(buf + x + 1), vr(buf + y + 1)))
            Pr, Pi = SC[g] + 0, SC[g] + 1
            lsr, lsi, cr, ci = (V[x + str(g)] for x in ('lsr', 'lsi', 'cr', 'ci'))
            it += ['v_fmac_f32 %s, %s, %s' % (vr(Pr), vr(lsr), vr(buf)),
                   'v_fmac_f32 %s, %s, %s' % (vr(Pi), vr(lsr), vr(buf + 1)),
                   'v_fma_f32 %s, -%s, %s, %s' % (vr(Pr), vr(lsi), vr(buf + 1), vr(Pr)),
                   'v_fmac_f32 %s, %s, %s' % (vr(Pi), vr(lsi), vr(buf)),
                   'v_mul_f32 %s, %s, %s' % (vr(buf + 2), vr(cr), vr(Pr)),
                   'v_mul_f32 %s, %s, %s' % (vr(buf + 3), vr(cr), vr(Pi)),
                   'v_fma_f32 %s, -%s, %s, %s' % (vr(buf + 2), vr(ci), vr(Pi), vr(buf + 2)),
                   'v_fmac_f32 %s, %s, %s' % (vr(buf + 3), vr(ci), vr(Pr))]
            return [[Ins(x)] for x in it]

        def pass2(g, buf):
            it = []
            RE, IM = ACC[g], ACC[g] + 16
            lr, li, nli = V['lr%d' % g], V['li%d' % g], V['nli%d' % g]
            pr, pi_ = buf + 2, buf + 3
            for t in range(16):
                it.append(Ins('v_fmac_f32 %s, %s, %s' % (vr(RE + t), vr(lr), vr(pr))))
                it.append(Ins('v_fmac_f32 %s, %s, %s' % (vr(IM + t), vr(lr), vr(pi_))))
                it.append(Ins('v_fmac_f32 %s, %s, %s' % (vr(RE + t), vr(nli), vr(pi_))))
                it.append(Ins('v_fmac_f32 %s, %s, %s' % (vr(IM + t), vr(li), vr(pr))))
                pr, pi_ = RE + t, IM + t
            for e in range(8):
                it.append(Ins('v_cvt_pk_bf16_f32 %s, %s, %s' % (vr(RE + e), vr(RE + 2 * e), vr(RE + 2 * e + 1))))
            for e in range(8):
                it.append(Ins('v_cvt_pk_bf16_f32 %s, -%s, -%s' % (vr(RE + 8 + e), vr(IM + 2 * e), vr(IM + 2 * e + 1))))
            return [[x] for x in it]

        def build_sel(B, T):
            n_, e_, t_, val = T, T + 1, T + 2, T + 3
            g = G(['v_and_b32 %s, 31, v0' % vr(n_),
                   'v_lshrrev_b32 %s, 3, %s' % (vr(t_), vr(n_)),
                   'v_and_b32 %s, 3, %s' % (vr(e_), vr(n_)),
                   'v_lshl_add_u32 %s, %s, 2, %s' % (vr(e_), vr(t_), vr(e_)),
                   'v_bfe_u32 %s, %s, 2, 1' % (vr(t_), vr(n_)),
                   'v_lshrrev_b32 %s, 5, v0' % vr(val)])
            g.append([Ins('v_cmp_eq_u32 vcc, %s, %s' % (vr(t_), vr(val))), Ins('v_cndmask_b32 %s, 31, %s, vcc' % (vr(e_), vr(e_)))])
            g += G(['v_lshrrev_b32 %s, 16, %s' % (vr(val), vr(V['G'])),
                    'v_and_b32 %s, 1, %s' % (vr(t_), vr(e_)),
                    'v_lshlrev_b32 %s, 4, %s' % (vr(t_), vr(t_)),
                    'v_lshlrev_b32 %s, %s, %s' % (vr(val), vr(t_), vr(val)),
                    'v_lshrrev_b32 %s, 1, %s' % (vr(e_), vr(e_))])
            for k in range(8):
                g.append([Ins('v_cmp_eq_u32 vcc, %d, %s' % (k, vr(e_))),
                          Ins('v_cndmask_b32 %s, 0, %s, vcc' % (vr(B + k), vr(val)))])
            return g

        def transpose_store(g, B, D0, D1):
            RE = ACC[g]
            a('v_mfma_f32_32x32x16_bf16 %s, %s, %s, 0' % (vr(D0, 16), vr(RE, 4), vr(B, 4)))
            a('v_mfma_f32_32x32x16_bf16 %s, %s, %s, 0' % (vr(D1, 16), vr(RE + 8, 4), vr(B, 4)))
            a('v_mfma_f32_32x32x16_bf16 %s, %s, %s, %s' % (vr(D0, 16), vr(RE + 4, 4), vr(B + 4, 4), vr(D0, 16)))
            a('v_mfma_f32_32x32x16_bf16 %s, %s, %s, %s' % (vr(D1, 16), vr(RE + 12, 4), vr(B + 4, 4), vr(D1, 16)))
            a('s_add_u32 s94, s%d, %d' % (sHS, (48 + g) * 4096))
            a('s_add_u32 s95, s%d, %d' % (sHS, (68 + g) * 4096))
            for D, so in ((D0, 94), (D1, 95)):
                for e in range(8):
                    a('v_cvt_pk_bf16_f32 %s, %s, %s' % (vr(D + e), vr(D + 2 * e), vr(D + 2 * e + 1)))
                a('buffer_store_dwordx4 %s, %s, %s, s%d offen %s' % (vr(D, 4), vr(V['ST']), srd(R_WS), so, HST))
                last = a('buffer_store_dwordx4 %s, %s, %s, s%d offen offset:512 %s' % (vr(D + 4, 4), vr(V['ST']), srd(R_WS), so, HST))
            return last

        def transpose_groups(g, B, D0, D1, s0=94, s1=97):
            RE = ACC[g]
            gr = [[Ins('v_mfma_f32_32x32x16_bf16 %s, %s, %s, 0' % (vr(D0, 16), vr(RE, 4), vr(B, 4)))],
                  [Ins('v_mfma_f32_32x32x16_bf16 %s, %s, %s, 0' % (vr(D1, 16), vr(RE + 8, 4), vr(B, 4)))],
                  [Ins('v_mfma_f32_32x32x16_bf16 %s, %s, %s, %s' % (vr(D0, 16), vr(RE + 4, 4), vr(B + 4, 4), vr(D0, 16)))],
                  [Ins('v_mfma_f32_32x32x16_bf16 %s, %s, %s, %s' % (vr(D1, 16), vr(RE + 12, 4), vr(B + 4, 4), vr(D1, 16)))],
                  [], [], []]
            for D, off in ((D0, 48), (D1, 68)):
                for e in range(8):
                    gr.append([Ins('v_cvt_pk_bf16_f32 %s, %s, %s' % (vr(D + e), vr(D + 2 * e), vr(D + 2 * e + 1)))])
                gr.append([Ins('s_add_u32 s97, s%d, %d' % (sHS, (off + g) * 4096)),
                           Ins('buffer_store_dwordx4 %s, %s, %s, s97 offen %s' % (vr(D, 4), vr(V['ST']), srd(R_WS), HST))])
                gr.append([Ins('s_add_u32 s97, s%d, %d' % (sHS, (off + g) * 4096)),
                           Ins('buffer_store_dwordx4 %s, %s, %s, s97 offen offset:512 %s' % (vr(D + 4, 4), vr(V['ST']), srd(R_WS), HST))])
            return gr

        NQ = 8

        def ffn_ops():
            ops = []
            for n in range(160):
                tile, s = n // 40, n % 40
                blk, tp = tile >> 1, tile & 1
                acc = FA[tile & 1]
                st, sp = s // 10, s % 10
                slot = slot_of[4 + 4 * blk + st]
                reg = slot // 3
                off = (slot % 3) * SLOT + (32 * (sp >> 1) + 8 * (sp & 1)) * 128
                q = RING + 4 * (n % NQ)
                base = V['RF'] + tp + 2 * reg
                r0 = Ins('ds_read_b64_tr_b16 %s, %s offset:%d' % (vr(q, 2), vr(base), off))
                r1 = Ins('ds_read_b64_tr_b16 %s, %s offset:%d' % (vr(q + 2, 2), vr(base), off + 512))
                m = Ins('v_mfma_f32_32x32x16_bf16 %s, %s, %s, %s' % (vr(acc, 16), vr(q, 4), XF(s), '0' if s == 0 else vr(acc, 16)))
                ops.append((r0, r1, m))
            return ops

        def ffn_main(ops, n0, n1, dist, rd_done, rd_limit):
            out = []
            for n in range(n0, n1):
                if n == n0:
                    while rd_done < min(n + dist, rd_limit):
                        out += [ops[rd_done][0], ops[rd_done][1]]
                        rd_done += 1
                out.append(ops[n][2])
                while rd_done < min(n + 1 + dist, rd_limit):
                    out += [ops[rd_done][0], ops[rd_done][1]]
                    rd_done += 1
            return out, rd_done

        def ffn_pack(tile):
            T = FA[tile & 1]
            it = []
            for e in range(16):
                it.append(Ins('v_mul_f32 %s, %s, %s' % (vr(T + e), vr(V['OMG']), vr(T + e))))
            for e in range(8):
                it.append(Ins('v_cvt_pk_bf16_f32 %s, %s, %s' % (vr(T + e), vr(T + 2 * e), vr(T + 2 * e + 1))))
            for e in range(8):
                it.append(Ins('v_pk_max_i16 %s, %s, 0' % (vr(T + e), vr(T + e))))
            return [[x] for x in it]

        last_store = {}

        def ffn_store(tile):
            r = ffn_store0(tile)
            last_store[tile] = r[-1][-1]
            return r

        def ffn_store0(tile):
            T = FA[tile & 1]
            return [[Ins('s_add_u32 s94, s%d, %d' % (sHF, tile * 4096))],
                    [Ins('buffer_store_dwordx4 %s, %s, %s, s94 offen %s' % (vr(T, 4), vr(V['ST']), srd(R_WS), HST))],
                    [Ins('buffer_store_dwordx4 %s, %s, %s, s94 offen offset:512 %s' % (vr(T + 4, 4), vr(V['ST']), srd(R_WS), HST))]]

        def wf_issue(T):
            t0, t1 = T + 2, T + 3
            gr = G(['s_mul_i32 s90, s%d, 120' % sC2, 's_mul_i32 s91, s%d, 30' % sW, 's_add_u32 s90, s90, s91',
                    'v_and_b32 %s, 31, v0' % vr(t1), 'v_min_u32 %s, 29, %s' % (vr(t0), vr(t1)),
                    'v_add_u32 %s, s90, %s' % (vr(t0), vr(t0)),
                    's_lshr_b32 s90, s%d, 1' % sW, 's_mul_i32 s90, s90, 400', 's_mul_i32 s91, s%d, 50' % sC2,
                    's_add_u32 s90, s90, s91', 's_and_b32 s91, s%d, 1' % sW, 's_mul_i32 s91, s91, 25', 's_add_u32 s90, s90, s91',
                    'v_min_u32 %s, 24, %s' % (vr(t1), vr(t1)), 'v_add_u32 %s, s90, %s' % (vr(t1), vr(t1))])
            gr.append([Ins('v_cmp_gt_u32 vcc, 32, v0'), Ins('v_cndmask_b32 %s, %s, %s, vcc' % (vr(t0), vr(t1), vr(t0)))])
            gr += G(['v_lshlrev_b32 %s, 3, %s' % (vr(t0), vr(t0)), 'v_add_u32 %s, 0x%x, %s' % (vr(t0), WF_OFF, vr(t0)),
                     'buffer_load_dwordx2 %s, %s, %s, 0 offen sc1' % (vr(T, 2), vr(t0), srd(R_WS))])
            return gr

        def wt_prefetch(T):
            j, t, ad = T, T + 1, T + 2
            gr = G(['s_and_b32 s90, s%d, 7' % sR2, 's_mul_i32 s90, s90, 110',
                    's_mul_i32 s91, s%d, 88' % sC2, 's_mul_i32 s95, s%d, 12' % sW, 's_add_u32 s95, s95, s91', 's_mul_i32 s95, s95, 5120',
                    's_mul_i32 s96, s%d, 10' % sW, 's_add_u32 s96, s96, s91', 's_add_u32 s96, s96, 48', 's_mul_i32 s96, s96, 5120',
                    's_sub_u32 s96, s96, %d' % (480 * 128), 's_add_u32 s95, s95, 0x%x' % WT_OFF, 's_add_u32 s96, s96, 0x%x' % WT_OFF])
            for e in range(2):
                gr += G(['v_min_u32 %s, %d, v0' % (vr(j), 63 if e == 0 else 45), 'v_add_u32 %s, s90, %s' % (vr(j), vr(j))])
                if e:
                    gr += G(['v_add_u32 %s, 64, %s' % (vr(j), vr(j))])
                gr += G(['v_mov_b32 %s, s95' % vr(t), 'v_mov_b32 %s, s96' % vr(ad)])
                gr.append([Ins('v_cmp_gt_u32 vcc, 480, %s' % vr(j)), Ins('v_cndmask_b32 %s, %s, %s, vcc' % (vr(ad), vr(ad), vr(t)))])
                gr += G(['v_lshl_add_u32 %s, %s, 7, %s' % (vr(ad), vr(j), vr(ad)),
                         'buffer_load_dword %s, %s, %s, 0 offen sc1' % (vr(T + 3 + e), vr(ad), srd(R_WS))])
            return gr

        def wf_check(T, lbl):
            t0 = T + 2

            def chk():
                a('v_xor_b32 %s, s%d, %s' % (vr(T), sTAG, vr(T)))
                a('v_xor_b32 %s, s%d, %s' % (vr(T + 1), sTAG2, vr(T + 1)))
                a('v_or_b32 %s, %s, %s' % (vr(T), vr(T), vr(T + 1)))
                a('v_cmp_ne_u32 vcc, 0, %s' % vr(T))
                a('s_cmp_eq_u64 vcc, 0')
            chk()
            a.settle()
            a('s_cbranch_scc1 %s_ok' % lbl)
            snap = a.snapshot()
            a('s_mov_b32 s91, 0')
            a.drain()
            a.label(lbl)
            a('buffer_load_dwordx2 %s, %s, %s, 0 offen sc1' % (vr(T, 2), vr(t0), srd(R_WS)))
            a('s_add_u32 s91, s91, 1')
            chk()
            a('s_cbranch_scc1 %s_ok' % lbl)
            a('s_cmp_lt_u32 s91, 0x%x' % o.get('spin', 200000))
            a('s_cbranch_scc1 %s' % lbl)
            a.settle()
            a.label(lbl + '_ok')
            a.restore(snap)

        BUD = o.get('bud', 3)
        P2 = self.p2
        for k in range(4):
            a('v_add_u32 %s, %d, %s' % (vr(RING_ADDR + k), 3 * SLOT, vr(V['RS'] + k)))
        put_all(late_scalars())
        put_all(w2_setup_a)
        put_all(item_addrs())
        put_all(c_setup())
        if PF == 2:
            put_all(xdma(1))
            put_all([s_load(0, 0, 1), s_load(0, 1, 1)])
        put_all(xdma(2))
        put_all([s_load(0, 0, 2), s_load(0, 1, 2)])
        x3s3 = xdma(3) + [s_load(0, 0, 3), s_load(0, 1, 3)]
        if o.get('eopen', 0) < 2:
            put_all(x3s3)
        if o.get('w1pf', 0) == 1:
            put_all(w1_prefetch(PT + 5))
        EO = o.get('eopen', 0)
        late_loads = []
        if EO:
            late_loads = w2_setup_b + c_dmas()
        else:
            put_all(w2_setup_b)
            put_all(c_dmas())
        a.put(WaitVM(gw_dma))
        put_all(gate_reads(0))
        put_all(xread(0))
        x4 = xrefill(4)
        if not EO:
            put_all(x4)
        a.put(WaitVM(s_dma[(0, 1, 0)]))
        a('s_barrier')
        self.stamp(3)
        hooks = {}

        def hook(pos, groups):
            hooks.setdefault(pos, [])
            hooks[pos] = hooks[pos] + groups
        cg, c_sts, c_st = c_item(72)
        w2g, w2_sts = w2_item(64)
        g1 = gate_reads(1)
        for kap in range(10):
            s0 = 4 * kap
            if kap + 1 <= 7:
                hook(s0, xread(kap + 1))
            if kap + 5 <= 9:
                for j, grp in enumerate(xrefill(kap + 5)):
                    hook(s0 + 1 + j, [grp])
            if kap + 4 <= 9:
                if kap + 4 == 8:
                    hook(s0 + 1, [[WaitLG(cg[1][0])]])
                hook(s0 + 1, [s_load(0, 0, kap + 4)])
                hook(s0 + 3, [s_load(0, 1, kap + 4)])
        if EO >= 2:
            for j, grp in enumerate(x3s3):
                hook(j // 3, [grp])
            for j, grp in enumerate(x4):
                hook(2 + j // 2, [grp])
        elif EO:
            for j, grp in enumerate(x4):
                hook(j // 2, [grp])
        if EO:
            for j, grp in enumerate(late_loads):
                hook(o.get('itempos', 5) + j, [grp])
        hook(25, xread(8))
        hook(27, xread(9))
        for j in range(20):
            hook(j + 1, [g1[j]])
        for kap in range(1, 10):
            pre = [WaitVM(s_dma[(0, 1, kap)])]
            if kap == 8:
                pre.append(WaitLG(x_rd_last[9]))
            pre.append(Ins('s_barrier'))
            hooks[('pre', 4 * kap)] = pre
        ldA = stage_loads(4) + stage_loads(5)
        ldB = stage_loads(6) + stage_loads(7)
        pos = [21, 22, 23, 24, 25, 26, 26, 27, 28, 28]
        for j, grp in enumerate(ldA):
            hook(pos[j] + 1 if pos[j] == 21 else pos[j], [grp])
        for j, grp in enumerate(w2_sts + c_sts):
            hook(29 + j // 4, [grp])
        for j, grp in enumerate(ldB):
            hook(30 + j, [grp])
        main = kstream(0, hooks)
        s_items = Stream(w2g + cg, start=(o.get('itemrd', 36) if EO else 24), every=2)
        s_lc = Stream(lane_consts() + params(0) + ([] if A else params(1)), start=2, per=3)
        if o.get('p1nobar'):
            main = [x for x in main if not (isinstance(x, Ins) and x.mn == 's_barrier')]
        if o.get('p1nogate'):
            main = [x for x in main if not (isinstance(x, Ins) and x.kind == 'mfma' and ('v[%d:%d]' % (GACC, GACC + 15)) in x.text.split(',')[0])]
        if o.get('p1nolc'):
            weave(a, main, [s_items], budget=3)
            self.stamp((7, 5))
            put_all(s_lc.groups)
        else:
            weave(a, main, [s_items, s_lc], budget=o.get('p1bud', 3))
            self.stamp((7, 5))
        put_all(masks(84))
        if o.get('detail', 0) != 2:
            self.stamp(4)

        gm_all = gate_math(72)
        put_all(gm_all[:3])
        gate_math0 = gm_all[3:]
        if A:
            SC = [48]
            BUF = 56
            SEL = 72
            WFT = 80
            TMP = 84
            a.put(WaitVM(dma_last[5]))
            a('s_barrier')
            self.stamp((3, 5))
            self.stamp((6, 5))
            self.stamp((3, 1), clock=True)
            ops = ffn_ops()
            D = o.get('fdist', 5)
            nof = (lambda x: []) if o.get('bare') else (lambda x: x)

            def split_at_read(items, n):
                k = items.index(ops[n][0])
                return items[:k], items[k:]
            m, rd = ffn_main(ops, 0, 40, D, 0, 80)
            m0, m = split_at_read(m, 20)
            m1, m2 = split_at_read(m, 30)
            p1 = nof(pass1(0))
            s_p1 = Stream(p1, per=4)
            s_flag = Stream(w_flag(76, c_st), start=4, per=5)
            s_gate = Stream(nof(gate_math0), per=3)
            s_ld = Stream(stage_loads(8) + stage_loads(9) + stage_loads(10), start=1, every=2)
            s_tab = Stream(P2.tables(), per=3)
            weave(a, m0, [s_flag, s_ld, s_p1, s_tab], budget=5, flush=False)
            put_all(s_p1.groups[s_p1.i:])
            assert s_flag.done()
            a.put(WaitVM(dma_last[6]))
            if p1:
                a.put(WaitLG(p1[-1][0]))
            a('s_barrier')
            s_pre = Stream(nof(prefix(0, BUF)), per=4)
            for x in (s_ld, s_tab):
                x.start = 0
            weave(a, m1, [s_pre, s_ld, s_tab], budget=4, flush=False)
            a.put(WaitVM(dma_last[7]))
            a('s_barrier')
            weave(a, m2, [s_pre, s_gate, s_ld, s_tab], budget=4, flush=False)
            self.stamp((6, 6))
            s_coef = Stream(nof(coef(0, TMP)), per=3)
            s_wfi = Stream(wf_issue(WFT), per=3)
            m, rd = ffn_main(ops, 40, 50, D, rd, 80)
            weave(a, m, [s_pre, s_gate, s_wfi, s_ld, s_tab], budget=BUD + 1, flush=False)
            assert s_pre.done() and s_gate.done() and s_wfi.done() and s_ld.done() and s_tab.done(), (s_pre.i, s_gate.i, s_wfi.i, s_ld.i, s_tab.i)
            a.put(WaitLG(ops[49][1]))
            a('s_barrier')
            self.stamp((6, 8))
            s_p0 = Stream(nof(ffn_pack(0) + ffn_store(0)), per=3)
            WFP = o.get('wfidx', 62)
            m, rd = ffn_main(ops, 50, WFP, D, rd, 80)
            weave(a, m, [Stream(stage_loads(11), every=2), s_p0, s_coef], budget=BUD, flush=False)
            wf_check(WFT, 'L_wfA')
            if o.get('wtpf'):
                put_all(wt_prefetch(90))
            self.stamp((6, 7))
            wpre = [] if o.get('now') else P2.early_w()
            s_w = Stream(wpre, every=o.get('wevery', 2))
            s_sel = Stream(nof(build_sel(SEL, TMP + 2)), per=3)
            m, rd = ffn_main(ops, WFP, 76, D, rd, 80)
            weave(a, m, [s_p0, s_w, s_coef, s_sel], budget=BUD, flush=False)
            assert s_p0.done()
            self.stamp((6, 9))
            for c in (8, 9, 10, 11):
                a.put(WaitVM(dma_last[c]))
            a('s_barrier')
            self.stamp((6, 10))
            s_w.start = 0
            LBX = o.get('lbx', 100)
            m, rd = ffn_main(ops, 76, LBX, D, rd, 160)
            s_lb = Stream(lb_issue(0, BUF), start=o.get('lbpos', 1), per=3)
            s_pack1 = Stream(nof(ffn_pack(1) + ffn_store(1)), start=6, per=3)
            s_coef.start = s_sel.start = 0
            weave(a, m, [s_lb, s_w, s_coef, s_pack1, s_sel], budget=BUD + 1, flush=False)
            assert s_lb.done() and s_coef.done(), (s_coef.i,)
            self.stamp(5)
            self.stamp((6, 11))
            self.stamp((3, 6))
            self.stamp((3, 2), clock=True)
            lookback_wait(0, BUF, 'L_lbA')
            self.stamp(6)
            s_scan = Stream(entry_state(0, BUF) + pass2(0, BUF) + transpose_groups(0, SEL, ACC[0] + 16, BUF), per=4)
            s_pack1.start = s_w.start = 0
            m, rd = ffn_main(ops, LBX, 120, D, rd, 160)
            weave(a, m, [s_pack1, s_w, s_sel, s_scan], budget=BUD + 1, flush=False)
            assert s_pack1.done() and s_sel.done(), (s_pack1.i, s_sel.i)
            m, rd = ffn_main(ops, 120, 160, D, rd, 160)
            w2nd = P2.early2_w()
            nleft = len(s_w.groups) - s_w.i
            pos = 2 * nleft
            slots = {}
            for j, g in enumerate(w2nd):
                pos = max(pos + o.get('w2step', 1), j + 2)
                slots[pos] = g
                pos += (j % 5 in (1, 3))
            keep = sorted(slots)[:o.get('w2in', 10)]
            late_w2 = [g for p_, g in sorted(slots.items()) if p_ >= 40 or p_ not in keep]
            paced = [slots.get(p_, []) if p_ in keep else [] for p_ in range(40)]
            weave(a, m, [s_scan, s_w, Stream(paced), Stream(ffn_pack(2) + ffn_store(2), start=2, per=3)], budget=BUD + 1)
            put_all(ffn_pack(3) + ffn_store(3))
            final_store = last_store[3]
            tail_loads = late_w2
        else:
            SC = [48, 52]
            BUF = 56
            SEL = 72
            WFT = 80
            TMP = 84
            put_all(pass1(0))
            stage_open([4, 5])
            main = kstream(1, {('pre', 20): [WaitVM(dma_last[7]), Ins('s_barrier')]})
            s_pre, s_wfi = Stream(prefix(0, BUF), per=3), Stream(wf_issue(WFT), start=22, per=3)
            s_flag, s_gate = Stream(w_flag(76, c_st), start=2, per=5), Stream(gate_math0, per=3)
            s_tab = Stream(P2.tables(), per=3)
            s_coef, s_sel = Stream(coef(0, TMP), per=3), Stream(build_sel(SEL, TMP + 2), per=3)
            wpre = P2.early_w()
            cut = [k for k, x in enumerate(main) if isinstance(x, Ins) and x.kind == 'mfma'][43] + 1
            weave(a, main[:cut], [s_flag, s_pre, s_gate, s_wfi, s_tab], budget=4, flush=False)
            assert s_pre.done() and s_wfi.done() and s_tab.done() and s_gate.done() and s_flag.done()
            wf_check(WFT, 'L_wfB')
            if o.get('wtpf'):
                put_all(wt_prefetch(66))
            s_w = Stream(wpre, every=2)
            rest = main[cut:]
            mf = [k for k, x in enumerate(rest) if isinstance(x, Ins) and x.kind == 'mfma']
            cut2 = mf[o.get('lbxb', 16) - 1] + 1
            s_lb = Stream(lb_issue(0, BUF), per=3)
            weave(a, rest[:cut2], [s_lb, s_coef, s_w, s_sel], budget=4, flush=False)
            assert s_lb.done()
            put_all(s_coef.groups[s_coef.i:])
            s_coef.i = len(s_coef.groups)
            self.stamp(5)
            lookback_wait(0, BUF, 'L_lbB0')
            self.stamp(6)
            s_scan = Stream(entry_state(0, BUF) + pass2(0, BUF), per=4)
            s_w.start = s_sel.start = 0
            weave(a, rest[cut2:], [s_sel, s_scan, s_w], budget=5, flush=False)
            put_all(s_sel.groups[s_sel.i:])
            wrest = s_w.groups[s_w.i:] + P2.early2_w()

            def mix(items, loads, every):
                out = []
                for k, x in enumerate(items):
                    out.append(x)
                    if k % every == every - 1 and loads:
                        out.append(loads.pop(0))
                return out
            put_all(pass1(1))
            a.waitcnt(lg=0)
            a('s_barrier')
            put_all(mix(prefix(1, 96), wrest, 8))
            put_all(s_scan.groups[s_scan.i:])
            put_all(mix(transpose_groups(0, SEL, ACC[0] + 16, 96), wrest, 6))
            put_all(mix(coef(1, TMP), wrest, o.get('bmix', 6)))
            put_all(lb_issue(1, BUF))
            for _ in range(min(o.get('bcover', 10), len(wrest))):
                put_all(wrest.pop(0))
            lookback_wait(1, BUF, 'L_lbB1')
            put_all(mix(entry_state(1, BUF) + pass2(1, BUF), wrest, o.get('bmix2', 10)))
            final_store = transpose_store(1, SEL, 96, 112)
            tail_loads = wrest

        self.stamp(7)
        put_all(tail_loads[:o.get('tailpre', 10)])
        tail_loads = tail_loads[o.get('tailpre', 10):]
        a.put(WaitVM(final_store))
        self.stamp(8)
        a('v_mov_b32 %s, s%d' % (vr(RING), sTAG))
        a('v_mov_b32 %s, s%d' % (vr(RING + 1), sTAG2))
        a('s_lshl_b32 s90, s%d, 2' % sR)
        a('s_add_u32 s90, s90, s%d' % sW)
        a('s_lshl_b32 s90, s90, 4')
        a('s_add_u32 s90, s90, s%d' % sC16)
        a('s_lshl_b32 s90, s90, 3')
        a('s_add_u32 s90, s90, 0x%x' % FLAG_OFF)
        a('v_mov_b32 %s, 0' % vr(RING + 2))
        a('buffer_store_dwordx2 %s, %s, %s, s90 offen sc1' % (vr(RING, 2), vr(RING + 2), srd(R_WS)))
        put_all(tail_loads)
        if o.get('hback', 0):
            t0, t1, t2 = RING + 4, RING + 5, RING + 6
            a('v_and_b32 %s, 15, v0' % vr(t0))
            a('v_lshlrev_b32 %s, 7, %s' % (vr(t0), vr(t0)))
            a('v_lshrrev_b32 %s, 5, v0' % vr(t1))
            a('v_mul_u32_u24 %s, %d, %s' % (vr(t1), 20 * 4096, vr(t1)))
            a('v_add_u32 %s, %s, %s' % (vr(t1), vr(t1), vr(t0)))
            if not A:
                a('v_bfe_u32 %s, v0, 4, 1' % vr(t2))
                a('v_lshl_add_u32 %s, %s, 12, %s' % (vr(t1), vr(t2), vr(t1)))
            a('s_add_u32 s90, s%d, %d' % (sHS, 48 * 4096))
            a('buffer_load_dword v121, %s, %s, s90 offen sc1' % (vr(t1), srd(R_WS)))
            if A:
                a('v_lshrrev_b32 %s, 4, v0' % vr(t2))
                a('v_lshl_add_u32 %s, %s, 12, %s' % (vr(t0), vr(t2), vr(t0)))
                a('buffer_load_dword v122, %s, %s, s%d offen sc1' % (vr(t0), srd(R_WS), sHF))
        a.waitcnt(lg=0)
        a.settle()

    def poll(self, lbl, voff, soff, tmp):
        a = self.a
        a('s_mov_b32 s91, 0')
        a.drain()
        a.settle()
        a.label(lbl)
        a('buffer_load_dwordx2 %s, %s, %s, s%d offen sc1' % (vr(tmp, 2), vr(voff), srd(R_WS), soff))
        a('s_add_u32 s91, s91, 1')
        a('v_xor_b32 %s, s%d, %s' % (vr(tmp), sTAG, vr(tmp)))
        a('v_xor_b32 %s, s%d, %s' % (vr(tmp + 1), sTAG2, vr(tmp + 1)))
        a('v_or_b32 %s, %s, %s' % (vr(tmp), vr(tmp), vr(tmp + 1)))
        a('v_cmp_ne_u32 vcc, 0, %s' % vr(tmp))
        a('s_cmp_eq_u64 vcc, 0')
        a('s_cbranch_scc1 %s_ok' % lbl)
        a('s_cmp_lt_u32 s91, 0x%x' % self.o.get('spin', 200000))
        a('s_cbranch_scc1 %s' % lbl)
        a.settle()
        a.label(lbl + '_ok')

    def phase2(self):
        a, o, P = self.a, self.o, self.p2
        VL16, VL16B = P.VL16, P.VL16B
        VH, VRW, VRR, VO, VX, VD, VG = 1, 5, 8, 9, 10, 11, 12
        VP, t0, t1, t2 = 96, 98, 120, 13
        VLWR = 99
        ACC = 16
        SK = 100
        KS = P.KS
        HLD = {0: 'sc1', 1: 'sc0 sc1', 2: 'sc1 nt', 3: '', 4: 'nt'}[o.get('hld', 0)]

        def acc(dt, dl):
            return ACC + 4 * (4 * dt + dl)
        early = set(P.early_quads[:5 * P.n_early]) | set(P.early2_quads)
        NE = P.n_early + P.n_early2
        top = 240 if o.get('stamps') else 256
        pool = [x for x in ([('a', r) for r in range(0, top, 4)] + [('v', r) for r in range(124, 256, 4)]) if x not in early]
        wq = dict(P.wq)
        hq = {}
        q = P.q

        def put_groups(gr):
            for g in gr:
                for x in g:
                    a.put(x)
        put_groups(P.tables(late=True))
        a('s_barrier')

        def w_groups(k):
            quads = [pool.pop(0) for dt in range(5)]
            for dt in range(5):
                wq[(k, dt)] = quads[dt]
            return P.w_loads(k, quads)

        def h_groups(k):
            gr = []
            for dl in range(4):
                r = pool.pop(0)
                hq[(k, dl)] = r
                hd = []
                if dl == 0:
                    hd = [Ins('s_lshl_b32 s%d, s%d, 12' % (P.sHk, KS[k])), Ins('s_add_u32 s%d, s%d, s%d' % (P.sHk, P.sHk, P.sHB))]
                gr.append(hd + [Ins('buffer_load_dwordx4 %s, %s, %s, s%d offen %s' % (q(r), vr(VH + dl), srd(R_WS), P.sHk, HLD))])
            return gr

        self.build_srd(R_OUT, S_OUT, 5242880)
        for dl in range(4):
            a('s_add_u32 s90, s%d, %d' % (sW, dl))
            a('s_and_b32 s90, s90, 3')
            a('s_lshl_b32 s91, s90, 10')
            a('v_add_u32 %s, s91, %s' % (vr(VH + dl), vr(VL16)))
            if dl:
                a('s_mul_i32 s91, s90, 15360')
                a('s_add_u32 s91, s91, %d' % ((dl - 1) * 5120))
                a('v_add_u32 %s, s91, %s' % (vr(VRW + dl - 1), vr(VL16)))
        a('s_mul_i32 s91, s%d, 15360' % sW)
        a('v_add_u32 %s, s91, %s' % (vr(VRR), vr(VL16)))
        a('v_and_b32 %s, 15, v0' % vr(t0))
        a('v_lshrrev_b32 %s, 4, v0' % vr(t2))
        a('v_bfe_u32 %s, %s, 2, 1' % (vr(t1), vr(t0)))
        a('v_lshlrev_b32 %s, 4, %s' % (vr(t1), vr(t1)))
        a('v_and_b32 %s, 3, %s' % (vr(VP), vr(t0)))
        a('v_add_u32 %s, %s, %s' % (vr(t1), vr(t1), vr(VP)))
        a('v_lshrrev_b32 %s, 3, %s' % (vr(VP), vr(t0)))
        a('v_lshl_add_u32 %s, %s, 2, %s' % (vr(t1), vr(VP), vr(t1)))
        a('s_lshr_b32 s90, s%d, 1' % sW)
        a('s_lshl_b32 s90, s90, 5')
        a('s_and_b32 s91, s%d, 1' % sW)
        a('s_lshl_b32 s91, s91, 3')
        a('s_add_u32 s90, s90, s91')
        a('v_add_u32 %s, s90, %s' % (vr(t1), vr(t1)))
        a('v_mul_u32_u24 %s, 2560, %s' % (vr(VO), vr(t1)))
        a('v_lshl_add_u32 %s, %s, 4, %s' % (vr(VO), vr(t2), vr(VO)))
        a('v_mul_u32_u24 %s, 1280, %s' % (vr(VX), vr(t1)))
        a('v_lshl_add_u32 %s, %s, 3, %s' % (vr(VX), vr(t2), vr(VX)))
        a('s_mul_i32 s90, s%d, 160' % sC2)
        a('v_lshlrev_b32 %s, 3, %s' % (vr(VD), vr(t2)))
        a('v_add_u32 %s, s90, %s' % (vr(VD), vr(VD)))
        a('s_and_b32 s90, s%d, 1' % sR2)
        a('s_lshl_b32 s90, s90, 6')
        a('v_add_u32 %s, s90, %s' % (vr(VG), vr(t1)))
        a('v_lshlrev_b32 %s, 2, %s' % (vr(VG), vr(VG)))
        a('v_add_u32 %s, %d, %s' % (vr(VG), L_GATE, vr(VG)))
        a('s_mul_i32 s90, s%d, %d' % (sR2, 64 * 1280))
        a('s_mul_i32 s91, s%d, 160' % sC2)
        a('s_add_u32 s90, s90, s91')
        for dt in range(5):
            a('buffer_load_dwordx2 %s, %s, %s, s90 offen offset:%d' % (vr(SK + 2 * dt, 2), vr(VX), srd(R_X), 32 * dt))
            a('global_load_dwordx2 %s, %s, s[%d:%d] offset:%d' % (vr(SK + 10 + 2 * dt, 2), vr(VD), S_DSK, S_DSK + 1, 32 * dt))
        HD = o.get('hdepth', 4)
        WD = min(22, NE + (len(pool) - 4 * o.get('hres', 4)) // 5)
        NL = min(o.get('wlds', 0), 22 - WD)
        L0 = 22 - NL
        assert NL * 5 * 1024 <= 35840
        for k in range(NE, WD):
            put_groups(w_groups(k))
        a('s_lshl_b32 s90, s%d, 2' % sR)
        a('s_and_b32 s95, s%d, 1' % sR2)
        a('s_lshl_b32 s95, s95, 1')
        a('s_add_u32 s90, s90, s95')
        a('s_lshl_b32 s90, s90, 7')
        a('s_add_u32 s95, s90, 0x%x' % FLAG_OFF)
        a('v_and_b32 %s, 31, v0' % vr(t0))
        a('v_lshlrev_b32 %s, 3, %s' % (vr(t0), vr(t0)))
        lds_last = None
        ldsg = []
        if NL:
            a('s_mul_i32 s94, s%d, 35840' % sW)
            a('v_add_u32 %s, s94, %s' % (vr(VLWR), vr(VL16)))
            for k in range(L0, 22):
                for dt in range(5):
                    g = []
                    if dt == 0:
                        g += [Ins('s_mul_i32 s%d, s%d, 5120' % (P.sWk, KS[k])), Ins('s_add_u32 s%d, s%d, s%d' % (P.sWk, P.sWk, P.sWB))]
                    g.append(Ins('s_add_u32 m0, s94, %d' % (((k - L0) * 5 + dt) * 1024)))
                    g.append(Ins('s_add_u32 s%d, s%d, 1024' % (P.sWk, P.sWk)) if dt else Ins('s_nop 0'))
                    lds_last = Ins('buffer_load_dwordx4 %s, %s, s%d offen sc1 lds' % (vr(VL16), srd(R_WS), P.sWk))
                    g.append(lds_last)
                    ldsg.append(g)
        npre = max(0, len(ldsg) - o.get('pollcover', 14))
        put_groups(ldsg[:npre])
        a('buffer_load_dwordx2 %s, %s, %s, s95 offen sc1' % (vr(VP, 2), vr(t0), srd(R_WS)))
        put_groups(ldsg[npre:])
        self.stamp(9)
        a('ds_read_b32 %s, %s' % (vr(VG), vr(VG)))
        def chk():
            a('v_xor_b32 %s, s%d, %s' % (vr(VP), sTAG, vr(VP)))
            a('v_xor_b32 %s, s%d, %s' % (vr(VP + 1), sTAG2, vr(VP + 1)))
            a('v_or_b32 %s, %s, %s' % (vr(VP), vr(VP), vr(VP + 1)))
            a('v_cmp_ne_u32 vcc, 0, %s' % vr(VP))
            a('s_cmp_eq_u64 vcc, 0')
        chk()
        a.settle()
        a('s_cbranch_scc1 L_pfl_ok')
        snap = a.snapshot()
        a('s_mov_b32 s91, 0')
        a.drain()
        a.label('L_pfl')
        a('buffer_load_dwordx2 %s, %s, %s, s95 offen sc1' % (vr(VP, 2), vr(t0), srd(R_WS)))
        a('s_add_u32 s91, s91, 1')
        chk()
        a('s_cbranch_scc1 L_pfl_ok')
        a('s_cmp_lt_u32 s91, 0x%x' % o.get('spin', 200000))
        a('s_cbranch_scc1 L_pfl')
        a.settle()
        a.label('L_pfl_ok')
        a.restore(snap)
        a('s_cmp_lg_u32 s%d, 31' % sR2)
        a('s_cbranch_scc1 L_noep')
        a('s_cmp_lg_u32 s%d, 0' % sC2)
        a('s_cbranch_scc1 L_noep')
        a('v_mov_b32 %s, s%d' % (vr(t1), sTAG))
        a('v_mov_b32 %s, 0x%x' % (vr(t0), EPOCH_OFF))
        a.raw('    buffer_store_dword %s, %s, %s, 0 offen sc1' % (vr(t1), vr(t0), srd(R_WS)))
        a.raw('    s_waitcnt vmcnt(0)')
        a.label('L_noep')
        self.stamp(10)
        self.stamp((2, 4))
        self.stamp((3, 9))
        self.stamp((3, 10), clock=True)
        nh = 0
        while nh < HD:
            put_groups(h_groups(nh))
            nh += 1
        nw = WD

        TS = 96
        skip = []
        for dt in range(5):
            xs, ds = SK + 2 * dt, SK + 10 + 2 * dt
            L = ['v_lshlrev_b32 %s, 16, %s' % (vr(TS), vr(xs)), 'v_lshlrev_b32 %s, 16, %s' % (vr(TS + 1), vr(ds)),
                 'v_and_b32 %s, 0xffff0000, %s' % (vr(xs), vr(xs)), 'v_and_b32 %s, 0xffff0000, %s' % (vr(ds), vr(ds)),
                 'v_mul_f32 %s, %s, %s' % (vr(xs), vr(xs), vr(ds)),
                 'v_mul_f32 %s, %s, %s' % (vr(ds), vr(TS), vr(TS + 1)),
                 'v_lshlrev_b32 %s, 16, %s' % (vr(TS), vr(xs + 1)), 'v_lshlrev_b32 %s, 16, %s' % (vr(TS + 1), vr(ds + 1)),
                 'v_and_b32 %s, 0xffff0000, %s' % (vr(xs + 1), vr(xs + 1)), 'v_and_b32 %s, 0xffff0000, %s' % (vr(ds + 1), vr(ds + 1)),
                 'v_mul_f32 %s, %s, %s' % (vr(xs + 1), vr(xs + 1), vr(ds + 1)),
                 'v_mul_f32 %s, %s, %s' % (vr(ds + 1), vr(TS), vr(TS + 1))]
            skip += [[Ins(x)] for x in L]
        s_skip = Stream(skip, per=1, every=2)

        def skr(dt, r):
            return (SK + 10 + 2 * dt, SK + 2 * dt, SK + 10 + 2 * dt + 1, SK + 2 * dt + 1)[r]

        GAP = o.get('gap', 72)
        HMAX = o.get('hmax', 7)
        st = dict(nh=nh, hj=0, nw=nw, wj=0, t=0)

        def next_load(k):
            can_h = st['nh'] < 22 and st['nh'] <= k + HMAX and pool
            can_w = st['nw'] < 22 and pool
            urgent_w = can_w and st['nw'] <= k + o.get('wlead', 5)
            if can_h and not (urgent_w and st['nw'] <= st['nh']):
                kk, dl = st['nh'], st['hj']
                r = pool.pop(0)
                hq[(kk, dl)] = r
                hd = []
                if dl == 0:
                    hd = [Ins('s_lshl_b32 s%d, s%d, 12' % (P.sHk, KS[kk])), Ins('s_add_u32 s%d, s%d, s%d' % (P.sHk, P.sHk, P.sWB if o.get('fakeH') == 2 else P.sHB))]
                st['hj'] += 1
                if st['hj'] == 4:
                    st['hj'] = 0
                    st['nh'] += 1
                return hd + [Ins('buffer_load_dwordx4 %s, %s, %s, s%d offen %s' % (q(r), vr(VH + dl), srd(R_WS), P.sHB if o.get('fakeH') == 1 else P.sHk, HLD))]
            if can_w:
                kk, dt = st['nw'], st['wj']
                r = pool.pop(0)
                wq[(kk, dt)] = r
                hd = []
                if NL and kk >= L0:
                    st['wj'] += 1
                    if st['wj'] == 5:
                        st['wj'] = 0
                        st['nw'] += 1
                    return ([WaitVM(lds_last)] if (kk == L0 and dt == 0) else []) + [Ins('ds_read_b128 %s, %s offset:%d' % (q(r), vr(VLWR), ((kk - L0) * 5 + dt) * 1024))]
                if dt == 0:
                    hd = [Ins('s_mul_i32 s%d, s%d, 5120' % (P.sWk, KS[kk])), Ins('s_add_u32 s%d, s%d, s%d' % (P.sWk, P.sWk, P.sWB))]
                if dt < 4:
                    ld = Ins('buffer_load_dwordx4 %s, %s, %s, s%d offen offset:%d sc1' % (q(r), vr(VL16), srd(R_WS), P.sWk, dt * 1024))
                else:
                    ld = Ins('buffer_load_dwordx4 %s, %s, %s, s%d offen sc1' % (q(r), vr(VL16B), srd(R_WS), P.sWk))
                st['wj'] += 1
                if st['wj'] == 5:
                    st['wj'] = 0
                    st['nw'] += 1
                return hd + [ld]
            return None

        NT = o.get('tilemajor', 3) if not NL else 0
        for k in range(22 - NT):
            while (st['nh'] <= k) or (st['nw'] <= k):
                g = next_load(k) if st['nh'] <= k else None
                if g is None or st['nh'] > k:
                    save = st['nh']
                    st['nh'] = 22
                    g2 = next_load(k) if g is None else None
                    st['nh'] = save
                    g = g or g2
                assert g is not None
                for x in g:
                    a.put(x)
            n = 0
            for dt in range(5):
                for dl in range(4):
                    c = '0' if k == 0 else vr(acc(dt, dl), 4)
                    a.put(Ins('v_mfma_f32_16x16x32_bf16 %s, %s, %s, %s' % (vr(acc(dt, dl), 4), q(wq[(k, dt)]), q(hq[(k, dl)]), c)))
                    now = (20 * k + n + 1) * 16
                    if NL and L0 <= st['nw'] < 22 and st['nw'] <= k + 2 and n % 4 == 2 and pool:
                        save = st['nh']
                        st['nh'] = 22
                        g = next_load(k)
                        st['nh'] = save
                        for x in g:
                            a.put(x)
                    elif now >= st['t']:
                        savew = st['nw']
                        staged = NL and savew >= L0
                        if staged:
                            st['nw'] = 22
                        g = next_load(k)
                        if staged:
                            st['nw'] = savew
                        if g is not None:
                            for x in g:
                                a.put(x)
                            st['t'] = max(st['t'] + GAP, now)
                    elif k >= o.get('skipk', 10) and n % 2 == 1 and not s_skip.done():
                        for x in s_skip.groups[s_skip.i]:
                            a.put(x)
                        s_skip.i += 1
                    n += 1
            for dt in range(5):
                pool.append(wq[(k, dt)])
            for dl in range(4):
                pool.append(hq[(k, dl)])
            if k in (0, 2, 5, 9, 13, 17):
                self.stamp((2, 5 + (0, 2, 5, 9, 13, 17).index(k)))
        red_done = False
        if NT:
            k0 = 22 - NT
            while st['nh'] < 22 or st['nw'] < 22:
                g = next_load(21)
                assert g is not None
                for x in g:
                    a.put(x)
            while not s_skip.done():
                a.put(s_skip.groups[s_skip.i][0])
                s_skip.i += 1
            order = [(dt, dl) for dl in (1, 2, 3, 0) for dt in range(5)]
            pend = []
            for j, (dt, dl) in enumerate(order):
                for k in range(k0, 22):
                    a.put(Ins('v_mfma_f32_16x16x32_bf16 %s, %s, %s, %s' % (vr(acc(dt, dl), 4), q(wq[(k, dt)]), q(hq[(k, dl)]), vr(acc(dt, dl), 4))))
                if dl:
                    pend.append((dt, dl))
                if len(pend) > 2 or (dl == 0 and pend):
                    pdt, pdl = pend.pop(0)
                    a('ds_write_b128 %s, %s offset:%d' % (vr(VRW + pdl - 1), vr(acc(pdt, pdl), 4), pdt * 1024))
            for pdt, pdl in pend:
                a('ds_write_b128 %s, %s offset:%d' % (vr(VRW + pdl - 1), vr(acc(pdt, pdl), 4), pdt * 1024))
            red_done = True
        assert st['nh'] == 22 and st['nw'] == 22
        while not s_skip.done():
            a.put(s_skip.groups[s_skip.i][0])
            s_skip.i += 1
        self.stamp(11)
        self.stamp((2, 11))
        self.stamp((3, 11))
        self.stamp((3, 8), clock=True)
        if NL:
            a.waitcnt(lg=0)
            a('s_barrier')
        for dl in range(1, 4):
            for dt in range(5):
                if not red_done:
                    a('ds_write_b128 %s, %s offset:%d' % (vr(VRW + dl - 1), vr(acc(dt, dl), 4), dt * 1024))
        for dt in range(5):
            for r in range(4):
                a('v_fmac_f32 %s, %s, %s' % (vr(acc(dt, 0) + r), vr(VG), vr(skr(dt, r))))
        a('s_mul_i32 s90, s%d, %d' % (sR2, 64 * 2560))
        a('s_mul_i32 s91, s%d, 320' % sC2)
        a('s_add_u32 s90, s90, s91')
        a.waitcnt(lg=0)
        a('s_barrier')
        RB = 128
        for dt in range(5):
            for sl in range(3):
                a('ds_read_b128 %s, %s offset:%d' % (vr(RB + 4 * (3 * dt + sl), 4), vr(VRR), (sl * 5 + dt) * 1024))
        for dt in range(5):
            b = RB + 12 * dt
            for r in range(4):
                a('v_add_f32 %s, %s, %s' % (vr(b + r), vr(b + r), vr(b + 4 + r)))
            for r in range(4):
                a('v_add_f32 %s, %s, %s' % (vr(acc(dt, 0) + r), vr(acc(dt, 0) + r), vr(b + 8 + r)))
            for r in range(4):
                a('v_add_f32 %s, %s, %s' % (vr(acc(dt, 0) + r), vr(acc(dt, 0) + r), vr(b + r)))
            a('buffer_store_dwordx4 %s, %s, %s, s90 offen offset:%d %s' % (vr(acc(dt, 0), 4), vr(VO), srd(R_OUT), 64 * dt, {0: '', 1: 'sc1', 2: 'nt', 3: 'sc0 sc1'}[o.get('outmode', 0)]))

    def weave2(self, main, loads, every, extra):
        a = self.a
        for n, it in enumerate(main):
            a.put(it)
            if n % every == 0 and loads:
                for x in loads.pop(0):
                    a.put(x)
            elif extra is not None and n % 2 == 1 and not extra.done():
                for x in extra.groups[extra.i]:
                    a.put(x)
                extra.i += 1

    def kernel(self):
        a = self.a
        self.prologue()
        a('s_cmp_ge_u32 s%d, 6' % sCC)
        a.settle()
        a('s_cbranch_scc1 L_typeB')
        snap = a.snapshot()
        self.phase1('A')
        a('s_branch L_phase2')
        a.label('L_typeB')
        a.restore(snap)
        self.phase1('B')
        a.label('L_phase2')
        self.phase2()
        self.dump_stamps()
        a.label('L_exit')
        a('s_endpgm')
        head = open('gated_mix__ssm_conv_s5__dense_activation_relu__prompt.s.ref').read().split('\n')
        hdr = [ln for ln in head if ln.startswith(';') and '@launch' not in ln and 'Override' not in ln and 'grid=ceil' not in ln]
        out = '\n'.join(hdr) + '\n'
        out += '; @launch grid=(256,1,1) block=(256,1,1) lds=%d\n' % LDS_BYTES
        out += '.amdgcn_target "amdgcn-amd-amdhsa--gfx950"\n.text\n.globl %s\n.p2align 8\n.type %s,@function\n%s:\n' % (KNAME, KNAME, KNAME)
        out += a.text()
        out += '''.section .rodata,"a"
.p2align 6
.amdhsa_kernel %s
  .amdhsa_next_free_vgpr 512
  .amdhsa_next_free_sgpr 102
  .amdhsa_accum_offset 256
  .amdhsa_group_segment_fixed_size 0
  .amdhsa_kernarg_size 128
  .amdhsa_user_sgpr_count 2
  .amdhsa_user_sgpr_kernarg_segment_ptr 1
  .amdhsa_system_sgpr_workgroup_id_x 1
  .amdhsa_float_denorm_mode_32 3
.end_amdhsa_kernel
''' % KNAME
        return out


if __name__ == '__main__':
    opts = {}
    for arg in sys.argv[2:]:
        k, v = arg.split('=')
        opts[k] = int(v, 0)
    g = Gen(opts)
    txt = g.kernel()
    open(sys.argv[1], 'w').write(txt)
    print('instructions', g.a.n_ins, g.a.stats, 'nop states', g.a.nop_states, 'bytes of text', len(txt))
```

```python
import sys, math, struct
from asmgen import Asm, Ins, WaitVM, WaitLG, Stream, weave

KNAME = 'gated_mix__ssm_conv_s5__dense_activation_relu__prompt_kernel'

EPOCH_OFF = 0
FLAG_OFF = 0x1000
WF_OFF = 0x4000
AGG_OFF = 0x10000
WT_OFF = 0x40000
H_OFF = 0x400000
STAMP_OFF = 0x1000000
WS_BYTES = 268435456
OOB = 0x40000000

SLOT = 20480
MISC = 7 * SLOT
XS = 4 * SLOT
L_GW = MISC + 4096
L_GATE = L_GW + 2048
L_WST = L_GATE + 512
L_SEG = L_WST + 8192
L_LB = L_WST
LDS_BYTES = 163840
assert L_SEG + 5120 <= LDS_BYTES and XS + 65536 <= L_GW

S_X, S_LRE, S_LIM, S_BRE, S_BIM, S_CRE, S_CIM, S_LDT = 4, 6, 8, 10, 12, 14, 16, 18
S_DSK, S_BX, S_W1, S_W2, S_GWP, S_OUT, S_DBG, S_WS = 20, 22, 24, 26, 28, 30, 32, 34
R_X, R_WS, R_BRE, R_BIM, R_W1, R_W2, R_GW = 36, 40, 44, 48, 52, 56, 60
R_CI = 60
R_OUT = 48
sTAG, sTAG2, sW, sR, sG, sA, sR2, sC2, sC16, sHALF, sCC, sRHO = 64, 65, 66, 67, 68, 69, 70, 71, 72, 73, 74, 75
S_MASK = 76
sKO = 76
sE = 3
sW10, sGWI, sHF, sHS = 99, 98, 22, 23
sFB, sXS = 28, 4


def srd(r):
    return 's[%d:%d]' % (r, r + 3)


def vr(b, n=1):
    return 'v%d' % b if n == 1 else 'v[%d:%d]' % (b, b + n - 1)


def ar(b, n=1):
    return 'a%d' % b if n == 1 else 'a[%d:%d]' % (b, b + n - 1)


def f2u(x):
    return struct.unpack('<I', struct.pack('<f', x))[0]


def magic(d):
    return (1 << 32) // d + 1


LOG2E = '0x%08x' % f2u(math.log2(math.e))
INV2PI = '0x%08x' % f2u(1.0 / (2 * math.pi))


class P2:
    VL16, VL16B = 14, 15
    KS = list(range(4, 20)) + list(range(52, 58))
    sWB, sHB, sWk, sHk = 24, 25, 26, 27

    def __init__(self, opts):
        self.o = opts
        top = 240 if opts.get('stamps') else 256
        self.early_quads = [('a', r) for r in range(160, top, 4)] + [('v', r) for r in range(192, 256, 4)]
        self.n_early = min(opts.get('nearly', 22), len(self.early_quads) // 5)
        self.wq = {}
        for k in range(self.n_early):
            for dt in range(5):
                self.wq[(k, dt)] = self.early_quads[5 * k + dt]
        self.n_early2 = opts.get('nearly2', 5)
        self.early2_quads = [('a', 4 * j) for j in range(5 * self.n_early2)]
        for k in range(self.n_early2):
            for dt in range(5):
                self.wq[(self.n_early + k, dt)] = self.early2_quads[5 * k + dt]

    @staticmethod
    def q(x):
        return (vr if x[0] == 'v' else ar)(x[1], 4)

    def tables(self, late=False):
        KS, o = self.KS, self.o
        gr = []
        if not late:
            L = ['v_add_u32 %s, 4096, %s' % (vr(self.VL16B), vr(self.VL16)),
                 's_mul_i32 s%d, s%d, %d' % (self.sWB, sC2, 88 * 5120), 's_add_u32 s%d, s%d, 0x%x' % (self.sWB, self.sWB, WT_OFF),
                 's_mul_i32 s%d, s%d, %d' % (self.sHB, sR2, 88 * 4096), 's_add_u32 s%d, s%d, 0x%x' % (self.sHB, self.sHB, H_OFF),
                 's_mul_i32 s34, s%d, 10' % sW, 's_add_u32 s34, s34, 48',
                 's_mul_i32 s35, s%d, 12' % sW, 's_sub_u32 s35, s35, 10']
            mode = o.get('rot2', 0)
            if mode == 0:
                L += ['s_mov_b32 s96, 0']
            else:
                L += ['s_and_b32 s96, s%d, 3' % sC2, 's_mul_i32 s96, s96, %d' % o.get('rotc', 5)]
                if mode == 2:
                    L += ['s_and_b32 s95, s%d, 7' % sR2, 's_mul_i32 s95, s95, %d' % o.get('rotr', 3), 's_add_u32 s96, s96, s95']
            gr = [[Ins(x)] for x in L]
            for rep in range(2):
                gr.append([Ins('s_cmp_ge_u32 s96, 22'), Ins('s_cselect_b32 s95, 22, 0'), Ins('s_sub_u32 s96, s96, s95')])
            rng = range(16)
        else:
            gr = [[Ins('s_mov_b32 s96, s29')]]
            rng = range(16, 22)
        for k in rng:
            gr.append([Ins('s_cmp_lt_u32 s96, 10'), Ins('s_cselect_b32 s95, s34, s35'), Ins('s_add_u32 s%d, s95, s96' % KS[k])])
            gr.append([Ins('s_add_u32 s96, s96, 1')])
            gr.append([Ins('s_cmp_eq_u32 s96, 22'), Ins('s_cselect_b32 s96, 0, s96')])
        if not late:
            gr.append([Ins('s_mov_b32 s29, s96')])
        return gr

    def w_loads(self, k, quads, sk=None):
        sk = self.sWk if sk is None else sk
        gr = []
        for dt in range(5):
            hd = []
            if dt == 0:
                hd = [Ins('s_mul_i32 s%d, s%d, 5120' % (sk, self.KS[k])), Ins('s_add_u32 s%d, s%d, s%d' % (sk, sk, self.sWB))]
            if dt < 4:
                ld = Ins('buffer_load_dwordx4 %s, %s, %s, s%d offen offset:%d sc1' % (self.q(quads[dt]), vr(self.VL16), srd(R_WS), sk, dt * 1024))
            else:
                ld = Ins('buffer_load_dwordx4 %s, %s, %s, s%d offen sc1' % (self.q(quads[dt]), vr(self.VL16B), srd(R_WS), sk))
            gr.append(hd + [ld])
        return gr

    def early2_w(self):
        gr = []
        for k in range(self.n_early, self.n_early + self.n_early2):
            gr += self.w_loads(k, [self.wq[(k, dt)] for dt in range(5)], self.sHk)
        return gr

    def early_w(self):
        gr = []
        for k in range(self.n_early):
            gr += self.w_loads(k, [self.wq[(k, dt)] for dt in range(5)])
        return gr


class Gen:
    def __init__(self, opts):
        self.o = opts
        self.a = Asm()
        self.p2 = P2(opts)

    def stamp(self, k, clock=False):
        if not self.o.get('stamps'):
            return
        det = self.o.get('detail', 0)
        if isinstance(k, tuple):
            if k[0] != det:
                return
            k = k[1]
        elif det and (5 <= k <= 11 or (det == 3 and k in (1, 2, 3))):
            return
        a = self.a
        a('%s s[100:101]' % ('s_memtime' if clock else 's_memrealtime'))
        a.waitcnt(lg=0)
        a('v_accvgpr_write_b32 a%d, s100' % (240 + k))

    def dump_stamps(self):
        if not self.o.get('stamps'):
            return
        a = self.a
        self.stamp(12)
        self.stamp(14, clock=True)
        a.drain()
        for k in range(16):
            a('v_accvgpr_read_b32 v%d, a%d' % (16 + k, 240 + k))
        a('s_lshl_b32 s90, s2, 2')
        a('s_add_u32 s90, s90, s%d' % sW)
        a('s_lshl_b32 s90, s90, 6')
        a('s_add_u32 s90, s90, 0x%x' % STAMP_OFF)
        a('v_mov_b32 v1, 0')
        for k in range(4):
            a('buffer_store_dwordx4 v[%d:%d], v1, %s, s90 offen offset:%d' % (16 + 4 * k, 19 + 4 * k, srd(R_WS), 16 * k))
        a.waitcnt(vm=0)

    def build_srd(self, r, ptr, nbytes):
        a = self.a
        a('s_mov_b32 s%d, s%d' % (r, ptr))
        a('s_and_b32 s%d, s%d, 0xffff' % (r + 1, ptr + 1))
        a('s_mov_b32 s%d, 0x%x' % (r + 2, nbytes))
        a('s_mov_b32 s%d, 0x20000' % (r + 3))

    def swap23(self, dst, src, tmp):
        a = self.a
        a('v_and_b32 %s, 19, %s' % (vr(dst), vr(src)))
        a('v_bfe_u32 %s, %s, 2, 1' % (vr(tmp), vr(src)))
        a('v_lshl_add_u32 %s, %s, 3, %s' % (vr(dst), vr(tmp), vr(dst)))
        a('v_bfe_u32 %s, %s, 3, 1' % (vr(tmp), vr(src)))
        a('v_lshl_add_u32 %s, %s, 2, %s' % (vr(dst), vr(tmp), vr(dst)))

    def lane_t(self, dst, src, tmp):
        a = self.a
        a('v_bfe_u32 %s, %s, 2, 1' % (vr(tmp), vr(src)))
        a('v_lshlrev_b32 %s, 4, %s' % (vr(tmp), vr(tmp)))
        a('v_and_b32 %s, 3, %s' % (vr(dst), vr(src)))
        a('v_add_u32 %s, %s, %s' % (vr(dst), vr(dst), vr(tmp)))
        a('v_lshrrev_b32 %s, 3, %s' % (vr(tmp), vr(src)))
        a('v_lshl_add_u32 %s, %s, 2, %s' % (vr(dst), vr(tmp), vr(dst)))

    XD, XR = 48, 52
    PO, GO0, GO1 = 56, 57, 58
    CD, CR = 60, 62

    def prologue(self):
        a, o = self.a, self.o
        a('s_cmp_ge_u32 s2, 256')
        a('s_cbranch_scc1 L_exit')
        self.stamp(0)
        self.stamp(13, clock=True)
        a('s_load_dwordx16 s[4:19], s[0:1], 0')
        a('s_load_dwordx16 s[20:35], s[0:1], 64')
        if o.get('codepf', 1):
            a('s_getpc_b64 s[92:93]')
            a.label('L_pc')
            a('s_lshr_b32 s90, s2, 3')
            a('s_lshl_b32 s90, s90, 2')
            a('v_lshrrev_b32 v1, 6, v0')
            a('v_add_u32 v1, s90, v1')
            a('v_mul_u32_u24 v1, 3, v1')
            a('v_and_b32 v2, 63, v0')
            a('v_min_u32 v2, 2, v2')
            a('v_add_u32 v1, v1, v2')
            a('v_lshlrev_b32 v1, 7, v1')
            a.raw('    v_min_u32 v1, L_exit-L_pc, v1')
            a('global_load_dword v47, v1, s[92:93]')
        a.many("""
            s_and_b32 s90, s2, 7
            s_lshr_b32 s91, s2, 3
            s_lshr_b32 s92, s90, 1
            s_and_b32 s%(half)d, s90, 1
            s_lshl_b32 s93, s92, 2
            s_lshr_b32 s94, s91, 3
            s_add_u32 s%(r)d, s93, s94
            s_and_b32 s%(cc)d, s91, 7
            s_lshl_b32 s93, s%(half)d, 3
            s_add_u32 s%(c16)d, s93, s%(cc)d
            s_lshl_b32 s93, s92, 3
            s_lshr_b32 s94, s91, 2
            s_add_u32 s%(r2)d, s93, s94
            s_lshl_b32 s93, s%(half)d, 2
            s_and_b32 s94, s91, 3
            s_add_u32 s%(c2)d, s93, s94
        """ % dict(half=sHALF, r=sR, cc=sCC, c16=sC16, r2=sR2, c2=sC2))
        a('v_lshrrev_b32 v1, 6, v0')
        a('v_and_b32 v0, 63, v0')
        a('v_readfirstlane_b32 s%d, v1' % sW)
        a.many("""
            s_mul_i32 s93, s%(half)d, 6
            s_add_u32 s%(A)d, s93, s%(cc)d
            s_lshl_b32 s93, s%(half)d, 1
            s_add_u32 s93, s93, s%(cc)d
            s_sub_u32 s93, s93, 6
            s_lshl_b32 s93, s93, 1
            s_add_u32 s93, s93, 12
            s_cmp_lt_u32 s%(cc)d, 6
            s_cselect_b32 s%(G)d, s%(A)d, s93
        """ % dict(half=sHALF, A=sA, cc=sCC, G=sG))
        rm = o.get('rotmode', 1)
        a('s_and_b32 s90, s%d, 3' % sR)
        if rm == 1:
            a('s_lshl_b32 s90, s90, 1')
            a('s_add_u32 s90, s90, s%d' % sCC)
        elif rm == 2:
            a('s_mov_b32 s90, s%d' % sCC)
        elif rm == 3:
            a('s_lshl_b32 s90, s90, 1')
        elif rm == 4:
            a('s_mul_i32 s90, s90, 3')
        elif rm == 5:
            a('s_lshr_b32 s91, s%d, 1' % sCC)
            a('s_lshl_b32 s91, s91, 1')
            a('s_add_u32 s90, s90, s91')
        elif rm == 20:
            a('s_mul_i32 s90, s90, %d' % o.get('c1', 1))
            a('s_lshr_b32 s91, s%d, 1' % sCC)
            a('s_mul_i32 s91, s91, %d' % o.get('c2', 2))
            a('s_add_u32 s90, s90, s91')
            a('s_and_b32 s91, s%d, 1' % sCC)
            a('s_mul_i32 s91, s91, %d' % o.get('c3', 0))
            a('s_add_u32 s90, s90, s91')
            a('s_mul_i32 s91, s%d, %d' % (sHALF, o.get('c4', 1)))
            a('s_add_u32 s90, s90, s91')
            a('s_lshr_b32 s91, s%d, 2' % sR)
            a('s_mul_i32 s91, s91, %d' % o.get('c5', 0))
            a('s_add_u32 s90, s90, s91')
            a('s_mul_hi_u32 s91, s90, 0x%x' % magic(10))
            a('s_mul_i32 s91, s91, 10')
            a('s_sub_u32 s90, s90, s91')
        elif rm == 7:
            a('s_add_u32 s90, s90, s%d' % sCC)
        elif rm == 8:
            a('s_mul_i32 s90, s90, 3')
            a('s_add_u32 s90, s90, s%d' % sCC)
        elif rm == 9:
            a('s_lshr_b32 s91, s%d, 1' % sCC)
            a('s_lshl_b32 s91, s91, 1')
            a('s_add_u32 s90, s90, s91')
            a('s_add_u32 s90, s90, s%d' % sHALF)
        elif rm == 10:
            a('s_lshr_b32 s91, s%d, 1' % sCC)
            a('s_lshl_b32 s90, s90, 1')
            a('s_add_u32 s90, s90, s91')
        elif rm == 11:
            a('s_lshr_b32 s91, s%d, 2' % sCC)
            a('s_mul_i32 s91, s91, 5')
            a('s_add_u32 s90, s90, s91')
        elif rm == 12:
            a('s_lshr_b32 s91, s%d, 1' % sCC)
            a('s_lshl_b32 s91, s91, 1')
            a('s_add_u32 s90, s90, s91')
            a('s_mul_i32 s91, s%d, 5' % sHALF)
            a('s_add_u32 s90, s90, s91')
        elif rm == 6:
            a('s_lshl_b32 s90, s90, 1')
            a('s_add_u32 s90, s90, s%d' % sCC)
            a('s_mul_i32 s91, s%d, 5' % sHALF)
            a('s_add_u32 s90, s90, s91')
            a('s_cmp_ge_u32 s90, 10')
            a('s_cselect_b32 s91, 10, 0')
            a('s_sub_u32 s90, s90, s91')
        a('s_cmp_ge_u32 s90, 10')
        a('s_cselect_b32 s91, 10, 0')
        a('s_sub_u32 s%d, s90, s91' % sRHO)
        if not o.get('rot', 1):
            a('s_mov_b32 s%d, 0' % sRHO)
        a('s_lshl_b32 s%d, s%d, 7' % (sKO, sRHO))
        for k in range(1, 10):
            a('s_add_u32 s%d, s%d, 128' % (sKO + k, sKO + k - 1))
            a('s_cmp_ge_u32 s%d, 1280' % (sKO + k))
            a('s_cselect_b32 s%d, 0, s%d' % (sKO + k, sKO + k))
        a('s_lshl_b32 s%d, s%d, 10' % (sW10, sW))
        XD, CD = self.XD, self.CD
        a('v_lshrrev_b32 v64, 3, v0')
        a('v_and_b32 v65, 7, v0')
        a('v_lshrrev_b32 v66, 1, v64')
        a('v_xor_b32 v66, v66, v65')
        a('v_mul_u32_u24 v67, 1280, v64')
        a('v_lshl_add_u32 %s, v66, 4, v67' % vr(CD))
        a('v_xor_b32 %s, 64, %s' % (vr(CD + 1), vr(CD)))
        a('v_add_u32 %s, 10240, %s' % (vr(CD + 1), vr(CD + 1)))
        a('s_lshl_b32 s90, s%d, 2' % sR)
        a('s_add_u32 s90, s90, s%d' % sW)
        a('s_mul_i32 s90, s90, 40960')
        a('v_add_u32 %s, s90, %s' % (vr(XD), vr(CD)))
        a('v_add_u32 %s, s90, %s' % (vr(XD + 1), vr(CD + 1)))
        a('v_add_u32 %s, 20480, %s' % (vr(XD + 2), vr(XD)))
        a('v_add_u32 %s, 20480, %s' % (vr(XD + 3), vr(XD + 1)))
        a('s_lshl_b32 s90, s%d, 3' % sW)
        a('v_add_u32 v66, s90, v64')
        self.swap23(67, 66, 68)
        a('v_mul_u32_u24 v67, 1280, v67')
        a('v_bfe_u32 v68, v66, 1, 3')
        a('v_xor_b32 v68, v68, v65')
        a('v_lshl_add_u32 v3, v68, 4, v67')
        a('s_mul_i32 s90, s%d, 40960' % sG)
        a('v_add_u32 v3, s90, v3')
        a('v_and_b32 v66, 31, v0')
        self.swap23(67, 66, 68)
        a('v_lshlrev_b32 %s, 1, v67' % vr(self.PO))
        g0, g1 = self.GO0, self.GO1
        a('s_lshl_b32 s90, s%d, 3' % sRHO)
        a('v_add_u32 %s, s90, v0' % vr(g0))
        a('v_subrev_u32 v66, 80, %s' % vr(g0))
        a('v_cmp_le_u32 vcc, 80, %s' % vr(g0))
        a('v_cndmask_b32 %s, %s, v66, vcc' % (vr(g0), vr(g0)))
        a('v_add_u32 %s, 64, %s' % (vr(g1), vr(g0)))
        a('v_subrev_u32 v66, 80, %s' % vr(g1))
        a('v_cmp_le_u32 vcc, 80, %s' % vr(g1))
        a('v_cndmask_b32 %s, %s, v66, vcc' % (vr(g1), vr(g1)))
        a('v_lshlrev_b32 %s, 4, %s' % (vr(g0), vr(g0)))
        a('v_lshlrev_b32 %s, 4, %s' % (vr(g1), vr(g1)))
        a('v_cmp_gt_u32 vcc, 16, v0')
        a('v_cndmask_b32 %s, 0x%x, %s, vcc' % (vr(g1), OOB, vr(g1)))
        a.waitcnt(lg=0)
        self.stamp(1)
        a('s_load_dword s%d, s[%d:%d], 0x%x' % (sE, S_WS, S_WS + 1, EPOCH_OFF))
        if o.get('tlb', 0):
            pages = [(S_X, 0), (S_X, 2097152), (S_BRE, 0), (S_BIM, 0), (S_GWP, 0), (S_LRE, 0), (S_LIM, 0), (S_LDT, 0),
                     (S_W1, 0), (S_W1, 1966080 - 64), (S_W2, 0), (S_W2, 1966080 - 64), (S_CRE, 0), (S_CIM, 0), (S_DSK, 0),
                     (S_OUT, 0), (S_OUT, 2097152), (S_OUT, 4194304), (S_OUT, 5242880 - 64)]
            pages += [(S_WS, p * 2097152) for p in range(8)]
            if o.get('tlb') == 2:
                pages = pages[:8]
            a('v_mov_b32 v70, s%d' % S_X)
            a('v_mov_b32 v71, s%d' % (S_X + 1))
            for ln, (ptr, off) in enumerate(pages):
                if ln == 0:
                    continue
                if off:
                    a('s_add_u32 s90, s%d, 0x%x' % (ptr, off))
                    a('s_addc_u32 s91, s%d, 0' % (ptr + 1))
                    a('v_writelane_b32 v70, s90, %d' % ln)
                    a('v_writelane_b32 v71, s91, %d' % ln)
                else:
                    a('v_writelane_b32 v70, s%d, %d' % (ptr, ln))
                    a('v_writelane_b32 v71, s%d, %d' % (ptr + 1, ln))
            a('global_load_dword v46, v[70:71], off')
        self.build_srd(R_X, S_X, 2621440)
        self.build_srd(R_BRE, S_BRE, 819200)
        self.build_srd(R_GW, S_GWP, 1280)
        a('s_lshl_b32 s%d, s%d, 14' % (sXS, sW))
        a('s_add_u32 s%d, s%d, %d' % (sXS, sXS, XS))

    def phase1(self, typ):
        a, o = self.a, self.o
        A = typ == 'A'
        HST = {0: 'sc1', 1: 'sc0 sc1', 2: 'sc1 nt', 3: 'sc0 sc1 nt'}[o.get('hst', 0)]
        XD, XR, CD, CR = self.XD, self.XR, self.CD, self.CR
        V = {'WS': 3}
        nxt = [4]

        def al(name, n=1):
            V[name] = nxt[0]
            nxt[0] += n
        for nm in ('WF', 'ST', 'AG', 'LB0', 'LB1', 'SEGW', 'SEGR', 'GW', 'G', 'OMG', 'W2D', 'W2R'):
            al(nm)
        al('RS', 4)
        if A:
            al('RF', 6)
        else:
            al('WS2')
        ngrp = 1 if A else 2
        for g in range(ngrp):
            for nm in ('lr', 'li', 'nli', 'l16r', 'l16i', 'lsr', 'lsi', 'p1r', 'p1i', 'p2r', 'p2i', 'cr', 'ci'):
                al('%s%d' % (nm, g))
        assert nxt[0] <= 47, nxt[0]
        RING = 96
        RING_ADDR = 92
        PT = 80
        ACC = [128, 160]
        GACC = 160
        FA = [160, 176]
        A_GW = 160

        def XF(s):
            return ar(4 * s, 4)

        def put_all(items):
            for it in items:
                if isinstance(it, list):
                    put_all(it)
                elif callable(it):
                    it()
                else:
                    a.put(it)

        def ssm_dma(g, stage, slot):
            R = R_BRE if stage % 2 == 0 else R_BIM
            kh = stage // 2
            ws_ = V['WS'] if g == 0 else V['WS2']
            grp = []
            last = None
            for kb in range(5):
                last = Ins('buffer_load_dwordx4 %s, %s, s%d offen lds' % (vr(ws_), srd(R), sKO + 5 * kh + kb))
                grp.append([Ins('s_add_u32 m0, s%d, %d' % (sW10, slot * SLOT + kb * 4096)), Ins('s_nop 0'), last])
            return grp, last

        s_dma = {}

        def s_load(g, m, kap):
            kh, kb = kap // 5, kap % 5
            slot = slot_of[4 * g + 2 * kh + m]
            ws_ = V['WS'] if g == 0 else V['WS2']
            ld = Ins('buffer_load_dwordx4 %s, %s, s%d offen lds' % (vr(ws_), srd(R_BIM if m else R_BRE), sKO + kap))
            s_dma[(g, m, kap)] = ld
            return [Ins('s_add_u32 m0, s%d, %d' % (sW10, slot * SLOT + kb * 4096)), Ins('s_nop 0'), ld]

        def ffn_dma(fst, slot):
            blk, st = fst >> 2, fst & 3
            grp = []
            last = None
            for i2 in range(5):
                c = (160 * st + 32 * i2) * 3072 + 128 * blk
                last = Ins('buffer_load_dwordx4 %s, %s, %s offen lds' % (vr(V['WF']), srd(R_W1), '0' if o.get('fakeF') else 's92'))
                grp.append([Ins('s_add_u32 s92, s%d, %d' % (sFB, c)),
                            Ins('s_cmp_ge_u32 s92, %d' % (640 * 3072)),
                            Ins('s_cselect_b32 s93, %d, 0' % (640 * 3072)),
                            Ins('s_add_u32 m0, s%d, %d' % (sW10, slot * SLOT + i2 * 4096)),
                            Ins('s_sub_u32 s92, s92, s93'),
                            last])
            return grp, last

        x_dma_last, x_rd_last = {}, {}

        def xdma(kap):
            grp = []
            for g in range(4):
                ld = Ins('buffer_load_dwordx4 %s, %s, %s offen lds' % (vr(XD + g), srd(R_X), '0' if (o.get('fakeX') and kap >= 4) else 's%d' % (sKO + kap)))
                grp.append([Ins('s_add_u32 m0, s%d, %d' % (sXS, (kap % 4) * 4096 + g * 1024)), Ins('s_nop 0'), ld])
                x_dma_last[kap] = ld
            return grp

        def xread(kap):
            grp = []
            for j in range(4):
                rd = Ins('ds_read_b128 %s, %s offset:%d' % (XF(4 * kap + j), vr(XR + j), (kap % 4) * 4096))
                grp.append(([WaitVM(x_dma_last[kap])] if j == 0 else []) + [rd])
                x_rd_last[kap] = rd
            return grp

        def xrefill(kap):
            g = xdma(kap)
            g[0] = [WaitLG(x_rd_last[kap - 4])] + g[0]
            return g

        if A:
            seq = [('S', 0, i) for i in range(4)] + [('F', 0, i) for i in range(8)]
            slot_of = [0, 1, 2, 3, 0, 1, 4, 5, 6, 2, 3, 0]
        else:
            seq = [('S', 0, i) for i in range(4)] + [('S', 1, i) for i in range(4)]
            slot_of = [0, 1, 2, 3, 0, 1, 4, 5]
        dma_last = [None] * len(seq)

        def stage_loads(i):
            kind, g, st = seq[i]
            grp, last = ssm_dma(g, st, slot_of[i]) if kind == 'S' else ffn_dma(st, slot_of[i])
            dma_last[i] = last
            return grp

        if not A:
            a('v_add_u32 %s, 40960, %s' % (vr(V['WS2']), vr(V['WS'])))
        self.build_srd(R_BIM, S_BIM, 819200)
        PF = o.get('pf', 0)
        if PF:
            a('s_lshr_b32 s90, s2, 3')
            a('s_lshl_b32 s90, s90, 2')
            a('s_add_u32 s90, s90, s%d' % sW)
            a('s_mul_i32 s91, s90, 40')
            a('v_min_u32 v64, 39, v0')
            a('v_add_u32 v64, s91, v64')
            a('v_lshlrev_b32 v64, 7, v64')
            a('s_and_b32 s91, s2, 7')
            a('s_lshr_b32 s91, s91, 1')
            a('s_mul_i32 s91, s91, %d' % (512 * 1280))
            a('buffer_load_dword v68, v64, %s, s91 offen' % srd(R_X))
            a('s_mul_i32 s91, s90, 25')
            a('v_min_u32 v64, 24, v0')
            a('v_add_u32 v64, s91, v64')
            a('v_mul_u32_u24 v65, 6554, v64')
            a('v_lshrrev_b32 v65, 21, v65')
            a('v_mul_u32_u24 v66, 320, v65')
            a('v_sub_u32 v64, v64, v66')
            a('s_mul_i32 s91, s%d, 6' % sHALF)
            a('s_lshl_b32 s92, s%d, 2' % sHALF)
            a('s_add_u32 s92, s92, 6')
            a('v_add_u32 v66, s91, v65')
            a('v_add_u32 v67, s92, v65')
            a('v_cmp_gt_u32 vcc, 6, v65')
            a('v_cndmask_b32 v65, v67, v66, vcc')
            a('v_mul_u32_u24 v65, 40960, v65')
            a('v_lshl_add_u32 v64, v64, 7, v65')
            a('buffer_load_dword v69, v64, %s, 0 offen' % srd(R_BRE))
            a('buffer_load_dword v70, v64, %s, 0 offen' % srd(R_BIM))
        put_all(xdma(0))
        put_all([s_load(0, 0, 0), s_load(0, 1, 0)])
        if PF != 2:
            put_all(xdma(1))
            put_all([s_load(0, 0, 1), s_load(0, 1, 1)])
        for g in range(ngrp):
            a('s_add_u32 s90, s%d, %d' % (sG, g))
            a('s_lshl_b32 s90, s90, 6')
            a('v_add_u32 v59, s90, %s' % vr(self.PO))
            a('global_load_ushort %s, v59, s[%d:%d]' % (vr(V['lr%d' % g]), S_LRE, S_LRE + 1))
            a('global_load_ushort %s, v59, s[%d:%d]' % (vr(V['li%d' % g]), S_LIM, S_LIM + 1))
            a('global_load_ushort %s, v59, s[%d:%d]' % (vr(V['cr%d' % g]), S_LDT, S_LDT + 1))
        a('s_mov_b32 m0, %d' % L_GW)
        a('s_nop 0')
        a('buffer_load_dwordx4 %s, %s, 0 offen lds' % (vr(self.GO0), srd(R_GW)))
        a('s_mov_b32 m0, %d' % (L_GW + 1024))
        a('s_nop 0')
        gw_dma = a('buffer_load_dwordx4 %s, %s, 0 offen lds' % (vr(self.GO1), srd(R_GW)))

        self.stamp(2)

        def G(lines):
            return [[Ins(x)] for x in lines]

        U0, U1, U2, U3, U4 = PT, PT + 1, PT + 2, PT + 3, PT + 4
        a('v_and_b32 %s, 31, v0' % vr(U0))
        a('v_lshrrev_b32 %s, 5, v0' % vr(U1))
        self.lane_t(U2, U0, U3)
        a('v_bfe_u32 %s, %s, 1, 3' % (vr(U3), vr(U2)))
        a('v_lshlrev_b32 %s, 1, %s' % (vr(U4), vr(U1)))
        a('v_xor_b32 %s, %s, %s' % (vr(U3), vr(U3), vr(U4)))
        a('v_lshlrev_b32 %s, 7, %s' % (vr(U2), vr(U2)))
        a('v_add_u32 %s, s%d, %s' % (vr(U2), sXS, vr(U2)))
        for u in range(2):
            for ab in range(2):
                d = XR + 2 * u + ab
                a('v_xor_b32 %s, %d, %s' % (vr(d), 4 * u + ab, vr(U3)))
                a('v_lshl_add_u32 %s, %s, 4, %s' % (vr(d), vr(d), vr(U2)))
        a('v_lshlrev_b32 %s, 5, %s' % (vr(V['GW']), vr(U1)))
        a('v_add_u32 %s, %d, %s' % (vr(V['GW']), L_GW, vr(V['GW'])))
        a('v_bfe_u32 %s, %s, 1, 3' % (vr(U2), vr(U0)))
        a('v_xor_b32 %s, %s, %s' % (vr(U2), vr(U2), vr(U4)))
        a('v_lshlrev_b32 %s, 7, %s' % (vr(U3), vr(U0)))
        for u in range(2):
            for ab in range(2):
                d = V['RS'] + 2 * u + ab
                a('v_xor_b32 %s, %d, %s' % (vr(d), 4 * u + ab, vr(U2)))
                a('v_lshl_add_u32 %s, %s, 4, %s' % (vr(d), vr(d), vr(U3)))

        def gate_reads(half):
            return G(['ds_read_b128 %s, %s offset:%d' % (ar(A_GW + 4 * k, 4), vr(V['GW']), 64 * ((20 * half + k) >> 1) + 16 * (k & 1)) for k in range(20)])
        def late_scalars():
            L = []
            for r, ptr, nb in ((R_WS, S_WS, WS_BYTES), (R_W1, S_W1, 1966080), (R_W2, S_W2, 1966080)):
                L += ['s_mov_b32 s%d, s%d' % (r, ptr), 's_and_b32 s%d, s%d, 0xffff' % (r + 1, ptr + 1),
                      's_mov_b32 s%d, 0x%x' % (r + 2, nb), 's_mov_b32 s%d, 0x20000' % (r + 3)]
            L += ['s_lshl_b32 s90, s%d, 3' % sRHO, 's_add_u32 s90, s90, s%d' % sW, 's_mul_i32 s90, s90, 24576',
                  's_lshl_b32 s91, s%d, 8' % sA, 's_add_u32 s%d, s90, s91' % sFB]
            if A:
                t0, t1, t2 = PT, PT + 1, PT + 2
                L += ['v_lshrrev_b32 %s, 3, v0' % vr(t0),
                      'v_mul_u32_u24 %s, 3072, %s' % (vr(t1), vr(t0)),
                      'v_bfe_u32 %s, %s, 1, 1' % (vr(t0), vr(t0)),
                      'v_lshlrev_b32 %s, 2, %s' % (vr(t0), vr(t0)),
                      'v_and_b32 %s, 7, v0' % vr(t2),
                      'v_xor_b32 %s, %s, %s' % (vr(t0), vr(t0), vr(t2)),
                      'v_lshl_add_u32 %s, %s, 4, %s' % (vr(V['WF']), vr(t0), vr(t1))]
            return G(L)

        w2_dma = []
        c_dma = []

        def w2_setup():
            T0, T1 = 59, PT + 4
            L = ['v_lshrrev_b32 %s, 1, v0' % vr(T0),
                 'v_mul_u32_u24 %s, 1280, %s' % (vr(T0), vr(T0)),
                 'v_and_b32 %s, 1, v0' % vr(T1),
                 'v_lshl_add_u32 %s, %s, 4, %s' % (vr(T0), vr(T1), vr(T0)),
                 's_lshl_b32 s90, s2, 2',
                 's_add_u32 s%d, s90, s%d' % (sGWI, sW),
                 's_cmp_lt_u32 s%d, 960' % sGWI]
            gr = G(L[:-1]) + [[Ins(L[-1]), Ins('s_cselect_b32 s91, 0, 0x%x' % OOB)]]
            gr += G(['v_add_u32 %s, s91, %s' % (vr(T0), vr(T0)),
                     'v_lshlrev_b32 %s, 4, v0' % vr(V['W2D']),
                     'v_add_u32 v1, s91, %s' % vr(V['W2D']),
                     's_min_u32 s91, s%d, 959' % sGWI,
                     's_lshl_b32 s91, s91, 1',
                     's_mul_hi_u32 s90, s91, 0x%x' % magic(240),
                     's_mul_i32 s94, s90, 240',
                     's_sub_u32 s91, s91, s94',
                     's_mul_i32 s94, s90, 440',
                     's_add_u32 s94, s94, s91',
                     's_lshl_b32 s94, s94, 10',
                     's_add_u32 s26, s94, 0x%x' % WT_OFF])
            for e in range(2):
                L = []
                if e:
                    L.append('s_add_u32 s91, s91, 1')
                L += ['s_mul_hi_u32 s94, s91, 0x%x' % magic(5),
                      's_mul_i32 s95, s94, 5',
                      's_sub_u32 s95, s91, s95',
                      's_mul_i32 s94, s94, 40960',
                      's_mul_i32 s96, s90, 160',
                      's_add_u32 s94, s94, s96',
                      's_lshl_b32 s95, s95, 5',
                      's_add_u32 s%d, s94, s95' % (27, 29)[e]]
                gr += G(L)
                ld = Ins('buffer_load_dwordx4 %s, %s, s%d offen lds' % (vr(T0), srd(R_W2), (27, 29)[e]))
                gr.append([Ins('s_add_u32 m0, s%d, %d' % (sW10, 2 * SLOT + 12288 + 4096 * e)), Ins('s_nop 0'), ld])
                w2_dma.append(ld)
            return gr

        _w2 = w2_setup()
        w2_setup_b = [g for g in _w2 if any(x.kind == 'vm' for x in g)]
        w2_setup_a = [g for g in _w2 if not any(x.kind == 'vm' for x in g)]
        assert len(w2_setup_b) == 2

        def c_setup():
            gr = [[Ins('s_cmp_lt_u32 s%d, 800' % sGWI), Ins('s_cselect_b32 s91, 0, 0x%x' % OOB)]]
            gr += G(['v_add_u32 %s, s91, %s' % (vr(CD), vr(CD)),
                     'v_add_u32 %s, s91, %s' % (vr(CD + 1), vr(CD + 1)),
                     'v_add_u32 v2, s91, %s' % vr(V['W2D']),
                     's_min_u32 s91, s%d, 799' % sGWI])
            gr.append([Ins('s_cmp_ge_u32 s91, 400'), Ins('s_cselect_b32 s90, 1, 0'),
                       Ins('s_cselect_b32 s%d, s%d, s%d' % (R_CI, S_CIM, S_CRE)),
                       Ins('s_cselect_b32 s%d, s%d, s%d' % (R_CI + 1, S_CIM + 1, S_CRE + 1))])
            gr += G(['s_and_b32 s%d, s%d, 0xffff' % (R_CI + 1, R_CI + 1),
                     's_mov_b32 s%d, 819200' % (R_CI + 2),
                     's_mov_b32 s%d, 0x20000' % (R_CI + 3),
                     's_mul_i32 s94, s90, 400',
                     's_sub_u32 s91, s91, s94',
                     's_mul_hi_u32 s94, s91, 0x%x' % magic(50),
                     's_mul_i32 s95, s94, 50',
                     's_sub_u32 s91, s91, s95',
                     's_mul_hi_u32 s95, s91, 0x%x' % magic(5),
                     's_mul_i32 s96, s95, 5',
                     's_sub_u32 s96, s91, s96',
                     's_mul_i32 s97, s94, 80',
                     's_lshl_b32 s91, s96, 4',
                     's_add_u32 s97, s97, s91',
                     's_mul_i32 s97, s97, 1280',
                     's_lshl_b32 s91, s95, 7',
                     's_add_u32 s24, s97, s91',
                     's_mul_i32 s90, s90, 20',
                     's_lshl_b32 s95, s95, 1',
                     's_add_u32 s90, s90, s95',
                     's_add_u32 s90, s90, 48',
                     's_mul_i32 s94, s94, 88',
                     's_add_u32 s90, s90, s94',
                     's_mul_i32 s90, s90, 5',
                     's_add_u32 s90, s90, s96',
                     's_lshl_b32 s90, s90, 10',
                     's_add_u32 s25, s90, 0x%x' % WT_OFF])
            return gr

        def item_addrs():
            U2, U3, U4 = PT + 5, PT + 6, PT + 7
            return G(['v_lshrrev_b32 %s, 5, v0' % vr(U2),
                      'v_lshlrev_b32 %s, 4, %s' % (vr(U2), vr(U2)),
                      'v_bfe_u32 %s, v0, 4, 1' % vr(U3),
                      'v_lshl_add_u32 %s, %s, 2, %s' % (vr(U2), vr(U3), vr(U2)),
                      'v_bfe_u32 %s, v0, 2, 2' % vr(U3),
                      'v_add_u32 %s, %s, %s' % (vr(U2), vr(U2), vr(U3)),
                      'v_lshlrev_b32 %s, 5, %s' % (vr(U2), vr(U2)),
                      'v_and_b32 %s, 3, v0' % vr(U3),
                      'v_lshl_add_u32 %s, %s, 3, %s' % (vr(U2), vr(U3), vr(U2)),
                      's_add_u32 s97, s%d, %d' % (sW10, 2 * SLOT + 12288),
                      'v_add_u32 %s, s97, %s' % (vr(V['W2R']), vr(U2)),
                      's_add_u32 s97, s%d, %d' % (sW10, 3 * SLOT + 12288),
                      'v_and_b32 %s, 15, v0' % vr(U2),
                      'v_lshrrev_b32 %s, 4, v0' % vr(U3),
                      'v_lshrrev_b32 %s, 1, %s' % (vr(U4), vr(U2)),
                      'v_xor_b32 %s, %s, %s' % (vr(U3), vr(U3), vr(U4)),
                      'v_lshlrev_b32 %s, 4, %s' % (vr(U3), vr(U3)),
                      'v_xor_b32 %s, 64, %s' % (vr(U4), vr(U3)),
                      'v_and_b32 %s, 7, %s' % (vr(PT + 9), vr(U2)),
                      'v_lshrrev_b32 %s, 3, %s' % (vr(U2), vr(U2)),
                      'v_lshlrev_b32 %s, 12, %s' % (vr(U2), vr(U2)),
                      'v_lshl_add_u32 %s, %s, 7, %s' % (vr(U2), vr(PT + 9), vr(U2)),
                      'v_add_u32 %s, s97, %s' % (vr(U2), vr(U2)),
                      'v_add_u32 %s, %s, %s' % (vr(CR), vr(U3), vr(U2)),
                      'v_add_u32 %s, %s, %s' % (vr(CR + 1), vr(U4), vr(U2))])

        def lane_consts():
            U0, U1, U2, U3 = PT, PT + 1, PT + 2, PT + 3
            SEGV, E0, E1 = PT + 8, PT + 9, PT + 10
            L = ['v_and_b32 %s, 31, v0' % vr(U0),
                 'v_lshrrev_b32 %s, 5, v0' % vr(U1),
                 'v_lshrrev_b32 %s, 4, %s' % (vr(U2), vr(U0)),
                 'v_lshlrev_b32 %s, 10, %s' % (vr(U2), vr(U2)),
                 'v_and_b32 %s, 15, %s' % (vr(U3), vr(U0)),
                 'v_lshl_add_u32 %s, %s, 4, %s' % (vr(U3), vr(U1), vr(U3)),
                 'v_lshl_add_u32 %s, %s, 4, %s' % (vr(V['ST']), vr(U3), vr(U2)),
                 'v_lshlrev_b32 %s, 4, %s' % (vr(V['AG']), vr(U0)),
                 'v_mul_u32_u24 %s, 80, %s' % (vr(V['SEGR']), vr(U0)),
                 'v_add_u32 %s, %d, %s' % (vr(V['SEGR']), MISC, vr(V['SEGR'])),
                 's_lshl_b32 s95, s%d, 1' % sW,
                 'v_add_u32 %s, s95, %s' % (vr(SEGV), vr(U1)),
                 'v_lshl_add_u32 %s, %s, 3, %s' % (vr(V['SEGW']), vr(SEGV), vr(V['SEGR']))]
            gr = G(L)
            for i2, E in ((0, E0), (1, E1)):
                gr += G(['v_add_u32 %s, %d, %s' % (vr(U3), 8 * i2, vr(SEGV)),
                         'v_sub_u32 %s, s%d, %s' % (vr(E), sR, vr(U3)),
                         'v_add_u32 %s, -1, %s' % (vr(E), vr(E))])
                gr.append([Ins('v_cmp_gt_u32 vcc, s%d, %s' % (sR, vr(U3))),
                           Ins('v_cndmask_b32 %s, -1, %s, vcc' % (vr(E), vr(E))),
                           Ins('v_cndmask_b32 %s, 0, %s, vcc' % (vr(U3), vr(U3)))])
                gr += G(['v_lshl_add_u32 %s, %s, 9, %s' % (vr(V['LB%d' % i2]), vr(U3), vr(V['AG']))])
            if A:
                jl, mh, tq = PT + 4, PT + 5, PT + 6
                L = ['v_and_b32 %s, 15, v0' % vr(jl),
                     'v_bfe_u32 %s, v0, 4, 1' % vr(mh),
                     'v_lshrrev_b32 %s, 2, %s' % (vr(U2), vr(jl)),
                     'v_lshl_add_u32 %s, %s, 4, %s' % (vr(U2), vr(U1), vr(U2)),
                     'v_lshlrev_b32 %s, 7, %s' % (vr(U2), vr(U2)),
                     'v_and_b32 %s, 1, %s' % (vr(U3), vr(jl)),
                     'v_lshl_add_u32 %s, %s, 3, %s' % (vr(U2), vr(U3), vr(U2)),
                     'v_bfe_u32 %s, %s, 1, 1' % (vr(U3), vr(jl)),
                     'v_lshl_add_u32 %s, %s, 1, %s' % (vr(U3), vr(mh), vr(U3)),
                     'v_bfe_u32 %s, %s, 3, 1' % (vr(tq), vr(jl)),
                     'v_lshlrev_b32 %s, 2, %s' % (vr(tq), vr(tq)),
                     'v_xor_b32 %s, %s, %s' % (vr(U3), vr(U3), vr(tq))]
                for tp in range(2):
                    d = V['RF'] + tp
                    L += ['v_xor_b32 %s, %d, %s' % (vr(d), 4 * tp, vr(U3)),
                          'v_lshl_add_u32 %s, %s, 4, %s' % (vr(d), vr(d), vr(U2)),
                          'v_add_u32 %s, %d, %s' % (vr(d + 2), 3 * SLOT, vr(d)),
                          'v_add_u32 %s, %d, %s' % (vr(d + 4), 6 * SLOT, vr(d))]
                gr += G(L)
            gr += G(['s_lshr_b32 s90, s%d, 1' % sW, 's_lshl_b32 s91, s%d, 1' % sR, 's_add_u32 s90, s90, s91',
                     's_mul_i32 s90, s90, %d' % (88 * 4096), 's_and_b32 s91, s%d, 1' % sW, 's_lshl_b32 s91, s91, 11',
                     's_add_u32 s90, s90, s91', 's_add_u32 s90, s90, 0x%x' % H_OFF, 's_lshl_b32 s91, s%d, 14' % sA,
                     's_add_u32 s%d, s90, s91' % sHF, 's_lshl_b32 s91, s%d, 12' % sG, 's_add_u32 s%d, s90, s91' % sHS,
                     's_add_u32 s%d, s%d, 1' % (sTAG, sE), 's_xor_b32 s%d, s%d, 0x5bd1e995' % (sTAG2, sTAG)])
            return gr

        def params(g):
            SEGV, E = PT + 8, (PT + 9, PT + 10)
            P0, P1, P2, P3, P4, P5, FM = PT, PT + 1, PT + 2, PT + 3, PT + 4, PT + 5, PT + 6
            lr, li, nli, cr, ci = (V[x + str(g)] for x in ('lr', 'li', 'nli', 'cr', 'ci'))

            def cpow(dr, di, m_reg, m_const):
                if m_reg is not None:
                    L = ['v_mul_f32 %s, %s, %s' % (vr(P2), vr(m_reg), vr(P3)), 'v_mul_f32 %s, %s, %s' % (vr(P5), vr(m_reg), vr(P4))]
                else:
                    L = ['v_mul_f32 %s, 0x%08x, %s' % (vr(P2), f2u(float(m_const)), vr(P3)),
                         'v_mul_f32 %s, 0x%08x, %s' % (vr(P5), f2u(float(m_const)), vr(P4))]
                return L + ['v_exp_f32 %s, %s' % (vr(P2), vr(P2)), 'v_fract_f32 %s, %s' % (vr(P5), vr(P5)),
                            'v_cos_f32 %s, %s' % (vr(dr), vr(P5)), 'v_sin_f32 %s, %s' % (vr(di), vr(P5)),
                            'v_mul_f32 %s, %s, %s' % (vr(dr), vr(P2), vr(dr)), 'v_mul_f32 %s, %s, %s' % (vr(di), vr(P2), vr(di))]
            L = ['v_lshlrev_b32 %s, 16, %s' % (vr(P0), vr(lr)),
                 'v_lshlrev_b32 %s, 16, %s' % (vr(P1), vr(li)),
                 'v_lshlrev_b32 %s, 16, %s' % (vr(P2), vr(cr)),
                 'v_mul_f32 %s, %s, %s' % (vr(P2), LOG2E, vr(P2)),
                 'v_exp_f32 %s, %s' % (vr(P2), vr(P2)),
                 'v_cvt_pk_bf16_f32 %s, %s, %s' % (vr(P2), vr(P2), vr(P2)),
                 'v_lshlrev_b32 %s, 16, %s' % (vr(P2), vr(P2)),
                 'v_mul_f32 %s, %s, %s' % (vr(P3), vr(P2), vr(P0)),
                 'v_mul_f32 %s, %s, %s' % (vr(P4), vr(P2), vr(P1)),
                 'v_mul_f32 %s, %s, %s' % (vr(P3), LOG2E, vr(P3)),
                 'v_mul_f32 %s, %s, %s' % (vr(P4), INV2PI, vr(P4))]
            L += cpow(lr, li, None, 1)
            L += ['v_sub_f32 %s, 0, %s' % (vr(nli), vr(li))]
            L += cpow(V['l16r%d' % g], V['l16i%d' % g], None, 16)
            L += ['v_cvt_f32_u32 %s, %s' % (vr(FM), vr(SEGV)), 'v_mul_f32 %s, 0x41800000, %s' % (vr(FM), vr(FM))]
            L += cpow(V['lsr%d' % g], V['lsi%d' % g], FM, None)
            gr = G(L)
            for k in range(2):
                pr, pi = V['p%dr%d' % (k + 1, g)], V['p%di%d' % (k + 1, g)]
                gr += G(['v_cvt_f32_i32 %s, %s' % (vr(FM), vr(E[k])), 'v_mul_f32 %s, 0x43000000, %s' % (vr(FM), vr(FM))] + cpow(pr, pi, FM, None))
                gr.append([Ins('v_cmp_le_i32 vcc, 0, %s' % vr(E[k])),
                           Ins('v_cndmask_b32 %s, 0, %s, vcc' % (vr(pr), vr(pr))),
                           Ins('v_cndmask_b32 %s, 0, %s, vcc' % (vr(pi), vr(pi)))])
            gr += G(['v_add_f32 %s, -1.0, %s' % (vr(P2), vr(lr)),
                     'v_mul_f32 %s, %s, %s' % (vr(P3), vr(P0), vr(P0)),
                     'v_fmac_f32 %s, %s, %s' % (vr(P3), vr(P1), vr(P1)),
                     'v_rcp_f32 %s, %s' % (vr(P3), vr(P3)),
                     'v_mul_f32 %s, %s, %s' % (vr(P4), vr(P2), vr(P0)),
                     'v_fmac_f32 %s, %s, %s' % (vr(P4), vr(li), vr(P1)),
                     'v_mul_f32 %s, %s, %s' % (vr(P5), vr(li), vr(P0)),
                     'v_fma_f32 %s, -%s, %s, %s' % (vr(P5), vr(P2), vr(P1), vr(P5)),
                     'v_add_f32 %s, %s, %s' % (vr(P3), vr(P3), vr(P3)),
                     'v_mul_f32 %s, %s, %s' % (vr(cr), vr(P4), vr(P3)),
                     'v_mul_f32 %s, %s, %s' % (vr(ci), vr(P5), vr(P3))])
            return gr

        def ssm_ops(i):
            kind, g, st = seq[i]
            slot = slot_of[i]
            acc = ACC[g] + (16 if st % 2 else 0)
            kh = st // 2
            gate = (g == 0 and st % 2 == 0)
            base = slot * SLOT
            rsb = V['RS']
            pre = []
            if base + SLOT > 65536:
                rsb = RING_ADDR
                pre = [Ins('v_add_u32 %s, %d, %s' % (vr(RING_ADDR + k), base, vr(V['RS'] + k))) for k in range(4)]
                base = 0
            ops = []
            for sp in range(20):
                bp, ab = sp >> 1, sp & 1
                kb, u = bp >> 1, bp & 1
                s = 20 * kh + sp
                q = RING + 4 * (sp % 4)
                rd = Ins('ds_read_b128 %s, %s offset:%d' % (vr(q, 4), vr(rsb + 2 * u + ab), base + kb * 4096))
                first = (kh == 0 and sp == 0)
                m = Ins('v_mfma_f32_32x32x16_bf16 %s, %s, %s, %s' % (vr(acc, 16), XF(s), vr(q, 4), '0' if first else vr(acc, 16)))
                gm = None
                if gate:
                    gm = Ins('v_mfma_f32_32x32x16_bf16 %s, %s, %s, %s' % (vr(GACC, 16), ar(A_GW + 4 * sp, 4), XF(s), '0' if s == 0 else vr(GACC, 16)))
                ops.append((rd, m, gm))
            return pre, ops

        def ssm_stage(i, hooks=None):
            pre, ops = ssm_ops(i)
            out = list(pre)
            dist = 3
            for sp in range(dist):
                out.append(ops[sp][0])
            for sp in range(20):
                rd, m, gm = ops[sp]
                out.append(m)
                if sp + dist < 20:
                    out.append(ops[sp + dist][0])
                if hooks and sp in hooks:
                    for grp in hooks[sp]:
                        out += grp
                if gm is not None:
                    out.append(gm)
            return out

        def kstream(g, hooks, dist=3):
            ops = []
            for s_ in range(40):
                kap, kh = s_ >> 2, s_ // 20
                sp = s_ - 20 * kh
                bp, ab = sp >> 1, sp & 1
                kb, u = bp >> 1, bp & 1
                rds, ms = [], []
                for m in range(2):
                    slot = slot_of[4 * g + 2 * kh + m]
                    if slot >= 3:
                        reg, base = RING_ADDR, (slot - 3) * SLOT
                    else:
                        reg, base = V['RS'], slot * SLOT
                    q = RING + 4 * ((2 * s_ + m) % 8)
                    acc = ACC[g] + 16 * m
                    rds.append(Ins('ds_read_b128 %s, %s offset:%d' % (vr(q, 4), vr(reg + 2 * u + ab), base + kb * 4096)))
                    ms.append(Ins('v_mfma_f32_32x32x16_bf16 %s, %s, %s, %s' % (vr(acc, 16), XF(s_), vr(q, 4), '0' if s_ == 0 else vr(acc, 16))))
                if g == 0:
                    ms.append(Ins('v_mfma_f32_32x32x16_bf16 %s, %s, %s, %s' % (vr(GACC, 16), ar(A_GW + 4 * (s_ % 20), 4), XF(s_), '0' if s_ == 0 else vr(GACC, 16))))
                ops.append((rds, ms))
            out = []
            for s_ in range(dist):
                out += hooks.get(('pre', s_), [])
                out += ops[s_][0]
            for s_ in range(40):
                rds, ms = ops[s_]
                out.append(ms[0])
                for grp in hooks.get(s_, []):
                    out += grp
                out.append(ms[1])
                if s_ + dist < 40:
                    out += hooks.get(('pre', s_ + dist), [])
                    out += ops[s_ + dist][0]
                out += ms[2:]
            return out

        def stage_open(covers):
            for c in covers:
                a.put(WaitVM(dma_last[c]))
            a.waitcnt(lg=0)
            a('s_barrier')

        item_rd = []

        def w2_item(T):
            gr = []
            for e in range(2):
                q = T + 4 * e
                g0 = [Ins('ds_read_b64_tr_b16 %s, %s offset:%d' % (vr(q, 2), vr(V['W2R']), 4096 * e))]
                if e == 0:
                    g0 = [WaitVM(w2_dma[1])] + g0
                gr.append(g0)
                rd = Ins('ds_read_b64_tr_b16 %s, %s offset:%d' % (vr(q + 2, 2), vr(V['W2R']), 4096 * e + 256))
                gr.append([rd])
            st = [[Ins('buffer_store_dwordx4 %s, v1, %s, s26 offen sc1' % (vr(T, 4), srd(R_WS)))],
                  [Ins('buffer_store_dwordx4 %s, v1, %s, s26 offen offset:1024 sc1' % (vr(T + 4, 4), srd(R_WS)))]]
            return gr, st

        def c_dmas():
            gr = []
            for e in range(2):
                ld = Ins('buffer_load_dwordx4 %s, %s, s24 offen lds' % (vr(CD + e), srd(R_CI)))
                gr.append([Ins('s_add_u32 m0, s%d, %d' % (sW10, 3 * SLOT + 12288 + 4096 * e)), Ins('s_nop 0'), ld])
                c_dma.append(ld)
            return gr

        def c_item(T):
            gr = [[WaitVM(c_dma[1]), Ins('ds_read_b128 %s, %s' % (vr(T, 4), vr(CR)))],
                  [Ins('ds_read_b128 %s, %s' % (vr(T + 4, 4), vr(CR + 1)))]]
            last = Ins('buffer_store_dwordx4 %s, v2, %s, s96 offen sc1' % (vr(T + 4, 4), srd(R_WS)))
            st = [[Ins('buffer_store_dwordx4 %s, v2, %s, s25 offen sc1' % (vr(T, 4), srd(R_WS)))],
                  [Ins('s_add_u32 s96, s25, 5120'), last]]
            return gr, st, last

        def w1_prefetch(T):
            t0, t1, t2 = T, T + 1, T + 2
            return G(['s_lshr_b32 s90, s2, 3', 's_lshl_b32 s90, s90, 2', 's_add_u32 s90, s90, s%d' % sW, 's_mul_i32 s90, s90, 60',
                      'v_min_u32 %s, 59, v0' % vr(t0), 'v_add_u32 %s, s90, %s' % (vr(t0), vr(t0)),
                      'v_mul_u32_u24 %s, 43691, %s' % (vr(t1), vr(t0)), 'v_lshrrev_b32 %s, 19, %s' % (vr(t1), vr(t1)),
                      'v_mul_u32_u24 %s, 12, %s' % (vr(t2), vr(t1)), 'v_sub_u32 %s, %s, %s' % (vr(t0), vr(t0), vr(t2)),
                      'v_mul_u32_u24 %s, 3072, %s' % (vr(t1), vr(t1)), 'v_lshl_add_u32 %s, %s, 7, %s' % (vr(t0), vr(t0), vr(t1)),
                      's_mul_i32 s90, s%d, 1536' % sHALF,
                      'buffer_load_dword %s, %s, %s, s90 offen' % (vr(T + 3), vr(t0), srd(R_W1))])

        def w_flag(T, st):
            return [[WaitVM(st), Ins('v_mov_b32 %s, s%d' % (vr(T), sTAG))],
                    [Ins('v_mov_b32 %s, s%d' % (vr(T + 1), sTAG2))],
                    [Ins('v_mov_b32 %s, 0' % vr(T + 2))],
                    [Ins('s_lshl_b32 s90, s%d, 3' % sGWI), Ins('s_add_u32 s90, s90, 0x%x' % WF_OFF),
                     Ins('buffer_store_dwordx2 %s, %s, %s, s90 offen sc1' % (vr(T, 2), vr(T + 2), srd(R_WS)))]]

        def masks(T):
            g_ = [[Ins('v_lshrrev_b32 %s, 5, v0' % vr(T))], [Ins('s_lshl_b32 s95, s%d, 1' % sW), Ins('v_add_u32 %s, s95, %s' % (vr(T), vr(T)))]]
            for s_ in range(1, 8):
                g_.append([Ins('v_cmp_eq_u32 s[%d:%d], %d, %s' % (S_MASK + 2 * (s_ - 1), S_MASK + 2 * (s_ - 1) + 1, s_, vr(T)))])
            return g_

        def gate_math(T):
            G, OMG = V['G'], V['OMG']
            t0, t1, t2 = T, T + 1, T + 2
            L = ['v_cvt_pk_bf16_f32 %s, %s, %s' % (vr(t0), vr(GACC), vr(GACC)),
                 'v_lshlrev_b32 %s, 16, %s' % (vr(t0), vr(t0)),
                 'v_mul_f32 %s, 0x%08x, %s' % (vr(t0), f2u(-math.log2(math.e)), vr(t0)),
                 'v_exp_f32 %s, %s' % (vr(t0), vr(t0)),
                 'v_and_b32 %s, 31, v0' % vr(t1),
                 'v_add_f32 %s, 1.0, %s' % (vr(t0), vr(t0)),
                 'v_rcp_f32 %s, %s' % (vr(t0), vr(t0)),
                 'v_bfe_u32 %s, %s, 2, 1' % (vr(t2), vr(t1)),
                 'v_cvt_pk_bf16_f32 %s, %s, %s' % (vr(t0), vr(t0), vr(t0)),
                 'v_lshlrev_b32 %s, 16, %s' % (vr(G), vr(t0)),
                 'v_sub_f32 %s, 1.0, %s' % (vr(t0), vr(G)),
                 'v_cvt_pk_bf16_f32 %s, %s, %s' % (vr(t0), vr(t0), vr(t0)),
                 'v_lshlrev_b32 %s, 16, %s' % (vr(OMG), vr(t0)),
                 'v_lshlrev_b32 %s, 4, %s' % (vr(t2), vr(t2)),
                 'v_and_b32 %s, 3, %s' % (vr(t0), vr(t1)),
                 'v_add_u32 %s, %s, %s' % (vr(t0), vr(t0), vr(t2)),
                 'v_lshrrev_b32 %s, 3, %s' % (vr(t2), vr(t1)),
                 'v_lshl_add_u32 %s, %s, 2, %s' % (vr(t0), vr(t2), vr(t0)),
                 's_lshl_b32 s95, s%d, 5' % sW,
                 'v_add_u32 %s, s95, %s' % (vr(t0), vr(t0)),
                 'v_lshlrev_b32 %s, 2, %s' % (vr(t0), vr(t0)),
                 'v_add_u32 %s, %d, %s' % (vr(t0), L_GATE, vr(t0)),
                 'ds_write_b32 %s, %s' % (vr(t0), vr(G))]
            return [[Ins(x)] for x in L]

        def pass1(g):
            it = []
            RE, IM = ACC[g], ACC[g] + 16
            lr, li, nli = V['lr%d' % g], V['li%d' % g], V['nli%d' % g]
            sa = [SC[g] + 0, SC[g] + 1]
            sb = [SC[g] + 2, SC[g] + 3]
            cur = [RE, IM]
            for t in range(1, 16):
                d = sa if t % 2 else sb
                it.append(Ins('v_fma_f32 %s, %s, %s, %s' % (vr(d[0]), vr(lr), vr(cur[0]), vr(RE + t))))
                it.append(Ins('v_fma_f32 %s, %s, %s, %s' % (vr(d[1]), vr(lr), vr(cur[1]), vr(IM + t))))
                it.append(Ins('v_fmac_f32 %s, %s, %s' % (vr(d[0]), vr(nli), vr(cur[1]))))
                it.append(Ins('v_fmac_f32 %s, %s, %s' % (vr(d[1]), vr(li), vr(cur[0]))))
                cur = d
            it.append(Ins('ds_write_b64 %s, %s offset:%d' % (vr(V['SEGW']), vr(cur[0], 2), L_SEG - MISC + 2560 * g)))
            return [[x] for x in it]

        def prefix(g, buf):
            it = []
            l16r, l16i = V['l16r%d' % g], V['l16i%d' % g]
            Pr, Pi = SC[g] + 0, SC[g] + 1
            for jj in range(4):
                it.append(Ins('ds_read_b128 %s, %s offset:%d' % (vr(buf + 4 * jj, 4), vr(V['SEGR']), L_SEG - MISC + 2560 * g + 16 * jj)))
            it.append(Ins('v_mov_b32 %s, 0' % vr(Pr)))
            it.append(Ins('v_mov_b32 %s, 0' % vr(Pi)))
            sel = []
            for s in range(1, 8):
                m = S_MASK + 2 * (s - 1)
                pr, pi_, cr_, ci_ = buf + 2 * (s - 1), buf + 2 * (s - 1) + 1, buf + 2 * s, buf + 2 * s + 1
                it.append(Ins('v_fmac_f32 %s, %s, %s' % (vr(cr_), vr(l16r), vr(pr))))
                it.append(Ins('v_fmac_f32 %s, %s, %s' % (vr(ci_), vr(l16r), vr(pi_))))
                it.append(Ins('v_fma_f32 %s, -%s, %s, %s' % (vr(cr_), vr(l16i), vr(pi_), vr(cr_))))
                it.append(Ins('v_fmac_f32 %s, %s, %s' % (vr(ci_), vr(l16i), vr(pr))))
                sel.append(Ins('v_cndmask_b32 %s, %s, %s, s[%d:%d]' % (vr(Pr), vr(Pr), vr(pr), m, m + 1)))
                sel.append(Ins('v_cndmask_b32 %s, %s, %s, s[%d:%d]' % (vr(Pi), vr(Pi), vr(pi_), m, m + 1)))
            pb = 52 if A else 88
            it.append(Ins('v_mov_b32 %s, %s' % (vr(pb), vr(buf + 14))))
            it.append(Ins('v_mov_b32 %s, s%d' % (vr(pb + 1), sTAG)))
            it.append(Ins('v_mov_b32 %s, %s' % (vr(pb + 2), vr(buf + 15))))
            it.append(Ins('v_mov_b32 %s, s%d' % (vr(pb + 3), sTAG)))
            it.append(Ins('s_add_u32 s97, s%d, %d' % (sG, g)))
            it.append(Ins('s_lshl_b32 s97, s97, 4'))
            it.append(Ins('s_add_u32 s97, s97, s%d' % sR))
            it.append(Ins('s_lshl_b32 s97, s97, 9'))
            it.append(Ins('s_add_u32 s97, s97, 0x%x' % AGG_OFF))
            it.append(Ins('buffer_store_dwordx4 %s, %s, %s, s97 offen sc1' % (vr(pb, 4), vr(V['AG']), srd(R_WS))))
            return [[x] for x in it + sel]

        def coef(g, t0):
            it = []
            RE, IM = ACC[g], ACC[g] + 16
            cr, ci = V['cr%d' % g], V['ci%d' % g]
            for t in range(16):
                tt = t0 + (t & 1)
                it.append(Ins('v_mul_f32 %s, %s, %s' % (vr(tt), vr(ci), vr(IM + t))))
                it.append(Ins('v_mul_f32 %s, %s, %s' % (vr(IM + t), vr(cr), vr(IM + t))))
                it.append(Ins('v_fmac_f32 %s, %s, %s' % (vr(IM + t), vr(ci), vr(RE + t))))
                it.append(Ins('v_fma_f32 %s, %s, %s, -%s' % (vr(RE + t), vr(cr), vr(RE + t), vr(tt))))
            return [[x] for x in it]

        def lb_issue(g, buf):
            return [[Ins('s_add_u32 s95, s%d, %d' % (sG, g)), Ins('s_lshl_b32 s95, s95, 13'), Ins('s_add_u32 s95, s95, 0x%x' % AGG_OFF)],
                    [Ins('buffer_load_dwordx4 %s, %s, %s, s95 offen sc1' % (vr(buf, 4), vr(V['LB0']), srd(R_WS)))],
                    [Ins('buffer_load_dwordx4 %s, %s, %s, s95 offen sc1' % (vr(buf + 4, 4), vr(V['LB1']), srd(R_WS)))]]

        def lb_check(buf, t):
            a('v_xor_b32 %s, s%d, %s' % (vr(t), sTAG, vr(buf + 1)))
            a('v_xor_b32 %s, s%d, %s' % (vr(t + 1), sTAG, vr(buf + 3)))
            a('v_xor_b32 %s, s%d, %s' % (vr(t + 2), sTAG, vr(buf + 5)))
            a('v_xor_b32 %s, s%d, %s' % (vr(t + 3), sTAG, vr(buf + 7)))
            a('v_or3_b32 %s, %s, %s, %s' % (vr(t), vr(t), vr(t + 1), vr(t + 2)))
            a('v_or_b32 %s, %s, %s' % (vr(t), vr(t), vr(t + 3)))
            a('v_cmp_ne_u32 vcc, 0, %s' % vr(t))
            a('s_cmp_eq_u64 vcc, 0')

        def lookback_wait(g, buf, lbl):
            t = buf + 8
            lb_check(buf, t)
            a.settle()
            a('s_cbranch_scc1 %s_ok' % lbl)
            snap = a.snapshot()
            a('s_mov_b32 s91, 0')
            a.drain()
            a.label(lbl)
            a('buffer_load_dwordx4 %s, %s, %s, s95 offen sc1' % (vr(buf, 4), vr(V['LB0']), srd(R_WS)))
            a('buffer_load_dwordx4 %s, %s, %s, s95 offen sc1' % (vr(buf + 4, 4), vr(V['LB1']), srd(R_WS)))
            a('s_add_u32 s91, s91, 1')
            lb_check(buf, t)
            a('s_cbranch_scc1 %s_ok' % lbl)
            a('s_cmp_lt_u32 s91, 0x%x' % o.get('spin', 200000))
            a('s_cbranch_scc1 %s' % lbl)
            a.settle()
            a.label(lbl + '_ok')
            a.restore(snap)
            p1r, p1i, p2r, p2i = (V['p%s%d' % (x, g)] for x in ('1r', '1i', '2r', '2i'))
            hr, hi = buf + 8, buf + 9
            a('v_mul_f32 %s, %s, %s' % (vr(hr), vr(p1r), vr(buf)))
            a('v_mul_f32 %s, %s, %s' % (vr(hi), vr(p1r), vr(buf + 2)))
            a('v_fma_f32 %s, -%s, %s, %s' % (vr(hr), vr(p1i), vr(buf + 2), vr(hr)))
            a('v_fmac_f32 %s, %s, %s' % (vr(hi), vr(p1i), vr(buf)))
            a('v_fmac_f32 %s, %s, %s' % (vr(hr), vr(p2r), vr(buf + 4)))
            a('v_fmac_f32 %s, %s, %s' % (vr(hi), vr(p2r), vr(buf + 6)))
            a('v_fma_f32 %s, -%s, %s, %s' % (vr(hr), vr(p2i), vr(buf + 6), vr(hr)))
            a('v_fmac_f32 %s, %s, %s' % (vr(hi), vr(p2i), vr(buf + 4)))
            a('ds_write_b64 %s, %s offset:%d' % (vr(V['SEGW']), vr(hr, 2), L_LB - MISC + 2560 * g))
            a.waitcnt(lg=0)
            a('s_barrier')

        def entry_state(g, buf):
            it = []
            for jj in range(4):
                it.append('ds_read_b128 %s, %s offset:%d' % (vr(buf + 4 * jj, 4), vr(V['SEGR']), L_LB - MISC + 2560 * g + 16 * jj))
            for jj in (1, 3, 5, 7):
                it.append('v_add_f32 %s, %s, %s' % (vr(buf + 2 * jj - 2), vr(buf + 2 * jj - 2), vr(buf + 2 * jj)))
                it.append('v_add_f32 %s, %s, %s' % (vr(buf + 2 * jj - 1), vr(buf + 2 * jj - 1), vr(buf + 2 * jj + 1)))
            for (x, y) in ((0, 4), (8, 12), (0, 8)):
                it.append('v_add_f32 %s, %s, %s' % (vr(buf + x), vr(buf + x), vr(buf + y)))
                it.append('v_add_f32 %s, %s, %s' % (vr(buf + x + 1), vr(buf + x + 1), vr(buf + y + 1)))
            Pr, Pi = SC[g] + 0, SC[g] + 1
            lsr, lsi, cr, ci = (V[x + str(g)] for x in ('lsr', 'lsi', 'cr', 'ci'))
            it += ['v_fmac_f32 %s, %s, %s' % (vr(Pr), vr(lsr), vr(buf)),
                   'v_fmac_f32 %s, %s, %s' % (vr(Pi), vr(lsr), vr(buf + 1)),
                   'v_fma_f32 %s, -%s, %s, %s' % (vr(Pr), vr(lsi), vr(buf + 1), vr(Pr)),
                   'v_fmac_f32 %s, %s, %s' % (vr(Pi), vr(lsi), vr(buf)),
                   'v_mul_f32 %s, %s, %s' % (vr(buf + 2), vr(cr), vr(Pr)),
                   'v_mul_f32 %s, %s, %s' % (vr(buf + 3), vr(cr), vr(Pi)),
                   'v_fma_f32 %s, -%s, %s, %s' % (vr(buf + 2), vr(ci), vr(Pi), vr(buf + 2)),
                   'v_fmac_f32 %s, %s, %s' % (vr(buf + 3), vr(ci), vr(Pr))]
            return [[Ins(x)] for x in it]

        def pass2(g, buf):
            it = []
            RE, IM = ACC[g], ACC[g] + 16
            lr, li, nli = V['lr%d' % g], V['li%d' % g], V['nli%d' % g]
            pr, pi_ = buf + 2, buf + 3
            for t in range(16):
                it.append(Ins('v_fmac_f32 %s, %s, %s' % (vr(RE + t), vr(lr), vr(pr))))
                it.append(Ins('v_fmac_f32 %s, %s, %s' % (vr(IM + t), vr(lr), vr(pi_))))
                it.append(Ins('v_fmac_f32 %s, %s, %s' % (vr(RE + t), vr(nli), vr(pi_))))
                it.append(Ins('v_fmac_f32 %s, %s, %s' % (vr(IM + t), vr(li), vr(pr))))
                pr, pi_ = RE + t, IM + t
            for e in range(8):
                it.append(Ins('v_cvt_pk_bf16_f32 %s, %s, %s' % (vr(RE + e), vr(RE + 2 * e), vr(RE + 2 * e + 1))))
            for e in range(8):
                it.append(Ins('v_cvt_pk_bf16_f32 %s, -%s, -%s' % (vr(RE + 8 + e), vr(IM + 2 * e), vr(IM + 2 * e + 1))))
            return [[x] for x in it]

        def build_sel(B, T):
            n_, e_, t_, val = T, T + 1, T + 2, T + 3
            g = G(['v_and_b32 %s, 31, v0' % vr(n_),
                   'v_lshrrev_b32 %s, 3, %s' % (vr(t_), vr(n_)),
                   'v_and_b32 %s, 3, %s' % (vr(e_), vr(n_)),
                   'v_lshl_add_u32 %s, %s, 2, %s' % (vr(e_), vr(t_), vr(e_)),
                   'v_bfe_u32 %s, %s, 2, 1' % (vr(t_), vr(n_)),
                   'v_lshrrev_b32 %s, 5, v0' % vr(val)])
            g.append([Ins('v_cmp_eq_u32 vcc, %s, %s' % (vr(t_), vr(val))), Ins('v_cndmask_b32 %s, 31, %s, vcc' % (vr(e_), vr(e_)))])
            g += G(['v_lshrrev_b32 %s, 16, %s' % (vr(val), vr(V['G'])),
                    'v_and_b32 %s, 1, %s' % (vr(t_), vr(e_)),
                    'v_lshlrev_b32 %s, 4, %s' % (vr(t_), vr(t_)),
                    'v_lshlrev_b32 %s, %s, %s' % (vr(val), vr(t_), vr(val)),
                    'v_lshrrev_b32 %s, 1, %s' % (vr(e_), vr(e_))])
            for k in range(8):
                g.append([Ins('v_cmp_eq_u32 vcc, %d, %s' % (k, vr(e_))),
                          Ins('v_cndmask_b32 %s, 0, %s, vcc' % (vr(B + k), vr(val)))])
            return g

        def transpose_store(g, B, D0, D1):
            RE = ACC[g]
            a('v_mfma_f32_32x32x16_bf16 %s, %s, %s, 0' % (vr(D0, 16), vr(RE, 4), vr(B, 4)))
            a('v_mfma_f32_32x32x16_bf16 %s, %s, %s, 0' % (vr(D1, 16), vr(RE + 8, 4), vr(B, 4)))
            a('v_mfma_f32_32x32x16_bf16 %s, %s, %s, %s' % (vr(D0, 16), vr(RE + 4, 4), vr(B + 4, 4), vr(D0, 16)))
            a('v_mfma_f32_32x32x16_bf16 %s, %s, %s, %s' % (vr(D1, 16), vr(RE + 12, 4), vr(B + 4, 4), vr(D1, 16)))
            a('s_add_u32 s94, s%d, %d' % (sHS, (48 + g) * 4096))
            a('s_add_u32 s95, s%d, %d' % (sHS, (68 + g) * 4096))
            for D, so in ((D0, 94), (D1, 95)):
                for e in range(8):
                    a('v_cvt_pk_bf16_f32 %s, %s, %s' % (vr(D + e), vr(D + 2 * e), vr(D + 2 * e + 1)))
                a('buffer_store_dwordx4 %s, %s, %s, s%d offen %s' % (vr(D, 4), vr(V['ST']), srd(R_WS), so, HST))
                last = a('buffer_store_dwordx4 %s, %s, %s, s%d offen offset:512 %s' % (vr(D + 4, 4), vr(V['ST']), srd(R_WS), so, HST))
            return last

        def transpose_groups(g, B, D0, D1, s0=94, s1=97):
            RE = ACC[g]
            gr = [[Ins('v_mfma_f32_32x32x16_bf16 %s, %s, %s, 0' % (vr(D0, 16), vr(RE, 4), vr(B, 4)))],
                  [Ins('v_mfma_f32_32x32x16_bf16 %s, %s, %s, 0' % (vr(D1, 16), vr(RE + 8, 4), vr(B, 4)))],
                  [Ins('v_mfma_f32_32x32x16_bf16 %s, %s, %s, %s' % (vr(D0, 16), vr(RE + 4, 4), vr(B + 4, 4), vr(D0, 16)))],
                  [Ins('v_mfma_f32_32x32x16_bf16 %s, %s, %s, %s' % (vr(D1, 16), vr(RE + 12, 4), vr(B + 4, 4), vr(D1, 16)))],
                  [], [], []]
            for D, off in ((D0, 48), (D1, 68)):
                for e in range(8):
                    gr.append([Ins('v_cvt_pk_bf16_f32 %s, %s, %s' % (vr(D + e), vr(D + 2 * e), vr(D + 2 * e + 1)))])
                gr.append([Ins('s_add_u32 s97, s%d, %d' % (sHS, (off + g) * 4096)),
                           Ins('buffer_store_dwordx4 %s, %s, %s, s97 offen %s' % (vr(D, 4), vr(V['ST']), srd(R_WS), HST))])
                gr.append([Ins('s_add_u32 s97, s%d, %d' % (sHS, (off + g) * 4096)),
                           Ins('buffer_store_dwordx4 %s, %s, %s, s97 offen offset:512 %s' % (vr(D + 4, 4), vr(V['ST']), srd(R_WS), HST))])
            return gr

        NQ = 8

        def ffn_ops():
            ops = []
            for n in range(160):
                tile, s = n // 40, n % 40
                blk, tp = tile >> 1, tile & 1
                acc = FA[tile & 1]
                st, sp = s // 10, s % 10
                slot = slot_of[4 + 4 * blk + st]
                reg = slot // 3
                off = (slot % 3) * SLOT + (32 * (sp >> 1) + 8 * (sp & 1)) * 128
                q = RING + 4 * (n % NQ)
                base = V['RF'] + tp + 2 * reg
                r0 = Ins('ds_read_b64_tr_b16 %s, %s offset:%d' % (vr(q, 2), vr(base), off))
                r1 = Ins('ds_read_b64_tr_b16 %s, %s offset:%d' % (vr(q + 2, 2), vr(base), off + 512))
                m = Ins('v_mfma_f32_32x32x16_bf16 %s, %s, %s, %s' % (vr(acc, 16), vr(q, 4), XF(s), '0' if s == 0 else vr(acc, 16)))
                ops.append((r0, r1, m))
            return ops

        def ffn_main(ops, n0, n1, dist, rd_done, rd_limit):
            out = []
            for n in range(n0, n1):
                if n == n0:
                    while rd_done < min(n + dist, rd_limit):
                        out += [ops[rd_done][0], ops[rd_done][1]]
                        rd_done += 1
                out.append(ops[n][2])
                while rd_done < min(n + 1 + dist, rd_limit):
                    out += [ops[rd_done][0], ops[rd_done][1]]
                    rd_done += 1
            return out, rd_done

        def ffn_pack(tile):
            T = FA[tile & 1]
            it = []
            for e in range(16):
                it.append(Ins('v_mul_f32 %s, %s, %s' % (vr(T + e), vr(V['OMG']), vr(T + e))))
            for e in range(8):
                it.append(Ins('v_cvt_pk_bf16_f32 %s, %s, %s' % (vr(T + e), vr(T + 2 * e), vr(T + 2 * e + 1))))
            for e in range(8):
                it.append(Ins('v_pk_max_i16 %s, %s, 0' % (vr(T + e), vr(T + e))))
            return [[x] for x in it]

        last_store = {}

        def ffn_store(tile):
            r = ffn_store0(tile)
            last_store[tile] = r[-1][-1]
            return r

        def ffn_store0(tile):
            T = FA[tile & 1]
            return [[Ins('s_add_u32 s94, s%d, %d' % (sHF, tile * 4096))],
                    [Ins('buffer_store_dwordx4 %s, %s, %s, s94 offen %s' % (vr(T, 4), vr(V['ST']), srd(R_WS), HST))],
                    [Ins('buffer_store_dwordx4 %s, %s, %s, s94 offen offset:512 %s' % (vr(T + 4, 4), vr(V['ST']), srd(R_WS), HST))]]

        def wf_issue(T):
            t0, t1 = T + 2, T + 3
            gr = G(['s_mul_i32 s90, s%d, 120' % sC2, 's_mul_i32 s91, s%d, 30' % sW, 's_add_u32 s90, s90, s91',
                    'v_and_b32 %s, 31, v0' % vr(t1), 'v_min_u32 %s, 29, %s' % (vr(t0), vr(t1)),
                    'v_add_u32 %s, s90, %s' % (vr(t0), vr(t0)),
                    's_lshr_b32 s90, s%d, 1' % sW, 's_mul_i32 s90, s90, 400', 's_mul_i32 s91, s%d, 50' % sC2,
                    's_add_u32 s90, s90, s91', 's_and_b32 s91, s%d, 1' % sW, 's_mul_i32 s91, s91, 25', 's_add_u32 s90, s90, s91',
                    'v_min_u32 %s, 24, %s' % (vr(t1), vr(t1)), 'v_add_u32 %s, s90, %s' % (vr(t1), vr(t1))])
            gr.append([Ins('v_cmp_gt_u32 vcc, 32, v0'), Ins('v_cndmask_b32 %s, %s, %s, vcc' % (vr(t0), vr(t1), vr(t0)))])
            gr += G(['v_lshlrev_b32 %s, 3, %s' % (vr(t0), vr(t0)), 'v_add_u32 %s, 0x%x, %s' % (vr(t0), WF_OFF, vr(t0)),
                     'buffer_load_dwordx2 %s, %s, %s, 0 offen sc1' % (vr(T, 2), vr(t0), srd(R_WS))])
            return gr

        def wt_prefetch(T):
            j, t, ad = T, T + 1, T + 2
            gr = G(['s_and_b32 s90, s%d, 7' % sR2, 's_mul_i32 s90, s90, 110',
                    's_mul_i32 s91, s%d, 88' % sC2, 's_mul_i32 s95, s%d, 12' % sW, 's_add_u32 s95, s95, s91', 's_mul_i32 s95, s95, 5120',
                    's_mul_i32 s96, s%d, 10' % sW, 's_add_u32 s96, s96, s91', 's_add_u32 s96, s96, 48', 's_mul_i32 s96, s96, 5120',
                    's_sub_u32 s96, s96, %d' % (480 * 128), 's_add_u32 s95, s95, 0x%x' % WT_OFF, 's_add_u32 s96, s96, 0x%x' % WT_OFF])
            for e in range(2):
                gr += G(['v_min_u32 %s, %d, v0' % (vr(j), 63 if e == 0 else 45), 'v_add_u32 %s, s90, %s' % (vr(j), vr(j))])
                if e:
                    gr += G(['v_add_u32 %s, 64, %s' % (vr(j), vr(j))])
                gr += G(['v_mov_b32 %s, s95' % vr(t), 'v_mov_b32 %s, s96' % vr(ad)])
                gr.append([Ins('v_cmp_gt_u32 vcc, 480, %s' % vr(j)), Ins('v_cndmask_b32 %s, %s, %s, vcc' % (vr(ad), vr(ad), vr(t)))])
                gr += G(['v_lshl_add_u32 %s, %s, 7, %s' % (vr(ad), vr(j), vr(ad)),
                         'buffer_load_dword %s, %s, %s, 0 offen sc1' % (vr(T + 3 + e), vr(ad), srd(R_WS))])
            return gr

        def wf_check(T, lbl):
            t0 = T + 2

            def chk():
                a('v_xor_b32 %s, s%d, %s' % (vr(T), sTAG, vr(T)))
                a('v_xor_b32 %s, s%d, %s' % (vr(T + 1), sTAG2, vr(T + 1)))
                a('v_or_b32 %s, %s, %s' % (vr(T), vr(T), vr(T + 1)))
                a('v_cmp_ne_u32 vcc, 0, %s' % vr(T))
                a('s_cmp_eq_u64 vcc, 0')
            chk()
            a.settle()
            a('s_cbranch_scc1 %s_ok' % lbl)
            snap = a.snapshot()
            a('s_mov_b32 s91, 0')
            a.drain()
            a.label(lbl)
            a('buffer_load_dwordx2 %s, %s, %s, 0 offen sc1' % (vr(T, 2), vr(t0), srd(R_WS)))
            a('s_add_u32 s91, s91, 1')
            chk()
            a('s_cbranch_scc1 %s_ok' % lbl)
            a('s_cmp_lt_u32 s91, 0x%x' % o.get('spin', 200000))
            a('s_cbranch_scc1 %s' % lbl)
            a.settle()
            a.label(lbl + '_ok')
            a.restore(snap)

        BUD = o.get('bud', 3)
        P2 = self.p2
        for k in range(4):
            a('v_add_u32 %s, %d, %s' % (vr(RING_ADDR + k), 3 * SLOT, vr(V['RS'] + k)))
        put_all(late_scalars())
        put_all(w2_setup_a)
        put_all(item_addrs())
        put_all(c_setup())
        if PF == 2:
            put_all(xdma(1))
            put_all([s_load(0, 0, 1), s_load(0, 1, 1)])
        put_all(xdma(2))
        put_all([s_load(0, 0, 2), s_load(0, 1, 2)])
        x3s3 = xdma(3) + [s_load(0, 0, 3), s_load(0, 1, 3)]
        if o.get('eopen', 0) < 2:
            put_all(x3s3)
        if o.get('w1pf', 0) == 1:
            put_all(w1_prefetch(PT + 5))
        EO = o.get('eopen', 0)
        late_loads = []
        if EO:
            late_loads = w2_setup_b + c_dmas()
        else:
            put_all(w2_setup_b)
            put_all(c_dmas())
        a.put(WaitVM(gw_dma))
        put_all(gate_reads(0))
        put_all(xread(0))
        x4 = xrefill(4)
        if not EO:
            put_all(x4)
        a.put(WaitVM(s_dma[(0, 1, 0)]))
        a('s_barrier')
        self.stamp(3)
        hooks = {}

        def hook(pos, groups):
            hooks.setdefault(pos, [])
            hooks[pos] = hooks[pos] + groups
        cg, c_sts, c_st = c_item(72)
        w2g, w2_sts = w2_item(64)
        g1 = gate_reads(1)
        for kap in range(10):
            s0 = 4 * kap
            if kap + 1 <= 7:
                hook(s0, xread(kap + 1))
            if kap + 5 <= 9:
                for j, grp in enumerate(xrefill(kap + 5)):
                    hook(s0 + 1 + j, [grp])
            if kap + 4 <= 9:
                if kap + 4 == 8:
                    hook(s0 + 1, [[WaitLG(cg[1][0])]])
                hook(s0 + 1, [s_load(0, 0, kap + 4)])
                hook(s0 + 3, [s_load(0, 1, kap + 4)])
        if EO >= 2:
            for j, grp in enumerate(x3s3):
                hook(j // 3, [grp])
            for j, grp in enumerate(x4):
                hook(2 + j // 2, [grp])
        elif EO:
            for j, grp in enumerate(x4):
                hook(j // 2, [grp])
        if EO:
            for j, grp in enumerate(late_loads):
                hook(o.get('itempos', 5) + j, [grp])
        hook(25, xread(8))
        hook(27, xread(9))
        for j in range(20):
            hook(j + 1, [g1[j]])
        for kap in range(1, 10):
            pre = [WaitVM(s_dma[(0, 1, kap)])]
            if kap == 8:
                pre.append(WaitLG(x_rd_last[9]))
            pre.append(Ins('s_barrier'))
            hooks[('pre', 4 * kap)] = pre
        ldA = stage_loads(4) + stage_loads(5)
        ldB = stage_loads(6) + stage_loads(7)
        pos = [21, 22, 23, 24, 25, 26, 26, 27, 28, 28]
        for j, grp in enumerate(ldA):
            hook(pos[j] + 1 if pos[j] == 21 else pos[j], [grp])
        for j, grp in enumerate(w2_sts + c_sts):
            hook(29 + j // 4, [grp])
        for j, grp in enumerate(ldB):
            hook(30 + j, [grp])
        main = kstream(0, hooks)
        s_items = Stream(w2g + cg, start=(o.get('itemrd', 36) if EO else 24), every=2)
        s_lc = Stream(lane_consts() + params(0) + ([] if A else params(1)), start=2, per=3)
        if o.get('p1nobar'):
            main = [x for x in main if not (isinstance(x, Ins) and x.mn == 's_barrier')]
        if o.get('p1nogate'):
            main = [x for x in main if not (isinstance(x, Ins) and x.kind == 'mfma' and ('v[%d:%d]' % (GACC, GACC + 15)) in x.text.split(',')[0])]
        if o.get('p1nolc'):
            weave(a, main, [s_items], budget=3)
            self.stamp((7, 5))
            put_all(s_lc.groups)
        else:
            weave(a, main, [s_items, s_lc], budget=o.get('p1bud', 3))
            self.stamp((7, 5))
        put_all(masks(84))
        if o.get('detail', 0) != 2:
            self.stamp(4)

        gm_all = gate_math(72)
        put_all(gm_all[:3])
        gate_math0 = gm_all[3:]
        if A:
            SC = [48]
            BUF = 56
            SEL = 72
            WFT = 80
            TMP = 84
            a.put(WaitVM(dma_last[5]))
            a('s_barrier')
            self.stamp((3, 5))
            self.stamp((6, 5))
            self.stamp((3, 1), clock=True)
            ops = ffn_ops()
            D = o.get('fdist', 5)
            nof = (lambda x: []) if o.get('bare') else (lambda x: x)

            def split_at_read(items, n):
                k = items.index(ops[n][0])
                return items[:k], items[k:]
            m, rd = ffn_main(ops, 0, 40, D, 0, 80)
            m0, m = split_at_read(m, 20)
            m1, m2 = split_at_read(m, 30)
            p1 = nof(pass1(0))
            s_p1 = Stream(p1, per=4)
            s_flag = Stream(w_flag(76, c_st), start=4, per=5)
            s_gate = Stream(nof(gate_math0), per=3)
            s_ld = Stream(stage_loads(8) + stage_loads(9) + stage_loads(10), start=1, every=2)
            s_tab = Stream(P2.tables(), per=3)
            weave(a, m0, [s_flag, s_ld, s_p1, s_tab], budget=5, flush=False)
            put_all(s_p1.groups[s_p1.i:])
            assert s_flag.done()
            a.put(WaitVM(dma_last[6]))
            if p1:
                a.put(WaitLG(p1[-1][0]))
            a('s_barrier')
            s_pre = Stream(nof(prefix(0, BUF)), per=4)
            for x in (s_ld, s_tab):
                x.start = 0
            weave(a, m1, [s_pre, s_ld, s_tab], budget=4, flush=False)
            a.put(WaitVM(dma_last[7]))
            a('s_barrier')
            weave(a, m2, [s_pre, s_gate, s_ld, s_tab], budget=4, flush=False)
            self.stamp((6, 6))
            s_coef = Stream(nof(coef(0, TMP)), per=3)
            s_wfi = Stream(wf_issue(WFT), per=3)
            m, rd = ffn_main(ops, 40, 50, D, rd, 80)
            weave(a, m, [s_pre, s_gate, s_wfi, s_ld, s_tab], budget=BUD + 1, flush=False)
            assert s_pre.done() and s_gate.done() and s_wfi.done() and s_ld.done() and s_tab.done(), (s_pre.i, s_gate.i, s_wfi.i, s_ld.i, s_tab.i)
            a.put(WaitLG(ops[49][1]))
            a('s_barrier')
            self.stamp((6, 8))
            s_p0 = Stream(nof(ffn_pack(0) + ffn_store(0)), per=3)
            WFP = o.get('wfidx', 62)
            m, rd = ffn_main(ops, 50, WFP, D, rd, 80)
            weave(a, m, [Stream(stage_loads(11), every=2), s_p0, s_coef], budget=BUD, flush=False)
            wf_check(WFT, 'L_wfA')
            if o.get('wtpf'):
                put_all(wt_prefetch(90))
            self.stamp((6, 7))
            wpre = [] if o.get('now') else P2.early_w()
            s_w = Stream(wpre, every=o.get('wevery', 2))
            s_sel = Stream(nof(build_sel(SEL, TMP + 2)), per=3)
            m, rd = ffn_main(ops, WFP, 76, D, rd, 80)
            weave(a, m, [s_p0, s_w, s_coef, s_sel], budget=BUD, flush=False)
            assert s_p0.done()
            self.stamp((6, 9))
            for c in (8, 9, 10, 11):
                a.put(WaitVM(dma_last[c]))
            a('s_barrier')
            self.stamp((6, 10))
            s_w.start = 0
            LBX = o.get('lbx', 100)
            m, rd = ffn_main(ops, 76, LBX, D, rd, 160)
            s_lb = Stream(lb_issue(0, BUF), start=o.get('lbpos', 1), per=3)
            s_pack1 = Stream(nof(ffn_pack(1) + ffn_store(1)), start=6, per=3)
            s_coef.start = s_sel.start = 0
            weave(a, m, [s_lb, s_w, s_coef, s_pack1, s_sel], budget=BUD + 1, flush=False)
            assert s_lb.done() and s_coef.done(), (s_coef.i,)
            self.stamp(5)
            self.stamp((6, 11))
            self.stamp((3, 6))
            self.stamp((3, 2), clock=True)
            lookback_wait(0, BUF, 'L_lbA')
            self.stamp(6)
            s_scan = Stream(entry_state(0, BUF) + pass2(0, BUF) + transpose_groups(0, SEL, ACC[0] + 16, BUF), per=4)
            s_pack1.start = s_w.start = 0
            m, rd = ffn_main(ops, LBX, 120, D, rd, 160)
            weave(a, m, [s_pack1, s_w, s_sel, s_scan], budget=BUD + 1, flush=False)
            assert s_pack1.done() and s_sel.done(), (s_pack1.i, s_sel.i)
            m, rd = ffn_main(ops, 120, 160, D, rd, 160)
            w2nd = P2.early2_w()
            nleft = len(s_w.groups) - s_w.i
            pos = 2 * nleft
            slots = {}
            for j, g in enumerate(w2nd):
                pos = max(pos + o.get('w2step', 1), j + 2)
                slots[pos] = g
                pos += (j % 5 in (1, 3))
            keep = sorted(slots)[:o.get('w2in', 10)]
            late_w2 = [g for p_, g in sorted(slots.items()) if p_ >= 40 or p_ not in keep]
            paced = [slots.get(p_, []) if p_ in keep else [] for p_ in range(40)]
            weave(a, m, [s_scan, s_w, Stream(paced), Stream(ffn_pack(2) + ffn_store(2), start=2, per=3)], budget=BUD + 1)
            put_all(ffn_pack(3) + ffn_store(3))
            final_store = last_store[3]
            tail_loads = late_w2
        else:
            SC = [48, 52]
            BUF = 56
            SEL = 72
            WFT = 80
            TMP = 84
            put_all(pass1(0))
            stage_open([4, 5])
            main = kstream(1, {('pre', 20): [WaitVM(dma_last[7]), Ins('s_barrier')]})
            s_pre, s_wfi = Stream(prefix(0, BUF), per=3), Stream(wf_issue(WFT), start=22, per=3)
            s_flag, s_gate = Stream(w_flag(76, c_st), start=2, per=5), Stream(gate_math0, per=3)
            s_tab = Stream(P2.tables(), per=3)
            s_coef, s_sel = Stream(coef(0, TMP), per=3), Stream(build_sel(SEL, TMP + 2), per=3)
            wpre = P2.early_w()
            cut = [k for k, x in enumerate(main) if isinstance(x, Ins) and x.kind == 'mfma'][43] + 1
            weave(a, main[:cut], [s_flag, s_pre, s_gate, s_wfi, s_tab], budget=4, flush=False)
            assert s_pre.done() and s_wfi.done() and s_tab.done() and s_gate.done() and s_flag.done()
            wf_check(WFT, 'L_wfB')
            if o.get('wtpf'):
                put_all(wt_prefetch(66))
            s_w = Stream(wpre, every=2)
            rest = main[cut:]
            mf = [k for k, x in enumerate(rest) if isinstance(x, Ins) and x.kind == 'mfma']
            cut2 = mf[o.get('lbxb', 16) - 1] + 1
            s_lb = Stream(lb_issue(0, BUF), per=3)
            weave(a, rest[:cut2], [s_lb, s_coef, s_w, s_sel], budget=4, flush=False)
            assert s_lb.done()
            put_all(s_coef.groups[s_coef.i:])
            s_coef.i = len(s_coef.groups)
            self.stamp(5)
            lookback_wait(0, BUF, 'L_lbB0')
            self.stamp(6)
            s_scan = Stream(entry_state(0, BUF) + pass2(0, BUF), per=4)
            s_w.start = s_sel.start = 0
            weave(a, rest[cut2:], [s_sel, s_scan, s_w], budget=5, flush=False)
            put_all(s_sel.groups[s_sel.i:])
            wrest = s_w.groups[s_w.i:] + P2.early2_w()

            def mix(items, loads, every):
                out = []
                for k, x in enumerate(items):
                    out.append(x)
                    if k % every == every - 1 and loads:
                        out.append(loads.pop(0))
                return out
            put_all(pass1(1))
            a.waitcnt(lg=0)
            a('s_barrier')
            put_all(mix(prefix(1, 96), wrest, 8))
            put_all(s_scan.groups[s_scan.i:])
            put_all(mix(transpose_groups(0, SEL, ACC[0] + 16, 96), wrest, 6))
            put_all(mix(coef(1, TMP), wrest, o.get('bmix', 6)))
            put_all(lb_issue(1, BUF))
            for _ in range(min(o.get('bcover', 10), len(wrest))):
                put_all(wrest.pop(0))
            lookback_wait(1, BUF, 'L_lbB1')
            put_all(mix(entry_state(1, BUF) + pass2(1, BUF), wrest, o.get('bmix2', 10)))
            final_store = transpose_store(1, SEL, 96, 112)
            tail_loads = wrest

        self.stamp(7)
        put_all(tail_loads[:o.get('tailpre', 10)])
        tail_loads = tail_loads[o.get('tailpre', 10):]
        a.put(WaitVM(final_store))
        self.stamp(8)
        a('v_mov_b32 %s, s%d' % (vr(RING), sTAG))
        a('v_mov_b32 %s, s%d' % (vr(RING + 1), sTAG2))
        a('s_lshl_b32 s90, s%d, 2' % sR)
        a('s_add_u32 s90, s90, s%d' % sW)
        a('s_lshl_b32 s90, s90, 4')
        a('s_add_u32 s90, s90, s%d' % sC16)
        a('s_lshl_b32 s90, s90, 3')
        a('s_add_u32 s90, s90, 0x%x' % FLAG_OFF)
        a('v_mov_b32 %s, 0' % vr(RING + 2))
        a('buffer_store_dwordx2 %s, %s, %s, s90 offen sc1' % (vr(RING, 2), vr(RING + 2), srd(R_WS)))
        put_all(tail_loads)
        if o.get('hback', 0):
            t0, t1, t2 = RING + 4, RING + 5, RING + 6
            a('v_and_b32 %s, 15, v0' % vr(t0))
            a('v_lshlrev_b32 %s, 7, %s' % (vr(t0), vr(t0)))
            a('v_lshrrev_b32 %s, 5, v0' % vr(t1))
            a('v_mul_u32_u24 %s, %d, %s' % (vr(t1), 20 * 4096, vr(t1)))
            a('v_add_u32 %s, %s, %s' % (vr(t1), vr(t1), vr(t0)))
            if not A:
                a('v_bfe_u32 %s, v0, 4, 1' % vr(t2))
                a('v_lshl_add_u32 %s, %s, 12, %s' % (vr(t1), vr(t2), vr(t1)))
            a('s_add_u32 s90, s%d, %d' % (sHS, 48 * 4096))
            a('buffer_load_dword v121, %s, %s, s90 offen sc1' % (vr(t1), srd(R_WS)))
            if A:
                a('v_lshrrev_b32 %s, 4, v0' % vr(t2))
                a('v_lshl_add_u32 %s, %s, 12, %s' % (vr(t0), vr(t2), vr(t0)))
                a('buffer_load_dword v122, %s, %s, s%d offen sc1' % (vr(t0), srd(R_WS), sHF))
        a.waitcnt(lg=0)
        a.settle()

    def poll(self, lbl, voff, soff, tmp):
        a = self.a
        a('s_mov_b32 s91, 0')
        a.drain()
        a.settle()
        a.label(lbl)
        a('buffer_load_dwordx2 %s, %s, %s, s%d offen sc1' % (vr(tmp, 2), vr(voff), srd(R_WS), soff))
        a('s_add_u32 s91, s91, 1')
        a('v_xor_b32 %s, s%d, %s' % (vr(tmp), sTAG, vr(tmp)))
        a('v_xor_b32 %s, s%d, %s' % (vr(tmp + 1), sTAG2, vr(tmp + 1)))
        a('v_or_b32 %s, %s, %s' % (vr(tmp), vr(tmp), vr(tmp + 1)))
        a('v_cmp_ne_u32 vcc, 0, %s' % vr(tmp))
        a('s_cmp_eq_u64 vcc, 0')
        a('s_cbranch_scc1 %s_ok' % lbl)
        a('s_cmp_lt_u32 s91, 0x%x' % self.o.get('spin', 200000))
        a('s_cbranch_scc1 %s' % lbl)
        a.settle()
        a.label(lbl + '_ok')

    def phase2(self):
        a, o, P = self.a, self.o, self.p2
        VL16, VL16B = P.VL16, P.VL16B
        VH, VRW, VRR, VO, VX, VD, VG = 1, 5, 8, 9, 10, 11, 12
        VP, t0, t1, t2 = 96, 98, 120, 13
        VLWR = 99
        ACC = 16
        SK = 100
        KS = P.KS
        HLD = {0: 'sc1', 1: 'sc0 sc1', 2: 'sc1 nt', 3: '', 4: 'nt'}[o.get('hld', 0)]

        def acc(dt, dl):
            return ACC + 4 * (4 * dt + dl)
        early = set(P.early_quads[:5 * P.n_early]) | set(P.early2_quads)
        NE = P.n_early + P.n_early2
        top = 240 if o.get('stamps') else 256
        pool = [x for x in ([('a', r) for r in range(0, top, 4)] + [('v', r) for r in range(124, 256, 4)]) if x not in early]
        wq = dict(P.wq)
        hq = {}
        q = P.q

        def put_groups(gr):
            for g in gr:
                for x in g:
                    a.put(x)
        put_groups(P.tables(late=True))
        a('s_barrier')

        def w_groups(k):
            quads = [pool.pop(0) for dt in range(5)]
            for dt in range(5):
                wq[(k, dt)] = quads[dt]
            return P.w_loads(k, quads)

        def h_groups(k):
            gr = []
            for dl in range(4):
                r = pool.pop(0)
                hq[(k, dl)] = r
                hd = []
                if dl == 0:
                    hd = [Ins('s_lshl_b32 s%d, s%d, 12' % (P.sHk, KS[k])), Ins('s_add_u32 s%d, s%d, s%d' % (P.sHk, P.sHk, P.sHB))]
                gr.append(hd + [Ins('buffer_load_dwordx4 %s, %s, %s, s%d offen %s' % (q(r), vr(VH + dl), srd(R_WS), P.sHk, HLD))])
            return gr

        self.build_srd(R_OUT, S_OUT, 5242880)
        for dl in range(4):
            a('s_add_u32 s90, s%d, %d' % (sW, dl))
            a('s_and_b32 s90, s90, 3')
            a('s_lshl_b32 s91, s90, 10')
            a('v_add_u32 %s, s91, %s' % (vr(VH + dl), vr(VL16)))
            if dl:
                a('s_mul_i32 s91, s90, 15360')
                a('s_add_u32 s91, s91, %d' % ((dl - 1) * 5120))
                a('v_add_u32 %s, s91, %s' % (vr(VRW + dl - 1), vr(VL16)))
        a('s_mul_i32 s91, s%d, 15360' % sW)
        a('v_add_u32 %s, s91, %s' % (vr(VRR), vr(VL16)))
        a('v_and_b32 %s, 15, v0' % vr(t0))
        a('v_lshrrev_b32 %s, 4, v0' % vr(t2))
        a('v_bfe_u32 %s, %s, 2, 1' % (vr(t1), vr(t0)))
        a('v_lshlrev_b32 %s, 4, %s' % (vr(t1), vr(t1)))
        a('v_and_b32 %s, 3, %s' % (vr(VP), vr(t0)))
        a('v_add_u32 %s, %s, %s' % (vr(t1), vr(t1), vr(VP)))
        a('v_lshrrev_b32 %s, 3, %s' % (vr(VP), vr(t0)))
        a('v_lshl_add_u32 %s, %s, 2, %s' % (vr(t1), vr(VP), vr(t1)))
        a('s_lshr_b32 s90, s%d, 1' % sW)
        a('s_lshl_b32 s90, s90, 5')
        a('s_and_b32 s91, s%d, 1' % sW)
        a('s_lshl_b32 s91, s91, 3')
        a('s_add_u32 s90, s90, s91')
        a('v_add_u32 %s, s90, %s' % (vr(t1), vr(t1)))
        a('v_mul_u32_u24 %s, 2560, %s' % (vr(VO), vr(t1)))
        a('v_lshl_add_u32 %s, %s, 4, %s' % (vr(VO), vr(t2), vr(VO)))
        a('v_mul_u32_u24 %s, 1280, %s' % (vr(VX), vr(t1)))
        a('v_lshl_add_u32 %s, %s, 3, %s' % (vr(VX), vr(t2), vr(VX)))
        a('s_mul_i32 s90, s%d, 160' % sC2)
        a('v_lshlrev_b32 %s, 3, %s' % (vr(VD), vr(t2)))
        a('v_add_u32 %s, s90, %s' % (vr(VD), vr(VD)))
        a('s_and_b32 s90, s%d, 1' % sR2)
        a('s_lshl_b32 s90, s90, 6')
        a('v_add_u32 %s, s90, %s' % (vr(VG), vr(t1)))
        a('v_lshlrev_b32 %s, 2, %s' % (vr(VG), vr(VG)))
        a('v_add_u32 %s, %d, %s' % (vr(VG), L_GATE, vr(VG)))
        a('s_mul_i32 s90, s%d, %d' % (sR2, 64 * 1280))
        a('s_mul_i32 s91, s%d, 160' % sC2)
        a('s_add_u32 s90, s90, s91')
        for dt in range(5):
            a('buffer_load_dwordx2 %s, %s, %s, s90 offen offset:%d' % (vr(SK + 2 * dt, 2), vr(VX), srd(R_X), 32 * dt))
            a('global_load_dwordx2 %s, %s, s[%d:%d] offset:%d' % (vr(SK + 10 + 2 * dt, 2), vr(VD), S_DSK, S_DSK + 1, 32 * dt))
        HD = o.get('hdepth', 4)
        WD = min(22, NE + (len(pool) - 4 * o.get('hres', 4)) // 5)
        NL = min(o.get('wlds', 0), 22 - WD)
        L0 = 22 - NL
        assert NL * 5 * 1024 <= 35840
        for k in range(NE, WD):
            put_groups(w_groups(k))
        a('s_lshl_b32 s90, s%d, 2' % sR)
        a('s_and_b32 s95, s%d, 1' % sR2)
        a('s_lshl_b32 s95, s95, 1')
        a('s_add_u32 s90, s90, s95')
        a('s_lshl_b32 s90, s90, 7')
        a('s_add_u32 s95, s90, 0x%x' % FLAG_OFF)
        a('v_and_b32 %s, 31, v0' % vr(t0))
        a('v_lshlrev_b32 %s, 3, %s' % (vr(t0), vr(t0)))
        lds_last = None
        ldsg = []
        if NL:
            a('s_mul_i32 s94, s%d, 35840' % sW)
            a('v_add_u32 %s, s94, %s' % (vr(VLWR), vr(VL16)))
            for k in range(L0, 22):
                for dt in range(5):
                    g = []
                    if dt == 0:
                        g += [Ins('s_mul_i32 s%d, s%d, 5120' % (P.sWk, KS[k])), Ins('s_add_u32 s%d, s%d, s%d' % (P.sWk, P.sWk, P.sWB))]
                    g.append(Ins('s_add_u32 m0, s94, %d' % (((k - L0) * 5 + dt) * 1024)))
                    g.append(Ins('s_add_u32 s%d, s%d, 1024' % (P.sWk, P.sWk)) if dt else Ins('s_nop 0'))
                    lds_last = Ins('buffer_load_dwordx4 %s, %s, s%d offen sc1 lds' % (vr(VL16), srd(R_WS), P.sWk))
                    g.append(lds_last)
                    ldsg.append(g)
        npre = max(0, len(ldsg) - o.get('pollcover', 14))
        put_groups(ldsg[:npre])
        a('buffer_load_dwordx2 %s, %s, %s, s95 offen sc1' % (vr(VP, 2), vr(t0), srd(R_WS)))
        put_groups(ldsg[npre:])
        self.stamp(9)
        a('ds_read_b32 %s, %s' % (vr(VG), vr(VG)))
        def chk():
            a('v_xor_b32 %s, s%d, %s' % (vr(VP), sTAG, vr(VP)))
            a('v_xor_b32 %s, s%d, %s' % (vr(VP + 1), sTAG2, vr(VP + 1)))
            a('v_or_b32 %s, %s, %s' % (vr(VP), vr(VP), vr(VP + 1)))
            a('v_cmp_ne_u32 vcc, 0, %s' % vr(VP))
            a('s_cmp_eq_u64 vcc, 0')
        chk()
        a.settle()
        a('s_cbranch_scc1 L_pfl_ok')
        snap = a.snapshot()
        a('s_mov_b32 s91, 0')
        a.drain()
        a.label('L_pfl')
        a('buffer_load_dwordx2 %s, %s, %s, s95 offen sc1' % (vr(VP, 2), vr(t0), srd(R_WS)))
        a('s_add_u32 s91, s91, 1')
        chk()
        a('s_cbranch_scc1 L_pfl_ok')
        a('s_cmp_lt_u32 s91, 0x%x' % o.get('spin', 200000))
        a('s_cbranch_scc1 L_pfl')
        a.settle()
        a.label('L_pfl_ok')
        a.restore(snap)
        a('s_cmp_lg_u32 s%d, 31' % sR2)
        a('s_cbranch_scc1 L_noep')
        a('s_cmp_lg_u32 s%d, 0' % sC2)
        a('s_cbranch_scc1 L_noep')
        a('v_mov_b32 %s, s%d' % (vr(t1), sTAG))
        a('v_mov_b32 %s, 0x%x' % (vr(t0), EPOCH_OFF))
        a.raw('    buffer_store_dword %s, %s, %s, 0 offen sc1' % (vr(t1), vr(t0), srd(R_WS)))
        a.raw('    s_waitcnt vmcnt(0)')
        a.label('L_noep')
        self.stamp(10)
        self.stamp((2, 4))
        self.stamp((3, 9))
        self.stamp((3, 10), clock=True)
        nh = 0
        while nh < HD:
            put_groups(h_groups(nh))
            nh += 1
        nw = WD

        TS = 96
        skip = []
        for dt in range(5):
            xs, ds = SK + 2 * dt, SK + 10 + 2 * dt
            L = ['v_lshlrev_b32 %s, 16, %s' % (vr(TS), vr(xs)), 'v_lshlrev_b32 %s, 16, %s' % (vr(TS + 1), vr(ds)),
                 'v_and_b32 %s, 0xffff0000, %s' % (vr(xs), vr(xs)), 'v_and_b32 %s, 0xffff0000, %s' % (vr(ds), vr(ds)),
                 'v_mul_f32 %s, %s, %s' % (vr(xs), vr(xs), vr(ds)),
                 'v_mul_f32 %s, %s, %s' % (vr(ds), vr(TS), vr(TS + 1)),
                 'v_lshlrev_b32 %s, 16, %s' % (vr(TS), vr(xs + 1)), 'v_lshlrev_b32 %s, 16, %s' % (vr(TS + 1), vr(ds + 1)),
                 'v_and_b32 %s, 0xffff0000, %s' % (vr(xs + 1), vr(xs + 1)), 'v_and_b32 %s, 0xffff0000, %s' % (vr(ds + 1), vr(ds + 1)),
                 'v_mul_f32 %s, %s, %s' % (vr(xs + 1), vr(xs + 1), vr(ds + 1)),
                 'v_mul_f32 %s, %s, %s' % (vr(ds + 1), vr(TS), vr(TS + 1))]
            skip += [[Ins(x)] for x in L]
        s_skip = Stream(skip, per=1, every=2)

        def skr(dt, r):
            return (SK + 10 + 2 * dt, SK + 2 * dt, SK + 10 + 2 * dt + 1, SK + 2 * dt + 1)[r]

        GAP = o.get('gap', 72)
        HMAX = o.get('hmax', 7)
        st = dict(nh=nh, hj=0, nw=nw, wj=0, t=0)

        def next_load(k):
            can_h = st['nh'] < 22 and st['nh'] <= k + HMAX and pool
            can_w = st['nw'] < 22 and pool
            urgent_w = can_w and st['nw'] <= k + o.get('wlead', 5)
            if can_h and not (urgent_w and st['nw'] <= st['nh']):
                kk, dl = st['nh'], st['hj']
                r = pool.pop(0)
                hq[(kk, dl)] = r
                hd = []
                if dl == 0:
                    hd = [Ins('s_lshl_b32 s%d, s%d, 12' % (P.sHk, KS[kk])), Ins('s_add_u32 s%d, s%d, s%d' % (P.sHk, P.sHk, P.sWB if o.get('fakeH') == 2 else P.sHB))]
                st['hj'] += 1
                if st['hj'] == 4:
                    st['hj'] = 0
                    st['nh'] += 1
                return hd + [Ins('buffer_load_dwordx4 %s, %s, %s, s%d offen %s' % (q(r), vr(VH + dl), srd(R_WS), P.sHB if o.get('fakeH') == 1 else P.sHk, HLD))]
            if can_w:
                kk, dt = st['nw'], st['wj']
                r = pool.pop(0)
                wq[(kk, dt)] = r
                hd = []
                if NL and kk >= L0:
                    st['wj'] += 1
                    if st['wj'] == 5:
                        st['wj'] = 0
                        st['nw'] += 1
                    return ([WaitVM(lds_last)] if (kk == L0 and dt == 0) else []) + [Ins('ds_read_b128 %s, %s offset:%d' % (q(r), vr(VLWR), ((kk - L0) * 5 + dt) * 1024))]
                if dt == 0:
                    hd = [Ins('s_mul_i32 s%d, s%d, 5120' % (P.sWk, KS[kk])), Ins('s_add_u32 s%d, s%d, s%d' % (P.sWk, P.sWk, P.sWB))]
                if dt < 4:
                    ld = Ins('buffer_load_dwordx4 %s, %s, %s, s%d offen offset:%d sc1' % (q(r), vr(VL16), srd(R_WS), P.sWk, dt * 1024))
                else:
                    ld = Ins('buffer_load_dwordx4 %s, %s, %s, s%d offen sc1' % (q(r), vr(VL16B), srd(R_WS), P.sWk))
                st['wj'] += 1
                if st['wj'] == 5:
                    st['wj'] = 0
                    st['nw'] += 1
                return hd + [ld]
            return None

        NT = o.get('tilemajor', 3) if not NL else 0
        for k in range(22 - NT):
            while (st['nh'] <= k) or (st['nw'] <= k):
                g = next_load(k) if st['nh'] <= k else None
                if g is None or st['nh'] > k:
                    save = st['nh']
                    st['nh'] = 22
                    g2 = next_load(k) if g is None else None
                    st['nh'] = save
                    g = g or g2
                assert g is not None
                for x in g:
                    a.put(x)
            n = 0
            for dt in range(5):
                for dl in range(4):
                    c = '0' if k == 0 else vr(acc(dt, dl), 4)
                    a.put(Ins('v_mfma_f32_16x16x32_bf16 %s, %s, %s, %s' % (vr(acc(dt, dl), 4), q(wq[(k, dt)]), q(hq[(k, dl)]), c)))
                    now = (20 * k + n + 1) * 16
                    if NL and L0 <= st['nw'] < 22 and st['nw'] <= k + 2 and n % 4 == 2 and pool:
                        save = st['nh']
                        st['nh'] = 22
                        g = next_load(k)
                        st['nh'] = save
                        for x in g:
                            a.put(x)
                    elif now >= st['t']:
                        savew = st['nw']
                        staged = NL and savew >= L0
                        if staged:
                            st['nw'] = 22
                        g = next_load(k)
                        if staged:
                            st['nw'] = savew
                        if g is not None:
                            for x in g:
                                a.put(x)
                            st['t'] = max(st['t'] + GAP, now)
                    elif k >= o.get('skipk', 10) and n % 2 == 1 and not s_skip.done():
                        for x in s_skip.groups[s_skip.i]:
                            a.put(x)
                        s_skip.i += 1
                    n += 1
            for dt in range(5):
                pool.append(wq[(k, dt)])
            for dl in range(4):
                pool.append(hq[(k, dl)])
            if k in (0, 2, 5, 9, 13, 17):
                self.stamp((2, 5 + (0, 2, 5, 9, 13, 17).index(k)))
        red_done = False
        if NT:
            k0 = 22 - NT
            while st['nh'] < 22 or st['nw'] < 22:
                g = next_load(21)
                assert g is not None
                for x in g:
                    a.put(x)
            while not s_skip.done():
                a.put(s_skip.groups[s_skip.i][0])
                s_skip.i += 1
            order = [(dt, dl) for dl in (1, 2, 3, 0) for dt in range(5)]
            pend = []
            for j, (dt, dl) in enumerate(order):
                for k in range(k0, 22):
                    a.put(Ins('v_mfma_f32_16x16x32_bf16 %s, %s, %s, %s' % (vr(acc(dt, dl), 4), q(wq[(k, dt)]), q(hq[(k, dl)]), vr(acc(dt, dl), 4))))
                if dl:
                    pend.append((dt, dl))
                if len(pend) > 2 or (dl == 0 and pend):
                    pdt, pdl = pend.pop(0)
                    a('ds_write_b128 %s, %s offset:%d' % (vr(VRW + pdl - 1), vr(acc(pdt, pdl), 4), pdt * 1024))
            for pdt, pdl in pend:
                a('ds_write_b128 %s, %s offset:%d' % (vr(VRW + pdl - 1), vr(acc(pdt, pdl), 4), pdt * 1024))
            red_done = True
        assert st['nh'] == 22 and st['nw'] == 22
        while not s_skip.done():
            a.put(s_skip.groups[s_skip.i][0])
            s_skip.i += 1
        self.stamp(11)
        self.stamp((2, 11))
        self.stamp((3, 11))
        self.stamp((3, 8), clock=True)
        if NL:
            a.waitcnt(lg=0)
            a('s_barrier')
        for dl in range(1, 4):
            for dt in range(5):
                if not red_done:
                    a('ds_write_b128 %s, %s offset:%d' % (vr(VRW + dl - 1), vr(acc(dt, dl), 4), dt * 1024))
        for dt in range(5):
            for r in range(4):
                a('v_fmac_f32 %s, %s, %s' % (vr(acc(dt, 0) + r), vr(VG), vr(skr(dt, r))))
        a('s_mul_i32 s90, s%d, %d' % (sR2, 64 * 2560))
        a('s_mul_i32 s91, s%d, 320' % sC2)
        a('s_add_u32 s90, s90, s91')
        a.waitcnt(lg=0)
        a('s_barrier')
        RB = 128
        for dt in range(5):
            for sl in range(3):
                a('ds_read_b128 %s, %s offset:%d' % (vr(RB + 4 * (3 * dt + sl), 4), vr(VRR), (sl * 5 + dt) * 1024))
        for dt in range(5):
            b = RB + 12 * dt
            for r in range(4):
                a('v_add_f32 %s, %s, %s' % (vr(b + r), vr(b + r), vr(b + 4 + r)))
            for r in range(4):
                a('v_add_f32 %s, %s, %s' % (vr(acc(dt, 0) + r), vr(acc(dt, 0) + r), vr(b + 8 + r)))
            for r in range(4):
                a('v_add_f32 %s, %s, %s' % (vr(acc(dt, 0) + r), vr(acc(dt, 0) + r), vr(b + r)))
            a('buffer_store_dwordx4 %s, %s, %s, s90 offen offset:%d %s' % (vr(acc(dt, 0), 4), vr(VO), srd(R_OUT), 64 * dt, {0: '', 1: 'sc1', 2: 'nt', 3: 'sc0 sc1'}[o.get('outmode', 0)]))

    def weave2(self, main, loads, every, extra):
        a = self.a
        for n, it in enumerate(main):
            a.put(it)
            if n % every == 0 and loads:
                for x in loads.pop(0):
                    a.put(x)
            elif extra is not None and n % 2 == 1 and not extra.done():
                for x in extra.groups[extra.i]:
                    a.put(x)
                extra.i += 1

    def kernel(self):
        a = self.a
        self.prologue()
        a('s_cmp_ge_u32 s%d, 6' % sCC)
        a.settle()
        a('s_cbranch_scc1 L_typeB')
        snap = a.snapshot()
        self.phase1('A')
        a('s_branch L_phase2')
        a.label('L_typeB')
        a.restore(snap)
        self.phase1('B')
        a.label('L_phase2')
        self.phase2()
        self.dump_stamps()
        a.label('L_exit')
        a('s_endpgm')
        head = open('gated_mix__ssm_conv_s5__dense_activation_relu__prompt.s.ref').read().split('\n')
        hdr = [ln for ln in head if ln.startswith(';') and '@launch' not in ln and 'Override' not in ln and 'grid=ceil' not in ln]
        out = '\n'.join(hdr) + '\n'
        out += '''; One persistent launch, 256 workgroups (one per CU) x 4 waves, two phases joined by tagged hand-offs in d_ws.
'''
        out += '; @launch grid=(256,1,1) block=(256,1,1) lds=%d\n' % LDS_BYTES
        out += '.amdgcn_target "amdgcn-amd-amdhsa--gfx950"\n.text\n.globl %s\n.p2align 8\n.type %s,@function\n%s:\n' % (KNAME, KNAME, KNAME)
        out += a.text()
        out += '''.section .rodata,"a"
.p2align 6
.amdhsa_kernel %s
  .amdhsa_next_free_vgpr 512
  .amdhsa_next_free_sgpr 102
  .amdhsa_accum_offset 256
  .amdhsa_group_segment_fixed_size 0
  .amdhsa_kernarg_size 128
  .amdhsa_user_sgpr_count 2
  .amdhsa_user_sgpr_kernarg_segment_ptr 1
  .amdhsa_system_sgpr_workgroup_id_x 1
  .amdhsa_float_denorm_mode_32 3
.end_amdhsa_kernel
''' % KNAME
        return out


if __name__ == '__main__':
    opts = {}
    for arg in sys.argv[2:]:
        k, v = arg.split('=')
        opts[k] = int(v, 0)
    g = Gen(opts)
    txt = g.kernel()
    open(sys.argv[1], 'w').write(txt)
    print('instructions', g.a.n_ins, g.a.stats, 'nop states', g.a.nop_states, 'bytes of text', len(txt))
```
